```python
import torch

def _softmax(x, axis=-1):
    return torch.softmax(x, dim=axis)

def _gelu(x):
    return torch.nn.functional.gelu(x, approximate='tanh')

def _silu(x):
    return torch.nn.functional.silu(x)

def _sigmoid(x):
    return torch.sigmoid(x)

def _layernorm(x, axis=-1, eps=1e-05):
    m = x.mean(dim=axis, keepdim=True)
    v = x.var(dim=axis, keepdim=True, unbiased=False)
    return (x - m) / torch.sqrt(v + eps)

def _scatter_add(tgt, idx, src, axis=0):
    return tgt.clone().index_add_(axis, idx, src)

def _segment_sum(src, seg, n):
    out = torch.zeros((n,) + src.shape[1:], dtype=src.dtype)
    return out.index_add_(0, seg, src)

def _pad(x, pw):
    flat = tuple((v for pair in reversed(pw) for v in pair))
    return torch.nn.functional.pad(x, flat)
kernel_name = 'adaLN_cond__memory_aug_recurrent_mem_tr__dense_activation_gelu__prompt'

def setup_inputs():

    _w = lambda a: (lambda t: t.to(torch.bfloat16) if t.is_floating_point() else t)(torch.as_tensor(a))

    def _A_setup():
        B, S, Dm = (1, 2048, 512)
        H, Dh = (32, 128)
        M, seg = (8, 32)
        seg = min(seg, S)
        S = S // seg * seg
        return {'x': _w((lambda *s: torch.randn(*s, dtype=torch.bfloat16) * 0.05)(B, S, Dm)), 'mem0': _w((lambda *s: torch.randn(*s, dtype=torch.bfloat16) * 0.8)(B, M, Dm)), 'Wq': _w((lambda *s: torch.randn(*s, dtype=torch.bfloat16) * 1.6)(Dm, H, Dh) * Dm ** (-0.5)), 'Wk': _w((lambda *s: torch.randn(*s, dtype=torch.bfloat16) * 1.6)(Dm, H, Dh) * Dm ** (-0.5)), 'Wv': _w((lambda *s: torch.randn(*s, dtype=torch.bfloat16) * 0.8)(Dm, H, Dh) * Dm ** (-0.5)), 'Wo': _w((lambda *s: torch.randn(*s, dtype=torch.bfloat16) * 0.8)(H, Dh, Dm) * (H * Dh) ** (-0.5)), 'seg_len': seg}
    _A_in = _A_setup()

    def _B_setup():
        B, S, D, F = (1, 2048, 512, 1376)
        return {'x': _w((lambda *s: torch.randn(*s, dtype=torch.bfloat16) * 0.05)(B, S, D)), 'w1': _w((lambda *s: torch.randn(*s, dtype=torch.bfloat16) * 1.6)(D, F) * D ** (-0.5)), 'b1': _w((lambda *s: torch.randn(*s, dtype=torch.bfloat16) * 1.6)(F) * 0.01), 'w2': _w((lambda *s: torch.randn(*s, dtype=torch.bfloat16) * 0.2)(F, D) * F ** (-0.5)), 'b2': _w((lambda *s: torch.randn(*s, dtype=torch.bfloat16) * 0.2)(D) * 0.01)}
    _B_in = _B_setup()
    return {'A_x': _A_in['x'], 'A_mem0': _A_in['mem0'], 'A_Wq': _A_in['Wq'], 'A_Wk': _A_in['Wk'], 'A_Wv': _A_in['Wv'], 'A_Wo': _A_in['Wo'], 'A_seg_len': _A_in['seg_len'], 'B_x': _B_in['x'], 'B_w1': _B_in['w1'], 'B_b1': _B_in['b1'], 'B_w2': _B_in['w2'], 'B_b2': _B_in['b2'], 'c': _w((lambda *s: torch.randn(*s, dtype=torch.bfloat16) * 0.05)(1, 512) * 8.0), 'w_mod': _w((lambda *s: torch.randn(*s, dtype=torch.bfloat16) * 0.05)(512, 6 * 512) * 512 ** (-0.5) * 8.0)}

def reference(A_x, A_mem0, A_Wq, A_Wk, A_Wv, A_Wo, A_seg_len, B_x, B_w1, B_b1, B_w2, B_b2, c, w_mod):

    def _A_ref(x, mem0, Wq, Wk, Wv, Wo, seg_len):
        B, S, Dm = x.shape
        H, Dh = (Wq.shape[1], Wq.shape[2])
        M = mem0.shape[1]
        scale = Dh ** (-0.5)
        n_seg = S // seg_len
        L = M + seg_len
        idx = torch.arange(L)
        mask = (idx[:, None] < M) | (idx[:, None] >= idx[None, :])
        mem = mem0
        outs = []
        for s in range(n_seg):
            xs = x[:, s * seg_len:(s + 1) * seg_len, :].clone()
            h = torch.concatenate([mem, xs], axis=1)
            q = torch.einsum('btd,dhe->bhte', h, Wq)
            k = torch.einsum('btd,dhe->bhte', h, Wk)
            v = torch.einsum('btd,dhe->bhte', h, Wv)
            scores = torch.einsum('bhqe,bhke->bhqk', q, k) * scale
            scores = torch.where(mask[None, None], scores, -1000000000.0)
            p = _softmax(scores, axis=-1)
            o = torch.einsum('bhqk,bhke->bhqe', p, v)
            o = torch.einsum('bhte,hed->btd', o, Wo)
            mem = o[:, :M, :].clone()
            outs.append(o[:, M:, :])
        return torch.concatenate(outs, axis=1)

    def _B_ref(x, w1, b1, w2, b2):
        h = torch.einsum('bsd,df->bsf', x, w1) + b1
        h = _gelu(h)
        return torch.einsum('bsf,fd->bsd', h, w2) + b2
    x = A_x
    mod = (_silu(c) @ w_mod).reshape(c.shape[0], 6, 1, -1)
    sa, ca, ga, sb, cb, gb = (mod[:, 0].clone(), mod[:, 1].clone(), mod[:, 2].clone(), mod[:, 3].clone(), mod[:, 4].clone(), mod[:, 5].clone())
    h = _layernorm(x, axis=-1) * (1 + ca) + sa
    x = x + ga * _A_ref(h, A_mem0, A_Wq, A_Wk, A_Wv, A_Wo, A_seg_len)
    h = _layernorm(x, axis=-1) * (1 + cb) + sb
    x = x + gb * _B_ref(h, B_w1, B_b1, B_w2, B_b2)
    return x
```

```python
import re

REG_RE = re.compile(r'(?<![\w.])([vas])(\d+)(?![\w\[])|(?<![\w.])([vas])\[(\d+):(\d+)\]')

def regs_of(tok):
    out = []
    for m in REG_RE.finditer(tok):
        if m.group(1):
            out.append((m.group(1), int(m.group(2))))
        else:
            for i in range(int(m.group(4)), int(m.group(5)) + 1):
                out.append((m.group(3), i))
    if re.search(r'\bvcc\b', tok): out += [('s', 'vcc')]
    if re.search(r'\bvcc_lo\b|\bvcc_hi\b', tok): out += [('s', 'vcc')]
    if re.search(r'\bexec\b|\bexec_lo\b|\bexec_hi\b', tok): out += [('s', 'exec')]
    if re.search(r'\bm0\b', tok): out += [('s', 'm0')]
    return out

TRANS = ('v_exp_f32', 'v_log_f32', 'v_rcp_f32', 'v_rsq_f32', 'v_sqrt_f32', 'v_sin_f32', 'v_cos_f32')

def mfma_passes(op):
    if '32x32x16' in op or '32x32x8' in op or 'smfmac_f32_32x32' in op: return 8
    if '16x16x4_f32' in op: return 8
    if '32x32x2_f32' in op: return 16
    if '16x16' in op: return 4
    raise ValueError(op)

class Ins:
    __slots__ = ('text', 'op', 'ops', 'cls', 'dst', 'src', 'srcC', 'ws', 'passes', 'dpp')
    def __init__(self, text):
        self.text = text
        t = text.split(';')[0].strip()
        self.op = None; self.cls = 'none'; self.dst = []; self.src = []; self.srcC = []; self.ws = 1; self.passes = 0; self.dpp = False
        if not t or t.endswith(':') or t.startswith('.'):
            self.ws = 0; self.cls = 'label' if t.endswith(':') else 'none'
            return
        parts = t.split(None, 1)
        op = parts[0]; self.op = op
        rest = parts[1] if len(parts) > 1 else ''
        ops = [o.strip() for o in re.split(r',(?![^\[]*\])', rest)]
        self.ops = ops
        R = regs_of
        if op == 's_nop':
            self.cls = 'nop'; self.ws = int(ops[0], 0) + 1
        elif op.startswith('v_mfma') or op.startswith('v_smfmac'):
            self.cls = 'mfma'; self.passes = mfma_passes(op)
            self.dst = R(ops[0])
            if op.startswith('v_smfmac'):
                self.src = R(ops[1]) + R(ops[2]) + R(ops[3].split()[0]); self.srcC = R(ops[0])
            else:
                self.src = R(ops[1]) + R(ops[2]); self.srcC = R(ops[3].split()[0])
        elif op.startswith('v_cmp'):
            self.cls = 'valu'; self.dst = R(ops[0]); self.src = sum((R(o) for o in ops[1:]), [])
            if op.startswith('v_cmpx'): self.dst += [('s', 'exec')]
        elif op.startswith('v_readfirstlane') or op.startswith('v_readlane'):
            self.cls = 'readlane'; self.dst = R(ops[0]); self.src = sum((R(o) for o in ops[1:]), [])
        elif op.startswith('v_permlane'):
            self.cls = 'permlane'; self.dst = R(ops[0]) + R(ops[1]); self.src = R(ops[0]) + R(ops[1])
        elif op.startswith('v_'):
            self.cls = 'trans' if op.replace('_e32', '').replace('_e64', '') in TRANS else 'valu'
            self.dst = R(ops[0]); self.src = sum((R(o) for o in ops[1:]), [])
            if 'dpp' in op or 'row_' in rest or 'quad_perm' in rest: self.dpp = True
            if op.startswith('v_fmac') or op.startswith('v_pk_fmac') or op.startswith('v_dot2c'): self.src += self.dst
            if op.startswith('v_add_co') or op.startswith('v_addc_co') or op.startswith('v_sub_co') or op.startswith('v_subb_co'):
                self.dst = R(ops[0]) + R(ops[1]); self.src = sum((R(o) for o in ops[2:]), [])
            if op.startswith('v_cndmask') and len(ops) == 3: self.src += [('s', 'vcc')]
        elif op.startswith('ds_read') or op.startswith('ds_bpermute') or op.startswith('ds_swizzle'):
            self.cls = 'dsread'; self.dst = R(ops[0]); self.src = sum((R(o) for o in ops[1:]), [])
        elif op.startswith('ds_'):
            self.cls = 'dswrite'; self.src = sum((R(o) for o in ops), [])
        elif op.startswith('global_load_lds') or (op.startswith('buffer_load') and re.search(r'\blds\b', rest)):
            self.cls = 'ldsdma'; self.src = sum((R(o) for o in ops), []) + [('s', 'm0')]
        elif op.startswith('global_load') or op.startswith('buffer_load'):
            self.cls = 'vload'; self.dst = R(ops[0]); self.src = sum((R(o) for o in ops[1:]), [])
        elif op.startswith('global_store'):
            self.cls = 'vstore'; self.src = sum((R(o) for o in ops), []); self.srcC = R(ops[1])
        elif op.startswith('buffer_store'):
            self.cls = 'vstore'; self.src = sum((R(o) for o in ops), []); self.srcC = R(ops[0])
        elif op.startswith('global_atomic') or op.startswith('buffer_atomic'):
            self.cls = 'vatomic'; self.src = sum((R(o) for o in ops), [])
            if 'sc0' in rest: self.dst = R(ops[0])
        elif op.startswith('buffer_'):
            self.cls = 'vmisc'
        elif op.startswith('s_'):
            self.cls = 'salu'
            nodst = ('s_cmp', 's_cbranch', 's_branch', 's_waitcnt', 's_barrier', 's_endpgm', 's_sleep', 's_setprio', 's_bitcmp', 's_setreg', 's_nop')
            if not op.startswith(nodst):
                self.dst = R(ops[0]); self.src = sum((R(o) for o in ops[1:]), [])
            else:
                self.src = sum((R(o) for o in ops), [])
            if 'saveexec' in op: self.dst += [('s', 'exec')]
        else:
            raise ValueError('unknown instr: ' + text)

def norm(r, accum_offset):
    if r[0] == 'a': return ('v', accum_offset + r[1])
    return r

class Prog:
    def __init__(self, accum_offset=256):
        self.L = []
        self.accum = accum_offset
        self.uid = 0
    def __call__(self, s, *a):
        for line in s.split('\n'):
            self.L.append(line)
    def label(self, n): self.L.append(n + ':')
    def newlabel(self, p='L'):
        self.uid += 1
        return f'{p}_{self.uid}'
    def nop(self, n):
        while n > 0:
            k = min(n, 16); self.L.append(f's_nop {k-1}'); n -= k

    def finalize(self, verbose=False):
        out = []
        INF = 10**9
        t = 0
        valu_w = {}
        trans_w = {}
        mfma_w = {}
        mfma_c = {}
        valu_sw = {}
        st_data = {}
        m0_w = -INF
        exec_valu = -INF
        npad = 0
        for line in self.L:
            ins = Ins(line)
            if ins.ws == 0:
                out.append(line); continue
            N = lambda rs: [norm(r, self.accum) for r in rs]
            src = N(ins.src); dst = N(ins.dst); srcC = N(ins.srcC)
            need = 0
            def req(last, gap):
                nonlocal need
                d = t - last - 1
                if d < gap: need = max(need, gap - d)
            c = ins.cls
            isvalu = c in ('valu', 'trans', 'permlane', 'readlane')
            if c == 'mfma':
                for r in src + srcC:
                    if r in valu_w: req(valu_w[r], 2)
                for r in src:
                    if r in mfma_w: req(mfma_w[r][0], {4: 8, 8: 12, 16: 20}[mfma_w[r][1]])
                dset = tuple(dst)
                for r in srcC:
                    if r in mfma_w:
                        tm, ps, ds = mfma_w[r]
                        if ds == tuple(srcC) and ps == ins.passes: pass
                        else: req(tm, {4: 6, 8: 10, 16: 18}[ps])
                req(exec_valu, 4)
            if isvalu or c in ('vload', 'vstore', 'dsread', 'dswrite', 'ldsdma', 'vatomic'):
                for r in src + dst + (srcC if c == 'vstore' else []):
                    if r in mfma_w: req(mfma_w[r][0], {4: 8, 8: 12, 16: 20}[mfma_w[r][1]])
            if isvalu:
                for r in dst:
                    if r in mfma_c: req(mfma_c[r][0], {4: 3, 8: 7, 16: 15}[mfma_c[r][1]])
                    if r in st_data: req(st_data[r], 2)
                for r in src:
                    if r in trans_w and c != 'trans': req(trans_w[r], 1)
                    if r[0] == 's' and r in valu_sw: req(valu_sw[r], 4 if c == 'readlane' and False else 2)
            if c in ('vload', 'dsread'):
                for r in dst:
                    if r in st_data: req(st_data[r], 1)
                    if r in mfma_c: req(mfma_c[r][0], {4: 3, 8: 7, 16: 15}[mfma_c[r][1]])
            if c == 'permlane' or ins.dpp:
                for r in src:
                    if r in valu_w: req(valu_w[r], 2)
                if ins.dpp: req(exec_valu, 5)
                else: req(exec_valu, 4)
            if c == 'readlane':
                for r in src:
                    if r in valu_w: req(valu_w[r], 1)
                req(exec_valu, 4)
            if c in ('vload', 'vstore', 'ldsdma', 'vatomic'):
                for r in src:
                    if r[0] == 's' and r in valu_sw: req(valu_sw[r], 5)
            if c == 'ldsdma': req(m0_w, 1)
            if c == 'salu':
                for r in src:
                    if r in valu_sw and r[1] != 'vcc': req(valu_sw[r], 1)
            if need > 0:
                npad += need
                k = need
                while k > 0:
                    kk = min(k, 16); out.append(f's_nop {kk-1}'); k -= kk
                t += need
            out.append(line)
            if isvalu:
                for r in dst:
                    if r[0] == 'v':
                        valu_w[r] = t
                        mfma_w.pop(r, None)
                        if c == 'trans': trans_w[r] = t
                        else: trans_w.pop(r, None)
                    else:
                        valu_sw[r] = t
                        if r[1] == 'exec': exec_valu = t
            if c == 'mfma':
                for r in dst: mfma_w[r] = (t, ins.passes, tuple(dst)); valu_w.pop(r, None)
                for r in srcC: mfma_c[r] = (t, ins.passes)
            if c in ('vload', 'dsread'):
                for r in dst: valu_w.pop(r, None); mfma_w.pop(r, None)
            if c == 'vstore' and len(srcC) >= 3:
                for r in srcC: st_data[r] = t
            if c == 'dswrite':
                pass
            if c == 'salu':
                for r in dst:
                    if r == ('s', 'm0'): m0_w = t
                    valu_sw.pop(r, None)
            t += ins.ws
        if verbose: print('hazard pads inserted:', npad)
        return '\n'.join(out)

def kernel_text(kernels, launches, header_comment=''):
    s = header_comment
    for l in launches: s += l + '\n'
    s += '.amdgcn_target "amdgcn-amd-amdhsa--gfx950"\n.text\n'
    for (name, body, vgpr, sgpr, accum) in kernels:
        s += f'.globl {name}\n.p2align 8\n.type {name},@function\n{name}:\n{body}\ns_endpgm\n'
    s += '.section .rodata,"a"\n'
    for (name, body, vgpr, sgpr, accum) in kernels:
        s += f""".p2align 6
.amdhsa_kernel {name}
  .amdhsa_next_free_vgpr {vgpr}
  .amdhsa_next_free_sgpr {sgpr}
  .amdhsa_accum_offset {accum}
  .amdhsa_group_segment_fixed_size 0
  .amdhsa_kernarg_size 136
  .amdhsa_user_sgpr_count 2
  .amdhsa_user_sgpr_kernarg_segment_ptr 1
  .amdhsa_system_sgpr_workgroup_id_x 1
.end_amdhsa_kernel
"""
    return s
```

```python
from common import *
import struct
L_STG = 0; L_QB = 8192; L_OB = 8192; L_KX = 10752; L_VX = 18944; L_KB = 27136; L_WO = 30208
OSTR = 288

vWoB = 1
vIDX, vL16, vAG, vWoA, vQW, vQR, vOW, vPst, vRS, vMst, vOR = range(2, 13)
vSEL = 16
vONE = 20
vHALF = 14
T0r, T1r = 0, 13
M = 24; Q = 56; K = 72; AQ = 88; AK = 96; SX = 104; SM = 112; OX = 116; LX = 124
WV = 128

SC_C = 0.08838834764831845 * 1.4426950408889634

sS = 12
sC = 14
sPst = 16
sPrd = 24
sMb = 26; sMc = 28; sKX = 30; sVX = 32
sMMSK = 40
sODD = 42
sFAIL = 44; sCNT = 45; sLO = 46
sHIST = 48
sPz = 50
sMz = 52
sMn = 54
sHn = 56
sM0K = 58
sM0V = 59
sNAG = 60
sNRS = 61
sST = 64
sEXC = 62
sEK = 92
sEV = 94
sKVC = 98

class Chain:
    def __init__(self, A, U, stamps=False, hist=False, nsteps=63, nv1=10, rs_wait=None, ag_delay=1, p_layout=1, rs_delay=2, masked=False, wo_spread=True, nohist=False, dump=None, rs_sets=2, rs_gap=2, ag_sets=2, ag_gap=2, late_reset=True, ag_reset=True, kvwait=True):
        self.U = U; self.exports = True; self.ag_reset = ag_reset; self.kvwait = kvwait
        self.rs_sets = rs_sets; self.rs_gap = rs_gap; self.ag_sets = ag_sets; self.ag_gap = ag_gap; self.late_reset = late_reset
        hist = hist and not nohist
        self.p_layout = p_layout; self.rs_delay = rs_delay; self.masked = masked; self.wo_spread = wo_spread
        self.nv1 = nv1; self.rs_wait = rs_wait; self.ag_delay = ag_delay
        self.A = A; self.stamps = stamps; self.hist = hist; self.nsteps = nsteps

    def stamp(self, i):
        if not self.stamps: return
        A = self.A
        A(f"s_memtime s[{sST+2*i}:{sST+2*i+1}]")

    def setup_consts(self):
        A = self.A; l = "v0"
        A(f"v_lshlrev_b32 {r(vL16)}, 4, {l}")
        A(f"s_lshl_b32 s34, s{sW}, 11"); A(f"v_add_u32 {r(vAG)}, s34, {r(vL16)}")
        A(f"s_lshl_b32 s34, s{sW}, 14"); A(f"s_add_u32 s34, s34, {L_WO}"); A(f"v_add_u32 {r(vWoA)}, s34, {r(vL16)}")
        A(f"v_add_u32 {r(vWoB)}, 0x10000, {r(vWoA)}")
        A(f"v_and_b32 v24, 15, {l}")
        A(f"v_lshrrev_b32 v25, 4, {l}")
        A(f"v_mov_b32 {r(vIDX)}, 0x4444"); A("v_mov_b32 v26, 0xeeee")
        A("v_cmp_le_u32 vcc, 8, v24")
        A(f"v_cndmask_b32 {r(vIDX)}, {r(vIDX)}, v26, vcc")
        A(f"v_lshrrev_b32 v26, 1, v25"); A("v_lshlrev_b32 v26, 8, v26")
        A("v_lshlrev_b32 v27, 4, v24"); A("v_add_u32 v26, v26, v27")
        A("v_and_b32 v27, 1, v25"); A("v_lshlrev_b32 v27, 3, v27"); A("v_add_u32 v26, v26, v27")
        A(f"s_lshl_b32 s34, s{sW}, 9"); A(f"v_add_u32 {r(vQW)}, s34, v26")
        A(f"v_lshrrev_b32 v26, 2, {l}"); A("v_lshlrev_b32 v26, 4, v26")
        A(f"v_and_b32 v27, 1, {l}"); A("v_lshlrev_b32 v27, 3, v27"); A(f"v_add_u32 {r(vQR)}, v26, v27")
        A("v_and_b32 v26, 7, v24"); A(f"v_mul_u32_u24 v26, {OSTR}, v26"); A(f"v_add_u32 {r(vOR)}, {L_OB}, v26")
        A("v_lshlrev_b32 v27, 3, v25"); A(f"v_add_u32 {r(vOW)}, {r(vOR)}, v27")
        A(f"s_lshl_b32 s34, s{sW}, 6"); A(f"v_add_u32 {r(vOW)}, s34, {r(vOW)}")
        A("v_lshlrev_b32 v27, 4, v25"); A(f"v_add_u32 {r(vOR)}, {r(vOR)}, v27")
        if self.p_layout == 0:
            A(f"v_lshrrev_b32 v26, 5, {l}"); A("v_lshlrev_b32 v26, 13, v26")
            A("v_and_b32 v27, 1, v25"); A("v_lshlrev_b32 v27, 7, v27"); A("v_add_u32 v26, v26, v27")
            A("v_lshlrev_b32 v27, 3, v24"); A("v_add_u32 v26, v26, v27")
            A(f"s_lshl_b32 s34, s{sW}, 16"); A(f"s_lshl_b32 s35, s{sH}, 8"); A("s_add_u32 s34, s34, s35")
            A(f"v_add_u32 {r(vPst)}, s34, v26")
            A("v_lshlrev_b32 v26, 8, v25"); A("v_lshlrev_b32 v27, 2, v24"); A("v_add_u32 v26, v26, v27")
            A(f"s_lshl_b32 s34, s{sH}, 13"); A(f"s_lshl_b32 s35, s{sW}, 6"); A("s_add_u32 s34, s34, s35"); A("s_add_u32 s34, s34, 4096")
            A(f"v_add_u32 {r(vRS)}, s34, v26")
        else:
            A(f"v_lshrrev_b32 v26, 5, {l}"); A("v_lshlrev_b32 v26, 13, v26")
            A("v_and_b32 v27, 1, v25"); A("v_lshlrev_b32 v27, 12, v27"); A("v_add_u32 v26, v26, v27")
            A("v_lshrrev_b32 v27, 3, v24"); A("v_lshlrev_b32 v27, 11, v27"); A("v_add_u32 v26, v26, v27")
            A("v_and_b32 v27, 7, v24"); A("v_lshlrev_b32 v27, 3, v27"); A("v_add_u32 v26, v26, v27")
            A(f"s_lshl_b32 s34, s{sW}, 16"); A(f"s_lshl_b32 s35, s{sH}, 6"); A("s_add_u32 s34, s34, s35")
            A(f"v_add_u32 {r(vPst)}, s34, v26")
            A("v_lshlrev_b32 v26, 6, v25"); A("v_lshlrev_b32 v27, 2, v24"); A("v_add_u32 v26, v26, v27")
            A(f"s_lshl_b32 s34, s{sH}, 13"); A(f"s_lshl_b32 s35, s{sW}, 11"); A("s_add_u32 s34, s34, s35")
            A(f"v_add_u32 {r(vRS)}, s34, v26")
        A("v_lshrrev_b32 v26, 2, v24"); A(f"s_and_b32 s34, s{sW}, 1"); A("s_lshl_b32 s34, s34, 2"); A("v_add_u32 v26, s34, v26")
        A("v_and_b32 v27, 1, v24"); A("v_lshlrev_b32 v27, 1, v27"); A("v_and_b32 v28, 1, v25"); A("v_add_u32 v27, v27, v28")
        A(f"s_lshr_b32 s34, s{sW}, 1"); A("s_lshl_b32 s34, s34, 2"); A("v_add_u32 v27, s34, v27")
        A("v_and_b32 v28, 1, v26"); A("v_lshlrev_b32 v28, 3, v28"); A("v_add_u32 v28, v28, v27"); A("v_lshlrev_b32 v28, 4, v28")
        A("v_lshrrev_b32 v29, 1, v26"); A("v_lshlrev_b32 v29, 2, v29"); A("v_add_u32 v28, v28, v29")
        A(f"s_lshl_b32 s34, s{sH}, 8"); A(f"v_add_u32 {r(vMst)}, s34, v28")
        A("v_lshlrev_b32 v27, 10, v27"); A("v_lshlrev_b32 v26, 2, v26"); A("v_add_u32 v27, v27, v26")
        A(f"s_lshl_b32 s34, s{sH}, 5"); A("v_add_u32 v127, s34, v27")
        A("v_and_b32 v26, 1, v24"); A("v_mov_b32 v27, 0x3f80"); A("v_mov_b32 v28, 0x3f800000")
        A("v_cmp_eq_u32 vcc, 1, v26"); A(f"v_cndmask_b32 {r(vSEL)}, v27, v28, vcc")
        for i in range(1, 4): A(f"v_mov_b32 {r(vSEL+i)}, {r(vSEL)}")
        for i in range(4): A(f"v_mov_b32 {r(vONE+i)}, 0x3f803f80")
        A("v_cmp_gt_u32 vcc, 2, v25"); A(f"v_cndmask_b32 {r(vHALF)}, 0, {r(vONE)}, vcc"); A(f"v_mov_b32 {r(vHALF+1)}, {r(vHALF)}")
        A(f"s_mov_b32 s{sMMSK}, 0x33333333"); A(f"s_mov_b32 s{sMMSK+1}, 0")
        A(f"s_mov_b32 s{sODD}, 0xffff0000"); A(f"s_mov_b32 s{sODD+1}, 0xffff0000")
        A(f"s_mov_b32 s{sC}, {fbits(SC_C):#x}"); A(f"s_mov_b32 s{sC+1}, {fbits(SC_C):#x}")
        A(f"s_add_u32 s{sMb}, s{sWS}, {WS_MBUF}"); A(f"s_addc_u32 s{sMb+1}, s{sWS+1}, 0")
        A(f"s_add_u32 s{sHIST}, s{sWS}, {WS_MHIST}"); A(f"s_addc_u32 s{sHIST+1}, s{sWS+1}, 0")
        A(f"s_lshl_b32 s34, s{sH}, 13")
        A(f"s_add_u32 s{sKX}, s{sWS}, s34"); A(f"s_addc_u32 s{sKX+1}, s{sWS+1}, 0")
        A(f"s_add_u32 s{sVX}, s{sKX}, {WS_VX}"); A(f"s_addc_u32 s{sVX+1}, s{sKX+1}, 0")
        A(f"s_add_u32 s{sKX}, s{sKX}, {WS_KX}"); A(f"s_addc_u32 s{sKX+1}, s{sKX+1}, 0")

    def clear_slots(self):
        A = self.A
        for i in range(4): A(f"v_mov_b32 v{28+i}, -1")
        for par in range(2):
            A(f"s_lshl_b32 s34, s{sH}, 13"); A(f"s_add_u32 s34, s34, {WS_PBUF + par*0x40000}")
            A(f"s_add_u32 s36, s{sWS}, s34"); A(f"s_addc_u32 s37, s{sWS+1}, 0")
            A(f"global_store_dwordx4 {r(vAG)}, v[28:31], s[36:37]"); A(f"global_store_dwordx4 {r(vAG)}, v[28:31], s[36:37] offset:1024")
        A(f"s_mov_b64 exec, {sp(sMMSK)}")
        for i in range(4):
            A(f"s_add_u32 s36, s{sMb}, {i*8192}"); A(f"s_addc_u32 s37, s{sMb+1}, 0")
            A(f"global_store_dword {r(vMst)}, v28, s[36:37]")
        A("s_mov_b64 exec, -1")

    def load_weights(self):
        A = self.A; l = "v0"
        A("s_load_dwordx4 s[56:59], s[0:1], 16"); A("s_load_dwordx4 s[60:63], s[0:1], 32")
        A(f"v_lshrrev_b32 v24, 4, {l}")
        A(f"v_and_b32 v25, 15, {l}"); A("v_lshlrev_b32 v26, 1, v24"); A("v_xor_b32 v25, v25, v26"); A("v_lshlrev_b32 v25, 4, v25")
        A("v_lshlrev_b32 v24, 13, v24"); A("v_add_u32 v24, v24, v25")
        A(f"s_lshl_b32 s34, s{sW}, 17"); A(f"s_lshl_b32 s35, s{sH}, 8"); A("s_add_u32 s34, s34, s35")
        A("v_add_u32 v24, s34, v24"); A("v_xor_b32 v25, 128, v24")
        A(f"v_lshrrev_b32 v26, 4, {l}"); A(f"v_bfe_u32 v27, {l}, 2, 2"); A(f"v_and_b32 v28, 3, {l}")
        A("v_lshlrev_b32 v29, 3, v26"); A("v_add_u32 v29, v29, v27"); A("v_lshlrev_b32 v29, 8, v29")
        A("v_lshrrev_b32 v30, 1, v28")
        A("v_lshlrev_b32 v31, 1, v27"); A("v_and_b32 v32, 1, v26"); A("v_lshlrev_b32 v32, 3, v32"); A("v_add_u32 v31, v31, v32")
        A(f"s_lshl_b32 s34, s{sW}, 2"); A("v_add_u32 v30, s34, v30"); A("v_xor_b32 v30, v30, v31")
        A("v_lshlrev_b32 v30, 4, v30"); A("v_add_u32 v29, v29, v30")
        A("v_and_b32 v32, 1, v28"); A("v_lshlrev_b32 v32, 3, v32"); A("v_add_u32 v29, v29, v32")
        A(f"v_add_u32 v38, {L_WO}, v29"); A("v_xor_b32 v39, 32, v29"); A(f"v_add_u32 v39, {L_WO}, v39")
        A("v_add_u32 v36, 0x10000, v38"); A("v_add_u32 v37, 0x10000, v39")
        A("v_lshrrev_b32 v33, 1, v26"); A("v_lshlrev_b32 v33, 3, v33"); A("v_and_b32 v34, 1, v26"); A("v_lshlrev_b32 v34, 2, v34"); A("v_add_u32 v33, v33, v34")
        A("v_and_b32 v34, 1, v27"); A("v_add_u32 v33, v33, v34"); A("v_lshlrev_b32 v33, 10, v33"); A("v_add_u32 v33, v33, v32")
        A(f"s_lshl_b32 s34, s{sW}, 8"); A(f"s_add_u32 s34, s34, {L_WO}"); A("v_add_u32 v33, s34, v33")
        A("v_lshrrev_b32 v34, 1, v27"); A("v_lshlrev_b32 v34, 1, v34"); A("v_lshrrev_b32 v35, 1, v28"); A("v_add_u32 v34, v34, v35")
        A("v_and_b32 v35, 1, v27"); A("v_lshlrev_b32 v35, 1, v35"); A("v_lshrrev_b32 v40, 1, v26"); A("v_and_b32 v40, 1, v40"); A("v_lshlrev_b32 v40, 3, v40")
        A("v_add_u32 v35, v35, v40"); A("v_xor_b32 v34, v34, v35")
        A("s_waitcnt lgkmcnt(0)")
        def dma_qkv(c):
            mat, t = divmod(c, 8); slot = c % 8; base = 56 + 2*mat
            for i in range(4):
                off = (64*t + 4*i) * 8192
                A(f"s_add_u32 s36, s{base}, {off}"); A(f"s_addc_u32 s37, s{base+1}, 0")
                A(f"s_lshl_b32 s34, s{sW}, 12"); A(f"s_add_u32 m0, s34, {L_WO + slot*16384 + i*1024}")
                A(f"global_load_lds_dwordx4 v{24 + (i >> 1)}, s[36:37]")
        def dma_wo(slot):
            for i in range(4):
                A(f"s_lshr_b32 s34, s{sW}, 1"); A("s_lshl_b32 s34, s34, 3"); A(f"s_add_u32 s34, s34, {2*i}")
                A(f"v_xor_b32 v35, s34, {l}"); A("v_lshlrev_b32 v35, 4, v35")
                A(f"s_lshl_b32 s34, s{sH}, 17"); A(f"s_lshl_b32 s35, s{sW}, 12"); A("s_add_u32 s34, s34, s35")
                A(f"s_add_u32 s34, s34, {(16*slot + i)*1024}")
                A("s_add_u32 s36, s62, s34"); A("s_addc_u32 s37, s63, 0")
                A(f"s_lshl_b32 s34, s{sW}, 12"); A(f"s_add_u32 m0, s34, {L_WO + slot*16384 + i*1024}")
                A("global_load_lds_dwordx4 v35, s[36:37]")
        for c in range(8): dma_qkv(c)
        for c in range(24):
            mat, t = divmod(c, 8); slot = c % 8
            A("s_waitcnt vmcnt(28)"); A("s_barrier")
            for X in range(2):
                for q4 in range(4):
                    roff = [0, 4, 32, 36][q4] * 256
                    ridx = (X*8 + t)*8 + 2*q4
                    d = ar(ridx, 2) if mat == 0 else (ar(128 + ridx, 2) if mat == 1 else r(WV + ridx, 2))
                    so = slot*16384 + roff
                    if so < 65536: A(f"ds_read_b64_tr_b16 {d}, v{38+X} offset:{so}")
                    else: A(f"ds_read_b64_tr_b16 {d}, v{36+X} offset:{so-65536}")
            A("s_waitcnt lgkmcnt(0)"); A("s_barrier")
            if c + 8 < 24: dma_qkv(c + 8)
            else: dma_wo(slot)
        for hb in range(2):
            A("s_waitcnt vmcnt(16)" if hb == 0 else "s_waitcnt vmcnt(0)"); A("s_barrier")
            for dl in range(4):
                for u1 in range(2):
                    A(f"v_xor_b32 v35, {(4*dl) ^ (4*u1)}, v34"); A("v_lshlrev_b32 v35, 4, v35"); A("v_add_u32 v35, v35, v33")
                    if hb: A("v_add_u32 v35, 0x10000, v35")
                    for tl in range(2):
                        for u2 in range(2):
                            u = 2*u2 + u1
                            dst = 48 + (dl*2 + tl)*8 + 2*u
                            A(f"ds_read_b64_tr_b16 {r(dst, 2)}, v35 offset:{tl*32768 + u2*16384 + u1*2048}")
            A("s_waitcnt lgkmcnt(0)"); A("s_barrier")
            b = vWoA if hb == 0 else vWoB
            for st in range(8):
                for half in range(2):
                    A(f"ds_write_b128 {r(b)}, {r(48 + st*8 + 4*half, 4)} offset:{st*2048 + half*1024}")
            A("s_waitcnt lgkmcnt(0)")

    def dma_k(self):
        A = self.A
        A(f"s_lshl_b32 s34, s{sW}, 11"); A(f"s_add_u32 m0, s34, {L_KX}")
        A(f"global_load_lds_dwordx4 {r(vAG)}, {sp(sKX)}"); A(f"global_load_lds_dwordx4 {r(vAG)}, {sp(sKX)} offset:1024 sc1")
        A(f"s_add_u32 s{sKX}, s{sKX}, 0x40000"); A(f"s_addc_u32 s{sKX+1}, s{sKX+1}, 0")
    def dma_v(self):
        A = self.A
        A(f"s_lshl_b32 s34, s{sW}, 11"); A(f"s_add_u32 m0, s34, {L_VX}")
        A(f"global_load_lds_dwordx4 {r(vAG)}, {sp(sVX)}"); A(f"global_load_lds_dwordx4 {r(vAG)}, {sp(sVX)} offset:1024")
        A(f"s_add_u32 s{sVX}, s{sVX}, 0x40000"); A(f"s_addc_u32 s{sVX+1}, s{sVX+1}, 0")

    def publish_mem0(self):
        A = self.A
        A("s_load_dwordx2 s[36:37], s[0:1], 8"); A("s_waitcnt lgkmcnt(0)")
        A(f"s_mov_b64 exec, {sp(sMMSK)}")
        A("global_load_dword v24, v127, s[36:37]"); A("s_waitcnt vmcnt(0)")
        A(f"global_store_dword {r(vMst)}, v24, {sp(sMb)}")
        if self.hist: A(f"global_store_dword {r(vMst)}, v24, {sp(sHIST)}")
        A("s_mov_b64 exec, -1")

    def shadow_prep(self):
        A = self.A
        for i in range(0, 16, 2): A(f"v_mov_b64 {r(AQ+i,2)}, 0")
        A(f"v_mov_b64 {r(SX,2)}, -1"); A(f"v_mov_b64 {r(SX+2,2)}, -1")
        A(f"s_and_b32 s34, s{sS}, 1"); A("s_lshl_b32 s34, s34, 18"); A(f"s_add_u32 s34, s34, {WS_PBUF}")
        A(f"s_add_u32 s{sPst}, s{sWS}, s34"); A(f"s_addc_u32 s{sPst+1}, s{sWS+1}, 0")
        for d in range(1, 4):
            A(f"s_add_u32 s{sPst+2*d}, s{sPst}, {d*16384}"); A(f"s_addc_u32 s{sPst+2*d+1}, s{sPst+1}, 0")
        A("s_xor_b32 s34, s34, 0x40000"); A(f"s_lshl_b32 s35, s{sH}, 13"); A("s_add_u32 s34, s34, s35")
        A(f"s_add_u32 s{sPz}, s{sWS}, s34"); A(f"s_addc_u32 s{sPz+1}, s{sWS+1}, 0")
        A(f"s_add_u32 s34, s{sS}, 2"); A("s_and_b32 s34, s34, 3"); A("s_lshl_b32 s34, s34, 13")
        A(f"s_add_u32 s{sMz}, s{sMb}, s34"); A(f"s_addc_u32 s{sMz+1}, s{sMb+1}, 0")
        A(f"s_add_u32 s34, s{sS}, 1"); A("s_and_b32 s35, s34, 3"); A("s_lshl_b32 s35, s35, 13")
        A(f"s_add_u32 s{sMn}, s{sMb}, s35"); A(f"s_addc_u32 s{sMn+1}, s{sMb+1}, 0")
        if self.hist:
            A("s_lshl_b32 s34, s34, 13"); A(f"s_add_u32 s{sHn}, s{sHIST}, s34"); A(f"s_addc_u32 s{sHn+1}, s{sHIST+1}, 0")
        A(f"s_lshl_b32 s34, s{sW}, 11"); A(f"s_add_u32 s{sM0K}, s34, {L_KX}"); A(f"s_add_u32 s{sM0V}, s34, {L_VX}")
        A(f"s_lshl_b32 s34, s{sS}, 5"); A(f"s_add_u32 s34, s34, s{sH}")
        A("s_lshl_b32 s35, s34, 11"); A(f"s_add_u32 s35, s35, {WS_EK}"); A(f"s_add_u32 s{sEK}, s{sWS}, s35"); A(f"s_addc_u32 s{sEK+1}, s{sWS+1}, 0")
        A("s_lshl_b32 s35, s34, 13"); A(f"s_add_u32 s35, s35, {WS_EV}"); A(f"s_add_u32 s{sEV}, s{sWS}, s35"); A(f"s_addc_u32 s{sEV+1}, s{sWS+1}, 0")
        A(f"s_lshl_b32 s34, s{sS}, 6"); A(f"s_add_u32 s35, s34, {cnt_off(C_EXP) - 64}")
        A(f"s_cmp_eq_u32 s{sS}, 0"); A("s_cselect_b32 s35, 0x7000, s35")
        A(f"s_add_u32 s{sEXC}, s{sWS}, s35"); A(f"s_addc_u32 s{sEXC+1}, s{sWS+1}, 0")
        A(f"s_add_u32 s35, s34, {cnt_off(C_KV) + 128}"); A(f"s_add_u32 s{sKVC}, s{sWS}, s35"); A(f"s_addc_u32 s{sKVC+1}, s{sWS+1}, 0")

    def ag_poll(self, P="L"):
        A = self.A
        n = self.ag_sets
        regs = [Q, Q+8, K, K+8][:n]
        def issue(b):
            A(f"global_load_dwordx4 {r(b,4)}, {r(vAG)}, {sp(sMc)} sc1")
            A(f"global_load_dwordx4 {r(b+4,4)}, {r(vAG)}, {sp(sMc)} offset:1024 sc1")
        def check(b):
            A(f"v_max3_u32 {r(T0r)}, {r(b)}, {r(b+1)}, {r(b+2)}"); A(f"v_max3_u32 {r(T1r)}, {r(b+3)}, {r(b+4)}, {r(b+5)}")
            A(f"ds_write_b128 {r(vAG)}, {r(b,4)}")
            A(f"v_max3_u32 {r(T0r)}, {r(T0r)}, {r(b+6)}, {r(b+7)}"); A(f"v_max_u32 {r(T0r)}, {r(T0r)}, {r(T1r)}")
            A(f"ds_write_b128 {r(vAG)}, {r(b+4,4)} offset:1024")
            A(f"v_cmp_eq_u32 vcc, -1, {r(T0r)}")
            A(f"s_cbranch_vccz {P}_agok")
            issue(b)
            A(f"s_add_u32 s{sNAG}, s{sNAG}, 1")
        self.stamp(0)
        A(f"s_mov_b32 s{sCNT}, 0")
        self.shadow_prep()
        for i in range(self.ag_delay): A("s_nop 15")
        for k, b in enumerate(regs):
            issue(b)
            if k < n-1:
                for i in range(self.ag_gap): A("s_nop 15")
        nres = 0
        if self.ag_reset:
            A(f"global_store_dwordx4 {r(vAG)}, {r(SX,4)}, {sp(sPz)}"); A(f"global_store_dwordx4 {r(vAG)}, {r(SX,4)}, {sp(sPz)} offset:1024")
            A(f"s_mov_b64 exec, {sp(sMMSK)}"); A(f"global_store_dword {r(vMst)}, {r(SX)}, {sp(sMz)}"); A("s_mov_b64 exec, -1")
            nres = 3
            for k, b in enumerate(regs):
                A(f"s_waitcnt vmcnt({2*(n-1) + nres})"); check(b)
        A.label(f"{P}_ag")
        for k, b in enumerate(regs):
            A(f"s_waitcnt vmcnt({2*(n-1)})"); check(b)
        A(f"s_add_u32 s{sCNT}, s{sCNT}, 1")
        A(f"s_cmp_lt_u32 s{sCNT}, 3000"); A(f"s_cbranch_scc1 {P}_ag")
        A(f"s_mov_b32 s{sFAIL}, 1"); A("s_waitcnt vmcnt(0)")
        A.label(f"{P}_agok")
        self.stamp(1)
        A("s_waitcnt lgkmcnt(0)")
        A("s_barrier")

    def exp_flag(self):
        L = self.A.newlabel("XF")
        return [f"s_cmp_lg_u32 s{sW}, 0", f"s_cbranch_scc1 {L}", "s_mov_b64 exec, 1",
                f"global_atomic_add {r(vL16)}, {r(vIDX)}, {sp(sEXC)}", "s_mov_b64 exec, -1", f"{L}:"]

    def kv_check(self):
        A = self.A
        L = A.newlabel("KV"); E = A.newlabel("KVE")
        out = [f"v_readlane_b32 s34, {r(vMst)}, 2", "s_cmp_ge_u32 s34, 32", f"s_cbranch_scc1 {E}", "s_mov_b32 s35, 0", "s_mov_b64 exec, 4", f"{L}:",
               f"global_load_dword {r(vMst)}, {r(vL16)}, {sp(sKVC)} offset:-96 sc1", "s_waitcnt vmcnt(0)",
               f"v_readlane_b32 s34, {r(vMst)}, 2", "s_cmp_ge_u32 s34, 32", f"s_cbranch_scc1 {E}_x", "s_sleep 2",
               "s_add_u32 s35, s35, 1", "s_cmp_lt_u32 s35, 60000", f"s_cbranch_scc1 {L}", f"{E}_x:", "s_mov_b64 exec, -1", f"{E}:"]
        return out
    def kv_prefetch(self):
        return ["s_mov_b64 exec, 4", f"global_load_dword {r(vMst)}, {r(vL16)}, {sp(sKVC)} offset:-32 sc1", "s_mov_b64 exec, -1"]

    def weave(self, main, fill):
        A = self.A
        for x in fill.get(-1, []): A(x)
        for i, m in enumerate(main):
            A(m)
            for x in fill.get(i, []): A(x)
        for k in fill:
            assert k < len(main), (k, len(main))

    def step(self):
        A = self.A
        SMF = "v_smfmac_f32_16x16x64_bf16"; MF = "v_mfma_f32_16x16x32_bf16"; MF16 = "v_mfma_f32_16x16x16_bf16"
        st = lambda i: ([f"s_memtime s[{sST+2*i}:{sST+2*i+1}]"] if self.stamps else [])
        from collections import defaultdict
        self.stamp(2)
        for t in range(8): A(f"ds_read_b128 {r(M+4*t,4)}, {r(vL16)} offset:{L_STG + t*1024}")
        kx0 = [K, K+4, K+8, K+12]; kx1 = [OX, OX+4, LX, SM]
        qs = [f"{SMF} {r(AQ+4*X,4)}, {r(M+4*t,4)}, {ar((X*8+t)*8, 8)}, {r(vIDX)}" for t in range(8) for X in range(2)]
        F = defaultdict(list)
        F[-1].append("s_waitcnt lgkmcnt(7)")
        kxr = [f"ds_read_b128 {r(kx0[t],4)}, {r(vL16)} offset:{L_KX + t*1024}" for t in range(4)] + \
              [f"ds_read_b128 {r(kx1[t],4)}, {r(vL16)} offset:{L_KX + (4+t)*1024}" for t in range(4)]
        nk = 0
        for t in range(1, 8):
            slot = 2*t - 1
            F[slot].append(f"s_waitcnt lgkmcnt({min(15, 7 - t + nk)})")
            if t >= 4:
                F[slot].append(kxr[nk]); nk += 1
                F[slot+1 if slot+1 < 16 else slot].append(kxr[nk]); nk += 1
        if not self.ag_reset:
            F[0].append(f"global_store_dwordx4 {r(vAG)}, {r(SX,4)}, {sp(sPz)}")
            F[2].append(f"global_store_dwordx4 {r(vAG)}, {r(SX,4)}, {sp(sPz)} offset:1024")
            F[4] += [f"s_mov_b64 exec, {sp(sMMSK)}", f"global_store_dword {r(vMst)}, {r(SX)}, {sp(sMz)}", "s_mov_b64 exec, -1"]
            F[6] += ["s_waitcnt vmcnt(3)"]

        self.weave(qs, F)
        assert nk == 8
        self.stamp(3)
        ks = [f"{SMF} {r(AK+4*X,4)}, {r(M+4*t,4)}, {ar(128+(X*8+t)*8, 8)}, {r(vIDX)}" for t in range(8) for X in range(2)]
        F = defaultdict(list)
        F[2] += ["s_nop 1"]
        for j in range(4): F[3+j].append(f"v_permlane32_swap_b32 {r(AQ+j)}, {r(AQ+4+j)}")
        F[7] += [f"v_pk_add_f32 {r(AQ,2)}, {r(AQ,2)}, {r(AQ+4,2)}", f"v_pk_add_f32 {r(AQ+2,2)}, {r(AQ+2,2)}, {r(AQ+6,2)}"]
        F[8] += [f"v_cvt_pk_bf16_f32 {r(AQ)}, {r(AQ)}, {r(AQ+1)}", f"v_cvt_pk_bf16_f32 {r(AQ+1)}, {r(AQ+2)}, {r(AQ+3)}",
                 f"ds_write_b64 {r(vQW)}, {r(AQ,2)} offset:{L_QB}"] + st(4)
        F[10] += ["s_waitcnt vmcnt(0)"]
        if self.exports: F[13] += self.exp_flag()
        F[11] += ["s_waitcnt lgkmcnt(0)", "s_barrier"]
        qtr = [f"ds_read_b64_tr_b16 {r(Q+4*t+2*hf,2)}, {r(vQR)} offset:{L_QB + t*512 + hf*256}" for t in range(4) for hf in range(2)]
        F[11] += qtr[0:2]; F[12] += qtr[2:4]; F[13] += qtr[4:6]; F[14] += qtr[6:8]
        for j in range(0, 8, 2): F[12 + j//2].append(f"v_mov_b64 {r(AQ+j,2)}, 0")
        self.weave(ks, F)
        self.stamp(5)
        sx = [f"{MF} {r(SX,4)}, {r(kx0[t],4)}, {r(Q+4*t,4)}, {'0' if t == 0 else r(SX,4)}" for t in range(4)] + \
             [f"{MF} {r(SX+4,4)}, {r(kx1[t],4)}, {r(Q+4*t,4)}, {'0' if t == 0 else r(SX+4,4)}" for t in range(4)]
        sx = [sx[0], sx[4], sx[1], sx[5], sx[2], sx[6], sx[3], sx[7]]
        F = defaultdict(list)
        F[-1] += ["s_waitcnt lgkmcnt(6)"]
        F[1] += ["s_waitcnt lgkmcnt(4)"]; F[3] += ["s_waitcnt lgkmcnt(2)"]; F[5] += ["s_waitcnt lgkmcnt(0)"]
        F[1] += [f"v_permlane32_swap_b32 {r(AK)}, {r(AK+4)}"]
        F[2] += [f"v_permlane32_swap_b32 {r(AK+1)}, {r(AK+5)}"]
        F[3] += [f"v_permlane32_swap_b32 {r(AK+2)}, {r(AK+6)}"]
        F[4] += [f"v_permlane32_swap_b32 {r(AK+3)}, {r(AK+7)}", f"v_pk_add_f32 {r(AK,2)}, {r(AK,2)}, {r(AK+4,2)}"]
        F[5] += [f"v_pk_add_f32 {r(AK+2,2)}, {r(AK+2,2)}, {r(AK+6,2)}", f"v_cvt_pk_bf16_f32 {r(AK)}, {r(AK)}, {r(AK+1)}"]
        F[6] += [f"v_cvt_pk_bf16_f32 {r(AK+1)}, {r(AK+2)}, {r(AK+3)}", f"ds_write_b64 {r(vQW)}, {r(AK,2)} offset:{L_KB}"]
        self.weave(sx, F)
        vs = [f"{SMF} {r(AQ+4*X,4)}, {r(M+4*t,4)}, {r(WV+(X*8+t)*8, 8)}, {r(vIDX)}" for t in range(8) for X in range(2)]
        NV1 = self.nv1
        F = defaultdict(list)
        F[1] += ["s_waitcnt lgkmcnt(0)", "s_barrier"] + st(6)
        ktr = [f"ds_read_b64_tr_b16 {r(K+4*t+2*hf,2)}, {r(vQR)} offset:{L_KB + t*512 + hf*256}" for t in range(4) for hf in range(2)]
        F[1] += ktr[0:4]; F[2] += ktr[4:8]
        if self.exports: F[0] += [f"global_store_dwordx2 {r(vQW)}, {r(AK,2)}, {sp(sEK)} sc1"]
        if self.kvwait: F[3] += self.kv_check()
        F[3] += [f"s_mov_b32 m0, s{sM0K}", f"ds_read_b128 {r(M,4)}, {r(vAG)} offset:{L_VX}", f"global_load_lds_dwordx4 {r(vAG)}, {sp(sKX)} sc1"]
        if self.kvwait: F[5] += self.kv_prefetch()
        F[4] += [f"ds_read_b128 {r(M+4,4)}, {r(vAG)} offset:{L_VX + 1024}"]
        F[7 if NV1 > 7 else NV1-1] += [f"global_load_lds_dwordx4 {r(vAG)}, {sp(sKX)} offset:1024 sc1",
                 f"s_add_u32 s{sKX}, s{sKX}, 0x40000", f"s_addc_u32 s{sKX+1}, s{sKX+1}, 0"]
        self.weave(vs[:NV1], F)
        A("s_waitcnt lgkmcnt(2)")
        for t in range(4): A(f"{MF} {r(SM,4)}, {r(K+4*t,4)}, {r(Q+4*t,4)}, {'0' if t == 0 else r(SM,4)}")
        self.stamp(7)
        sets = [Q, Q+8, K, K+8, M+8, M+16, M+24, AQ, M]
        def ldset(idx, reg):
            dl, t = divmod(idx, 4); b = vWoA if t < 2 else vWoB; o = (dl*2 + (t & 1))*2048
            return [f"ds_read_b128 {r(reg,4)}, {r(b)} offset:{o}", f"ds_read_b128 {r(reg+4,4)}, {r(b)} offset:{o+1024}"]
        F = defaultdict(list)
        rd = ldset(0, sets[0]) + ldset(1, sets[1])
        n2 = 16 - NV1
        F[0] += [f"s_mov_b32 m0, s{sM0V}", rd[0]]
        F[0] += [f"global_load_lds_dwordx4 {r(vAG)}, {sp(sVX)} sc1"]
        for i in range(1, 4): F[min(i, n2-1)].append(rd[i])
        self.weave(vs[NV1:], F)
        mx, t1 = T0r, T1r
        rd = ldset(2, sets[2]) + ldset(3, sets[3]) + ldset(4, sets[4]) + ldset(5, sets[5]) + ldset(6, sets[6])
        A(f"v_max3_f32 {r(mx)}, {r(SX)}, {r(SX+1)}, {r(SX+2)}"); A(f"v_max3_f32 {r(t1)}, {r(SX+3)}, {r(SX+4)}, {r(SX+5)}")
        A(f"v_max3_f32 {r(mx)}, {r(mx)}, {r(SX+6)}, {r(SX+7)}"); A(f"v_max3_f32 {r(t1)}, {r(t1)}, {r(SM)}, {r(SM+1)}")
        A(f"v_max3_f32 {r(mx)}, {r(mx)}, {r(SM+2)}, {r(SM+3)}"); A(f"v_max_f32 {r(mx)}, {r(mx)}, {r(t1)}")
        A(f"v_mov_b32 {r(t1)}, {r(mx)}"); A(f"global_load_lds_dwordx4 {r(vAG)}, {sp(sVX)} offset:1024 sc1"); A(f"s_add_u32 s{sVX}, s{sVX}, 0x40000")
        A(f"v_permlane16_swap_b32 {r(mx)}, {r(t1)}"); A(f"s_addc_u32 s{sVX+1}, s{sVX+1}, 0"); A(f"v_max_f32 {r(mx)}, {r(mx)}, {r(t1)}")
        A(f"v_mov_b32 {r(t1)}, {r(mx)}"); A(rd[0]); A(rd[1])
        A(f"v_permlane32_swap_b32 {r(mx)}, {r(t1)}"); A(rd[2]); A(f"v_max_f32 {r(mx)}, {r(mx)}, {r(t1)}")
        A(f"v_mul_f32 {r(mx)}, s{sC}, {r(mx)}")
        def pkf(b): return f"v_pk_fma_f32 {r(b,2)}, {r(b,2)}, {sp(sC)}, {r(mx,2)} op_sel_hi:[1,1,0] neg_lo:[0,0,1] neg_hi:[0,0,1]"
        for b in (SX, SX+2, SX+4, SX+6, SM, SM+2): A(pkf(b))
        ex = [SX+i for i in range(8)] + [SM+i for i in range(4)]
        ri = 3
        for n, e in enumerate(ex):
            A(f"v_exp_f32 {r(e)}, {r(e)}")
            if ri < len(rd): A(rd[ri]); ri += 1
        for i in range(4): A(f"v_cvt_pk_bf16_f32 {r(SX+i)}, {r(SX+2*i)}, {r(SX+2*i+1)}")
        for i in range(2): A(f"v_cvt_pk_bf16_f32 {r(SM+i)}, {r(SM+2*i)}, {r(SM+2*i+1)}")
        self.stamp(8)
        for X in range(2):
            A(f"v_cvt_pk_bf16_f32 {r(AK+2*X)}, {r(AQ+4*X)}, {r(AQ+4*X+1)}"); A(f"v_cvt_pk_bf16_f32 {r(AK+2*X+1)}, {r(AQ+4*X+2)}, {r(AQ+4*X+3)}")
        if self.exports: A(f"global_store_dwordx4 {r(vAG)}, {r(AK,4)}, {sp(sEV)} sc1")
        A("s_waitcnt lgkmcnt(14)")
        A(f"{MF} {r(LX,4)}, {r(vONE,4)}, {r(SX,4)}, 0")
        for X in range(2): A(f"{MF} {r(OX+4*X,4)}, {r(M+4*X,4)}, {r(SX,4)}, 0")
        A(f"{MF16} {r(LX,4)}, {r(vHALF,2)}, {r(SM,2)}, {r(LX,4)}")
        for X in range(2): A(f"{MF16} {r(OX+4*X,4)}, {r(AK+2*X,2)}, {r(SM,2)}, {r(OX+4*X,4)}")
        rd = ldset(7, sets[7]) + ldset(8, sets[8])
        for x in rd: A(x)
        A(f"v_rcp_f32 {r(mx)}, {r(LX)}")
        for X in range(2):
            o = OX + 4*X
            A(f"v_pk_mul_f32 {r(o,2)}, {r(o,2)}, {r(mx,2)} op_sel_hi:[1,0]"); A(f"v_pk_mul_f32 {r(o+2,2)}, {r(o+2,2)}, {r(mx,2)} op_sel_hi:[1,0]")
            A(f"v_cvt_pk_bf16_f32 {r(o)}, {r(o)}, {r(o+1)}"); A(f"v_cvt_pk_bf16_f32 {r(o+1)}, {r(o+2)}, {r(o+3)}")
            A(f"ds_write_b64 {r(vOW)}, {r(o,2)} offset:{X*32}")
        self.stamp(9)
        ACC = AK
        for i in range(0, 16, 2): A(f"v_mov_b64 {r(ACC+i,2)}, 0")
        A("s_waitcnt lgkmcnt(0)"); A("s_barrier")
        self.stamp(10)
        OF = SM
        for t in range(4): A(f"ds_read_b128 {r(OF+4*t,4)}, {r(vOR)} offset:{t*64}")
        reg_of = {i: sets[i] for i in range(9)}
        main = []; F = defaultdict(list)
        issued = []
        nxt = 9
        for idx in range(16):
            dl, t = divmod(idx, 4)
            main.append(None)
        lds_out = ['o0', 'o1', 'o2', 'o3']
        def wait_for(tag):
            if tag in lds_out:
                last = max(i for i, x in enumerate(lds_out) if x == tag)
                n = len(lds_out) - 1 - last
                A(f"s_waitcnt lgkmcnt({min(n,15)})")
                del lds_out[:last+1]
        pend = []
        for idx in range(16):
            dl, t = divmod(idx, 4)
            if dl == 0: wait_for(f'o{t}')
            if idx >= 9: wait_for(f's{idx}')
            A(f"{SMF} {r(ACC+4*dl,4)}, {r(OF+4*t,4)}, {r(reg_of[idx],8)}, {r(vIDX)}")
            if nxt < 16:
                reg_of[nxt] = reg_of[idx]
                for x in ldset(nxt, reg_of[nxt]): pend.append((x, f's{nxt}'))
                nxt += 1
            n = (1 if idx >= 3 else 2) if self.wo_spread else 99
            if self.wo_spread and idx >= 8: n = 2
            for _ in range(n):
                if pend:
                    x, tg = pend.pop(0); A(x); lds_out.append(tg)
            if t == 2 and dl >= 1:
                a = ACC + 4*(dl-1)
                A(f"v_cvt_pk_bf16_f32 {r(a)}, {r(a)}, {r(a+1)}"); A(f"v_cvt_pk_bf16_f32 {r(a+1)}, {r(a+2)}, {r(a+3)}")
                A(f"global_store_dwordx2 {r(vPst)}, {r(a,2)}, {sp(sPst+2*(dl-1))}")
        assert not pend
        a = ACC + 12
        A(f"v_cvt_pk_bf16_f32 {r(a)}, {r(a)}, {r(a+1)}"); A(f"v_cvt_pk_bf16_f32 {r(a+1)}, {r(a+2)}, {r(a+3)}")
        A(f"global_store_dwordx2 {r(vPst)}, {r(a,2)}, {sp(sPst+6)}")
        self.stamp(11)
        def off(i): return i*1024-4096 if self.p_layout == 0 else i*256
        n = self.rs_sets
        regs = [Q, Q+8, K, K+8][:n]
        D = M
        def issue(b):
            for i in range(8): A(f"global_load_dword {r(b+i)}, {r(vRS)}, {sp(sPst)} offset:{off(i)} sc1")
        A(f"s_mov_b32 s{sCNT}, 0")
        for i in range(self.rs_delay): A("s_nop 15")
        for k, b in enumerate(regs):
            issue(b)
            if k < n-1:
                for i in range(self.rs_gap): A("s_nop 15")
        A.label("L_rs")
        for k, b in enumerate(regs):
            A(f"s_waitcnt vmcnt({8*(n-1)})")
            A(f"v_max3_u32 {r(T0r)}, {r(b)}, {r(b+1)}, {r(b+2)}"); A(f"v_max3_u32 {r(T1r)}, {r(b+3)}, {r(b+4)}, {r(b+5)}")
            A(f"{MF} {r(D,4)}, {r(vSEL,4)}, {r(b,4)}, 0")
            A(f"v_max3_u32 {r(T0r)}, {r(T0r)}, {r(b+6)}, {r(b+7)}"); A(f"v_max_u32 {r(T0r)}, {r(T0r)}, {r(T1r)}")
            A(f"{MF} {r(D,4)}, {r(vSEL,4)}, {r(b+4,4)}, {r(D,4)}")
            A(f"v_cmp_eq_u32 vcc, -1, {r(T0r)}")
            A("s_cbranch_vccz L_rsok")
            issue(b)
            A(f"s_add_u32 s{sNRS}, s{sNRS}, 1")
        A(f"s_add_u32 s{sCNT}, s{sCNT}, 1")
        A(f"s_cmp_lt_u32 s{sCNT}, 2000"); A("s_cbranch_scc1 L_rs")
        A(f"s_mov_b32 s{sFAIL}, 2")
        A.label("L_rsok")
        self.stamp(12)
        A(f"s_add_u32 s{sS}, s{sS}, 1")
        A(f"s_mov_b32 s{sMc}, s{sMn}"); A(f"s_mov_b32 s{sMc+1}, s{sMn+1}")
        D = M
        A(f"v_mov_b32_dpp {r(D+2)}, {r(D)} quad_perm:[2,3,2,3] row_mask:0xf bank_mask:0xf")
        A(f"v_mov_b32_dpp {r(D+3)}, {r(D+1)} quad_perm:[2,3,2,3] row_mask:0xf bank_mask:0xf")
        A(f"v_cvt_pk_bf16_f32 {r(D)}, {r(D)}, {r(D+2)}"); A(f"v_cvt_pk_bf16_f32 {r(D+1)}, {r(D+1)}, {r(D+3)}")
        A(f"v_cndmask_b32 {r(D)}, {r(D)}, {r(D+1)}, {sp(sODD)}")
        A(f"s_mov_b64 exec, {sp(sMMSK)}")
        A(f"v_min_u32 {r(D)}, -2, {r(D)}")
        A(f"global_store_dword {r(vMst)}, {r(D)}, {sp(sMc)}")
        if self.hist: A(f"global_store_dword {r(vMst)}, {r(D)}, {sp(sHn)}")
        A("s_mov_b64 exec, -1")
        self.stamp(13)


    def tail(self):
        A = self.A
        SMF = "v_smfmac_f32_16x16x64_bf16"
        self.ag_poll("T")
        for t in range(8): A(f"ds_read_b128 {r(M+4*t,4)}, {r(vL16)} offset:{L_STG + t*1024}")
        for x in self.exp_flag(): A(x)
        A("s_waitcnt lgkmcnt(0)")
        for t in range(8):
            for X in range(2): A(f"{SMF} {r(AK+4*X,4)}, {r(M+4*t,4)}, {ar(128+(X*8+t)*8, 8)}, {r(vIDX)}")
        for t in range(8):
            for X in range(2): A(f"{SMF} {r(AQ+4*X,4)}, {r(M+4*t,4)}, {r(WV+(X*8+t)*8, 8)}, {r(vIDX)}")
        for j in range(4): A(f"v_permlane32_swap_b32 {r(AK+j)}, {r(AK+4+j)}")
        A(f"v_pk_add_f32 {r(AK,2)}, {r(AK,2)}, {r(AK+4,2)}"); A(f"v_pk_add_f32 {r(AK+2,2)}, {r(AK+2,2)}, {r(AK+6,2)}")
        A(f"v_cvt_pk_bf16_f32 {r(AK)}, {r(AK)}, {r(AK+1)}"); A(f"v_cvt_pk_bf16_f32 {r(AK+1)}, {r(AK+2)}, {r(AK+3)}")
        A(f"global_store_dwordx2 {r(vQW)}, {r(AK,2)}, {sp(sEK)} sc1")
        for X in range(2):
            A(f"v_cvt_pk_bf16_f32 {r(SX+2*X)}, {r(AQ+4*X)}, {r(AQ+4*X+1)}"); A(f"v_cvt_pk_bf16_f32 {r(SX+2*X+1)}, {r(AQ+4*X+2)}, {r(AQ+4*X+3)}")
        A(f"global_store_dwordx4 {r(vAG)}, {r(SX,4)}, {sp(sEV)} sc1")
        A("s_waitcnt vmcnt(0)"); A("s_barrier")
        A(f"s_add_u32 s{sEXC}, s{sEXC}, 64"); A(f"s_addc_u32 s{sEXC+1}, s{sEXC+1}, 0")
        for x in self.exp_flag(): A(x)
        A("s_waitcnt vmcnt(0)")

def gen_chain(A, U, o):
    kw = dict(o.get('chain_opts', {}))
    C = Chain(A, U, **kw)
    A(f"s_mov_b32 s{sH}, s{sROLE}")
    C.setup_consts()
    C.clear_slots()
    C.load_weights()
    U.wait_cnt(sDBG, 1, off=D_INIT*4, tmpv=(24, 25), tmps=(36, 37))
    if C.kvwait:
        U.add64(38, sWS, cnt_off(C_KV, 0)); U.wait_cnt(38, 32, tmpv=(24, 25), tmps=(36, 37))
    C.dma_k(); C.dma_v()
    U.add64(sKVC, sWS, cnt_off(C_KV, 1))
    for x in C.kv_prefetch(): A(x)
    A("s_waitcnt vmcnt(0)"); A("s_barrier")
    L2 = A.newlabel("RC")
    A(f"s_cmp_lg_u32 s{sW}, 0"); A(f"s_cbranch_scc1 {L2}")
    A("v_mov_b32 v24, 0"); A("v_mov_b32 v25, 1"); A("s_mov_b64 exec, 1")
    A(f"global_atomic_add v24, v25, {sp(sDBG)} offset:{D_ROLL*4}")
    A("s_mov_b64 exec, -1")
    A.label(L2)
    U.wait_cnt(sDBG, 32, off=D_ROLL*4, tmpv=(24, 25), tmps=(36, 37), sleep=1)
    A("s_barrier")
    A(f"s_mov_b32 s{sFAIL}, 0"); A(f"s_mov_b32 s{sS}, 0"); A(f"s_mov_b32 s{sNAG}, 0"); A(f"s_mov_b32 s{sNRS}, 0")
    A(f"s_mov_b32 s{sMc}, s{sMb}"); A(f"s_mov_b32 s{sMc+1}, s{sMb+1}")
    C.publish_mem0()
    A.label("L_loop")
    C.ag_poll("L")
    C.step()
    A(f"s_cmp_lt_u32 s{sS}, 63"); A("s_cbranch_scc1 L_loop")
    C.tail()
    if C.stamps:
        A(f"s_lshl_b32 s34, s{sH}, 2"); A(f"s_add_u32 s34, s34, s{sW}"); A("s_lshl_b32 s34, s34, 6"); A(f"s_add_u32 s34, s34, {WS_STAMP}")
        A(f"s_add_u32 s36, s{sWS}, s34"); A(f"s_addc_u32 s37, s{sWS+1}, 0")
        A("s_mov_b64 exec, 1"); A("v_mov_b32 v24, 0")
        for q in range(4):
            for i in range(4): A(f"v_mov_b32 v{32+4*q+i}, s{sST+2*(4*q+i)}" if 4*q+i < 14 else f"v_mov_b32 v{32+4*q+i}, s{sNAG + (4*q+i-14)}")
            A(f"global_store_dwordx4 v24, v[{32+4*q}:{35+4*q}], s[36:37] offset:{16*q}")
        A("s_waitcnt vmcnt(0)"); A("s_mov_b64 exec, -1")
```

```python
import struct
from asmlib import Prog
def r(b, n=1): return f"v{b}" if n == 1 else f"v[{b}:{b+n-1}]"
def ar(b, n=1): return f"a{b}" if n == 1 else f"a[{b}:{b+n-1}]"
def sp(b, n=2): return f"s[{b}:{b+n-1}]"
def fbits(x): return struct.unpack('<I', struct.pack('<f', x))[0]

KA = dict(x=0, mem0=8, Wq=16, Wk=24, Wv=32, Wo=40, seglen=48, Bx=56, w1=64, b1=72, w2=80, b2=88, c=96, wmod=104, out=112, dbg=120, ws=128)
WS_CNT = 0x0
C_HRDY, C_KV, C_QD, C_EXP, C_AD, C_R1, C_CD = range(7)
def cnt_off(arr, s=0): return arr*4096 + s*64
WS_MOD  = 0x8000
WS_PBUF = 0x100000
WS_MBUF = 0x200000
WS_MHIST = 0x210000
WS_STAMP = 0x300000
WS_HF   = 0x400000
WS_H2F  = 0x600000
WS_X1   = 0x800000
WS_KX   = 0x2000000
WS_VX   = 0x3000000
WS_QX   = 0x4000000
WS_EK   = 0x5000000
WS_EV   = 0x5400000
WS_YP   = 0x6400000
WS_FP   = 0x7400000
D_XT = 0; D_WT = 1; D_INIT = 2; D_ROLL = 3; D_MODA = 4; D_MODB = 5
sWS = 4; sDBG = 6; sXCC = 8; sROLE = 9; sH = 10; sW = 11
LDS_TOTAL = 161280
L_MISC = 160768

class Util:
    def __init__(self, A): self.A = A
    def add64(self, d, s, off):
        A = self.A
        A(f"s_add_u32 s{d}, s{s}, {off}"); A(f"s_addc_u32 s{d+1}, s{s+1}, 0")
    def wait_cnt(self, base, target, tmpv=(250, 251), tmps=(96, 97), off=0, bound=60000, sleep=4):
        A = self.A
        L = A.newlabel("W"); E = A.newlabel("WE")
        va, vd = tmpv; sc, sv = tmps
        A(f"v_mov_b32 v{va}, 0"); A(f"s_mov_b32 s{sc}, 0")
        A.label(L)
        A(f"global_load_dword v{vd}, v{va}, {sp(base)} offset:{off} sc1")
        A("s_waitcnt vmcnt(0)")
        A(f"v_readfirstlane_b32 s{sv}, v{vd}")
        A(f"s_cmp_ge_u32 s{sv}, {target}"); A(f"s_cbranch_scc1 {E}")
        A(f"s_sleep {sleep}")
        A(f"s_add_u32 s{sc}, s{sc}, 1"); A(f"s_cmp_lt_u32 s{sc}, {bound}"); A(f"s_cbranch_scc1 {L}")
        A.label(E)
    def signal(self, base, off=0, tmpv=(250, 251), drain=True):
        A = self.A
        L = A.newlabel("SG")
        va, vd = tmpv
        if drain: A("s_waitcnt vmcnt(0)")
        A("s_barrier")
        A(f"s_cmp_lg_u32 s{sW}, 0"); A(f"s_cbranch_scc1 {L}")
        A(f"v_mov_b32 v{va}, 0"); A(f"v_mov_b32 v{vd}, 1")
        A("s_mov_b64 exec, 1")
        A(f"global_atomic_add v{va}, v{vd}, {sp(base)} offset:{off}")
        A("s_mov_b64 exec, -1")
        A.label(L)
```

```python
from common import *
import roles1

def gen(opts=None):
    o = dict(chain=True, mh=True, g=True, q=True, arc=True)
    o.update(opts or {})
    A = Prog(); U = Util(A)
    A(f"s_load_dwordx2 {sp(sWS)}, s[0:1], 128"); A(f"s_load_dwordx2 {sp(sDBG)}, s[0:1], 120")
    A(f"s_getreg_b32 s{sXCC}, hwreg(HW_REG_XCC_ID, 0, 4)")
    A("v_lshrrev_b32 v1, 6, v0"); A("v_and_b32 v0, 63, v0")
    A(f"v_readfirstlane_b32 s{sW}, v1")
    A("s_waitcnt lgkmcnt(0)")
    A(f"s_cmp_lg_u32 s{sW}, 0"); A("s_cbranch_scc1 L_wt")
    A("s_mov_b64 exec, 1")
    A("v_mov_b32 v3, 0"); A("v_mov_b32 v4, 1")
    A(f"s_cmp_lg_u32 s{sXCC}, 0"); A("s_cbranch_scc1 L_wk")
    A(f"global_atomic_add v5, v3, v4, {sp(sDBG)} offset:{D_XT*4} sc0"); A("s_waitcnt vmcnt(0)")
    A("v_readfirstlane_b32 s12, v5"); A("s_cmp_lt_u32 s12, 32"); A("s_cbranch_scc1 L_got")
    A.label("L_wk")
    A(f"global_atomic_add v5, v3, v4, {sp(sDBG)} offset:{D_WT*4} sc0"); A("s_waitcnt vmcnt(0)")
    A("v_add_u32 v5, 32, v5")
    A.label("L_got")
    A(f"v_mov_b32 v3, {L_MISC}"); A("ds_write_b32 v3, v5"); A("s_waitcnt lgkmcnt(0)")
    A("s_mov_b64 exec, -1")
    A.label("L_wt")
    A("s_barrier")
    A(f"v_mov_b32 v3, {L_MISC}"); A("ds_read_b32 v5, v3"); A("s_waitcnt lgkmcnt(0)")
    A(f"v_readfirstlane_b32 s{sROLE}, v5")
    A("s_barrier")
    A(f"s_cmp_lt_u32 s{sROLE}, 32"); A("s_cbranch_scc1 L_chain")
    A(f"s_sub_u32 s12, s{sROLE}, 32")
    A("s_cmp_ge_u32 s12, 224"); A("s_cbranch_scc1 L_end")
    A("s_cmp_lg_u32 s12, 0"); A("s_cbranch_scc1 L_noinit")
    A(f"s_lshl_b32 s34, s{sW}, 10"); A("v_lshlrev_b32 v2, 4, v0"); A("v_add_u32 v2, s34, v2")
    for i in range(4): A(f"v_mov_b32 v{8+i}, 0")
    for i in range(7):
        A(f"global_store_dwordx4 v2, v[8:11], {sp(sWS)} sc1"); A("v_add_u32 v2, 4096, v2")
    A("s_waitcnt vmcnt(0)"); A("s_barrier")
    U.add64(44, sDBG, D_INIT*4); U.signal(44)
    A.label("L_noinit")
    if o['mh']:
        A("s_cmp_lt_u32 s12, 160"); A("s_cbranch_scc1 L_nomh")
        A("s_sub_u32 s13, s12, 160")
        A("s_cmp_ge_u32 s13, 48"); A("s_cbranch_scc1 L_nom")
        roles1.role_M(A, U, 13)
        A("s_barrier")
        A.label("L_nom")
        U.wait_cnt(sDBG, 1, off=D_INIT*4)
        roles1.role_H(A, U, 13)
        A("s_barrier")
        A.label("L_nomh")
    U.wait_cnt(sDBG, 1, off=D_INIT*4)
    if o['g']:
        A("s_and_b32 s14, s12, 31"); A("s_lshr_b32 s15, s12, 5")
        roles1.role_G(A, U, 14, 15, do_q=o['q'])
    if o['arc']:
        import roles2
        roles2.roles_ARC(A, U, 12)
    A("s_branch L_end")
    A.label("L_chain")
    if o['chain']:
        import chainf
        chainf.gen_chain(A, U, o)
    A.label("L_end")
    return A

NAME = "adaLN_cond__memory_aug_recurrent_mem_tr__dense_activation_gelu__prompt_kernel"
def text(opts=None, name=NAME):
    from asmlib import kernel_text
    A = gen(opts)
    body = A.finalize(verbose=True)
    return kernel_text([(name, body, 512, 102, 256)], [f"; @launch grid=(256,1,1) block=(256,1,1) lds={LDS_TOTAL}"])

if __name__ == "__main__":
    t = text(dict(chain=False, arc=False))
    open("k_test.s", "w").write(t)
    print(len(t.split("\n")), "lines")
```

```python
from common import *

def bf_round_pair(A, a, b, t):
    A(f"v_cvt_pk_bf16_f32 v{t}, v{a}, v{b}")
    A(f"v_lshlrev_b32 v{a}, 16, v{t}"); A(f"v_and_b32 v{b}, 0xffff0000, v{t}")

class WLoad:
    def __init__(self, A, LB=0, vb=200):
        self.A = A; self.LB = LB
        self.vS0, self.vS1, self.vT, self.vTh, self.vX = vb, vb+1, vb+2, vb+3, vb+4
        self.vZ = vb+5
    def setup(self, RS, roworder="nat", colmode="tile"):
        A = self.A; self.RS = RS
        A(f"v_lshrrev_b32 v{self.vX}, 4, v0")
        A(f"v_and_b32 v{self.vS0}, 15, v0"); A(f"v_lshlrev_b32 v{self.vS1}, 1, v{self.vX}"); A(f"v_xor_b32 v{self.vS0}, v{self.vS0}, v{self.vS1}")
        A(f"v_lshlrev_b32 v{self.vS0}, 4, v{self.vS0}")
        A(f"v_xor_b32 v{self.vS1}, 128, v{self.vS0}")
        A(f"s_mov_b32 s34, {RS}"); A(f"v_mul_lo_u32 v{self.vX}, v{self.vX}, s34")
        A(f"s_mul_i32 s34, s{sW}, {16*RS}"); A(f"v_add_u32 v{self.vX}, s34, v{self.vX}")
        A(f"v_add_u32 v{self.vS0}, v{self.vS0}, v{self.vX}"); A(f"v_add_u32 v{self.vS1}, v{self.vS1}, v{self.vX}")
        self.setup_tr(roworder, colmode)
    def setup_tr(self, roworder, colmode):
        A = self.A; X = self.vX; T = self.vT; Z = self.vZ
        self.roworder = roworder; self.colmode = colmode
        A(f"v_lshrrev_b32 v{X}, 4, v0")
        A(f"v_bfe_u32 v{Z}, v0, 2, 2")
        if roworder == "nat":
            A(f"v_lshlrev_b32 v{T}, 3, v{X}"); A(f"v_add_u32 v{T}, v{T}, v{Z}")
            A(f"v_lshlrev_b32 v{Z}, 1, v{Z}"); A(f"v_and_b32 v{X}, 1, v{X}"); A(f"v_lshlrev_b32 v{X}, 3, v{X}"); A(f"v_add_u32 v{Z}, v{Z}, v{X}")
        else:
            A(f"v_lshlrev_b32 v{T}, 2, v{X}"); A(f"v_add_u32 v{T}, v{T}, v{Z}")
            A(f"v_lshlrev_b32 v{Z}, 1, v{Z}"); A(f"v_lshrrev_b32 v{X}, 1, v{X}"); A(f"v_lshlrev_b32 v{X}, 3, v{X}"); A(f"v_add_u32 v{Z}, v{Z}, v{X}")
        A(f"v_lshlrev_b32 v{T}, 8, v{T}")
        A(f"v_and_b32 v{X}, 3, v0")
        if colmode == "tile":
            A(f"v_lshrrev_b32 v{self.vTh}, 1, v{X}"); A(f"v_xor_b32 v{Z}, v{Z}, v{self.vTh}")
            A(f"v_lshlrev_b32 v{Z}, 4, v{Z}"); A(f"v_add_u32 v{T}, v{T}, v{Z}")
            A(f"v_and_b32 v{X}, 1, v{X}"); A(f"v_lshlrev_b32 v{X}, 3, v{X}"); A(f"v_add_u32 v{T}, v{T}, v{X}")
        else:
            A(f"v_xor_b32 v{Z}, v{Z}, v{X}"); A(f"v_lshlrev_b32 v{Z}, 4, v{Z}"); A(f"v_add_u32 v{T}, v{T}, v{Z}")
        if self.LB: A(f"v_add_u32 v{T}, {self.LB}, v{T}")
    def dma(self, sbase, rowoff_bytes, slot, flags=""):
        A = self.A
        for i in range(4):
            off = rowoff_bytes + 4*i*self.RS
            A(f"s_add_u32 s36, s{sbase}, {off}"); A(f"s_addc_u32 s37, s{sbase+1}, 0")
            A(f"s_lshl_b32 s34, s{sW}, 12"); A(f"s_add_u32 m0, s34, {self.LB + slot*16384 + i*1024}")
            A(f"global_load_lds_dwordx4 v{self.vS0 + (i >> 1)}, s[36:37] {flags}")
    def tr_addr(self, xorval, dst):
        A = self.A
        if self.LB:
            A(f"v_subrev_u32 v{dst}, {self.LB}, v{self.vT}"); A(f"v_xor_b32 v{dst}, {xorval}, v{dst}"); A(f"v_add_u32 v{dst}, {self.LB}, v{dst}")
        else:
            A(f"v_xor_b32 v{dst}, {xorval}, v{dst if False else self.vT}")
    def tr(self, dstreg, vaddr, vaddr_hi, slot, rowoff, extra=0):
        so = slot*16384 + rowoff*256 + extra
        if so < 65536: self.A(f"ds_read_b64_tr_b16 {dstreg}, v{vaddr} offset:{so}")
        else: self.A(f"ds_read_b64_tr_b16 {dstreg}, v{vaddr_hi} offset:{so-65536}")

def role_M(A, U, sJ):
    A("s_load_dwordx2 s[40:41], s[0:1], 96"); A("s_load_dwordx2 s[42:43], s[0:1], 104")
    A(f"s_lshl_b32 s34, s{sW}, 6"); A("v_add_u32 v1, s34, v0")
    A("v_lshrrev_b32 v2, 3, v1"); A("v_and_b32 v3, 7, v1")
    A("v_mul_u32_u24 v4, 6144, v2"); A("v_lshlrev_b32 v5, 4, v3"); A("v_add_u32 v4, v4, v5")
    A(f"s_lshl_b32 s34, s{sJ}, 7"); A("v_add_u32 v4, s34, v4")
    A("v_lshlrev_b32 v5, 1, v2")
    A("s_waitcnt lgkmcnt(0)")
    for i in range(16): A(f"global_load_ushort v{16+i}, v5, s[40:41] offset:{i*64}")
    for i in range(16):
        A(f"global_load_dwordx4 v[{32+4*i}:{35+4*i}], v4, s[42:43]")
        A(f"s_add_u32 s42, s42, {32*6144}"); A("s_addc_u32 s43, s43, 0")
    for k in range(8): A(f"v_mov_b32 v{100+k}, 0")
    A("s_waitcnt vmcnt(16)")
    A(f"s_mov_b32 s34, {fbits(-1.4426950408889634):#x}")
    for i in range(16):
        x = 16+i
        A(f"v_lshlrev_b32 v{x}, 16, v{x}")
        A(f"v_mul_f32 v110, s34, v{x}"); A("v_exp_f32 v110, v110"); A("v_add_f32 v110, 1.0, v110"); A("v_rcp_f32 v110, v110")
        A(f"v_mul_f32 v{x}, v{x}, v110")
        A(f"v_cvt_pk_bf16_f32 v{x}, v{x}, v{x}"); A(f"v_lshlrev_b32 v{x}, 16, v{x}")
    A("s_waitcnt vmcnt(0)")
    for i in range(16):
        for k in range(4):
            w = 32+4*i+k
            A(f"v_lshlrev_b32 v110, 16, v{w}"); A(f"v_and_b32 v111, 0xffff0000, v{w}")
            A(f"v_fmac_f32 v{100+2*k}, v{16+i}, v110"); A(f"v_fmac_f32 v{101+2*k}, v{16+i}, v111")
    A("v_lshlrev_b32 v6, 8, v2"); A("v_lshlrev_b32 v7, 5, v3"); A("v_add_u32 v6, v6, v7")
    A("ds_write_b128 v6, v[100:103]"); A("ds_write_b128 v6, v[104:107] offset:16")
    A("s_waitcnt lgkmcnt(0)"); A("s_barrier")
    L = A.newlabel("Mskip")
    A(f"s_cmp_lg_u32 s{sW}, 0"); A(f"s_cbranch_scc1 {L}")
    A("v_lshlrev_b32 v6, 2, v0")
    for i in range(32): A(f"ds_read_b32 v{16+i}, v6 offset:{i*256}")
    A("s_waitcnt lgkmcnt(0)")
    for st in (16, 8, 4, 2, 1):
        for i in range(st): A(f"v_add_f32 v{16+i}, v{16+i}, v{16+i+st}")
    A("v_cvt_pk_bf16_f32 v16, v16, v16"); A("v_lshlrev_b32 v16, 16, v16")
    A(f"s_lshl_b32 s34, s{sJ}, 8"); A(f"s_add_u32 s34, s34, {WS_MOD}"); U.add64(44, sWS, "s34")
    A("global_store_dword v6, v16, s[44:45] sc1")
    A.label(L)
    A(f"s_cmp_lt_u32 s{sJ}, 16"); A(f"s_cselect_b32 s34, {D_MODA*4}, {D_MODB*4}"); U.add64(44, sDBG, "s34")
    U.signal(44)

def ln_rows(A, xb, n, eps_s, tmp):
    t0, t1, t2, t3, t4, t5 = tmp
    def red8(v):
        A(f"v_add_f32_dpp v{v}, v{v}, v{v} quad_perm:[1,0,3,2] row_mask:0xf bank_mask:0xf")
        A(f"v_add_f32_dpp v{v}, v{v}, v{v} quad_perm:[2,3,0,1] row_mask:0xf bank_mask:0xf")
        A(f"v_add_f32_dpp v{v}, v{v}, v{v} row_half_mirror row_mask:0xf bank_mask:0xf")
    A(f"v_add_f32 v{t0}, v{xb}, v{xb+1}"); A(f"v_add_f32 v{t1}, v{xb+2}, v{xb+3}")
    for i in range(4, n, 2): A(f"v_add_f32 v{t0}, v{t0}, v{xb+i}"); A(f"v_add_f32 v{t1}, v{t1}, v{xb+i+1}")
    A(f"v_add_f32 v{t0}, v{t0}, v{t1}")
    red8(t0)
    A(f"v_mul_f32 v{t0}, {fbits(1.0/512):#x}, v{t0}")
    A(f"v_mov_b32 v{t1}, 0"); A(f"v_mov_b32 v{t2}, 0")
    for i in range(0, n, 2):
        A(f"v_sub_f32 v{t3}, v{xb+i}, v{t0}"); A(f"v_sub_f32 v{t4}, v{xb+i+1}, v{t0}")
        A(f"v_fmac_f32 v{t1}, v{t3}, v{t3}"); A(f"v_fmac_f32 v{t2}, v{t4}, v{t4}")
    A(f"v_add_f32 v{t1}, v{t1}, v{t2}")
    red8(t1)
    A(f"v_mul_f32 v{t1}, {fbits(1.0/512):#x}, v{t1}")
    bf_round_pair(A, t0, t1, t2)
    A(f"v_add_f32 v{t1}, s{eps_s}, v{t1}")
    A(f"v_cvt_pk_bf16_f32 v{t1}, v{t1}, v{t1}"); A(f"v_lshlrev_b32 v{t1}, 16, v{t1}")
    A(f"v_sqrt_f32 v{t1}, v{t1}")
    A(f"v_cvt_pk_bf16_f32 v{t1}, v{t1}, v{t1}"); A(f"v_lshlrev_b32 v{t1}, 16, v{t1}")
    A(f"v_rcp_f32 v{t1}, v{t1}")
    for i in range(0, n, 2):
        A(f"v_sub_f32 v{xb+i}, v{xb+i}, v{t0}"); A(f"v_sub_f32 v{xb+i+1}, v{xb+i+1}, v{t0}")
        bf_round_pair(A, xb+i, xb+i+1, t2)
        A(f"v_mul_f32 v{xb+i}, v{xb+i}, v{t1}"); A(f"v_mul_f32 v{xb+i+1}, v{xb+i+1}, v{t1}")
        bf_round_pair(A, xb+i, xb+i+1, t2)

def role_H(A, U, sJ):
    A("s_load_dwordx2 s[40:41], s[0:1], 0")
    A("v_lshrrev_b32 v2, 3, v0"); A("v_and_b32 v3, 7, v0")
    A(f"s_lshl_b32 s34, s{sW}, 3"); A("v_add_u32 v2, s34, v2")
    A("v_lshlrev_b32 v4, 10, v2"); A("v_lshlrev_b32 v5, 4, v3"); A("v_add_u32 v4, v4, v5")
    A(f"s_lshl_b32 s34, s{sJ}, 15"); A("v_add_u32 v4, s34, v4")
    A("s_waitcnt lgkmcnt(0)")
    for i in range(8): A(f"global_load_dwordx4 v[{16+4*i}:{19+4*i}], v4, s[40:41] offset:{i*128}")
    A("s_waitcnt vmcnt(0)")
    XB = 64
    for i in range(32):
        A(f"v_lshlrev_b32 v{XB+2*i}, 16, v{16+i}"); A(f"v_and_b32 v{XB+2*i+1}, 0xffff0000, v{16+i}")
    A(f"s_mov_b32 s35, {fbits(1e-5):#x}")
    ln_rows(A, XB, 64, 35, (8, 9, 10, 11, 12, 13))
    U.wait_cnt(sDBG, 16, off=D_MODA*4)
    U.add64(42, sWS, WS_MOD)
    A("v_lshlrev_b32 v6, 5, v3")
    A("v_lshrrev_b32 v7, 4, v2"); A("v_lshlrev_b32 v7, 14, v7"); A("v_lshrrev_b32 v8, 2, v3"); A("v_lshlrev_b32 v8, 10, v8"); A("v_add_u32 v7, v7, v8")
    A("v_and_b32 v8, 3, v3"); A("v_lshlrev_b32 v8, 8, v8"); A("v_add_u32 v7, v7, v8")
    A("v_and_b32 v8, 15, v2"); A("v_lshlrev_b32 v8, 4, v8"); A("v_add_u32 v7, v7, v8")
    A(f"s_lshl_b32 s34, s{sJ}, 15"); A(f"s_add_u32 s34, s34, {WS_HF}"); U.add64(44, sWS, "s34")
    for i in range(8):
        A(f"global_load_dwordx4 v[16:19], v6, s[42:43] offset:{i*256} sc1"); A(f"global_load_dwordx4 v[20:23], v6, s[42:43] offset:{i*256+16} sc1")
        A(f"global_load_dwordx4 v[24:27], v6, s[42:43] offset:{2048+i*256} sc1"); A(f"global_load_dwordx4 v[28:31], v6, s[42:43] offset:{2048+i*256+16} sc1")
        A("s_waitcnt vmcnt(0)")
        for k in range(0, 8, 2):
            a, b = 24+k, 25+k
            A(f"v_add_f32 v{a}, 1.0, v{a}"); A(f"v_add_f32 v{b}, 1.0, v{b}"); bf_round_pair(A, a, b, 10)
            x0, x1 = XB+8*i+k, XB+8*i+k+1
            A(f"v_mul_f32 v{x0}, v{x0}, v{a}"); A(f"v_mul_f32 v{x1}, v{x1}, v{b}"); bf_round_pair(A, x0, x1, 10)
            A(f"v_add_f32 v{x0}, v{x0}, v{16+k}"); A(f"v_add_f32 v{x1}, v{x1}, v{17+k}")
            A(f"v_cvt_pk_bf16_f32 v{32+k//2}, v{x0}, v{x1}")
        A(f"global_store_dwordx4 v7, v[32:35], s[44:45] sc1")
        A("v_add_u32 v7, 2048, v7")
    A(f"s_lshl_b32 s34, s{sJ}, 6"); A(f"s_add_u32 s34, s34, {cnt_off(C_HRDY)}"); U.add64(44, sWS, "s34")
    U.signal(44)

def role_G(A, U, sHd, sRep, nrep=7, do_q=True):
    WL = WLoad(A, LB=0, vb=200)
    A("s_load_dwordx4 s[40:43], s[0:1], 16"); A("s_load_dwordx2 s[44:45], s[0:1], 32")
    WL.setup(8192, "nat", "tile")
    A(f"s_lshl_b32 s34, s{sW}, 6"); A(f"v_xor_b32 v210, s34, v{WL.vT}"); A("v_xor_b32 v211, 32, v210")
    A("v_add_u32 v212, 0x10000, v210"); A("v_add_u32 v213, 0x10000, v211")
    A("s_waitcnt lgkmcnt(0)")
    A(f"s_lshl_b32 s34, s{sHd}, 8")
    for b in (40, 42, 44): A(f"s_add_u32 s{b}, s{b}, s34"); A(f"s_addc_u32 s{b+1}, s{b+1}, 0")
    def load_mats(mats):
        n = 8*len(mats)
        for c in range(8): WL.dma(mats[c//8][0], (c % 8)*64*8192, c % 8)
        for c in range(n):
            mi, t = divmod(c, 8); slot = c % 8
            rem = min(n - 1 - c, 7)
            A(f"s_waitcnt vmcnt({4*rem})"); A("s_barrier")
            for X in range(2):
                for q4 in range(4):
                    WL.tr(ar(mats[mi][1] + (X*8 + t)*8 + 2*q4, 2), 210+X, 212+X, slot, [0, 4, 32, 36][q4])
            A("s_waitcnt lgkmcnt(0)"); A("s_barrier")
            if c + 8 < n: WL.dma(mats[(c+8)//8][0], ((c+8) % 8)*64*8192, slot)
    A("v_lshlrev_b32 v2, 4, v0")
    A(f"s_lshl_b32 s34, s{sW}, 13"); A("v_add_u32 v3, s34, v2")
    def seg_loop(tag, mode):
        sS, sN, sB = 46, 47, 48
        def issue_h(sseg, sbuf):
            A(f"s_lshl_b32 s34, s{sseg}, 6"); A(f"s_add_u32 s34, s34, {cnt_off(C_HRDY)}"); U.add64(50, sWS, "s34")
            U.wait_cnt(50, 1)
            A(f"s_lshl_b32 s34, s{sseg}, 15"); A(f"s_add_u32 s34, s34, {WS_HF}"); U.add64(50, sWS, "s34")
            for i in range(8):
                if i % 4 == 0:
                    A(f"s_lshl_b32 s34, s{sW}, 13"); A(f"s_add_u32 s34, s34, s{sbuf}"); A(f"s_add_u32 m0, s34, {i*1024}")
                    if i: A("s_add_u32 s50, s50, 4096"); A("s_addc_u32 s51, s51, 0")
                A(f"global_load_lds_dwordx4 v3, s[50:51] offset:{(i % 4)*1024} sc1")
        A(f"s_mov_b32 s{sS}, s{sRep}"); A(f"s_mov_b32 s{sB}, 0")
        issue_h(sS, sB)
        A.label(f"G{tag}_loop")
        A(f"s_add_u32 s{sN}, s{sS}, {nrep}")
        A("s_waitcnt vmcnt(0)"); A("s_barrier")
        Ls = A.newlabel("Gn")
        A(f"s_xor_b32 s49, s{sB}, 32768")
        A(f"s_cmp_ge_u32 s{sN}, 64"); A(f"s_cbranch_scc1 {Ls}")
        issue_h(sN, 49)
        A.label(Ls)
        A(f"v_add_u32 v4, s{sB}, v2")
        ACK, ACV, HFR = 16, 32, 64
        nacc = 32 if mode == 'kv' else 16
        for i in range(0, nacc, 2): A(f"v_mov_b64 {r(16+i,2)}, 0")
        for n in range(4): A(f"ds_read_b128 {r(HFR+4*n,4)}, v4 offset:{n*1024}")
        for n in range(32):
            Xt, t = divmod(n, 16)
            if n + 4 < 32: A(f"ds_read_b128 {r(HFR+4*((n+4) % 8),4)}, v4 offset:{(n+4)*1024}")
            A(f"s_waitcnt lgkmcnt({min(4, 31-n)})")
            hf = r(HFR+4*(n % 8), 4)
            for Xe in range(2):
                wk = ar((Xe*16 + t)*4, 4)
                d = r(ACK + (Xt*2 + Xe)*4, 4)
                A(f"v_mfma_f32_16x16x32_bf16 {d}, {wk}, {hf}, {d}")
            if mode == 'kv':
                for Xe in range(2):
                    wv = ar(128 + (Xe*16 + t)*4, 4)
                    d = r(ACV + (Xt*2 + Xe)*4, 4)
                    A(f"v_mfma_f32_16x16x32_bf16 {d}, {hf}, {wv}, {d}")
        A(f"s_lshl_b32 s34, s{sS}, 18"); A(f"s_lshl_b32 s35, s{sHd}, 13"); A("s_add_u32 s34, s34, s35")
        A(f"s_add_u32 s35, s34, {WS_KX if mode == 'kv' else WS_QX}"); U.add64(52, sWS, "s35")
        A(f"s_lshl_b32 s35, s{sW}, 10"); A("v_add_u32 v5, s35, v2")
        for Xt in range(2):
            a0, a1 = ACK + (Xt*2)*4, ACK + (Xt*2+1)*4
            o = 100 + 4*Xt
            A(f"v_cvt_pk_bf16_f32 v{o}, v{a0}, v{a0+1}"); A(f"v_cvt_pk_bf16_f32 v{o+1}, v{a0+2}, v{a0+3}")
            A(f"v_cvt_pk_bf16_f32 v{o+2}, v{a1}, v{a1+1}"); A(f"v_cvt_pk_bf16_f32 v{o+3}, v{a1+2}, v{a1+3}")
        A(f"global_store_dwordx4 v5, v[100:103], s[52:53] sc1")
        A("v_add_u32 v6, 4096, v5"); A(f"global_store_dwordx4 v6, v[104:107], s[52:53] sc1")
        if mode == 'kv':
            A(f"s_add_u32 s35, s34, {WS_VX}"); U.add64(52, sWS, "s35")
            A(f"s_lshl_b32 s35, s{sW}, 11"); A("v_add_u32 v5, s35, v2")
            for Xe in range(2):
                a0, a1 = ACV + Xe*4, ACV + (2 + Xe)*4
                o = 108 + 4*Xe
                A(f"v_cvt_pk_bf16_f32 v{o}, v{a0}, v{a0+1}"); A(f"v_cvt_pk_bf16_f32 v{o+1}, v{a0+2}, v{a0+3}")
                A(f"v_cvt_pk_bf16_f32 v{o+2}, v{a1}, v{a1+1}"); A(f"v_cvt_pk_bf16_f32 v{o+3}, v{a1+2}, v{a1+3}")
                A(f"global_store_dwordx4 v5, v[{o}:{o+3}], s[52:53] offset:{Xe*1024} sc1")
        A(f"s_lshl_b32 s34, s{sS}, 6"); A(f"s_add_u32 s34, s34, {cnt_off(C_KV if mode == 'kv' else C_QD)}"); U.add64(52, sWS, "s34")
        U.signal(52)
        A(f"s_mov_b32 s{sS}, s{sN}"); A(f"s_mov_b32 s{sB}, s49")
        A(f"s_cmp_lt_u32 s{sS}, 64"); A(f"s_cbranch_scc1 G{tag}_loop")
    load_mats([(42, 0), (44, 128)])
    seg_loop("kv", "kv")
    if do_q:
        A("s_barrier")
        load_mats([(40, 0)])
        seg_loop("q", "q")
```

```python
from common import *
from roles1 import WLoad, bf_round_pair
SC_C = 0.08838834764831845 * 1.4426950408889634
MF = "v_mfma_f32_16x16x32_bf16"; MF16 = "v_mfma_f32_16x16x16_bf16"
EXP_TARGET = 32 * 0x4444

def cnt_addr(A, U, d, arr, sseg):
    A(f"s_lshl_b32 s34, s{sseg}, 6"); A(f"s_add_u32 s34, s34, {cnt_off(arr)}"); U.add64(d, sWS, "s34")

def role_A(A, U, sJ):
    sHG, sNH, sRep, sS, sHd = 14, 15, 16, 17, 18
    A(f"s_and_b32 s{sHG}, s{sJ}, 7"); A(f"s_bfe_u32 s{sNH}, s{sJ}, 0x10003"); A(f"s_lshr_b32 s{sRep}, s{sJ}, 4")
    A(f"s_lshl_b32 s{sHd}, s{sHG}, 2"); A(f"s_add_u32 s{sHd}, s{sHd}, s{sW}")
    WL = WLoad(A, LB=0, vb=200)
    A("s_load_dwordx2 s[40:41], s[0:1], 40")
    WL.setup(1024, "split", "pair")
    A(f"s_and_b32 s34, s{sW}, 1"); A("s_lshl_b32 s34, s34, 7"); A(f"v_xor_b32 v210, s34, v{WL.vT}"); A("v_xor_b32 v211, 64, v210")
    A(f"s_lshr_b32 s34, s{sW}, 1"); A("s_lshl_b32 s34, s34, 14"); A("v_add_u32 v210, s34, v210"); A("v_add_u32 v211, s34, v211")
    A("v_add_u32 v212, 0x10000, v210"); A("v_add_u32 v213, 0x10000, v211")
    A("s_waitcnt lgkmcnt(0)")
    A(f"s_lshl_b32 s34, s{sHG}, 19"); A(f"s_lshl_b32 s35, s{sNH}, 9"); A("s_add_u32 s34, s34, s35")
    A("s_add_u32 s40, s40, s34"); A("s_addc_u32 s41, s41, 0")
    U.add64(42, 40, 256)
    def dma_pair(rb, sl):
        WL.dma(40, rb*64*1024, 2*sl); WL.dma(42, rb*64*1024, 2*sl+1)
    for rb in range(4): dma_pair(rb, rb)
    for rb in range(8):
        sl = rb % 4
        A(f"s_waitcnt vmcnt({8*min(3, 7-rb)})"); A("s_barrier")
        for u in range(2):
            kk = 2*rb + u
            for pp in range(2):
                for a in range(2):
                    q = 2*pp + a
                    for hf in range(2):
                        WL.tr(ar((kk*4 + q)*4 + 2*hf, 2), 210+pp, 212+pp, 2*sl, 32*u + 16*hf, extra=8*a)
        A("s_waitcnt lgkmcnt(0)"); A("s_barrier")
        if rb + 4 < 8: dma_pair(rb+4, sl)
    QF, KF, VF, KM, VM, SS, OO, PX, PM, ACC, ONE, HALF = 16, 48, 80, 112, 128, 144, 164, 228, 236, 240, 8, 12
    LL = 240
    A("v_lshlrev_b32 v2, 4, v0")
    for i in range(4): A(f"v_mov_b32 v{ONE+i}, 0x3f803f80")
    A("v_lshrrev_b32 v3, 4, v0"); A("v_and_b32 v4, 15, v0")
    A(f"v_cmp_gt_u32 vcc, 2, v3"); A(f"v_cndmask_b32 v{HALF}, 0, v{ONE}, vcc"); A(f"v_mov_b32 v{HALF+1}, v{HALF}")
    for j in range(4):
        A("v_lshlrev_b32 v5, 2, v3"); A(f"v_add_u32 v5, {j}, v5"); A(f"v_cmp_gt_u32 s[{20+2*j}:{21+2*j}], v5, v4")
    A(f"s_mov_b32 s28, {fbits(SC_C):#x}"); A(f"s_mov_b32 s29, {fbits(-1e30):#x}")
    A("v_lshrrev_b32 v5, 2, v0"); A("v_lshlrev_b32 v5, 4, v5"); A("v_and_b32 v6, 1, v0"); A("v_lshlrev_b32 v6, 3, v6"); A("v_add_u32 v5, v5, v6")
    A(f"s_lshl_b32 s34, s{sW}, 11"); A("s_add_u32 s30, s34, 40960"); A("v_add_u32 v5, s30, v5")
    A(f"s_lshl_b32 s34, s{sW}, 12"); A("v_add_u32 v6, s34, v2")
    A("v_lshlrev_b32 v7, 10, v4"); A("v_lshlrev_b32 v14, 4, v3"); A("v_add_u32 v7, v7, v14")
    A(f"s_lshl_b32 s34, s{sW}, 7"); A(f"s_lshl_b32 s35, s{sNH}, 9"); A("s_add_u32 s34, s34, s35"); A("v_add_u32 v7, s34, v7")
    A(f"s_mov_b32 s{sS}, s{sRep}")
    A.label("A_loop")
    cnt_addr(A, U, 42, C_QD, sS); U.wait_cnt(42, 32)
    cnt_addr(A, U, 42, C_KV, sS); U.wait_cnt(42, 32)
    A(f"s_lshl_b32 s34, s{sS}, 5"); A(f"s_add_u32 s31, s34, s{sHd}")
    A("s_lshl_b32 s34, s31, 13")
    for nm, base, reg in (("q", WS_QX, QF), ("k", WS_KX, KF), ("v", WS_VX, VF)):
        A(f"s_add_u32 s35, s34, {base}"); U.add64(44, sWS, "s35")
        for f in range(8):
            if f == 4: A("s_add_u32 s44, s44, 4096"); A("s_addc_u32 s45, s45, 0")
            A(f"global_load_dwordx4 {r(reg+4*f,4)}, v2, s[44:45] offset:{(f % 4)*1024} sc1")
    A("s_waitcnt vmcnt(8)")
    tiles = [(0, 0), (0, 1), (1, 1)]
    for t in range(4):
        for i, (Y, Xq) in enumerate(tiles):
            d = r(SS+4*i, 4)
            A(f"{MF} {d}, {r(KF+(Y*4+t)*4,4)}, {r(QF+(Xq*4+t)*4,4)}, {'0' if t == 0 else d}")
    cnt_addr(A, U, 42, C_EXP, sS); A(f"s_mov_b32 s33, {EXP_TARGET}"); U.wait_cnt(42, "s33", sleep=2)
    A("s_lshl_b32 s34, s31, 11"); A(f"s_add_u32 s34, s34, {WS_EK}"); U.add64(44, sWS, "s34")
    A("s_mov_b32 m0, s30")
    A("global_load_lds_dwordx4 v2, s[44:45] sc1"); A("global_load_lds_dwordx4 v2, s[44:45] offset:1024 sc1")
    A("s_lshl_b32 s34, s31, 13"); A(f"s_add_u32 s34, s34, {WS_EV}"); U.add64(44, sWS, "s34")
    for wp in range(4):
        if wp == 2: A("s_add_u32 s44, s44, 4096"); A("s_addc_u32 s45, s45, 0")
        A(f"global_load_dwordx4 {r(VM+4*wp,4)}, v2, s[44:45] offset:{(wp % 2)*2048} sc1")
    A("s_waitcnt vmcnt(0)")
    for t in range(4):
        for hf in range(2): A(f"ds_read_b64_tr_b16 {r(KM+4*t+2*hf,2)}, v5 offset:{t*512 + hf*256}")
    A("s_waitcnt lgkmcnt(0)")
    for t in range(4):
        for Xq in range(2):
            d = r(SS+12+4*Xq, 4)
            A(f"{MF} {d}, {r(KM+4*t,4)}, {r(QF+(Xq*4+t)*4,4)}, {'0' if t == 0 else d}")
    A("v_mov_b32 v15, s29")
    for i in (0, 2):
        for j in range(4): A(f"v_cndmask_b32 v{SS+4*i+j}, v{SS+4*i+j}, v15, s[{20+2*j}:{21+2*j}]")
    mx, t1 = 14, 15
    for Xq in range(2):
        regs = ([SS+0+j for j in range(4)] + [SS+12+j for j in range(4)]) if Xq == 0 else \
               ([SS+4+j for j in range(4)] + [SS+8+j for j in range(4)] + [SS+16+j for j in range(4)])
        A(f"v_max3_f32 v{mx}, v{regs[0]}, v{regs[1]}, v{regs[2]}")
        rest = regs[3:]
        while len(rest) >= 2: A(f"v_max3_f32 v{mx}, v{mx}, v{rest[0]}, v{rest[1]}"); rest = rest[2:]
        if rest: A(f"v_max_f32 v{mx}, v{mx}, v{rest[0]}")
        A(f"v_mov_b32 v{t1}, v{mx}"); A(f"v_permlane16_swap_b32 v{mx}, v{t1}"); A(f"v_max_f32 v{mx}, v{mx}, v{t1}")
        A(f"v_mov_b32 v{t1}, v{mx}"); A(f"v_permlane32_swap_b32 v{mx}, v{t1}"); A(f"v_max_f32 v{mx}, v{mx}, v{t1}")
        A(f"v_mul_f32 v{mx}, s28, v{mx}")
        for x in regs: A(f"v_fma_f32 v{x}, v{x}, s28, -v{mx}")
        for x in regs: A(f"v_exp_f32 v{x}, v{x}")
        px = PX + 4*Xq; pm = PM + 2*Xq
        if Xq == 0:
            A(f"v_cvt_pk_bf16_f32 v{px}, v{SS}, v{SS+1}"); A(f"v_cvt_pk_bf16_f32 v{px+1}, v{SS+2}, v{SS+3}")
            A(f"v_mov_b32 v{px+2}, 0"); A(f"v_mov_b32 v{px+3}, 0")
            m = SS+12
        else:
            A(f"v_cvt_pk_bf16_f32 v{px}, v{SS+4}, v{SS+5}"); A(f"v_cvt_pk_bf16_f32 v{px+1}, v{SS+6}, v{SS+7}")
            A(f"v_cvt_pk_bf16_f32 v{px+2}, v{SS+8}, v{SS+9}"); A(f"v_cvt_pk_bf16_f32 v{px+3}, v{SS+10}, v{SS+11}")
            m = SS+16
        A(f"v_cvt_pk_bf16_f32 v{pm}, v{m}, v{m+1}"); A(f"v_cvt_pk_bf16_f32 v{pm+1}, v{m+2}, v{m+3}")
    for Xq in range(2):
        A(f"{MF} {r(LL+4*Xq,4)}, {r(ONE,4)}, {r(PX+4*Xq,4)}, 0")
        for E in range(8): A(f"{MF} {r(OO+(E*2+Xq)*4,4)}, {r(VF+4*E,4)}, {r(PX+4*Xq,4)}, 0")
    for Xq in range(2):
        A(f"{MF16} {r(LL+4*Xq,4)}, {r(HALF,2)}, {r(PM+2*Xq,2)}, {r(LL+4*Xq,4)}")
        for E in range(8):
            d = r(OO+(E*2+Xq)*4, 4)
            A(f"{MF16} {d}, {r(VM+2*E,2)}, {r(PM+2*Xq,2)}, {d}")
    for Xq in range(2):
        A(f"v_rcp_f32 v{mx}, v{LL+4*Xq}")
        for t in range(4):
            o = QF + 4*t
            for hf in range(2):
                b = OO + ((2*t+hf)*2 + Xq)*4
                for j in range(4): A(f"v_mul_f32 v{b+j}, v{mx}, v{b+j}")
                A(f"v_cvt_pk_bf16_f32 v{o+2*hf}, v{b}, v{b+1}"); A(f"v_cvt_pk_bf16_f32 v{o+2*hf+1}, v{b+2}, v{b+3}")
            A(f"ds_write_b128 v6, {r(o,4)} offset:{Xq*16384 + t*1024}")
    A("s_waitcnt lgkmcnt(0)"); A("s_barrier")
    AC2 = KF; OFR = VF
    for i in range(0, 32, 2): A(f"v_mov_b64 {r(AC2+i,2)}, 0")
    for n in range(4): A(f"ds_read_b128 {r(OFR+4*n,4)}, v2 offset:{n*1024}")
    for n in range(32):
        Xq, kk = divmod(n, 16)
        if n + 4 < 32: A(f"ds_read_b128 {r(OFR+4*((n+4) % 8),4)}, v2 offset:{(n+4)*1024}")
        A(f"s_waitcnt lgkmcnt({min(4, 31-n)})")
        for q in range(4):
            d = r(AC2 + (q*2+Xq)*4, 4)
            A(f"{MF} {d}, {ar((kk*4+q)*4,4)}, {r(OFR+4*(n % 8),4)}, {d}")
    A(f"s_lshl_b32 s34, s{sS}, 3"); A(f"s_add_u32 s34, s34, s{sHG}"); A("s_lshl_b32 s34, s34, 15"); A(f"s_add_u32 s34, s34, {WS_YP}"); U.add64(44, sWS, "s34")
    for Xq in range(2):
        for pp in range(2):
            a0 = AC2 + ((2*pp)*2+Xq)*4; a1 = AC2 + ((2*pp+1)*2+Xq)*4
            o = QF + 4*(Xq*2+pp)
            A(f"v_cvt_pk_bf16_f32 v{o}, v{a0}, v{a0+1}"); A(f"v_cvt_pk_bf16_f32 v{o+1}, v{a0+2}, v{a0+3}")
            A(f"v_cvt_pk_bf16_f32 v{o+2}, v{a1}, v{a1+1}"); A(f"v_cvt_pk_bf16_f32 v{o+3}, v{a1+2}, v{a1+3}")
        if Xq == 1: A("s_add_u32 s44, s44, 16384"); A("s_addc_u32 s45, s45, 0")
        for pp in range(2):
            A(f"global_store_dwordx4 v7, {r(QF+4*(Xq*2+pp),4)}, s[44:45] offset:{pp*64} sc1")
    cnt_addr(A, U, 42, C_AD, sS); U.signal(42)
    A(f"s_add_u32 s{sS}, s{sS}, 4"); A(f"s_cmp_lt_u32 s{sS}, 64"); A("s_cbranch_scc1 A_loop")

def wave_sum(A, v, t):
    A(f"v_add_f32_dpp v{v}, v{v}, v{v} quad_perm:[1,0,3,2] row_mask:0xf bank_mask:0xf")
    A(f"v_add_f32_dpp v{v}, v{v}, v{v} quad_perm:[2,3,0,1] row_mask:0xf bank_mask:0xf")
    A(f"v_add_f32_dpp v{v}, v{v}, v{v} row_half_mirror row_mask:0xf bank_mask:0xf")
    A(f"v_add_f32_dpp v{v}, v{v}, v{v} row_mirror row_mask:0xf bank_mask:0xf")
    A(f"v_mov_b32 v{t}, v{v}"); A(f"v_permlane16_swap_b32 v{v}, v{t}"); A(f"v_add_f32 v{v}, v{v}, v{t}")
    A(f"v_mov_b32 v{t}, v{v}"); A(f"v_permlane32_swap_b32 v{v}, v{t}"); A(f"v_add_f32 v{v}, v{v}, v{t}")

def unpack8(A, src, dst):
    for k in range(4):
        A(f"v_lshlrev_b32 v{dst+2*k}, 16, v{src+k}"); A(f"v_and_b32 v{dst+2*k+1}, 0xffff0000, v{src+k}")

def role_R(A, U, sJ):
    sRG, sRep, sS = 14, 15, 17
    A(f"s_sub_u32 s34, s{sJ}, 108"); A(f"s_and_b32 s{sRG}, s34, 3"); A(f"s_lshr_b32 s{sRep}, s34, 2")
    A("s_load_dwordx2 s[40:41], s[0:1], 0"); A("s_load_dwordx2 s[46:47], s[0:1], 88"); A("s_load_dwordx2 s[48:49], s[0:1], 112")
    A("v_lshlrev_b32 v2, 4, v0"); A("v_lshlrev_b32 v3, 5, v0")
    U.wait_cnt(sDBG, 32, off=D_MODB*4)
    U.add64(42, sWS, WS_MOD + 2*2048)
    GA, SB, CB, GB, B2 = 16, 24, 32, 40, 48
    for i, reg in enumerate((GA, SB, CB, GB)):
        U.add64(44, 42, i*2048)
        A(f"global_load_dwordx4 {r(reg,4)}, v3, s[44:45] sc1"); A(f"global_load_dwordx4 {r(reg+4,4)}, v3, s[44:45] offset:16 sc1")
    A("s_waitcnt lgkmcnt(0)")
    A("global_load_dwordx4 v[56:59], v2, s[46:47]")
    A("s_waitcnt vmcnt(0)")
    unpack8(A, 56, B2)
    for k in range(0, 8, 2):
        A(f"v_add_f32 v{CB+k}, 1.0, v{CB+k}"); A(f"v_add_f32 v{CB+k+1}, 1.0, v{CB+k+1}"); bf_round_pair(A, CB+k, CB+k+1, 60)
    A(f"s_mov_b32 s35, {fbits(1e-5):#x}"); A("s_mov_b32 s33, s35")
    A(f"s_lshl_b32 s18, s{sRG}, 3"); A(f"s_lshl_b32 s34, s{sW}, 1"); A("s_add_u32 s18, s18, s34")
    A("v_lshrrev_b32 v4, 2, v0"); A("v_lshlrev_b32 v4, 10, v4"); A("v_and_b32 v5, 3, v0"); A("v_lshlrev_b32 v5, 8, v5"); A("v_add_u32 v4, v4, v5")
    X1R = 64
    LD = 96
    A(f"s_mov_b32 s{sS}, s{sRep}")
    A.label("R_loop")
    cnt_addr(A, U, 42, C_AD, sS); U.wait_cnt(42, 16, sleep=2)
    for i in range(2):
        A(f"s_lshl_b32 s34, s{sS}, 18"); A(f"s_add_u32 s19, s18, {i}"); A("s_lshl_b32 s19, s19, 10"); A("s_add_u32 s34, s34, s19"); A(f"s_add_u32 s34, s34, {WS_YP}")
        U.add64(44, sWS, "s34")
        for hg in range(8):
            A(f"global_load_dwordx4 {r(LD+i*36+4*hg,4)}, v2, s[44:45] sc1"); A("s_add_u32 s44, s44, 32768"); A("s_addc_u32 s45, s45, 0")
        A(f"s_lshl_b32 s34, s{sS}, 15"); A("s_add_u32 s34, s34, s19"); U.add64(44, 40, "s34")
        A(f"global_load_dwordx4 {r(LD+i*36+32,4)}, v2, s[44:45]")
    A("s_waitcnt vmcnt(0)")
    for i in range(2):
        xr = X1R + 8*i
        ac = 80
        unpack8(A, LD+i*36, ac)
        for hg in range(1, 8):
            unpack8(A, LD+i*36+4*hg, 88)
            for k in range(8): A(f"v_add_f32 v{ac+k}, v{ac+k}, v{88+k}")
        unpack8(A, LD+i*36+32, xr)
        for k in range(0, 8, 2):
            bf_round_pair(A, ac+k, ac+k+1, 60)
            A(f"v_mul_f32 v{ac+k}, v{GA+k}, v{ac+k}"); A(f"v_mul_f32 v{ac+k+1}, v{GA+k+1}, v{ac+k+1}"); bf_round_pair(A, ac+k, ac+k+1, 60)
            A(f"v_add_f32 v{xr+k}, v{xr+k}, v{ac+k}"); A(f"v_add_f32 v{xr+k+1}, v{xr+k+1}, v{ac+k+1}"); bf_round_pair(A, xr+k, xr+k+1, 60)
        t0, t1, t2, t3, t4 = 6, 7, 8, 9, 10
        A(f"v_add_f32 v{t0}, v{xr}, v{xr+1}")
        for k in range(2, 8): A(f"v_add_f32 v{t0}, v{t0}, v{xr+k}")
        wave_sum(A, t0, t2); A(f"v_mul_f32 v{t0}, {fbits(1.0/512):#x}, v{t0}")
        A(f"v_mov_b32 v{t1}, 0")
        for k in range(8): A(f"v_sub_f32 v{t3}, v{xr+k}, v{t0}"); A(f"v_fmac_f32 v{t1}, v{t3}, v{t3}")
        wave_sum(A, t1, t2); A(f"v_mul_f32 v{t1}, {fbits(1.0/512):#x}, v{t1}")
        bf_round_pair(A, t0, t1, t2)
        A(f"v_add_f32 v{t1}, s33, v{t1}"); A(f"v_cvt_pk_bf16_f32 v{t1}, v{t1}, v{t1}"); A(f"v_lshlrev_b32 v{t1}, 16, v{t1}")
        A(f"v_sqrt_f32 v{t1}, v{t1}"); A(f"v_cvt_pk_bf16_f32 v{t1}, v{t1}, v{t1}"); A(f"v_lshlrev_b32 v{t1}, 16, v{t1}"); A(f"v_rcp_f32 v{t1}, v{t1}")
        for k in range(0, 8, 2):
            a, b = ac+k, ac+k+1
            A(f"v_sub_f32 v{a}, v{xr+k}, v{t0}"); A(f"v_sub_f32 v{b}, v{xr+k+1}, v{t0}"); bf_round_pair(A, a, b, t2)
            A(f"v_mul_f32 v{a}, v{a}, v{t1}"); A(f"v_mul_f32 v{b}, v{b}, v{t1}"); bf_round_pair(A, a, b, t2)
            A(f"v_mul_f32 v{a}, v{a}, v{CB+k}"); A(f"v_mul_f32 v{b}, v{b}, v{CB+k+1}"); bf_round_pair(A, a, b, t2)
            A(f"v_add_f32 v{a}, v{a}, v{SB+k}"); A(f"v_add_f32 v{b}, v{b}, v{SB+k+1}")
            A(f"v_cvt_pk_bf16_f32 v{88+k//2}, v{a}, v{b}")
        A(f"s_add_u32 s19, s18, {i}"); A("s_lshr_b32 s34, s19, 4"); A("s_lshl_b32 s34, s34, 14"); A("s_and_b32 s36, s19, 15"); A("s_lshl_b32 s36, s36, 4"); A("s_add_u32 s34, s34, s36")
        A(f"s_lshl_b32 s36, s{sS}, 15"); A("s_add_u32 s34, s34, s36"); A(f"s_add_u32 s34, s34, {WS_H2F}"); U.add64(44, sWS, "s34")
        A("global_store_dwordx4 v4, v[88:91], s[44:45] sc1")
        for k in range(0, 8, 2): A(f"v_cvt_pk_bf16_f32 v{92+k//2}, v{xr+k}, v{xr+k+1}")
        A(f"s_lshl_b32 s34, s{sS}, 15"); A("s_lshl_b32 s36, s19, 10"); A("s_add_u32 s34, s34, s36"); A(f"s_add_u32 s34, s34, {WS_X1}"); U.add64(44, sWS, "s34")
        A("global_store_dwordx4 v2, v[92:95], s[44:45]")
    cnt_addr(A, U, 42, C_R1, sS); U.signal(42)
    cnt_addr(A, U, 42, C_CD, sS); U.wait_cnt(42, 11, sleep=2)
    for i in range(2):
        A(f"s_mul_i32 s34, s{sS}, {11*32768}"); A(f"s_add_u32 s19, s18, {i}"); A("s_lshl_b32 s19, s19, 10"); A("s_add_u32 s34, s34, s19"); A(f"s_add_u32 s34, s34, {WS_FP}")
        U.add64(44, sWS, "s34")
        for f in range(11):
            A(f"global_load_dwordx4 {r(LD+i*44+4*f,4)}, v2, s[44:45] sc1"); A("s_add_u32 s44, s44, 32768"); A("s_addc_u32 s45, s45, 0")
    A("s_waitcnt vmcnt(0)")
    for i in range(2):
        xr = X1R + 8*i; ac = 80
        unpack8(A, LD+i*44, ac)
        for f in range(1, 11):
            unpack8(A, LD+i*44+4*f, 88)
            for k in range(8): A(f"v_add_f32 v{ac+k}, v{ac+k}, v{88+k}")
        for k in range(0, 8, 2):
            a, b = ac+k, ac+k+1
            bf_round_pair(A, a, b, 60)
            A(f"v_add_f32 v{a}, v{a}, v{B2+k}"); A(f"v_add_f32 v{b}, v{b}, v{B2+k+1}"); bf_round_pair(A, a, b, 60)
            A(f"v_mul_f32 v{a}, v{a}, v{GB+k}"); A(f"v_mul_f32 v{b}, v{b}, v{GB+k+1}"); bf_round_pair(A, a, b, 60)
            A(f"v_add_f32 v{a}, v{a}, v{xr+k}"); A(f"v_add_f32 v{b}, v{b}, v{xr+k+1}")
            A(f"v_cvt_pk_bf16_f32 v{88+k//2}, v{a}, v{b}")
        A(f"s_add_u32 s19, s18, {i}"); A(f"s_lshl_b32 s34, s{sS}, 15"); A("s_lshl_b32 s36, s19, 10"); A("s_add_u32 s34, s34, s36"); U.add64(44, 48, "s34")
        A("global_store_dwordx4 v2, v[88:91], s[44:45]")
        A("s_nop 1")
    A(f"s_add_u32 s{sS}, s{sS}, 8"); A(f"s_cmp_lt_u32 s{sS}, 64"); A("s_cbranch_scc1 R_loop")
    A("s_waitcnt vmcnt(0)")

def role_C(A, U, sJ):
    sF, sRep, sS = 14, 15, 17
    A(f"s_sub_u32 s34, s{sJ}, 64"); A("s_mul_i32 s35, s34, 0x1746"); A(f"s_lshr_b32 s{sRep}, s35, 16")
    A(f"s_mul_i32 s35, s{sRep}, 11"); A(f"s_sub_u32 s{sF}, s34, s35")
    A("s_load_dwordx4 s[40:43], s[0:1], 64"); A("s_load_dwordx2 s[44:45], s[0:1], 80")
    WL = WLoad(A, LB=0, vb=200)
    WL.setup(2752, "nat", "tile")
    Lc = A.newlabel("Cnc")
    A(f"s_cmp_lg_u32 s{sF}, 10"); A(f"s_cbranch_scc1 {Lc}")
    for v, x in ((WL.vS0, 0), (WL.vS1, 8)):
        A("v_lshrrev_b32 v214, 4, v0"); A("v_lshlrev_b32 v214, 1, v214"); A("v_and_b32 v215, 15, v0"); A("v_xor_b32 v214, v214, v215")
        if x: A(f"v_xor_b32 v214, {x}, v214")
        A("v_cmp_le_u32 vcc, 12, v214"); A("v_lshlrev_b32 v214, 4, v214"); A(f"v_sub_u32 v214, v{v}, v214")
        A(f"v_cndmask_b32 v{v}, v{v}, v214, vcc")
    A.label(Lc)
    A(f"s_lshl_b32 s34, s{sW}, 6"); A(f"v_xor_b32 v210, s34, v{WL.vT}"); A("v_xor_b32 v211, 32, v210")
    A("v_add_u32 v212, 0x10000, v210"); A("v_add_u32 v213, 0x10000, v211")
    A("s_waitcnt lgkmcnt(0)")
    A(f"s_lshl_b32 s34, s{sF}, 8"); A("s_add_u32 s40, s40, s34"); A("s_addc_u32 s41, s41, 0")
    for c in range(8): WL.dma(40, c*64*2752, c)
    for c in range(8):
        A(f"s_waitcnt vmcnt({4*(7-c)})"); A("s_barrier")
        for X in range(2):
            for q4 in range(4): WL.tr(ar((X*8 + c)*8 + 2*q4, 2), 210+X, 212+X, c, [0, 4, 32, 36][q4])
        A("s_waitcnt lgkmcnt(0)")
    A("s_barrier")
    WL2 = WLoad(A, LB=0, vb=200)
    WL2.setup(1024, "split", "pair")
    A(f"s_lshl_b32 s34, s{sF}, 17"); A("s_add_u32 s44, s44, s34"); A("s_addc_u32 s45, s45, 0")
    A(f"s_cmp_eq_u32 s{sF}, 10"); A("s_cselect_b32 s34, 1, 0"); A(f"s_cmp_ge_u32 s{sW}, 2"); A("s_cselect_b32 s35, s34, 0"); A("s_lshl_b32 s35, s35, 15")
    for rb in range(2):
        for cq in range(4):
            U.add64(46, 44, cq*256)
            if rb == 1: A("s_sub_u32 s46, s46, s35"); A("s_subb_u32 s47, s47, 0")
            WL2.dma(46, rb*64*1024, rb*4 + cq)
    A(f"s_lshl_b32 s34, s{sW}, 14"); A(f"v_add_u32 v210, s34, v{WL2.vT}")
    A("s_waitcnt vmcnt(0)"); A("s_barrier")
    for rb in range(2):
        for p in range(4):
            A(f"v_xor_b32 v211, {p*64}, v210") if True else None
            A(f"v_add_u32 v211, {rb*65536}, v211") if rb else None
            for u2 in range(2):
                u = 2*rb + u2
                for a in range(2):
                    q = 2*p + a
                    for hf in range(2):
                        A(f"ds_read_b64_tr_b16 {ar(128 + (u*8 + q)*4 + 2*hf, 2)}, v211 offset:{(32*u2 + 16*hf)*256 + 8*a}")
    A("s_waitcnt lgkmcnt(0)"); A("s_barrier")
    A("v_lshrrev_b32 v3, 4, v0"); A("v_and_b32 v4, 15, v0")
    A("v_lshlrev_b32 v5, 3, v3"); A(f"s_lshl_b32 s34, s{sF}, 8"); A(f"s_lshl_b32 s35, s{sW}, 6"); A("s_add_u32 s34, s34, s35"); A("v_add_u32 v5, s34, v5")
    A("v_min_u32 v6, 2744, v5"); A("v_add_u32 v7, 32, v5"); A("v_min_u32 v7, 2744, v7")
    A("global_load_dwordx2 v[24:25], v6, s[42:43]"); A("global_load_dwordx2 v[26:27], v7, s[42:43]")
    A("s_waitcnt vmcnt(0)")
    B1 = 16
    for X in range(2):
        for k in range(2):
            A(f"v_lshlrev_b32 v{B1+4*X+2*k}, 16, v{24+2*X+k}"); A(f"v_and_b32 v{B1+4*X+2*k+1}, 0xffff0000, v{24+2*X+k}")
    Lz = A.newlabel("Cz")
    A(f"s_cmp_lg_u32 s{sF}, 10"); A(f"s_cbranch_scc1 {Lz}"); A(f"s_cmp_lg_u32 s{sW}, 3"); A(f"s_cbranch_scc1 {Lz}")
    for i in range(128): A(f"v_accvgpr_write_b32 a{i}, 0")
    for i in range(8): A(f"v_mov_b32 v{B1+i}, 0")
    A.label(Lz)
    A("v_lshlrev_b32 v2, 4, v0")
    A(f"s_lshl_b32 s34, s{sW}, 13"); A("v_add_u32 v8, s34, v2")
    A(f"s_lshl_b32 s34, s{sW}, 10"); A("v_add_u32 v9, s34, v2")
    A("v_lshlrev_b32 v10, 10, v4"); A("v_lshlrev_b32 v11, 4, v3"); A("v_add_u32 v10, v10, v11")
    A(f"s_lshl_b32 s34, s{sW}, 8"); A("v_add_u32 v10, s34, v10")
    A(f"s_mov_b32 s28, {fbits(0.044715):#x}"); A(f"s_mov_b32 s29, {fbits(-2.0*0.7978845608028654*1.4426950408889634):#x}")
    AC1, HFR, FF, AC2 = 32, 64, 96, 128
    A(f"s_mov_b32 s{sS}, s{sRep}")
    A.label("C_loop")
    cnt_addr(A, U, 42, C_R1, sS); U.wait_cnt(42, 4, sleep=2)
    A(f"s_lshl_b32 s34, s{sS}, 15"); A(f"s_add_u32 s34, s34, {WS_H2F}"); U.add64(46, sWS, "s34")
    for i in range(8):
        if i % 4 == 0:
            A(f"s_lshl_b32 s34, s{sW}, 13"); A(f"s_add_u32 m0, s34, {i*1024}")
            if i: A("s_add_u32 s46, s46, 4096"); A("s_addc_u32 s47, s47, 0")
        A(f"global_load_lds_dwordx4 v8, s[46:47] offset:{(i % 4)*1024} sc1")
    for Xr in range(2):
        for X in range(2):
            for j in range(4): A(f"v_mov_b32 v{AC1+(Xr*2+X)*4+j}, v{B1+4*X+j}")
    A("s_waitcnt vmcnt(0)"); A("s_barrier")
    for n in range(4): A(f"ds_read_b128 {r(HFR+4*n,4)}, v2 offset:{n*1024}")
    for n in range(32):
        Xr, t = divmod(n, 16)
        if n + 4 < 32: A(f"ds_read_b128 {r(HFR+4*((n+4) % 8),4)}, v2 offset:{(n+4)*1024}")
        A(f"s_waitcnt lgkmcnt({min(4, 31-n)})")
        for X in range(2):
            d = r(AC1+(Xr*2+X)*4, 4)
            A(f"{MF} {d}, {ar((X*16+t)*4,4)}, {r(HFR+4*(n % 8),4)}, {d}")
    for Xr in range(2):
        for X in range(2):
            b = AC1+(Xr*2+X)*4
            for k in range(0, 4, 2): bf_round_pair(A, b+k, b+k+1, 12)
            for j in range(4):
                x = b+j
                A(f"v_mul_f32 v13, v{x}, v{x}"); A(f"v_mul_f32 v13, s28, v13"); A(f"v_fma_f32 v13, v13, v{x}, v{x}")
                A(f"v_mul_f32 v13, s29, v13"); A("v_exp_f32 v13, v13"); A("v_add_f32 v13, 1.0, v13"); A("v_rcp_f32 v13, v13")
                A(f"v_mul_f32 v{x}, v{x}, v13")
            A(f"v_cvt_pk_bf16_f32 v{24+2*X}, v{b}, v{b+1}"); A(f"v_cvt_pk_bf16_f32 v{25+2*X}, v{b+2}, v{b+3}")
        A(f"ds_write_b128 v9, v[24:27] offset:{32768 + Xr*4096}")
        A("s_nop 1")
    A("s_waitcnt lgkmcnt(0)"); A("s_barrier")
    for n in range(8): A(f"ds_read_b128 {r(FF+4*n,4)}, v2 offset:{32768 + n*1024}")
    A("s_waitcnt lgkmcnt(0)")
    for Xr in range(2):
        for q in range(8):
            d = r(AC2+(q*2+Xr)*4, 4)
            for u in range(4):
                A(f"{MF} {d}, {ar(128+(u*8+q)*4,4)}, {r(FF+(Xr*4+u)*4,4)}, {'0' if u == 0 else d}")
    A(f"s_mul_i32 s34, s{sS}, 11"); A(f"s_add_u32 s34, s34, s{sF}"); A("s_lshl_b32 s34, s34, 15"); A(f"s_add_u32 s34, s34, {WS_FP}"); U.add64(46, sWS, "s34")
    for Xr in range(2):
        if Xr == 1: A("s_add_u32 s46, s46, 16384"); A("s_addc_u32 s47, s47, 0")
        for p in range(4):
            a0 = AC2 + ((2*p)*2+Xr)*4; a1 = AC2 + ((2*p+1)*2+Xr)*4
            o = HFR + 4*(Xr*4+p)
            A(f"v_cvt_pk_bf16_f32 v{o}, v{a0}, v{a0+1}"); A(f"v_cvt_pk_bf16_f32 v{o+1}, v{a0+2}, v{a0+3}")
            A(f"v_cvt_pk_bf16_f32 v{o+2}, v{a1}, v{a1+1}"); A(f"v_cvt_pk_bf16_f32 v{o+3}, v{a1+2}, v{a1+3}")
            A(f"global_store_dwordx4 v10, {r(o,4)}, s[46:47] offset:{p*64} sc1")
    cnt_addr(A, U, 42, C_CD, sS); U.signal(42)
    A(f"s_add_u32 s{sS}, s{sS}, 4"); A(f"s_cmp_lt_u32 s{sS}, 64"); A("s_cbranch_scc1 C_loop")

def roles_ARC(A, U, sJ):
    A("s_barrier")
    A(f"s_cmp_ge_u32 s{sJ}, 64"); A("s_cbranch_scc1 L_notA")
    role_A(A, U, sJ)
    A("s_branch L_end")
    A.label("L_notA")
    A(f"s_cmp_ge_u32 s{sJ}, 108"); A("s_cbranch_scc1 L_notC")
    role_C(A, U, sJ)
    A("s_branch L_end")
    A.label("L_notC")
    A(f"s_cmp_ge_u32 s{sJ}, 140"); A("s_cbranch_scc1 L_end")
    role_R(A, U, sJ)
```

```python
import sys, json
import kern
opts = json.loads(sys.argv[1]) if len(sys.argv) > 1 else {}
outp = sys.argv[2] if len(sys.argv) > 2 else "adaLN_cond__memory_aug_recurrent_mem_tr__dense_activation_gelu__prompt.s"
ref = open("adaLN_cond__memory_aug_recurrent_mem_tr__dense_activation_gelu__prompt.s.ref").read().split("\n")
hdr = []
for l in ref:
    if l.startswith(";") and "@launch" not in l: hdr.append(l)
    elif "@launch" in l: break
t = kern.text(opts)
open(outp, "w").write("\n".join(hdr) + "\n" + t)
print("wrote", outp, len(t))
```

```python
import re

REG_RE = re.compile(r'(?<![\w.])([vas])(\d+)(?![\w\[])|(?<![\w.])([vas])\[(\d+):(\d+)\]')

def regs_of(tok):
    out = []
    for m in REG_RE.finditer(tok):
        if m.group(1):
            out.append((m.group(1), int(m.group(2))))
        else:
            for i in range(int(m.group(4)), int(m.group(5)) + 1):
                out.append((m.group(3), i))
    if re.search(r'\bvcc\b', tok): out += [('s', 'vcc')]
    if re.search(r'\bvcc_lo\b|\bvcc_hi\b', tok): out += [('s', 'vcc')]
    if re.search(r'\bexec\b|\bexec_lo\b|\bexec_hi\b', tok): out += [('s', 'exec')]
    if re.search(r'\bm0\b', tok): out += [('s', 'm0')]
    return out

TRANS = ('v_exp_f32', 'v_log_f32', 'v_rcp_f32', 'v_rsq_f32', 'v_sqrt_f32', 'v_sin_f32', 'v_cos_f32')

def mfma_passes(op):
    if '32x32x16' in op or '32x32x8' in op or 'smfmac_f32_32x32' in op: return 8
    if '16x16x4_f32' in op: return 8
    if '32x32x2_f32' in op: return 16
    if '16x16' in op: return 4
    raise ValueError(op)

class Ins:
    __slots__ = ('text', 'op', 'ops', 'cls', 'dst', 'src', 'srcC', 'ws', 'passes', 'dpp')
    def __init__(self, text):
        self.text = text
        t = text.split(';')[0].strip()
        self.op = None; self.cls = 'none'; self.dst = []; self.src = []; self.srcC = []; self.ws = 1; self.passes = 0; self.dpp = False
        if not t or t.endswith(':') or t.startswith('.'):
            self.ws = 0; self.cls = 'label' if t.endswith(':') else 'none'
            return
        parts = t.split(None, 1)
        op = parts[0]; self.op = op
        rest = parts[1] if len(parts) > 1 else ''
        ops = [o.strip() for o in re.split(r',(?![^\[]*\])', rest)]
        self.ops = ops
        R = regs_of
        if op == 's_nop':
            self.cls = 'nop'; self.ws = int(ops[0], 0) + 1
        elif op.startswith('v_mfma') or op.startswith('v_smfmac'):
            self.cls = 'mfma'; self.passes = mfma_passes(op)
            self.dst = R(ops[0])
            if op.startswith('v_smfmac'):
                self.src = R(ops[1]) + R(ops[2]) + R(ops[3].split()[0]); self.srcC = R(ops[0])
            else:
                self.src = R(ops[1]) + R(ops[2]); self.srcC = R(ops[3].split()[0])
        elif op.startswith('v_cmp'):
            self.cls = 'valu'; self.dst = R(ops[0]); self.src = sum((R(o) for o in ops[1:]), [])
            if op.startswith('v_cmpx'): self.dst += [('s', 'exec')]
        elif op.startswith('v_readfirstlane') or op.startswith('v_readlane'):
            self.cls = 'readlane'; self.dst = R(ops[0]); self.src = sum((R(o) for o in ops[1:]), [])
        elif op.startswith('v_permlane'):
            self.cls = 'permlane'; self.dst = R(ops[0]) + R(ops[1]); self.src = R(ops[0]) + R(ops[1])
        elif op.startswith('v_'):
            self.cls = 'trans' if op.replace('_e32', '').replace('_e64', '') in TRANS else 'valu'
            self.dst = R(ops[0]); self.src = sum((R(o) for o in ops[1:]), [])
            if 'dpp' in op or 'row_' in rest or 'quad_perm' in rest: self.dpp = True
            if op.startswith('v_fmac') or op.startswith('v_pk_fmac') or op.startswith('v_dot2c'): self.src += self.dst
            if op.startswith('v_add_co') or op.startswith('v_addc_co') or op.startswith('v_sub_co') or op.startswith('v_subb_co'):
                self.dst = R(ops[0]) + R(ops[1]); self.src = sum((R(o) for o in ops[2:]), [])
            if op.startswith('v_cndmask') and len(ops) == 3: self.src += [('s', 'vcc')]
        elif op.startswith('ds_read') or op.startswith('ds_bpermute') or op.startswith('ds_swizzle'):
            self.cls = 'dsread'; self.dst = R(ops[0]); self.src = sum((R(o) for o in ops[1:]), [])
        elif op.startswith('ds_'):
            self.cls = 'dswrite'; self.src = sum((R(o) for o in ops), [])
        elif op.startswith('global_load_lds') or (op.startswith('buffer_load') and re.search(r'\blds\b', rest)):
            self.cls = 'ldsdma'; self.src = sum((R(o) for o in ops), []) + [('s', 'm0')]
        elif op.startswith('global_load') or op.startswith('buffer_load'):
            self.cls = 'vload'; self.dst = R(ops[0]); self.src = sum((R(o) for o in ops[1:]), [])
        elif op.startswith('global_store'):
            self.cls = 'vstore'; self.src = sum((R(o) for o in ops), []); self.srcC = R(ops[1])
        elif op.startswith('buffer_store'):
            self.cls = 'vstore'; self.src = sum((R(o) for o in ops), []); self.srcC = R(ops[0])
        elif op.startswith('global_atomic') or op.startswith('buffer_atomic'):
            self.cls = 'vatomic'; self.src = sum((R(o) for o in ops), [])
            if 'sc0' in rest: self.dst = R(ops[0])
        elif op.startswith('buffer_'):
            self.cls = 'vmisc'
        elif op.startswith('s_'):
            self.cls = 'salu'
            nodst = ('s_cmp', 's_cbranch', 's_branch', 's_waitcnt', 's_barrier', 's_endpgm', 's_sleep', 's_setprio', 's_bitcmp', 's_setreg', 's_nop')
            if not op.startswith(nodst):
                self.dst = R(ops[0]); self.src = sum((R(o) for o in ops[1:]), [])
            else:
                self.src = sum((R(o) for o in ops), [])
            if 'saveexec' in op: self.dst += [('s', 'exec')]
        else:
            raise ValueError('unknown instr: ' + text)

def norm(r, accum_offset):
    if r[0] == 'a': return ('v', accum_offset + r[1])
    return r

class Prog:
    def __init__(self, accum_offset=256):
        self.L = []
        self.accum = accum_offset
        self.uid = 0
        self.timed = True
        self.barrier = False
    def __call__(self, s, *a):
        for line in s.split('\n'):
            self.L.append(line)
    def label(self, n): self.L.append(n + ':')
    def newlabel(self, p='L'):
        self.uid += 1
        return f'{p}_{self.uid}'
    def nop(self, n):
        while n > 0:
            k = min(n, 16); self.L.append(f's_nop {k-1}'); n -= k

    def finalize(self, verbose=False):
        out = []
        INF = 10**9
        t = 0
        valu_w = {}
        trans_w = {}
        mfma_w = {}
        mfma_c = {}
        valu_sw = {}
        st_data = {}
        m0_w = -INF
        exec_valu = -INF
        npad = 0
        last_mfma = (-INF, 0)
        for line in self.L:
            ins = Ins(line)
            if ins.ws == 0:
                out.append(line); continue
            N = lambda rs: [norm(r, self.accum) for r in rs]
            src = N(ins.src); dst = N(ins.dst); srcC = N(ins.srcC)
            need = 0
            def req(last, gap):
                nonlocal need
                d = t - last - 1
                if d < gap: need = max(need, gap - d)
            c = ins.cls
            if c == 'mfma' and self.timed and not self.barrier:
                t = max(t, last_mfma[0] + last_mfma[1])
            isvalu = c in ('valu', 'trans', 'permlane', 'readlane')
            if c == 'mfma':
                for r in src + srcC:
                    if r in valu_w: req(valu_w[r], 2)
                for r in src:
                    if r in mfma_w: req(mfma_w[r][0], {4: 8, 8: 12, 16: 20}[mfma_w[r][1]])
                dset = tuple(dst)
                for r in srcC:
                    if r in mfma_w:
                        tm, ps, ds = mfma_w[r]
                        if ds == tuple(srcC) and ps == ins.passes: pass
                        else: req(tm, {4: 6, 8: 10, 16: 18}[ps])
                req(exec_valu, 4)
            if isvalu or c in ('vload', 'vstore', 'dsread', 'dswrite', 'ldsdma', 'vatomic'):
                for r in src + dst + (srcC if c == 'vstore' else []):
                    if r in mfma_w: req(mfma_w[r][0], {4: 8, 8: 12, 16: 20}[mfma_w[r][1]])
            if isvalu:
                for r in dst:
                    if r in mfma_c: req(mfma_c[r][0], {4: 3, 8: 7, 16: 15}[mfma_c[r][1]])
                    if r in st_data: req(st_data[r], 2)
                for r in src:
                    if r in trans_w and c != 'trans': req(trans_w[r], 1)
                    if r[0] == 's' and r in valu_sw: req(valu_sw[r], 4 if c == 'readlane' and False else 2)
            if c in ('vload', 'dsread'):
                for r in dst:
                    if r in st_data: req(st_data[r], 1)
                    if r in mfma_c: req(mfma_c[r][0], {4: 3, 8: 7, 16: 15}[mfma_c[r][1]])
            if c == 'permlane' or ins.dpp:
                for r in src:
                    if r in valu_w: req(valu_w[r], 2)
                if ins.dpp: req(exec_valu, 5)
                else: req(exec_valu, 4)
            if c == 'readlane':
                for r in src:
                    if r in valu_w: req(valu_w[r], 1)
                req(exec_valu, 4)
            if c in ('vload', 'vstore', 'ldsdma', 'vatomic'):
                for r in src:
                    if r[0] == 's' and r in valu_sw: req(valu_sw[r], 5)
            if c == 'ldsdma': req(m0_w, 1)
            if c == 'salu':
                for r in src:
                    if r in valu_sw and r[1] != 'vcc': req(valu_sw[r], 1)
            if need > 0:
                npad += need
                k = need
                while k > 0:
                    kk = min(k, 16); out.append(f's_nop {kk-1}'); k -= kk
                t += need
            out.append(line)
            if isvalu:
                for r in dst:
                    if r[0] == 'v':
                        valu_w[r] = t
                        mfma_w.pop(r, None)
                        if c == 'trans': trans_w[r] = t
                        else: trans_w.pop(r, None)
                    else:
                        valu_sw[r] = t
                        if r[1] == 'exec': exec_valu = t
            if c == 'mfma':
                last_mfma = (t, ins.passes)
                for r in dst: mfma_w[r] = (t, ins.passes, tuple(dst)); valu_w.pop(r, None)
                for r in srcC: mfma_c[r] = (t, ins.passes)
            if c in ('vload', 'dsread'):
                for r in dst: valu_w.pop(r, None); mfma_w.pop(r, None)
            if c == 'vstore' and len(srcC) >= 3:
                for r in srcC: st_data[r] = t
            if c == 'dswrite':
                pass
            if c == 'salu':
                for r in dst:
                    if r == ('s', 'm0'): m0_w = t
                    valu_sw.pop(r, None)
            t += ins.ws
        if verbose: print('hazard pads inserted:', npad)
        return '\n'.join(out)

def kernel_text(kernels, launches, header_comment=''):
    s = header_comment
    for l in launches: s += l + '\n'
    s += '.amdgcn_target "amdgcn-amd-amdhsa--gfx950"\n.text\n'
    for (name, body, vgpr, sgpr, accum) in kernels:
        s += f'.globl {name}\n.p2align 8\n.type {name},@function\n{name}:\n{body}\ns_endpgm\n'
    s += '.section .rodata,"a"\n'
    for (name, body, vgpr, sgpr, accum) in kernels:
        s += f""".p2align 6
.amdhsa_kernel {name}
  .amdhsa_next_free_vgpr {vgpr}
  .amdhsa_next_free_sgpr {sgpr}
  .amdhsa_accum_offset {accum}
  .amdhsa_group_segment_fixed_size 0
  .amdhsa_kernarg_size 136
  .amdhsa_user_sgpr_count 2
  .amdhsa_user_sgpr_kernarg_segment_ptr 1
  .amdhsa_system_sgpr_workgroup_id_x 1
.end_amdhsa_kernel
"""
    return s
```

```python
from common import *
import struct
L_STG = 0; L_QB = 8192; L_OB = 161280; L_KX = 10752; L_VX = 18944; L_KB = 27136; L_WO = 30208
OSTR = 288
L_PF = 161280

vWoB = 1
vIDX, vL16, vAG, vWoA, vQW, vQR, vOW, vPst, vRS, vMst, vOR = range(2, 13)
vSEL = 16
vONE = 20
vHALF = 14
T0r, T1r = 0, 13
M = 24; Q = 56; K = 72; AQ = 88; AK = 96; SX = 104; SM = 112; OX = 116; LX = 124
WV = 128

SC_C = 0.08838834764831845 * 1.4426950408889634

sS = 12
sC = 14
sPst = 16
sPrd = 24
sMb = 26; sMc = 28; sKX = 30; sVX = 32
sMMSK = 40
sODD = 42
sFAIL = 44; sCNT = 45; sLO = 46
sHIST = 48
sPz = 50
sMz = 52
sMn = 54
sHn = 56
sM0K = 58
sM0V = 59
sNAG = 60
sNRS = 61
sST = 64
sEXC = 62
sEK = 92
sEV = 94
sKVC = 98
sEVp = 100
sXM = 46
sKVOK = 13
sHB2 = 20
sTAG = 50
sPrd2 = 22
sHn2 = 84
sHB = 18
sPF = 24

class Chain:
    def __init__(self, A, U, stamps=False, hist=False, nsteps=63, nv1=12, rs_wait=None, ag_delay=2, p_layout=1, rs_delay=4, masked=False, wo_spread=True, nohist=False, dump=None, rs_sets=1, rs_gap=2, ag_sets=2, ag_gap=2, late_reset=True, ag_reset=True, kvwait=True, pipe_t0=True, nocomm=False, stash_v=False, l2pf=False, noexp=False, nodma=False, mpoll=False, ag_depth=2, rs_depth=2, ackstamp=False, steplog=False, rs_var='C', opt2=True, bar=5, early_shadow=True, ptag=True, cfull=False):
        self.cfull = cfull
        self.ptag = ptag
        self.early_shadow = early_shadow
        self.bar = bar
        self.opt2 = opt2
        self.rs_var = rs_var
        self.steplog = steplog
        self.ackstamp = ackstamp
        self.mpoll = mpoll; self.ag_depth = ag_depth; self.rs_depth = rs_depth
        self.nodma = nodma; self.noexp = noexp
        self.stash_v = stash_v; self.l2pf = l2pf
        self.pipe_t0 = pipe_t0; self.nocomm = nocomm
        self.U = U; self.kv_ret = []; self.exports = not noexp; self.ag_reset = ag_reset; self.kvwait = kvwait
        self.rs_sets = rs_sets; self.rs_gap = rs_gap; self.ag_sets = ag_sets; self.ag_gap = ag_gap; self.late_reset = late_reset
        hist = hist and not nohist
        self.p_layout = p_layout; self.rs_delay = rs_delay; self.masked = masked; self.wo_spread = wo_spread
        self.nv1 = nv1; self.rs_wait = rs_wait; self.ag_delay = ag_delay
        self.A = A; self.stamps = stamps; self.hist = hist; self.nsteps = nsteps

    def stamp(self, i):
        if not self.stamps: return
        A = self.A
        A(f"s_memtime s[{sST+2*i}:{sST+2*i+1}]")

    def setup_consts(self):
        A = self.A; l = "v0"
        A(f"v_lshlrev_b32 {r(vL16)}, 4, {l}")
        A(f"s_lshl_b32 s34, s{sW}, 11"); A(f"v_add_u32 {r(vAG)}, s34, {r(vL16)}")
        A(f"s_lshl_b32 s34, s{sW}, 14"); A(f"s_add_u32 s34, s34, {L_WO}"); A(f"v_add_u32 {r(vWoA)}, s34, {r(vL16)}")
        A(f"v_add_u32 {r(vWoB)}, 0x10000, {r(vWoA)}")
        A(f"v_and_b32 v24, 15, {l}")
        A(f"v_lshrrev_b32 v25, 4, {l}")
        A(f"v_mov_b32 {r(vIDX)}, 0x4444"); A("v_mov_b32 v26, 0xeeee")
        A("v_cmp_le_u32 vcc, 8, v24")
        A(f"v_cndmask_b32 {r(vIDX)}, {r(vIDX)}, v26, vcc")
        A(f"v_lshrrev_b32 v26, 1, v25"); A("v_lshlrev_b32 v26, 8, v26")
        A("v_lshlrev_b32 v27, 4, v24"); A("v_add_u32 v26, v26, v27")
        A("v_and_b32 v27, 1, v25"); A("v_lshlrev_b32 v27, 3, v27"); A("v_add_u32 v26, v26, v27")
        A(f"s_lshl_b32 s34, s{sW}, 9"); A(f"v_add_u32 {r(vQW)}, s34, v26")
        A(f"v_lshrrev_b32 v26, 2, {l}"); A("v_lshlrev_b32 v26, 4, v26")
        A(f"v_and_b32 v27, 1, {l}"); A("v_lshlrev_b32 v27, 3, v27"); A(f"v_add_u32 {r(vQR)}, v26, v27")
        A("v_and_b32 v26, 7, v24"); A(f"v_mul_u32_u24 v26, {OSTR}, v26"); A(f"v_add_u32 {r(vOR)}, {L_OB}, v26")
        A("v_lshlrev_b32 v27, 3, v25"); A(f"v_add_u32 {r(vOW)}, {r(vOR)}, v27")
        A(f"s_lshl_b32 s34, s{sW}, 6"); A(f"v_add_u32 {r(vOW)}, s34, {r(vOW)}")
        A("v_lshlrev_b32 v27, 4, v25"); A(f"v_add_u32 {r(vOR)}, {r(vOR)}, v27")
        if self.rs_var == 'C':
            pass
        elif self.p_layout == 0:
            A(f"v_lshrrev_b32 v26, 5, {l}"); A("v_lshlrev_b32 v26, 13, v26")
            A("v_and_b32 v27, 1, v25"); A("v_lshlrev_b32 v27, 7, v27"); A("v_add_u32 v26, v26, v27")
            A("v_lshlrev_b32 v27, 3, v24"); A("v_add_u32 v26, v26, v27")
            A(f"s_lshl_b32 s34, s{sW}, 16"); A(f"s_lshl_b32 s35, s{sH}, 8"); A("s_add_u32 s34, s34, s35")
            A(f"v_add_u32 {r(vPst)}, s34, v26")
            A("v_lshlrev_b32 v26, 8, v25"); A("v_lshlrev_b32 v27, 2, v24"); A("v_add_u32 v26, v26, v27")
            A(f"s_lshl_b32 s34, s{sH}, 13"); A(f"s_lshl_b32 s35, s{sW}, 6"); A("s_add_u32 s34, s34, s35"); A("s_add_u32 s34, s34, 4096")
            A(f"v_add_u32 {r(vRS)}, s34, v26")
        else:
            A(f"v_lshrrev_b32 v26, 5, {l}"); A("v_lshlrev_b32 v26, 13, v26")
            A("v_and_b32 v27, 1, v25"); A("v_lshlrev_b32 v27, 12, v27"); A("v_add_u32 v26, v26, v27")
            A("v_lshrrev_b32 v27, 3, v24"); A("v_lshlrev_b32 v27, 11, v27"); A("v_add_u32 v26, v26, v27")
            A("v_and_b32 v27, 7, v24"); A("v_lshlrev_b32 v27, 3, v27"); A("v_add_u32 v26, v26, v27")
            A(f"s_lshl_b32 s34, s{sW}, 16"); A(f"s_lshl_b32 s35, s{sH}, 6"); A("s_add_u32 s34, s34, s35")
            A(f"v_add_u32 {r(vPst)}, s34, v26")
            A("v_lshlrev_b32 v26, 6, v25"); A("v_lshlrev_b32 v27, 2, v24"); A("v_add_u32 v26, v26, v27")
            A(f"s_lshl_b32 s34, s{sH}, 13"); A(f"s_lshl_b32 s35, s{sW}, 11"); A("s_add_u32 s34, s34, s35")
            A(f"v_add_u32 {r(vRS)}, s34, v26")
        if self.rs_var == 'C':
            if not self.cfull:
                A(f"v_lshrrev_b32 v26, 5, {l}"); A("v_lshlrev_b32 v26, 3, v26")
                A("v_and_b32 v27, 1, v25"); A("v_lshlrev_b32 v27, 2, v27"); A("v_add_u32 v26, v26, v27")
                A("v_lshrrev_b32 v27, 2, v24"); A("v_add_u32 v26, v26, v27"); A("v_lshlrev_b32 v26, 11, v26")
                A("v_and_b32 v27, 3, v24"); A("v_lshlrev_b32 v27, 4, v27"); A("v_add_u32 v26, v26, v27")
                A(f"s_lshl_b32 s34, s{sW}, 16"); A(f"s_lshl_b32 s35, s{sH}, 6"); A("s_add_u32 s34, s34, s35")
                A(f"v_add_u32 {r(vPst)}, s34, v26")
                A(f"s_lshl_b32 s34, s{sH}, 13"); A(f"v_add_u32 {r(vRS)}, s34, {r(vAG)}")
            else:
                A(f"v_lshrrev_b32 v26, 5, {l}"); A("v_lshlrev_b32 v26, 2, v26")
                A("v_and_b32 v27, 1, v25"); A("v_lshlrev_b32 v27, 1, v27"); A("v_add_u32 v26, v26, v27")
                A("v_lshrrev_b32 v27, 3, v24"); A("v_add_u32 v26, v26, v27"); A("v_lshlrev_b32 v26, 12, v26")
                A("v_and_b32 v27, 7, v24"); A("v_lshlrev_b32 v27, 4, v27"); A("v_add_u32 v26, v26, v27")
                A(f"s_lshl_b32 s34, s{sW}, 16"); A(f"s_lshl_b32 s35, s{sH}, 7"); A("s_add_u32 s34, s34, s35")
                A(f"v_add_u32 {r(vPst)}, s34, v26")
                A(f"v_lshrrev_b32 v26, 2, {l}"); A("v_lshlrev_b32 v26, 7, v26"); A(f"v_and_b32 v27, 3, {l}"); A("v_lshlrev_b32 v27, 4, v27"); A("v_add_u32 v26, v26, v27")
                A(f"s_lshl_b32 s34, s{sH}, 13"); A(f"s_lshr_b32 s35, s{sW}, 1"); A("s_lshl_b32 s35, s35, 12"); A("s_add_u32 s34, s34, s35")
                A(f"s_and_b32 s35, s{sW}, 1"); A("s_lshl_b32 s35, s35, 6"); A("s_add_u32 s34, s34, s35")
                A(f"v_add_u32 {r(vRS)}, s34, v26")
            A(f"s_lshr_b32 s34, s{sH}, 3"); A("s_lshl_b32 s34, s34, 3")
            A(f"s_bfe_u32 s35, s{sH}, 0x10002"); A("s_lshl_b32 s35, s35, 2"); A("s_add_u32 s34, s34, s35")
            A(f"s_bfe_u32 s35, s{sH}, 0x10001"); A("s_add_u32 s34, s34, s35")
            A("v_and_b32 v26, 1, v25"); A("v_lshlrev_b32 v26, 1, v26"); A("v_add_u32 v26, s34, v26")
            A(f"v_bfe_u32 v27, {l}, 2, 2"); A(f"s_and_b32 s34, s{sH}, 1"); A("s_lshl_b32 s34, s34, 2"); A("v_add_u32 v27, s34, v27")
            A(f"v_bfe_u32 v28, {l}, 1, 1"); A(f"s_lshl_b32 s34, s{sW}, 1"); A("v_add_u32 v28, s34, v28")
            A("v_and_b32 v29, 1, v28"); A("v_lshlrev_b32 v29, 3, v29"); A("v_add_u32 v29, v29, v27"); A("v_lshlrev_b32 v29, 4, v29")
            A("v_lshrrev_b32 v30, 1, v28"); A("v_lshlrev_b32 v30, 2, v30"); A("v_add_u32 v29, v29, v30")
            A("v_lshlrev_b32 v30, 8, v26"); A(f"v_add_u32 {r(vMst)}, v29, v30")
            A("v_lshlrev_b32 v27, 10, v27"); A("v_lshlrev_b32 v26, 5, v26"); A("v_lshlrev_b32 v28, 2, v28"); A("v_add_u32 v27, v27, v26"); A("v_add_u32 v127, v27, v28")
            A("v_and_b32 v26, 7, v24"); A("v_lshrrev_b32 v27, 1, v26"); A("v_and_b32 v28, 1, v26")
            A("v_mov_b32 v29, 0x3f80"); A("v_mov_b32 v30, 0x3f800000")
            A("v_cmp_eq_u32 vcc, 1, v28"); A("v_cndmask_b32 v29, v29, v30, vcc")
            for rho in range(4):
                A(f"v_cmp_eq_u32 vcc, {rho}, v27"); A(f"v_cndmask_b32 {r(vSEL+rho)}, 0, v29, vcc")
        elif self.rs_var == 'A':
            A(f"v_and_b32 v26, 3, {l}"); A(f"s_and_b32 s34, s{sW}, 1"); A("s_lshl_b32 s34, s34, 2"); A("v_add_u32 v26, s34, v26")
            A(f"s_lshr_b32 s34, s{sW}, 1"); A("s_lshl_b32 s34, s34, 2"); A("v_add_u32 v27, s34, v25")
            A("v_and_b32 v28, 1, v26"); A("v_lshlrev_b32 v28, 3, v28"); A("v_add_u32 v28, v28, v27"); A("v_lshlrev_b32 v28, 4, v28")
            A("v_lshrrev_b32 v29, 1, v26"); A("v_lshlrev_b32 v29, 2, v29"); A("v_add_u32 v28, v28, v29")
            A(f"s_lshl_b32 s34, s{sH}, 8"); A(f"v_add_u32 {r(vMst)}, s34, v28")
            A("v_lshlrev_b32 v27, 10, v27"); A("v_lshlrev_b32 v26, 2, v26"); A("v_add_u32 v27, v27, v26")
            A(f"s_lshl_b32 s34, s{sH}, 5"); A("v_add_u32 v127, s34, v27")
            A("v_and_b32 v26, 7, v24"); A("v_lshrrev_b32 v27, 1, v26"); A("v_and_b32 v28, 1, v26")
            A("v_mov_b32 v29, 0x3f80"); A("v_mov_b32 v30, 0x3f800000")
            A("v_cmp_eq_u32 vcc, 1, v28"); A("v_cndmask_b32 v29, v29, v30, vcc")
            for rho in range(4):
                A(f"v_cmp_eq_u32 vcc, {rho}, v27"); A(f"v_cndmask_b32 {r(vSEL+rho)}, 0, v29, vcc")
            A(f"s_lshl_b32 s34, s{sH}, 13"); A(f"v_add_u32 {r(vRS)}, s34, {r(vAG)}")
        else:
            A("v_lshrrev_b32 v26, 2, v24"); A(f"s_and_b32 s34, s{sW}, 1"); A("s_lshl_b32 s34, s34, 2"); A("v_add_u32 v26, s34, v26")
            A("v_and_b32 v27, 1, v24"); A("v_lshlrev_b32 v27, 1, v27"); A("v_and_b32 v28, 1, v25"); A("v_add_u32 v27, v27, v28")
            A(f"s_lshr_b32 s34, s{sW}, 1"); A("s_lshl_b32 s34, s34, 2"); A("v_add_u32 v27, s34, v27")
            A("v_and_b32 v28, 1, v26"); A("v_lshlrev_b32 v28, 3, v28"); A("v_add_u32 v28, v28, v27"); A("v_lshlrev_b32 v28, 4, v28")
            A("v_lshrrev_b32 v29, 1, v26"); A("v_lshlrev_b32 v29, 2, v29"); A("v_add_u32 v28, v28, v29")
            A(f"s_lshl_b32 s34, s{sH}, 8"); A(f"v_add_u32 {r(vMst)}, s34, v28")
            A("v_lshlrev_b32 v27, 10, v27"); A("v_lshlrev_b32 v26, 2, v26"); A("v_add_u32 v27, v27, v26")
            A(f"s_lshl_b32 s34, s{sH}, 5"); A("v_add_u32 v127, s34, v27")
            A("v_and_b32 v26, 1, v24"); A("v_mov_b32 v27, 0x3f80"); A("v_mov_b32 v28, 0x3f800000")
            A("v_cmp_eq_u32 vcc, 1, v26"); A(f"v_cndmask_b32 {r(vSEL)}, v27, v28, vcc")
            for i in range(1, 4): A(f"v_mov_b32 {r(vSEL+i)}, {r(vSEL)}")
        for i in range(4): A(f"v_mov_b32 {r(vONE+i)}, 0x3f803f80")
        A("v_cmp_gt_u32 vcc, 2, v25"); A(f"v_cndmask_b32 {r(vHALF)}, 0, {r(vONE)}, vcc"); A(f"v_mov_b32 {r(vHALF+1)}, {r(vHALF)}")
        if self.rs_var == 'C':
            A(f"s_mov_b32 s{sMMSK}, 0x55555555"); A(f"s_mov_b32 s{sMMSK+1}, 0")
            A(f"s_mov_b32 s{sHB}, 0xf0f0f0f0"); A(f"s_mov_b32 s{sHB+1}, 0xf0f0f0f0")
            A(f"s_mov_b32 s{sHB2}, 0xff00ff00"); A(f"s_mov_b32 s{sHB2+1}, 0xff00ff00")
        elif self.rs_var == 'A':
            A(f"s_mov_b32 s{sMMSK}, 0x000f000f"); A(f"s_mov_b32 s{sMMSK+1}, 0x000f000f")
            A(f"s_mov_b32 s{sODD}, 0"); A(f"s_mov_b32 s{sODD+1}, -1")
        else:
            A(f"s_mov_b32 s{sMMSK}, 0x33333333"); A(f"s_mov_b32 s{sMMSK+1}, 0")
            A(f"s_mov_b32 s{sODD}, 0xffff0000"); A(f"s_mov_b32 s{sODD+1}, 0xffff0000")
        A(f"s_mov_b32 s{sC}, {fbits(SC_C):#x}"); A(f"s_mov_b32 s{sC+1}, {fbits(SC_C):#x}")
        A(f"s_add_u32 s{sMb}, s{sWS}, {WS_MBUF}"); A(f"s_addc_u32 s{sMb+1}, s{sWS+1}, 0")
        A(f"s_add_u32 s{sHIST}, s{sWS}, {WS_MHIST}"); A(f"s_addc_u32 s{sHIST+1}, s{sWS+1}, 0")
        A(f"s_lshl_b32 s34, s{sH}, 13")
        A(f"s_add_u32 s{sKX}, s{sWS}, s34"); A(f"s_addc_u32 s{sKX+1}, s{sWS+1}, 0")
        A(f"s_add_u32 s{sVX}, s{sKX}, {WS_VX}"); A(f"s_addc_u32 s{sVX+1}, s{sKX+1}, 0")
        A(f"s_add_u32 s{sKX}, s{sKX}, {WS_KX}"); A(f"s_addc_u32 s{sKX+1}, s{sKX+1}, 0")

    def clear_slots(self):
        A = self.A
        for i in range(4): A(f"v_mov_b32 v{28+i}, -1")
        for par in range(2):
            A(f"s_lshl_b32 s34, s{sH}, 13"); A(f"s_add_u32 s34, s34, {WS_PBUF + par*0x40000}")
            A(f"s_add_u32 s36, s{sWS}, s34"); A(f"s_addc_u32 s37, s{sWS+1}, 0")
            A(f"global_store_dwordx4 {r(vAG)}, v[28:31], s[36:37]"); A(f"global_store_dwordx4 {r(vAG)}, v[28:31], s[36:37] offset:1024")
        A(f"s_mov_b64 exec, {sp(sMMSK)}")
        for i in range(4):
            A(f"s_add_u32 s36, s{sMb}, {i*8192}"); A(f"s_addc_u32 s37, s{sMb+1}, 0")
            A(f"global_store_dword {r(vMst)}, v28, s[36:37]")
        A("s_mov_b64 exec, -1")

    def load_weights(self):
        A = self.A; l = "v0"
        A("s_load_dwordx4 s[56:59], s[0:1], 16"); A("s_load_dwordx4 s[60:63], s[0:1], 32")
        A(f"v_lshrrev_b32 v24, 4, {l}")
        A(f"v_and_b32 v25, 15, {l}"); A("v_lshlrev_b32 v26, 1, v24"); A("v_xor_b32 v25, v25, v26"); A("v_lshlrev_b32 v25, 4, v25")
        A("v_lshlrev_b32 v24, 13, v24"); A("v_add_u32 v24, v24, v25")
        A(f"s_lshl_b32 s34, s{sW}, 17"); A(f"s_lshl_b32 s35, s{sH}, 8"); A("s_add_u32 s34, s34, s35")
        A("v_add_u32 v24, s34, v24"); A("v_xor_b32 v25, 128, v24")
        A(f"v_lshrrev_b32 v26, 4, {l}"); A(f"v_bfe_u32 v27, {l}, 2, 2"); A(f"v_and_b32 v28, 3, {l}")
        A("v_lshlrev_b32 v29, 3, v26"); A("v_add_u32 v29, v29, v27"); A("v_lshlrev_b32 v29, 8, v29")
        A("v_lshrrev_b32 v30, 1, v28")
        A("v_lshlrev_b32 v31, 1, v27"); A("v_and_b32 v32, 1, v26"); A("v_lshlrev_b32 v32, 3, v32"); A("v_add_u32 v31, v31, v32")
        A(f"s_lshl_b32 s34, s{sW}, 2"); A("v_add_u32 v30, s34, v30"); A("v_xor_b32 v30, v30, v31")
        A("v_lshlrev_b32 v30, 4, v30"); A("v_add_u32 v29, v29, v30")
        A("v_and_b32 v32, 1, v28"); A("v_lshlrev_b32 v32, 3, v32"); A("v_add_u32 v29, v29, v32")
        A(f"v_add_u32 v38, {L_WO}, v29"); A("v_xor_b32 v39, 32, v29"); A(f"v_add_u32 v39, {L_WO}, v39")
        A("v_add_u32 v36, 0x10000, v38"); A("v_add_u32 v37, 0x10000, v39")
        A("v_lshrrev_b32 v33, 1, v26"); A("v_lshlrev_b32 v33, 3, v33"); A("v_and_b32 v34, 1, v26"); A("v_lshlrev_b32 v34, 2, v34"); A("v_add_u32 v33, v33, v34")
        A("v_and_b32 v34, 1, v27"); A("v_add_u32 v33, v33, v34"); A("v_lshlrev_b32 v33, 10, v33"); A("v_add_u32 v33, v33, v32")
        A(f"s_lshl_b32 s34, s{sW}, 8"); A(f"s_add_u32 s34, s34, {L_WO}"); A("v_add_u32 v33, s34, v33")
        A("v_lshrrev_b32 v34, 1, v27"); A("v_lshlrev_b32 v34, 1, v34"); A("v_lshrrev_b32 v35, 1, v28"); A("v_add_u32 v34, v34, v35")
        A("v_and_b32 v35, 1, v27"); A("v_lshlrev_b32 v35, 1, v35"); A("v_lshrrev_b32 v40, 1, v26"); A("v_and_b32 v40, 1, v40"); A("v_lshlrev_b32 v40, 3, v40")
        A("v_add_u32 v35, v35, v40"); A("v_xor_b32 v34, v34, v35")
        A("s_waitcnt lgkmcnt(0)")
        def dma_qkv(c):
            mat, t = divmod(c, 8); slot = c % 8; base = 56 + 2*mat
            for i in range(4):
                off = (64*t + 4*i) * 8192
                A(f"s_add_u32 s36, s{base}, {off}"); A(f"s_addc_u32 s37, s{base+1}, 0")
                A(f"s_lshl_b32 s34, s{sW}, 12"); A(f"s_add_u32 m0, s34, {L_WO + slot*16384 + i*1024}")
                A(f"global_load_lds_dwordx4 v{24 + (i >> 1)}, s[36:37]")
        def dma_wo(slot):
            for i in range(4):
                A(f"s_lshr_b32 s34, s{sW}, 1"); A("s_lshl_b32 s34, s34, 3"); A(f"s_add_u32 s34, s34, {2*i}")
                A(f"v_xor_b32 v35, s34, {l}"); A("v_lshlrev_b32 v35, 4, v35")
                A(f"s_lshl_b32 s34, s{sH}, 17"); A(f"s_lshl_b32 s35, s{sW}, 12"); A("s_add_u32 s34, s34, s35")
                A(f"s_add_u32 s34, s34, {(16*slot + i)*1024}")
                A("s_add_u32 s36, s62, s34"); A("s_addc_u32 s37, s63, 0")
                A(f"s_lshl_b32 s34, s{sW}, 12"); A(f"s_add_u32 m0, s34, {L_WO + slot*16384 + i*1024}")
                A("global_load_lds_dwordx4 v35, s[36:37]")
        for c in range(8): dma_qkv(c)
        for c in range(24):
            mat, t = divmod(c, 8); slot = c % 8
            A("s_waitcnt vmcnt(28)"); A("s_barrier")
            for X in range(2):
                for q4 in range(4):
                    roff = [0, 4, 32, 36][q4] * 256
                    ridx = (X*8 + t)*8 + 2*q4
                    d = ar(ridx, 2) if mat == 0 else (ar(128 + ridx, 2) if mat == 1 else r(WV + ridx, 2))
                    so = slot*16384 + roff
                    if so < 65536: A(f"ds_read_b64_tr_b16 {d}, v{38+X} offset:{so}")
                    else: A(f"ds_read_b64_tr_b16 {d}, v{36+X} offset:{so-65536}")
            A("s_waitcnt lgkmcnt(0)"); A("s_barrier")
            if c + 8 < 24: dma_qkv(c + 8)
            else: dma_wo(slot)
        for hb in range(2):
            A("s_waitcnt vmcnt(16)" if hb == 0 else "s_waitcnt vmcnt(0)"); A("s_barrier")
            for dl in range(4):
                for u1 in range(2):
                    A(f"v_xor_b32 v35, {(4*dl) ^ (4*u1)}, v34"); A("v_lshlrev_b32 v35, 4, v35"); A("v_add_u32 v35, v35, v33")
                    if hb: A("v_add_u32 v35, 0x10000, v35")
                    for tl in range(2):
                        for u2 in range(2):
                            u = 2*u2 + u1
                            dst = 48 + (dl*2 + tl)*8 + 2*u
                            A(f"ds_read_b64_tr_b16 {r(dst, 2)}, v35 offset:{tl*32768 + u2*16384 + u1*2048}")
            A("s_waitcnt lgkmcnt(0)"); A("s_barrier")
            b = vWoA if hb == 0 else vWoB
            for st in range(8):
                for half in range(2):
                    A(f"ds_write_b128 {r(b)}, {r(48 + st*8 + 4*half, 4)} offset:{st*2048 + half*1024}")
            A("s_waitcnt lgkmcnt(0)")

    def dma_k(self):
        A = self.A
        A(f"s_lshl_b32 s34, s{sW}, 11"); A(f"s_add_u32 m0, s34, {L_KX}")
        A(f"global_load_lds_dwordx4 {r(vAG)}, {sp(sKX)}"); A(f"global_load_lds_dwordx4 {r(vAG)}, {sp(sKX)} offset:1024 sc1")
        A(f"s_add_u32 s{sKX}, s{sKX}, 0x40000"); A(f"s_addc_u32 s{sKX+1}, s{sKX+1}, 0")
    def dma_v(self):
        A = self.A
        A(f"s_lshl_b32 s34, s{sW}, 11"); A(f"s_add_u32 m0, s34, {L_VX}")
        A(f"global_load_lds_dwordx4 {r(vAG)}, {sp(sVX)}"); A(f"global_load_lds_dwordx4 {r(vAG)}, {sp(sVX)} offset:1024")
        A(f"s_add_u32 s{sVX}, s{sVX}, 0x40000"); A(f"s_addc_u32 s{sVX+1}, s{sVX+1}, 0")

    def publish_mem0(self):
        A = self.A
        A("s_load_dwordx2 s[36:37], s[0:1], 8"); A("s_waitcnt lgkmcnt(0)")
        A(f"s_mov_b64 exec, {sp(sMMSK)}")
        A("global_load_dword v24, v127, s[36:37]"); A("s_waitcnt vmcnt(0)")
        A(f"global_store_dword {r(vMst)}, v24, {sp(sMb)}")
        if self.hist: A(f"global_store_dword {r(vMst)}, v24, {sp(sHIST)}")
        A("s_mov_b64 exec, -1")

    def salu_step(self):
        L = []; A = L.append
        A(f"s_and_b32 s34, s{sS}, 1"); A("s_lshl_b32 s34, s34, 18"); A(f"s_add_u32 s34, s34, {WS_PBUF}")
        A(f"s_add_u32 s{sPst}, s{sWS}, s34"); A(f"s_addc_u32 s{sPst+1}, s{sWS+1}, 0")
        A(f"s_add_u32 s24, s{sPst}, 32768"); A(f"s_addc_u32 s25, s{sPst+1}, 0")
        A(f"s_bfe_u32 s{sTAG}, s{sS}, 0x10001")
        A(f"s_add_u32 s34, s{sS}, 1"); A("s_and_b32 s35, s34, 3"); A("s_lshl_b32 s35, s35, 13")
        A(f"s_add_u32 s{sMn}, s{sMb}, s35"); A(f"s_addc_u32 s{sMn+1}, s{sMb+1}, 0")
        A("s_xor_b32 s35, s35, 0x4000")
        A(f"s_add_u32 s{sMz}, s{sMb}, s35"); A(f"s_addc_u32 s{sMz+1}, s{sMb+1}, 0")
        if self.hist:
            A("s_lshl_b32 s34, s34, 13"); A(f"s_add_u32 s{sHn}, s{sHIST}, s34"); A(f"s_addc_u32 s{sHn+1}, s{sHIST+1}, 0")
        A(f"s_lshl_b32 s34, s{sS}, 5"); A(f"s_add_u32 s34, s34, s{sH}")
        A("s_lshl_b32 s35, s34, 11"); A(f"s_add_u32 s35, s35, {WS_EK}"); A(f"s_add_u32 s{sEK}, s{sWS}, s35"); A(f"s_addc_u32 s{sEK+1}, s{sWS+1}, 0")
        A("s_lshl_b32 s35, s34, 13"); A(f"s_add_u32 s35, s35, {WS_EV}"); A(f"s_add_u32 s{sEV}, s{sWS}, s35"); A(f"s_addc_u32 s{sEV+1}, s{sWS+1}, 0")
        A(f"s_lshl_b32 s34, s{sS}, 6"); A(f"s_add_u32 s35, s34, {cnt_off(C_EXP) - 64}")
        A(f"s_cmp_eq_u32 s{sS}, 0"); A("s_cselect_b32 s35, 0x7000, s35")
        A(f"s_add_u32 s{sEXC}, s{sWS}, s35"); A(f"s_addc_u32 s{sEXC+1}, s{sWS+1}, 0")
        return L
    def shadow_prep(self):
        A = self.A
        for i in range(0, 16, 2): A(f"v_mov_b64 {r(AQ+i,2)}, 0")
        A(f"v_mov_b32 {r(SX)}, -1")

    def ag_poll_m(self, P="L"):
        A = self.A; b = Q; dep = self.ag_depth
        def issue():
            A(f"global_load_dwordx4 {r(b,4)}, {r(vAG)}, {sp(sMc)} sc1")
            A(f"global_load_dwordx4 {r(b+4,4)}, {r(vAG)}, {sp(sMc)} offset:1024 sc1")
        def check():
            A(f"v_max3_u32 {r(T0r)}, {r(b)}, {r(b+1)}, {r(b+2)}"); A(f"v_max3_u32 {r(T1r)}, {r(b+3)}, {r(b+4)}, {r(b+5)}")
            A(f"v_max3_u32 {r(T0r)}, {r(T0r)}, {r(b+6)}, {r(b+7)}"); A(f"v_max_u32 {r(T0r)}, {r(T0r)}, {r(T1r)}")
            A(f"v_cmp_eq_u32 vcc, -1, {r(T0r)}")
            A(f"s_cbranch_vccz {P}_agok")
            A("s_mov_b64 exec, vcc")
            issue()
            A(f"s_add_u32 s{sNAG}, s{sNAG}, 1")
        self.stamp(0)
        A(f"s_mov_b32 s{sCNT}, 0")
        self.shadow_prep()
        for i in range(self.ag_delay): A("s_nop 15")
        for k in range(dep):
            issue()
            if k < dep-1:
                for i in range(self.ag_gap): A("s_nop 15")
        A(f"global_store_dwordx4 {r(vAG)}, {r(SX,4)}, {sp(sPz)}"); A(f"global_store_dwordx4 {r(vAG)}, {r(SX,4)}, {sp(sPz)} offset:1024")
        A(f"s_mov_b64 exec, {sp(sMMSK)}"); A(f"global_store_dword {r(vMst)}, {r(SX)}, {sp(sMz)}"); A("s_mov_b64 exec, -1")
        for k in range(dep):
            A(f"s_waitcnt vmcnt({2*(dep-1) + 3})"); check()
        A.label(f"{P}_ag")
        A(f"s_waitcnt vmcnt({2*(dep-1)})"); check()
        A(f"s_add_u32 s{sCNT}, s{sCNT}, 1")
        A(f"s_cmp_lt_u32 s{sCNT}, 6000"); A(f"s_cbranch_scc1 {P}_ag")
        A(f"s_mov_b32 s{sFAIL}, 1"); A("s_waitcnt vmcnt(0)")
        A.label(f"{P}_agok")
        A("s_mov_b64 exec, -1")
        A(f"ds_write_b128 {r(vAG)}, {r(b,4)}"); A(f"ds_write_b128 {r(vAG)}, {r(b+4,4)} offset:1024")
        self.stamp(1)
        A("s_waitcnt lgkmcnt(0)")
        A("s_barrier")

    def ag_poll(self, P="L"):
        if self.nocomm:
            A = self.A
            self.stamp(0); self.shadow_prep()
            A(f"ds_write_b128 {r(vAG)}, {r(WV,4)}"); A(f"ds_write_b128 {r(vAG)}, {r(WV+4,4)} offset:1024")
            self.stamp(1); A("s_waitcnt lgkmcnt(0)"); A("s_barrier"); return
        if self.mpoll: return self.ag_poll_m(P)
        A = self.A
        n = self.ag_sets
        regs = [Q, Q+8, K, K+8][:n]
        def issue(b):
            A(f"global_load_dwordx4 {r(b,4)}, {r(vAG)}, {sp(sMc)} sc1")
            A(f"global_load_dwordx4 {r(b+4,4)}, {r(vAG)}, {sp(sMc)} offset:1024 sc1")
        def check(b):
            A(f"v_max3_u32 {r(T0r)}, {r(b)}, {r(b+1)}, {r(b+2)}"); A(f"v_max3_u32 {r(T1r)}, {r(b+3)}, {r(b+4)}, {r(b+5)}")
            A(f"ds_write_b128 {r(vAG)}, {r(b,4)}")
            A(f"v_max3_u32 {r(T0r)}, {r(T0r)}, {r(b+6)}, {r(b+7)}"); A(f"v_max_u32 {r(T0r)}, {r(T0r)}, {r(T1r)}")
            A(f"ds_write_b128 {r(vAG)}, {r(b+4,4)} offset:1024")
            A(f"v_cmp_eq_u32 vcc, -1, {r(T0r)}")
            A(f"s_cbranch_vccz {P}_agok")
            issue(b)
            A(f"s_add_u32 s{sNAG}, s{sNAG}, 1")
        self.stamp(0)
        A(f"s_mov_b32 s{sCNT}, 0")
        stv = self.exports and self.stash_v
        if stv:
            A(f"ds_read_b128 {r(OX,4)}, {r(vAG)}")
            A(f"s_mov_b32 s{sEVp}, s{sEV}"); A(f"s_mov_b32 s{sEVp+1}, s{sEV+1}")
        if not self.early_shadow: self.shadow_prep()
        for i in range(self.ag_delay): A("s_nop 15")
        for k, b in enumerate(regs):
            issue(b)
            if k < n-1:
                for i in range(self.ag_gap): A("s_nop 15")
        nres = 0
        if self.ag_reset:
            if not self.ptag:
                A(f"global_store_dwordx4 {r(vAG)}, {r(SX,4)}, {sp(sPz)}"); A(f"global_store_dwordx4 {r(vAG)}, {r(SX,4)}, {sp(sPz)} offset:1024")
            A(f"s_mov_b64 exec, {sp(sMMSK)}"); A(f"global_store_dword {r(vMst)}, {r(SX)}, {sp(sMz)}"); A("s_mov_b64 exec, -1")
            nres = 1 if self.ptag else 3
            if stv:
                A("s_waitcnt lgkmcnt(0)"); A(f"global_store_dwordx4 {r(vAG)}, {r(OX,4)}, {sp(sEVp)} sc1"); nres = 4
            for k, b in enumerate(regs):
                A(f"s_waitcnt vmcnt({2*(n-1) + nres})"); check(b)
        A.label(f"{P}_ag")
        for k, b in enumerate(regs):
            A(f"s_waitcnt vmcnt({2*(n-1)})"); check(b)
        A(f"s_add_u32 s{sCNT}, s{sCNT}, 1")
        A(f"s_cmp_lt_u32 s{sCNT}, 3000"); A(f"s_cbranch_scc1 {P}_ag")
        A(f"s_mov_b32 s{sFAIL}, 1"); A("s_waitcnt vmcnt(0)")
        A.label(f"{P}_agok")
        self.stamp(1)
        A("s_waitcnt lgkmcnt(0)")
        A("s_barrier")

    def exp_flag(self):
        return [f"s_mov_b64 exec, {sp(sXM)}", f"global_atomic_add {r(vL16)}, {r(vIDX)}, {sp(sEXC)}", "s_mov_b64 exec, -1"]

    def kv_fast(self):
        L = self.A.newlabel("KVR")
        self.kv_ret.append(L)
        return [f"s_cmp_ge_u32 s{sS}, s{sKVOK}", f"s_cbranch_scc1 KVSLOW", f"KVRET:"]
    def kv_slow_code(self, lab="KVSLOW", ret="KVRET", need_off=0):
        A = self.A
        A.label(lab)
        A("s_mov_b32 s35, 0")
        A.label(lab + "_l")
        A(f"v_lshlrev_b32 {r(T1r)}, 2, {r(vL16)}")
        A(f"global_load_dword {r(T0r)}, {r(T1r)}, {sp(sKVC)} sc1"); A("s_waitcnt vmcnt(0)")
        A(f"v_cmp_gt_u32 vcc, 32, {r(T0r)}")
        A("s_nop 3"); A("s_ff1_i32_b64 s34, vcc")
        A("s_cmp_eq_u32 s34, -1"); A("s_cselect_b32 s34, 64, s34")
        A(f"s_sub_u32 s{sKVOK}, s34, 1")
        A(f"s_cmp_lt_i32 s{sS}, s{sKVOK}"); A(f"s_cbranch_scc1 {ret}")
        A("s_sleep 4"); A("s_add_u32 s35, s35, 1"); A("s_cmp_lt_u32 s35, 60000"); A(f"s_cbranch_scc1 {lab}_l")
        A(f"s_mov_b32 s{sKVOK}, 64"); A(f"s_branch {ret}")

    def kv_check(self):
        A = self.A
        L = A.newlabel("KV"); E = A.newlabel("KVE")
        out = [f"v_readlane_b32 s34, {r(vMst)}, 2", "s_cmp_ge_u32 s34, 32", f"s_cbranch_scc1 {E}", "s_mov_b32 s35, 0", "s_mov_b64 exec, 4", f"{L}:",
               f"global_load_dword {r(vMst)}, {r(vL16)}, {sp(sKVC)} offset:-96 sc1", "s_waitcnt vmcnt(0)",
               f"v_readlane_b32 s34, {r(vMst)}, 2", "s_cmp_ge_u32 s34, 32", f"s_cbranch_scc1 {E}_x", "s_sleep 2",
               "s_add_u32 s35, s35, 1", "s_cmp_lt_u32 s35, 60000", f"s_cbranch_scc1 {L}", f"{E}_x:", "s_mov_b64 exec, -1", f"{E}:"]
        return out
    def kv_prefetch(self):
        return ["s_mov_b64 exec, 4", f"global_load_dword {r(vMst)}, {r(vL16)}, {sp(sKVC)} offset:-32 sc1", "s_mov_b64 exec, -1"]

    def weave(self, main, fill):
        A = self.A
        for x in fill.get(-1, []): A(x)
        for i, m in enumerate(main):
            A(m)
            for x in fill.get(i, []): A(x)
        for k in fill:
            assert k < len(main), (k, len(main))

    def step(self):
        A = self.A
        SMF = "v_smfmac_f32_16x16x64_bf16"; MF = "v_mfma_f32_16x16x32_bf16"; MF16 = "v_mfma_f32_16x16x16_bf16"
        st = lambda i: ([f"s_memtime s[{sST+2*i}:{sST+2*i+1}]"] if self.stamps else [])
        from collections import defaultdict
        self.stamp(2)
        kx0 = [K, K+4, K+8, K+12]; kx1 = [OX, OX+4, LX, SM]
        qs = [f"{SMF} {r(AQ+4*X,4)}, {r(M+4*t,4)}, {ar((X*8+t)*8, 8)}, {r(vIDX)}" for t in range(8) for X in range(2)]
        F = defaultdict(list)
        kxr = [f"ds_read_b128 {r(kx0[t],4)}, {r(vL16)} offset:{L_KX + t*1024}" for t in range(4)] + \
              [f"ds_read_b128 {r(kx1[t],4)}, {r(vL16)} offset:{L_KX + (4+t)*1024}" for t in range(4)]
        mr = [f"ds_read_b128 {r(M+4*t,4)}, {r(vL16)} offset:{L_STG + t*1024}" for t in range(8)]
        if not self.pipe_t0:
            for x in mr: A(x)
            F[-1].append("s_waitcnt lgkmcnt(7)")
            nk = 0
            for t in range(1, 8):
                slot = 2*t - 1
                F[slot].append(f"s_waitcnt lgkmcnt({min(15, 7 - t + nk)})")
                if t >= 4:
                    F[slot].append(kxr[nk]); nk += 1
                    F[slot+1 if slot+1 < 16 else slot].append(kxr[nk]); nk += 1
        else:
            LA = 3
            for x in mr[:LA]: A(x)
            seq = mr[LA:] + kxr
            F[-1].append(f"s_waitcnt lgkmcnt({LA-1})")
            issued = LA
            for sl in range(16):
                if sl < len(seq): F[sl].append(seq[sl]); issued += 1
                if sl % 2 == 1 and sl < 15:
                    t = (sl + 1)//2
                    F[sl].append(f"s_waitcnt lgkmcnt({min(15, issued - 1 - t)})")
            nk = 8
        if not self.ag_reset:
            F[0].append(f"global_store_dwordx4 {r(vAG)}, {r(SX,4)}, {sp(sPz)}")
            F[2].append(f"global_store_dwordx4 {r(vAG)}, {r(SX,4)}, {sp(sPz)} offset:1024")
            F[4] += [f"s_mov_b64 exec, {sp(sMMSK)}", f"global_store_dword {r(vMst)}, {r(SX)}, {sp(sMz)}", "s_mov_b64 exec, -1"]
            F[6] += ["s_waitcnt vmcnt(3)"]

        sl = self.salu_step()
        chunks = []; cur = []
        for x in sl:
            cur.append(x)
            if len(cur) >= 2 and not (x.startswith("s_add_u32") or x.startswith("s_cmp")): chunks.append(cur); cur = []
        if cur: chunks.append(cur)
        qslots = [13, 14, 15]
        for i, sl_ in enumerate(qslots): F[sl_] += chunks[i]
        self.kchunks = chunks[len(qslots):]
        self.weave(qs, F)
        assert nk == 8
        self.stamp(3)
        BAR = self.bar
        ks = [f"{SMF} {r(AK+4*X,4)}, {r(M+4*t,4)}, {ar(128+(X*8+t)*8, 8)}, {r(vIDX)}" for t in range(8) for X in range(2)]
        def post(acc, lds_off):
            return [f"v_permlane32_swap_b32 {r(acc+j)}, {r(acc+4+j)}" for j in range(4)] + \
                   [f"v_pk_add_f32 {r(acc,2)}, {r(acc,2)}, {r(acc+4,2)}", f"v_pk_add_f32 {r(acc+2,2)}, {r(acc+2,2)}, {r(acc+6,2)}",
                    f"v_cvt_pk_bf16_f32 {r(acc)}, {r(acc)}, {r(acc+1)}", f"v_cvt_pk_bf16_f32 {r(acc+1)}, {r(acc+2)}, {r(acc+3)}",
                    f"ds_write_b64 {r(vQW)}, {r(acc,2)} offset:{lds_off}"]
        F = defaultdict(list)
        F[1] += post(AQ, L_QB)
        F[8] += ["s_waitcnt vmcnt(0)"]
        kslots = [2, 3, 4, 5, 6, 7, 8, 10, 12, 14]
        assert len(self.kchunks) <= len(kslots), len(self.kchunks)
        for i, cch in enumerate(self.kchunks): F[kslots[i]] += cch
        for j in range(0, 8, 2): F[9 + j].append(f"v_mov_b64 {r(AQ+j,2)}, 0")
        self.weave(ks, F)
        self.stamp(5)
        vs = [f"{SMF} {r(AQ+4*X,4)}, {r(M+4*t,4)}, {r(WV+(X*8+t)*8, 8)}, {r(vIDX)}" for t in range(8) for X in range(2)]
        NV1 = self.nv1
        qtr = [f"ds_read_b64_tr_b16 {r(Q+4*t+2*hf,2)}, {r(vQR)} offset:{L_QB + t*512 + hf*256}" for t in range(4) for hf in range(2)]
        KF = M + 8
        ktr = [f"ds_read_b64_tr_b16 {r(KF+4*t+2*hf,2)}, {r(vQR)} offset:{L_KB + t*512 + hf*256}" for t in range(4) for hf in range(2)]
        F = defaultdict(list)
        kp = post(AK, L_KB)
        F[1] += kp
        if self.exports: F[2] += [f"global_store_dwordx2 {r(vQW)}, {r(AK,2)}, {sp(sEK)} sc1"]
        F[BAR] += ["s_waitcnt lgkmcnt(0)", "s_barrier"] + st(6)
        if self.exports: F[BAR+1] += self.exp_flag()
        for i in range(4): F[BAR+i] += qtr[2*i:2*i+2]
        if self.kvwait: F[BAR] += self.kv_fast()
        F[BAR+1] += [f"s_mov_b32 m0, s{sM0K}", f"global_load_lds_dwordx4 {r(vAG)}, {sp(sKX)} sc1"]
        F[BAR+2] += [f"ds_read_b128 {r(M,4)}, {r(vAG)} offset:{L_VX}"]
        F[BAR+3] += [f"ds_read_b128 {r(M+4,4)}, {r(vAG)} offset:{L_VX + 1024}"]
        F[BAR+5] += [f"global_load_lds_dwordx4 {r(vAG)}, {sp(sKX)} offset:1024 sc1", f"s_add_u32 s{sKX}, s{sKX}, 0x40000", f"s_addc_u32 s{sKX+1}, s{sKX+1}, 0"]
        self.weave(vs[:NV1], F)
        assert NV1 >= 12
        for x in ktr: A(x)
        sx = [f"{MF} {r(SX+4*X,4)}, {r((kx0 if X == 0 else kx1)[t],4)}, {r(Q+4*t,4)}, {'0' if t == 0 else r(SX+4*X,4)}" for t in range(4) for X in range(2)]
        A("s_waitcnt lgkmcnt(8)")
        for x in sx: A(x)
        mx, t1 = T0r, T1r
        pre = [f"v_max3_f32 {r(mx)}, {r(SX)}, {r(SX+1)}, {r(SX+2)}", f"v_max3_f32 {r(t1)}, {r(SX+4)}, {r(SX+5)}, {r(SX+6)}",
               f"v_max3_f32 {r(mx)}, {r(mx)}, {r(SX+3)}, {r(SX+7)}", f"v_max_f32 {r(mx)}, {r(mx)}, {r(t1)}"]
        A("s_waitcnt lgkmcnt(0)")
        for t in range(4):
            A(f"{MF} {r(SM,4)}, {r(KF+4*t,4)}, {r(Q+4*t,4)}, {'0' if t == 0 else r(SM,4)}")
            if t >= 1: A(pre[t-1])
        A(pre[3])
        self.stamp(7)
        sets = [Q, Q+8, K, K+8, M+8, M+16, M+24, AQ, M]
        def ldset(idx, reg):
            dl, t = divmod(idx, 4); b = vWoA if t < 2 else vWoB; o = (dl*2 + (t & 1))*2048
            return [f"ds_read_b128 {r(reg,4)}, {r(b)} offset:{o}", f"ds_read_b128 {r(reg+4,4)}, {r(b)} offset:{o+1024}"]
        F = defaultdict(list)
        rd = ldset(0, sets[0]) + ldset(1, sets[1])
        n2 = 16 - NV1
        F[0] += [f"s_mov_b32 m0, s{sM0V}", rd[0]]
        F[0] += [f"global_load_lds_dwordx4 {r(vAG)}, {sp(sVX)} sc1"]
        for i in range(1, 4): F[min(i, n2-1)].append(rd[i])
        self.weave(vs[NV1:], F)
        mx, t1 = T0r, T1r
        rd = ldset(2, sets[2]) + ldset(3, sets[3]) + ldset(4, sets[4]) + ldset(5, sets[5]) + ldset(6, sets[6])
        A(f"v_max3_f32 {r(mx)}, {r(mx)}, {r(SM)}, {r(SM+1)}"); A(f"v_max3_f32 {r(mx)}, {r(mx)}, {r(SM+2)}, {r(SM+3)}")
        A(f"v_mov_b32 {r(t1)}, {r(mx)}"); A(f"global_load_lds_dwordx4 {r(vAG)}, {sp(sVX)} offset:1024 sc1"); A(f"s_add_u32 s{sVX}, s{sVX}, 0x40000")
        A(f"v_permlane16_swap_b32 {r(mx)}, {r(t1)}"); A(f"s_addc_u32 s{sVX+1}, s{sVX+1}, 0"); A(f"v_max_f32 {r(mx)}, {r(mx)}, {r(t1)}")
        A(f"v_mov_b32 {r(t1)}, {r(mx)}"); A(rd[0]); A(rd[1])
        A(f"v_permlane32_swap_b32 {r(mx)}, {r(t1)}"); A(rd[2]); A(f"v_max_f32 {r(mx)}, {r(mx)}, {r(t1)}")
        A(f"v_mul_f32 {r(mx)}, s{sC}, {r(mx)}")
        def pkf(b): return f"v_pk_fma_f32 {r(b,2)}, {r(b,2)}, {sp(sC)}, {r(mx,2)} op_sel_hi:[1,1,0] neg_lo:[0,0,1] neg_hi:[0,0,1]"
        for b in (SX, SX+2, SX+4, SX+6, SM, SM+2): A(pkf(b))
        ex = [SX+i for i in range(8)] + [SM+i for i in range(4)]
        ri = 3
        for n, e in enumerate(ex):
            A(f"v_exp_f32 {r(e)}, {r(e)}")
            if ri < len(rd): A(rd[ri]); ri += 1
        for i in range(4): A(f"v_cvt_pk_bf16_f32 {r(SX+i)}, {r(SX+2*i)}, {r(SX+2*i+1)}")
        for i in range(2): A(f"v_cvt_pk_bf16_f32 {r(SM+i)}, {r(SM+2*i)}, {r(SM+2*i+1)}")
        self.stamp(8)
        vc = [f"v_cvt_pk_bf16_f32 {r(AK+2*X+h)}, {r(AQ+4*X+2*h)}, {r(AQ+4*X+2*h+1)}" for X in range(2) for h in range(2)]
        A("s_waitcnt lgkmcnt(14)")
        A(f"{MF} {r(LX,4)}, {r(vONE,4)}, {r(SX,4)}, 0"); A(vc[0]); A(vc[1])
        A(f"{MF} {r(OX,4)}, {r(M,4)}, {r(SX,4)}, 0"); A(vc[2]); A(vc[3])
        A(f"{MF} {r(OX+4,4)}, {r(M+4,4)}, {r(SX,4)}, 0")
        A(f"{MF16} {r(LX,4)}, {r(vHALF,2)}, {r(SM,2)}, {r(LX,4)}")
        for X in range(2): A(f"{MF16} {r(OX+4*X,4)}, {r(AK+2*X,2)}, {r(SM,2)}, {r(OX+4*X,4)}")
        if self.exports: A(f"global_store_dwordx4 {r(vAG)}, {r(AK,4)}, {sp(sEV)} sc1")
        rd = ldset(7, sets[7]) + ldset(8, sets[8])
        for x in rd: A(x)
        A(f"v_rcp_f32 {r(mx)}, {r(LX)}")
        for X in range(2):
            o = OX + 4*X
            A(f"v_pk_mul_f32 {r(o,2)}, {r(o,2)}, {r(mx,2)} op_sel_hi:[1,0]"); A(f"v_pk_mul_f32 {r(o+2,2)}, {r(o+2,2)}, {r(mx,2)} op_sel_hi:[1,0]")
            A(f"v_cvt_pk_bf16_f32 {r(o)}, {r(o)}, {r(o+1)}"); A(f"v_cvt_pk_bf16_f32 {r(o+1)}, {r(o+2)}, {r(o+3)}")
            A(f"ds_write_b64 {r(vOW)}, {r(o,2)} offset:{X*32}")
        self.stamp(9)
        ACC = AK
        for i in range(0, 16, 2): A(f"v_mov_b64 {r(ACC+i,2)}, 0")
        A("s_waitcnt lgkmcnt(0)"); A("s_barrier")
        self.stamp(10)
        OF = SM
        for t in range(4): A(f"ds_read_b128 {r(OF+4*t,4)}, {r(vOR)} offset:{t*64}")
        reg_of = {i: sets[i] for i in range(9)}
        main = []; F = defaultdict(list)
        issued = []
        nxt = 9
        for idx in range(16):
            dl, t = divmod(idx, 4)
            main.append(None)
        lds_out = ['o0', 'o1', 'o2', 'o3']
        def wait_for(tag):
            if tag in lds_out:
                last = max(i for i, x in enumerate(lds_out) if x == tag)
                n = len(lds_out) - 1 - last
                A(f"s_waitcnt lgkmcnt({min(n,15)})")
                del lds_out[:last+1]
        pend = []
        for idx in range(16):
            dl, t = divmod(idx, 4)
            if dl == 0: wait_for(f'o{t}')
            if idx >= 9: wait_for(f's{idx}')
            A(f"{SMF} {r(ACC+4*dl,4)}, {r(OF+4*t,4)}, {r(reg_of[idx],8)}, {r(vIDX)}")
            if nxt < 16:
                reg_of[nxt] = reg_of[idx]
                for x in ldset(nxt, reg_of[nxt]): pend.append((x, f's{nxt}'))
                nxt += 1
            n = (1 if idx >= 3 else 2) if self.wo_spread else 99
            if self.wo_spread and idx >= 8: n = 2
            for _ in range(n):
                if pend:
                    x, tg = pend.pop(0); A(x); lds_out.append(tg)
            if self.rs_var == 'C':
                a = ACC
                if idx == 5: A(f"v_cvt_pk_bf16_f32 {r(a)}, {r(a)}, {r(a+1)}")
                if idx == 6: A(f"v_cvt_pk_bf16_f32 {r(a+1)}, {r(a+2)}, {r(a+3)}")
                if idx == 9: A(f"v_cvt_pk_bf16_f32 {r(a+2)}, {r(a+4)}, {r(a+5)}")
                if idx == 10:
                    A(f"v_cvt_pk_bf16_f32 {r(a+3)}, {r(a+6)}, {r(a+7)}")
                    if self.ptag: A(f"v_bfi_b32 {r(a)}, 1, s{sTAG}, {r(a)}")
                    A(f"global_store_dwordx4 {r(vPst)}, {r(a,4)}, {sp(sPst)}")
                a = ACC + 8
                if idx == 13: A(f"v_cvt_pk_bf16_f32 {r(a)}, {r(a)}, {r(a+1)}")
                if idx == 14: A(f"v_cvt_pk_bf16_f32 {r(a+1)}, {r(a+2)}, {r(a+3)}")
            elif t == 2 and dl >= 1:
                a = ACC + 4*(dl-1)
                A(f"v_cvt_pk_bf16_f32 {r(a)}, {r(a)}, {r(a+1)}"); A(f"v_cvt_pk_bf16_f32 {r(a+1)}, {r(a+2)}, {r(a+3)}")
                A(f"global_store_dwordx2 {r(vPst)}, {r(a,2)}, {sp(sPst+2*(dl-1))}")
        assert not pend
        if self.rs_var == 'C':
            a = ACC + 8
            A(f"v_cvt_pk_bf16_f32 {r(a+2)}, {r(a+4)}, {r(a+5)}"); A(f"v_cvt_pk_bf16_f32 {r(a+3)}, {r(a+6)}, {r(a+7)}")
            if self.ptag: A(f"v_bfi_b32 {r(a)}, 1, s{sTAG}, {r(a)}")
            A(f"global_store_dwordx4 {r(vPst)}, {r(a,4)}, s[24:25]")
        else:
            a = ACC + 12
            A(f"v_cvt_pk_bf16_f32 {r(a)}, {r(a)}, {r(a+1)}"); A(f"v_cvt_pk_bf16_f32 {r(a+1)}, {r(a+2)}, {r(a+3)}")
            A(f"global_store_dwordx2 {r(vPst)}, {r(a,2)}, {sp(sPst+6)}")
        self.stamp(11)
        if self.ackstamp:
            A("s_waitcnt vmcnt(0)"); self.stamp(4)
        sRD = sPst
        if self.early_shadow:
            sRD = sPrd2
            A(f"s_mov_b32 s{sPrd2}, s{sPst}"); A(f"s_mov_b32 s{sPrd2+1}, s{sPst+1}")
            A(f"s_mov_b32 s{sMc}, s{sMn}"); A(f"s_mov_b32 s{sMc+1}, s{sMn+1}")
            if self.hist: A(f"s_mov_b32 s{sHn2}, s{sHn}"); A(f"s_mov_b32 s{sHn2+1}, s{sHn+1}")
            if self.ptag: A(f"s_mov_b32 s{sTAG+1}, s{sTAG}")
            A(f"s_add_u32 s{sS}, s{sS}, 1")
            self.shadow_prep()
        def off(i): return i*1024-4096 if self.p_layout == 0 else i*256
        n = self.rs_sets
        regs = [Q, Q+8, K, K+8][:n]
        D = M
        def issue(b):
            if self.rs_var in 'AC':
                A(f"global_load_dwordx4 {r(b,4)}, {r(vRS)}, {sp(sRD)} sc1"); A(f"global_load_dwordx4 {r(b+4,4)}, {r(vRS)}, {sp(sRD)} offset:{2048 if self.cfull else 1024} sc1")
            else:
                for i in range(8): A(f"global_load_dword {r(b+i)}, {r(vRS)}, {sp(sRD)} offset:{off(i)} sc1")
        NLD = 2 if self.rs_var in 'AC' else 8
        if self.nocomm:
            A(f"{MF} {r(D,4)}, {r(vSEL,4)}, {r(WV,4)}, 0"); A(f"{MF} {r(D,4)}, {r(vSEL,4)}, {r(WV+4,4)}, {r(D,4)}")
        elif self.mpoll:
            b = Q; dep = self.rs_depth
            A(f"s_mov_b32 s{sCNT}, 0")
            for i in range(self.rs_delay): A("s_nop 15")
            for k in range(dep):
                issue(b)
                if k < dep-1:
                    for i in range(self.rs_gap): A("s_nop 15")
            A.label("L_rs")
            A(f"s_waitcnt vmcnt({NLD*(dep-1)})")
            A(f"v_max3_u32 {r(T0r)}, {r(b)}, {r(b+1)}, {r(b+2)}"); A(f"v_max3_u32 {r(T1r)}, {r(b+3)}, {r(b+4)}, {r(b+5)}")
            A(f"v_max3_u32 {r(T0r)}, {r(T0r)}, {r(b+6)}, {r(b+7)}"); A(f"v_max_u32 {r(T0r)}, {r(T0r)}, {r(T1r)}")
            A(f"v_cmp_eq_u32 vcc, -1, {r(T0r)}")
            A("s_cbranch_vccz L_rsok0")
            A("s_mov_b64 exec, vcc")
            issue(b)
            A(f"s_add_u32 s{sNRS}, s{sNRS}, 1")
            A(f"s_add_u32 s{sCNT}, s{sCNT}, 1")
            A(f"s_cmp_lt_u32 s{sCNT}, 6000"); A("s_cbranch_scc1 L_rs")
            A(f"s_mov_b32 s{sFAIL}, 2")
            A.label("L_rsok0")
            A("s_mov_b64 exec, -1")
            A(f"{MF} {r(D,4)}, {r(vSEL,4)}, {r(b,4)}, 0"); A(f"{MF} {r(D,4)}, {r(vSEL,4)}, {r(b+4,4)}, {r(D,4)}")
        else:
            A(f"s_mov_b32 s{sCNT}, 0")
            for i in range(self.rs_delay): A("s_nop 15")
            for k, b in enumerate(regs):
                issue(b)
                if k < n-1:
                    for i in range(self.rs_gap): A("s_nop 15")
            A.label("L_rs")
            for k, b in enumerate(regs):
                A(f"s_waitcnt vmcnt({NLD*(n-1)})")
                if self.ptag:
                    A(f"v_xor_b32 {r(T0r)}, s{sTAG+1}, {r(b)}"); A(f"v_xor_b32 {r(T1r)}, s{sTAG+1}, {r(b+4)}")
                    A(f"{MF} {r(D,4)}, {r(vSEL,4)}, {r(b,4)}, 0")
                    A(f"v_or_b32 {r(T0r)}, {r(T0r)}, {r(T1r)}"); A(f"v_and_b32 {r(T0r)}, 1, {r(T0r)}")
                    A(f"{MF} {r(D,4)}, {r(vSEL,4)}, {r(b+4,4)}, {r(D,4)}")
                    A(f"v_cmp_ne_u32 vcc, 0, {r(T0r)}")
                else:
                    A(f"v_max3_u32 {r(T0r)}, {r(b)}, {r(b+1)}, {r(b+2)}"); A(f"v_max3_u32 {r(T1r)}, {r(b+3)}, {r(b+4)}, {r(b+5)}")
                    A(f"{MF} {r(D,4)}, {r(vSEL,4)}, {r(b,4)}, 0")
                    A(f"v_max3_u32 {r(T0r)}, {r(T0r)}, {r(b+6)}, {r(b+7)}"); A(f"v_max_u32 {r(T0r)}, {r(T0r)}, {r(T1r)}")
                    A(f"{MF} {r(D,4)}, {r(vSEL,4)}, {r(b+4,4)}, {r(D,4)}")
                    A(f"v_cmp_eq_u32 vcc, -1, {r(T0r)}")
                A("s_cbranch_vccz L_rsok")
                issue(b)
                A(f"s_add_u32 s{sNRS}, s{sNRS}, 1")
            A(f"s_add_u32 s{sCNT}, s{sCNT}, 1")
            A(f"s_cmp_lt_u32 s{sCNT}, 2000"); A("s_cbranch_scc1 L_rs")
            A(f"s_mov_b32 s{sFAIL}, 2")
        A.label("L_rsok")
        self.stamp(12)
        if not self.early_shadow:
            A(f"s_add_u32 s{sS}, s{sS}, 1")
            A(f"s_mov_b32 s{sMc}, s{sMn}"); A(f"s_mov_b32 s{sMc+1}, s{sMn+1}")
        D = M
        if self.rs_var == 'C':
            for j in range(4): A(f"v_add_f32_dpp {r(D+j)}, {r(D+j)}, {r(D+j)} row_ror:4 row_mask:0xf bank_mask:0xf")
            for j in range(4): A(f"v_add_f32_dpp {r(D+j)}, {r(D+j)}, {r(D+j)} row_ror:8 row_mask:0xf bank_mask:0xf")
            A(f"v_cndmask_b32 {r(D)}, {r(D)}, {r(D+1)}, {sp(sHB)}"); A(f"v_cndmask_b32 {r(D+2)}, {r(D+2)}, {r(D+3)}, {sp(sHB)}")
            A(f"v_cndmask_b32 {r(D)}, {r(D)}, {r(D+2)}, {sp(sHB2)}")
            A(f"v_mov_b32_dpp {r(D+1)}, {r(D)} quad_perm:[1,1,3,3] row_mask:0xf bank_mask:0xf")
            A(f"v_cvt_pk_bf16_f32 {r(D)}, {r(D)}, {r(D+1)}")
        elif self.rs_var == 'A':
            for j in range(4): A(f"v_add_f32_dpp {r(D+j)}, {r(D+j)}, {r(D+j)} row_ror:4 row_mask:0xf bank_mask:0xf")
            for j in range(4): A(f"v_add_f32_dpp {r(D+j)}, {r(D+j)}, {r(D+j)} row_ror:8 row_mask:0xf bank_mask:0xf")
            A(f"v_permlane16_swap_b32 {r(D)}, {r(D+1)}"); A(f"v_permlane16_swap_b32 {r(D+2)}, {r(D+3)}")
            A(f"v_cvt_pk_bf16_f32 {r(D)}, {r(D)}, {r(D+1)}"); A(f"v_cvt_pk_bf16_f32 {r(D+2)}, {r(D+2)}, {r(D+3)}")
            A(f"v_cndmask_b32 {r(D)}, {r(D)}, {r(D+2)}, {sp(sODD)}")
        else:
            A(f"v_mov_b32_dpp {r(D+2)}, {r(D)} quad_perm:[2,3,2,3] row_mask:0xf bank_mask:0xf")
            A(f"v_mov_b32_dpp {r(D+3)}, {r(D+1)} quad_perm:[2,3,2,3] row_mask:0xf bank_mask:0xf")
            A(f"v_cvt_pk_bf16_f32 {r(D)}, {r(D)}, {r(D+2)}"); A(f"v_cvt_pk_bf16_f32 {r(D+1)}, {r(D+1)}, {r(D+3)}")
            A(f"v_cndmask_b32 {r(D)}, {r(D)}, {r(D+1)}, {sp(sODD)}")
        A(f"s_mov_b64 exec, {sp(sMMSK)}")
        A(f"v_min_u32 {r(D)}, -2, {r(D)}")
        A(f"global_store_dword {r(vMst)}, {r(D)}, {sp(sMc)}")
        if self.hist: A(f"global_store_dword {r(vMst)}, {r(D)}, {sp(sHn2 if self.early_shadow else sHn)}")
        A("s_mov_b64 exec, -1")
        self.stamp(13)
        if self.steplog:
            A("s_memtime s[64:65]"); A("s_memrealtime s[66:67]"); A("s_waitcnt lgkmcnt(0)")
            A(f"s_lshl_b32 s34, s{sH}, 2"); A(f"s_add_u32 s34, s34, s{sW}"); A("s_lshl_b32 s34, s34, 6"); A(f"s_add_u32 s34, s34, s{sS}"); A("s_lshl_b32 s34, s34, 4")
            A(f"s_add_u32 s34, s34, {WS_STAMP + 0x10000}")
            A(f"v_mov_b32 {r(M+4)}, s34"); A(f"v_mov_b32 {r(M+8)}, s64"); A(f"v_mov_b32 {r(M+9)}, s{sNAG}"); A(f"v_mov_b32 {r(M+10)}, s{sNRS}"); A(f"v_mov_b32 {r(M+11)}, s66")
            A("s_mov_b64 exec, 1"); A(f"global_store_dwordx4 {r(M+4)}, {r(M+8,4)}, {sp(sWS)}"); A("s_mov_b64 exec, -1")


    def tail(self):
        A = self.A
        SMF = "v_smfmac_f32_16x16x64_bf16"
        self.ag_poll("T")
        for x in self.salu_step(): A(x)
        for t in range(8): A(f"ds_read_b128 {r(M+4*t,4)}, {r(vL16)} offset:{L_STG + t*1024}")
        for x in self.exp_flag(): A(x)
        A("s_waitcnt lgkmcnt(0)")
        for t in range(8):
            for X in range(2): A(f"{SMF} {r(AK+4*X,4)}, {r(M+4*t,4)}, {ar(128+(X*8+t)*8, 8)}, {r(vIDX)}")
        for t in range(8):
            for X in range(2): A(f"{SMF} {r(AQ+4*X,4)}, {r(M+4*t,4)}, {r(WV+(X*8+t)*8, 8)}, {r(vIDX)}")
        for j in range(4): A(f"v_permlane32_swap_b32 {r(AK+j)}, {r(AK+4+j)}")
        A(f"v_pk_add_f32 {r(AK,2)}, {r(AK,2)}, {r(AK+4,2)}"); A(f"v_pk_add_f32 {r(AK+2,2)}, {r(AK+2,2)}, {r(AK+6,2)}")
        A(f"v_cvt_pk_bf16_f32 {r(AK)}, {r(AK)}, {r(AK+1)}"); A(f"v_cvt_pk_bf16_f32 {r(AK+1)}, {r(AK+2)}, {r(AK+3)}")
        A(f"global_store_dwordx2 {r(vQW)}, {r(AK,2)}, {sp(sEK)} sc1")
        for X in range(2):
            A(f"v_cvt_pk_bf16_f32 {r(SX+2*X)}, {r(AQ+4*X)}, {r(AQ+4*X+1)}"); A(f"v_cvt_pk_bf16_f32 {r(SX+2*X+1)}, {r(AQ+4*X+2)}, {r(AQ+4*X+3)}")
        A(f"global_store_dwordx4 {r(vAG)}, {r(SX,4)}, {sp(sEV)} sc1")
        A("s_waitcnt vmcnt(0)"); A("s_barrier")
        A(f"s_add_u32 s{sEXC}, s{sEXC}, 64"); A(f"s_addc_u32 s{sEXC+1}, s{sEXC+1}, 0")
        for x in self.exp_flag(): A(x)
        A("s_waitcnt vmcnt(0)")

def gen_chain(A, U, o):
    kw = dict(o.get('chain_opts', {}))
    C = Chain(A, U, **kw)
    A(f"s_mov_b32 s{sH}, s{sROLE}")
    C.setup_consts()
    C.clear_slots()
    A("s_waitcnt vmcnt(0)"); A("s_barrier")
    L2 = A.newlabel("RC")
    A(f"s_cmp_lg_u32 s{sW}, 0"); A(f"s_cbranch_scc1 {L2}")
    A("v_mov_b32 v24, 0"); A("v_mov_b32 v25, 1"); A("s_mov_b64 exec, 1")
    A(f"global_atomic_add v24, v25, {sp(sDBG)} offset:{D_ROLL*4}")
    A("s_mov_b64 exec, -1")
    A.label(L2)
    C.load_weights()
    tl_stamp(A, o.get('tl'), 0, 1, vr=(120, 121))
    U.wait_cnt(sDBG, 32, off=D_ROLL*4, tmpv=(24, 25), tmps=(36, 37), sleep=1)
    U.wait_cnt(sDBG, 1, off=D_INIT*4, tmpv=(24, 25), tmps=(36, 37), sleep=1)
    U.add64(sKVC, sWS, cnt_off(C_KV, 0))
    A(f"s_cmp_eq_u32 s{sW}, 0"); A(f"s_cselect_b32 s{sXM}, 1, 0"); A(f"s_mov_b32 s{sXM+1}, 0")
    if C.kvwait:
        U.add64(38, sWS, cnt_off(C_KV, 0)); U.wait_cnt(38, 32, tmpv=(24, 25), tmps=(36, 37), sleep=1)
    A(f"s_mov_b32 s{sKVOK}, 0")
    tl_stamp(A, o.get('tl'), 0, 2, vr=(120, 121))
    C.dma_k(); C.dma_v()
    A(f"s_mov_b32 s{sFAIL}, 0"); A(f"s_mov_b32 s{sS}, 0"); A(f"s_mov_b32 s{sNAG}, 0"); A(f"s_mov_b32 s{sNRS}, 0")
    A(f"s_mov_b32 s{sMc}, s{sMb}"); A(f"s_mov_b32 s{sMc+1}, s{sMb+1}")
    U.add64(sEV, sWS, 0x380000)
    A(f"s_lshl_b32 s34, s{sW}, 11"); A(f"s_add_u32 s{sM0K}, s34, {L_KX}"); A(f"s_add_u32 s{sM0V}, s34, {L_VX}")
    U.add64(sMz, sMb, 2*8192)
    C.shadow_prep()
    C.publish_mem0()
    tl_stamp(A, o.get('tl'), 0, 3, vr=(120, 121))
    A.label("L_loop")
    C.ag_poll("L")
    n0 = len(A.L)
    C.step()
    if C.nodma: A.L[n0:] = [x for x in A.L[n0:] if not x.startswith("global_load_lds")]
    A(f"s_cmp_lt_u32 s{sS}, 63"); A("s_cbranch_scc1 L_loop")
    tl_stamp(A, o.get('tl'), 0, 4, vr=(120, 121))
    C.tail()
    tl_stamp(A, o.get('tl'), 0, 5, vr=(120, 121))
    A("s_branch L_chain_done")
    if C.kvwait: C.kv_slow_code()
    A.label("L_chain_done")
    if C.stamps:
        A(f"s_lshl_b32 s34, s{sH}, 2"); A(f"s_add_u32 s34, s34, s{sW}"); A("s_lshl_b32 s34, s34, 6"); A(f"s_add_u32 s34, s34, {WS_STAMP}")
        A(f"s_add_u32 s36, s{sWS}, s34"); A(f"s_addc_u32 s37, s{sWS+1}, 0")
        A("s_mov_b64 exec, 1"); A("v_mov_b32 v24, 0")
        for q in range(4):
            for i in range(4): A(f"v_mov_b32 v{32+4*q+i}, s{sST+2*(4*q+i)}" if 4*q+i < 14 else f"v_mov_b32 v{32+4*q+i}, s{sNAG + (4*q+i-14)}")
            A(f"global_store_dwordx4 v24, v[{32+4*q}:{35+4*q}], s[36:37] offset:{16*q}")
        A("s_waitcnt vmcnt(0)"); A("s_mov_b64 exec, -1")
```

```python
import struct
from asmlib import Prog
def r(b, n=1): return f"v{b}" if n == 1 else f"v[{b}:{b+n-1}]"
def ar(b, n=1): return f"a{b}" if n == 1 else f"a[{b}:{b+n-1}]"
def sp(b, n=2): return f"s[{b}:{b+n-1}]"
def fbits(x): return struct.unpack('<I', struct.pack('<f', x))[0]

KA = dict(x=0, mem0=8, Wq=16, Wk=24, Wv=32, Wo=40, seglen=48, Bx=56, w1=64, b1=72, w2=80, b2=88, c=96, wmod=104, out=112, dbg=120, ws=128)
WS_CNT = 0x0
C_HRDY, C_KV, C_QD, C_EXP, C_AD, C_R1, C_CD = range(7)
def cnt_off(arr, s=0): return arr*4096 + s*64
WS_MOD  = 0x8000
WS_PBUF = 0x100000
WS_MBUF = 0x200000
WS_MHIST = 0x210000
WS_STAMP = 0x300000
WS_HF   = 0x400000
WS_H2F  = 0x600000
WS_X1   = 0x800000
WS_KX   = 0x2000000
WS_VX   = 0x3000000
WS_QX   = 0x4000000
WS_EK   = 0x5000000
WS_EV   = 0x5400000
WS_YP   = 0x6400000
WS_FP   = 0x7400000
D_XT = 0; D_WT = 1; D_INIT = 2; D_ROLL = 3; D_MODA = 4; D_MODB = 5
sWS = 4; sDBG = 6; sXCC = 8; sROLE = 9; sH = 10; sW = 11
LDS_TOTAL = 163584
L_MISC = 160768

class Util:
    def __init__(self, A): self.A = A
    def add64(self, d, s, off):
        A = self.A
        A(f"s_add_u32 s{d}, s{s}, {off}"); A(f"s_addc_u32 s{d+1}, s{s+1}, 0")
    def wait_cnt(self, base, target, tmpv=(250, 251), tmps=(96, 97), off=0, bound=60000, sleep=4):
        A = self.A
        L = A.newlabel("W"); E = A.newlabel("WE")
        va, vd = tmpv; sc, sv = tmps
        A(f"v_mov_b32 v{va}, 0"); A(f"s_mov_b32 s{sc}, 0")
        A.label(L)
        A(f"global_load_dword v{vd}, v{va}, {sp(base)} offset:{off} sc1")
        A("s_waitcnt vmcnt(0)")
        A(f"v_readfirstlane_b32 s{sv}, v{vd}")
        A(f"s_cmp_ge_u32 s{sv}, {target}"); A(f"s_cbranch_scc1 {E}")
        A(f"s_sleep {sleep}")
        A(f"s_add_u32 s{sc}, s{sc}, 1"); A(f"s_cmp_lt_u32 s{sc}, {bound}"); A(f"s_cbranch_scc1 {L}")
        A.label(E)
    def signal(self, base, off=0, tmpv=(250, 251), drain=True):
        A = self.A
        L = A.newlabel("SG")
        va, vd = tmpv
        if drain: A("s_waitcnt vmcnt(0)")
        A("s_barrier")
        A(f"s_cmp_lg_u32 s{sW}, 0"); A(f"s_cbranch_scc1 {L}")
        A(f"v_mov_b32 v{va}, 0"); A(f"v_mov_b32 v{vd}, 1")
        A("s_mov_b64 exec, 1")
        A(f"global_atomic_add v{va}, v{vd}, {sp(base)} offset:{off}")
        A("s_mov_b64 exec, -1")
        A.label(L)

def tl_stamp(A, on, slot_expr_sgpr, idx, vr=(252, 253)):
    if not on: return
    L = A.newlabel("TL")
    A(f"s_cmp_lg_u32 s{sW}, 0"); A(f"s_cbranch_scc1 {L}")
    A("s_memrealtime s[100:101]"); A("s_waitcnt lgkmcnt(0)")
    A(f"s_lshl_b32 s38, s{sROLE}, 6"); A(f"s_add_u32 s38, s38, {WS_STAMP + 0x4000 + idx*4}")
    A(f"v_mov_b32 v{vr[0]}, s38"); A(f"v_mov_b32 v{vr[1]}, s100")
    A("s_mov_b64 exec, 1"); A(f"global_store_dword v{vr[0]}, v{vr[1]}, {sp(sWS)}"); A("s_mov_b64 exec, -1")
    A.label(L)
```

```python
from common import *
import roles1

def gen(opts=None):
    o = dict(chain=True, mh=True, g=True, q=True, arc=True)
    o.update(opts or {})
    A = Prog(); U = Util(A)
    A(f"s_load_dwordx2 {sp(sWS)}, s[0:1], 128"); A(f"s_load_dwordx2 {sp(sDBG)}, s[0:1], 120")
    A(f"s_getreg_b32 s{sXCC}, hwreg(HW_REG_XCC_ID, 0, 4)")
    A("v_lshrrev_b32 v1, 6, v0"); A("v_and_b32 v0, 63, v0")
    A(f"v_readfirstlane_b32 s{sW}, v1")
    A("s_waitcnt lgkmcnt(0)")
    A(f"s_cmp_lg_u32 s{sW}, 0"); A("s_cbranch_scc1 L_wt")
    A("s_mov_b64 exec, 1")
    A("v_mov_b32 v3, 0"); A("v_mov_b32 v4, 1")
    A(f"s_cmp_lg_u32 s{sXCC}, 0"); A("s_cbranch_scc1 L_wk")
    A(f"global_atomic_add v5, v3, v4, {sp(sDBG)} offset:{D_XT*4} sc0"); A("s_waitcnt vmcnt(0)")
    A("v_readfirstlane_b32 s12, v5"); A("s_cmp_lt_u32 s12, 32"); A("s_cbranch_scc1 L_got")
    A.label("L_wk")
    A(f"global_atomic_add v5, v3, v4, {sp(sDBG)} offset:{D_WT*4} sc0"); A("s_waitcnt vmcnt(0)")
    A("v_add_u32 v5, 32, v5")
    A.label("L_got")
    A(f"v_mov_b32 v3, {L_MISC}"); A("ds_write_b32 v3, v5"); A("s_waitcnt lgkmcnt(0)")
    A("s_mov_b64 exec, -1")
    A.label("L_wt")
    A("s_barrier")
    A(f"v_mov_b32 v3, {L_MISC}"); A("ds_read_b32 v5, v3"); A("s_waitcnt lgkmcnt(0)")
    A(f"v_readfirstlane_b32 s{sROLE}, v5")
    A("s_barrier")
    TL = o.get('tl', False)
    tl_stamp(A, TL, 0, 0)
    A(f"s_cmp_lt_u32 s{sROLE}, 32"); A("s_cbranch_scc1 L_chain")
    A(f"s_sub_u32 s12, s{sROLE}, 32")
    A("s_cmp_ge_u32 s12, 224"); A("s_cbranch_scc1 L_end")
    A("s_cmp_lg_u32 s12, 0"); A("s_cbranch_scc1 L_noinit")
    A(f"s_lshl_b32 s34, s{sW}, 10"); A("v_lshlrev_b32 v2, 4, v0"); A("v_add_u32 v2, s34, v2")
    for i in range(4): A(f"v_mov_b32 v{8+i}, 0")
    for i in range(7):
        A(f"global_store_dwordx4 v2, v[8:11], {sp(sWS)} sc1"); A("v_add_u32 v2, 4096, v2")
    A("s_waitcnt vmcnt(0)"); A("s_barrier")
    U.add64(44, sDBG, D_INIT*4); U.signal(44)
    A.label("L_noinit")
    if o['mh']:
        MH0 = o.get('mh0', 64)
        A(f"s_sub_u32 s13, s12, {MH0}"); A("s_cmp_ge_u32 s13, 64"); A("s_cbranch_scc1 L_nomh")
        A("s_cmp_ge_u32 s13, 48"); A("s_cbranch_scc1 L_nom")
        roles1.role_M(A, U, 13)
        A("s_barrier")
        A.label("L_nom")
        U.wait_cnt(sDBG, 1, off=D_INIT*4)
        roles1.role_H(A, U, 13)
        A("s_barrier")
        A.label("L_nomh")
    tl_stamp(A, TL, 0, 1)
    U.wait_cnt(sDBG, 1, off=D_INIT*4)
    if o['g']:
        A("s_and_b32 s14, s12, 31"); A("s_lshr_b32 s15, s12, 5")
        if o.get('gdelay', True):
            A("s_cmp_lt_u32 s15, 2"); A("s_cbranch_scc1 L_gnd")
            U.wait_cnt(sDBG, 16, off=D_MODA*4, sleep=8)
            A.label("L_gnd")
        roles1.role_G(A, U, 14, 15, do_q=o['q'], TL=TL)
        tl_stamp(A, TL, 0, 4)
    if o['arc']:
        import roles2
        roles2.DBGX1 = o.get('dbgx1', False); roles2.OUTFLAG = o.get('outflag', 'sc1')
        roles2.roles_ARC(A, U, 12, TL, o.get('slp'), o.get('w1', True))
    A("s_branch L_end")
    A.label("L_chain")
    if o['chain']:
        import chainf
        chainf.gen_chain(A, U, o)
    A.label("L_end")
    return A

NAME = "adaLN_cond__memory_aug_recurrent_mem_tr__dense_activation_gelu__prompt_kernel"
def text(opts=None, name=NAME):
    from asmlib import kernel_text
    A = gen(opts)
    body = A.finalize(verbose=True)
    return kernel_text([(name, body, 512, 102, 256)], [f"; @launch grid=(256,1,1) block=(256,1,1) lds={LDS_TOTAL}"])

if __name__ == "__main__":
    t = text(dict(chain=False, arc=False))
    open("k_test.s", "w").write(t)
    print(len(t.split("\n")), "lines")
```

```python
from common import *

def bf_round_pair(A, a, b, t):
    A(f"v_cvt_pk_bf16_f32 v{t}, v{a}, v{b}")
    A(f"v_lshlrev_b32 v{a}, 16, v{t}"); A(f"v_and_b32 v{b}, 0xffff0000, v{t}")

class WLoad:
    def __init__(self, A, LB=0, vb=200):
        self.A = A; self.LB = LB
        self.vS0, self.vS1, self.vT, self.vTh, self.vX = vb, vb+1, vb+2, vb+3, vb+4
        self.vZ = vb+5
    def setup(self, RS, roworder="nat", colmode="tile"):
        A = self.A; self.RS = RS
        A(f"v_lshrrev_b32 v{self.vX}, 4, v0")
        A(f"v_and_b32 v{self.vS0}, 15, v0"); A(f"v_lshlrev_b32 v{self.vS1}, 1, v{self.vX}"); A(f"v_xor_b32 v{self.vS0}, v{self.vS0}, v{self.vS1}")
        A(f"v_lshlrev_b32 v{self.vS0}, 4, v{self.vS0}")
        A(f"v_xor_b32 v{self.vS1}, 128, v{self.vS0}")
        A(f"s_mov_b32 s34, {RS}"); A(f"v_mul_lo_u32 v{self.vX}, v{self.vX}, s34")
        A(f"s_mul_i32 s34, s{sW}, {16*RS}"); A(f"v_add_u32 v{self.vX}, s34, v{self.vX}")
        A(f"v_add_u32 v{self.vS0}, v{self.vS0}, v{self.vX}"); A(f"v_add_u32 v{self.vS1}, v{self.vS1}, v{self.vX}")
        self.setup_tr(roworder, colmode)
    def setup_tr(self, roworder, colmode):
        A = self.A; X = self.vX; T = self.vT; Z = self.vZ
        self.roworder = roworder; self.colmode = colmode
        A(f"v_lshrrev_b32 v{X}, 4, v0")
        A(f"v_bfe_u32 v{Z}, v0, 2, 2")
        if roworder == "nat":
            A(f"v_lshlrev_b32 v{T}, 3, v{X}"); A(f"v_add_u32 v{T}, v{T}, v{Z}")
            A(f"v_lshlrev_b32 v{Z}, 1, v{Z}"); A(f"v_and_b32 v{X}, 1, v{X}"); A(f"v_lshlrev_b32 v{X}, 3, v{X}"); A(f"v_add_u32 v{Z}, v{Z}, v{X}")
        else:
            A(f"v_lshlrev_b32 v{T}, 2, v{X}"); A(f"v_add_u32 v{T}, v{T}, v{Z}")
            A(f"v_lshlrev_b32 v{Z}, 1, v{Z}"); A(f"v_lshrrev_b32 v{X}, 1, v{X}"); A(f"v_lshlrev_b32 v{X}, 3, v{X}"); A(f"v_add_u32 v{Z}, v{Z}, v{X}")
        A(f"v_lshlrev_b32 v{T}, 8, v{T}")
        A(f"v_and_b32 v{X}, 3, v0")
        if colmode == "tile":
            A(f"v_lshrrev_b32 v{self.vTh}, 1, v{X}"); A(f"v_xor_b32 v{Z}, v{Z}, v{self.vTh}")
            A(f"v_lshlrev_b32 v{Z}, 4, v{Z}"); A(f"v_add_u32 v{T}, v{T}, v{Z}")
            A(f"v_and_b32 v{X}, 1, v{X}"); A(f"v_lshlrev_b32 v{X}, 3, v{X}"); A(f"v_add_u32 v{T}, v{T}, v{X}")
        else:
            A(f"v_xor_b32 v{Z}, v{Z}, v{X}"); A(f"v_lshlrev_b32 v{Z}, 4, v{Z}"); A(f"v_add_u32 v{T}, v{T}, v{Z}")
        if self.LB: A(f"v_add_u32 v{T}, {self.LB}, v{T}")
    def dma(self, sbase, rowoff_bytes, slot, flags=""):
        A = self.A
        for i in range(4):
            off = rowoff_bytes + 4*i*self.RS
            A(f"s_add_u32 s36, s{sbase}, {off}"); A(f"s_addc_u32 s37, s{sbase+1}, 0")
            A(f"s_lshl_b32 s34, s{sW}, 12"); A(f"s_add_u32 m0, s34, {self.LB + slot*16384 + i*1024}")
            A(f"global_load_lds_dwordx4 v{self.vS0 + (i >> 1)}, s[36:37] {flags}")
    def tr_addr(self, xorval, dst):
        A = self.A
        if self.LB:
            A(f"v_subrev_u32 v{dst}, {self.LB}, v{self.vT}"); A(f"v_xor_b32 v{dst}, {xorval}, v{dst}"); A(f"v_add_u32 v{dst}, {self.LB}, v{dst}")
        else:
            A(f"v_xor_b32 v{dst}, {xorval}, v{dst if False else self.vT}")
    def tr(self, dstreg, vaddr, vaddr_hi, slot, rowoff, extra=0):
        so = slot*16384 + rowoff*256 + extra
        if so < 65536: self.A(f"ds_read_b64_tr_b16 {dstreg}, v{vaddr} offset:{so}")
        else: self.A(f"ds_read_b64_tr_b16 {dstreg}, v{vaddr_hi} offset:{so-65536}")

def role_M(A, U, sJ):
    A("s_load_dwordx2 s[40:41], s[0:1], 96"); A("s_load_dwordx2 s[42:43], s[0:1], 104")
    A(f"s_lshl_b32 s34, s{sW}, 6"); A("v_add_u32 v1, s34, v0")
    A("v_lshrrev_b32 v2, 3, v1"); A("v_and_b32 v3, 7, v1")
    A("v_mul_u32_u24 v4, 6144, v2"); A("v_lshlrev_b32 v5, 4, v3"); A("v_add_u32 v4, v4, v5")
    A(f"s_lshl_b32 s34, s{sJ}, 7"); A("v_add_u32 v4, s34, v4")
    A("v_lshlrev_b32 v5, 1, v2")
    A("s_waitcnt lgkmcnt(0)")
    for i in range(16): A(f"global_load_ushort v{16+i}, v5, s[40:41] offset:{i*64}")
    for i in range(16):
        A(f"global_load_dwordx4 v[{32+4*i}:{35+4*i}], v4, s[42:43]")
        A(f"s_add_u32 s42, s42, {32*6144}"); A("s_addc_u32 s43, s43, 0")
    for k in range(8): A(f"v_mov_b32 v{100+k}, 0")
    A("s_waitcnt vmcnt(16)")
    A(f"s_mov_b32 s34, {fbits(-1.4426950408889634):#x}")
    for i in range(16):
        x = 16+i
        A(f"v_lshlrev_b32 v{x}, 16, v{x}")
        A(f"v_mul_f32 v110, s34, v{x}"); A("v_exp_f32 v110, v110"); A("v_add_f32 v110, 1.0, v110"); A("v_rcp_f32 v110, v110")
        A(f"v_mul_f32 v{x}, v{x}, v110")
        A(f"v_cvt_pk_bf16_f32 v{x}, v{x}, v{x}"); A(f"v_lshlrev_b32 v{x}, 16, v{x}")
    A("s_waitcnt vmcnt(0)")
    for i in range(16):
        for k in range(4):
            w = 32+4*i+k
            A(f"v_lshlrev_b32 v110, 16, v{w}"); A(f"v_and_b32 v111, 0xffff0000, v{w}")
            A(f"v_fmac_f32 v{100+2*k}, v{16+i}, v110"); A(f"v_fmac_f32 v{101+2*k}, v{16+i}, v111")
    A("v_lshlrev_b32 v6, 8, v2"); A("v_lshlrev_b32 v7, 5, v3"); A("v_add_u32 v6, v6, v7")
    A("ds_write_b128 v6, v[100:103]"); A("ds_write_b128 v6, v[104:107] offset:16")
    A("s_waitcnt lgkmcnt(0)"); A("s_barrier")
    L = A.newlabel("Mskip")
    A(f"s_cmp_lg_u32 s{sW}, 0"); A(f"s_cbranch_scc1 {L}")
    A("v_lshlrev_b32 v6, 2, v0")
    for i in range(32): A(f"ds_read_b32 v{16+i}, v6 offset:{i*256}")
    A("s_waitcnt lgkmcnt(0)")
    for st in (16, 8, 4, 2, 1):
        for i in range(st): A(f"v_add_f32 v{16+i}, v{16+i}, v{16+i+st}")
    A("v_cvt_pk_bf16_f32 v16, v16, v16"); A("v_lshlrev_b32 v16, 16, v16")
    A(f"s_lshl_b32 s34, s{sJ}, 8"); A(f"s_add_u32 s34, s34, {WS_MOD}"); U.add64(44, sWS, "s34")
    A("global_store_dword v6, v16, s[44:45] sc1")
    A.label(L)
    A(f"s_cmp_lt_u32 s{sJ}, 16"); A(f"s_cselect_b32 s34, {D_MODA*4}, {D_MODB*4}"); U.add64(44, sDBG, "s34")
    U.signal(44)

def ln_rows(A, xb, n, eps_s, tmp):
    t0, t1, t2, t3, t4, t5 = tmp
    def red8(v):
        A(f"v_add_f32_dpp v{v}, v{v}, v{v} quad_perm:[1,0,3,2] row_mask:0xf bank_mask:0xf")
        A(f"v_add_f32_dpp v{v}, v{v}, v{v} quad_perm:[2,3,0,1] row_mask:0xf bank_mask:0xf")
        A(f"v_add_f32_dpp v{v}, v{v}, v{v} row_half_mirror row_mask:0xf bank_mask:0xf")
    A(f"v_add_f32 v{t0}, v{xb}, v{xb+1}"); A(f"v_add_f32 v{t1}, v{xb+2}, v{xb+3}")
    for i in range(4, n, 2): A(f"v_add_f32 v{t0}, v{t0}, v{xb+i}"); A(f"v_add_f32 v{t1}, v{t1}, v{xb+i+1}")
    A(f"v_add_f32 v{t0}, v{t0}, v{t1}")
    red8(t0)
    A(f"v_mul_f32 v{t0}, {fbits(1.0/512):#x}, v{t0}")
    A(f"v_mov_b32 v{t1}, 0"); A(f"v_mov_b32 v{t2}, 0")
    for i in range(0, n, 2):
        A(f"v_sub_f32 v{t3}, v{xb+i}, v{t0}"); A(f"v_sub_f32 v{t4}, v{xb+i+1}, v{t0}")
        A(f"v_fmac_f32 v{t1}, v{t3}, v{t3}"); A(f"v_fmac_f32 v{t2}, v{t4}, v{t4}")
    A(f"v_add_f32 v{t1}, v{t1}, v{t2}")
    red8(t1)
    A(f"v_mul_f32 v{t1}, {fbits(1.0/512):#x}, v{t1}")
    bf_round_pair(A, t0, t1, t2)
    A(f"v_add_f32 v{t1}, s{eps_s}, v{t1}")
    A(f"v_cvt_pk_bf16_f32 v{t1}, v{t1}, v{t1}"); A(f"v_lshlrev_b32 v{t1}, 16, v{t1}")
    A(f"v_sqrt_f32 v{t1}, v{t1}")
    A(f"v_cvt_pk_bf16_f32 v{t1}, v{t1}, v{t1}"); A(f"v_lshlrev_b32 v{t1}, 16, v{t1}")
    A(f"v_rcp_f32 v{t1}, v{t1}")
    for i in range(0, n, 2):
        A(f"v_sub_f32 v{xb+i}, v{xb+i}, v{t0}"); A(f"v_sub_f32 v{xb+i+1}, v{xb+i+1}, v{t0}")
        bf_round_pair(A, xb+i, xb+i+1, t2)
        A(f"v_mul_f32 v{xb+i}, v{xb+i}, v{t1}"); A(f"v_mul_f32 v{xb+i+1}, v{xb+i+1}, v{t1}")
        bf_round_pair(A, xb+i, xb+i+1, t2)

def role_H(A, U, sJ):
    A("s_load_dwordx2 s[40:41], s[0:1], 0")
    A("v_lshrrev_b32 v2, 3, v0"); A("v_and_b32 v3, 7, v0")
    A(f"s_lshl_b32 s34, s{sW}, 3"); A("v_add_u32 v2, s34, v2")
    A("v_lshlrev_b32 v4, 10, v2"); A("v_lshlrev_b32 v5, 4, v3"); A("v_add_u32 v4, v4, v5")
    A(f"s_lshl_b32 s34, s{sJ}, 15"); A("v_add_u32 v4, s34, v4")
    A("s_waitcnt lgkmcnt(0)")
    for i in range(8): A(f"global_load_dwordx4 v[{16+4*i}:{19+4*i}], v4, s[40:41] offset:{i*128}")
    A("s_waitcnt vmcnt(0)")
    XB = 64
    for i in range(32):
        A(f"v_lshlrev_b32 v{XB+2*i}, 16, v{16+i}"); A(f"v_and_b32 v{XB+2*i+1}, 0xffff0000, v{16+i}")
    A(f"s_mov_b32 s35, {fbits(1e-5):#x}")
    ln_rows(A, XB, 64, 35, (8, 9, 10, 11, 12, 13))
    U.wait_cnt(sDBG, 16, off=D_MODA*4)
    U.add64(42, sWS, WS_MOD)
    A("v_lshlrev_b32 v6, 5, v3")
    A("v_lshrrev_b32 v7, 4, v2"); A("v_lshlrev_b32 v7, 14, v7"); A("v_lshrrev_b32 v8, 2, v3"); A("v_lshlrev_b32 v8, 10, v8"); A("v_add_u32 v7, v7, v8")
    A("v_and_b32 v8, 3, v3"); A("v_lshlrev_b32 v8, 8, v8"); A("v_add_u32 v7, v7, v8")
    A("v_and_b32 v8, 15, v2"); A("v_lshlrev_b32 v8, 4, v8"); A("v_add_u32 v7, v7, v8")
    A(f"s_lshl_b32 s34, s{sJ}, 15"); A(f"s_add_u32 s34, s34, {WS_HF}"); U.add64(44, sWS, "s34")
    SA, CA = 128, 192
    for i in range(8):
        A(f"global_load_dwordx4 {r(SA+8*i,4)}, v6, s[42:43] offset:{i*256} sc1"); A(f"global_load_dwordx4 {r(SA+8*i+4,4)}, v6, s[42:43] offset:{i*256+16} sc1")
        A(f"global_load_dwordx4 {r(CA+8*i,4)}, v6, s[42:43] offset:{2048+i*256} sc1"); A(f"global_load_dwordx4 {r(CA+8*i+4,4)}, v6, s[42:43] offset:{2048+i*256+16} sc1")
    for i in range(8):
        A(f"s_waitcnt vmcnt({4*(7-i) + min(i, 63)})" if False else f"s_waitcnt vmcnt({4*(7-i)})" if i == 0 else "s_nop 0")
        if i == 1: A("s_waitcnt vmcnt(1)")
        for k in range(0, 8, 2):
            a, b = CA+8*i+k, CA+8*i+k+1
            A(f"v_add_f32 v{a}, 1.0, v{a}"); A(f"v_add_f32 v{b}, 1.0, v{b}"); bf_round_pair(A, a, b, 10)
            x0, x1 = XB+8*i+k, XB+8*i+k+1
            A(f"v_mul_f32 v{x0}, v{x0}, v{a}"); A(f"v_mul_f32 v{x1}, v{x1}, v{b}"); bf_round_pair(A, x0, x1, 10)
            A(f"v_add_f32 v{x0}, v{x0}, v{SA+8*i+k}"); A(f"v_add_f32 v{x1}, v{x1}, v{SA+8*i+k+1}")
            A(f"v_cvt_pk_bf16_f32 v{32+4*(i%2)+k//2}, v{x0}, v{x1}")
        A(f"global_store_dwordx4 v7, v[{32+4*(i%2)}:{35+4*(i%2)}], s[44:45] sc1")
        A("v_add_u32 v7, 2048, v7")
    A(f"s_lshl_b32 s34, s{sJ}, 6"); A(f"s_add_u32 s34, s34, {cnt_off(C_HRDY)}"); U.add64(44, sWS, "s34")
    U.signal(44)

def role_G(A, U, sHd, sRep, nrep=7, do_q=True, TL=False):
    WL = WLoad(A, LB=0, vb=200)
    A("s_load_dwordx4 s[40:43], s[0:1], 16"); A("s_load_dwordx2 s[44:45], s[0:1], 32")
    WL.setup(8192, "nat", "tile")
    A(f"s_lshl_b32 s34, s{sW}, 6"); A(f"v_xor_b32 v210, s34, v{WL.vT}"); A("v_xor_b32 v211, 32, v210")
    A("v_add_u32 v212, 0x10000, v210"); A("v_add_u32 v213, 0x10000, v211")
    A("s_waitcnt lgkmcnt(0)")
    A(f"s_lshl_b32 s34, s{sHd}, 8")
    for b in (40, 42, 44): A(f"s_add_u32 s{b}, s{b}, s34"); A(f"s_addc_u32 s{b+1}, s{b+1}, 0")
    def load_mats(mats):
        n = 8*len(mats)
        for c in range(8): WL.dma(mats[c//8][0], (c % 8)*64*8192, c % 8)
        for c in range(n):
            mi, t = divmod(c, 8); slot = c % 8
            rem = min(n - 1 - c, 7)
            A(f"s_waitcnt vmcnt({4*rem})"); A("s_barrier")
            for X in range(2):
                for q4 in range(4):
                    WL.tr(ar(mats[mi][1] + (X*8 + t)*8 + 2*q4, 2), 210+X, 212+X, slot, [0, 4, 32, 36][q4])
            A("s_waitcnt lgkmcnt(0)"); A("s_barrier")
            if c + 8 < n: WL.dma(mats[(c+8)//8][0], ((c+8) % 8)*64*8192, slot)
    A("v_lshlrev_b32 v2, 4, v0")
    A(f"s_lshl_b32 s34, s{sW}, 13"); A("v_add_u32 v3, s34, v2")
    def seg_loop(tag, mode):
        sS, sN, sB = 46, 47, 48
        def issue_h(sseg, sbuf):
            A(f"s_lshl_b32 s34, s{sseg}, 6"); A(f"s_add_u32 s34, s34, {cnt_off(C_HRDY)}"); U.add64(50, sWS, "s34")
            U.wait_cnt(50, 1)
            A(f"s_lshl_b32 s34, s{sseg}, 15"); A(f"s_add_u32 s34, s34, {WS_HF}"); U.add64(50, sWS, "s34")
            for i in range(8):
                if i % 4 == 0:
                    A(f"s_lshl_b32 s34, s{sW}, 13"); A(f"s_add_u32 s34, s34, s{sbuf}"); A(f"s_add_u32 m0, s34, {i*1024}")
                    if i: A("s_add_u32 s50, s50, 4096"); A("s_addc_u32 s51, s51, 0")
                A(f"global_load_lds_dwordx4 v3, s[50:51] offset:{(i % 4)*1024} sc1")
        A(f"s_mov_b32 s{sS}, s{sRep}"); A(f"s_mov_b32 s{sB}, 0")
        issue_h(sS, sB)
        A.label(f"G{tag}_loop")
        A(f"s_add_u32 s{sN}, s{sS}, {nrep}")
        A("s_waitcnt vmcnt(0)"); A("s_barrier")
        Ls = A.newlabel("Gn")
        A(f"s_xor_b32 s49, s{sB}, 32768")
        A(f"s_cmp_ge_u32 s{sN}, 64"); A(f"s_cbranch_scc1 {Ls}")
        issue_h(sN, 49)
        A.label(Ls)
        A(f"v_add_u32 v4, s{sB}, v2")
        ACK, ACV, HFR = 16, 32, 64
        nacc = 32 if mode == 'kv' else 16
        for i in range(0, nacc, 2): A(f"v_mov_b64 {r(16+i,2)}, 0")
        for n in range(4): A(f"ds_read_b128 {r(HFR+4*n,4)}, v4 offset:{n*1024}")
        for n in range(32):
            Xt, t = divmod(n, 16)
            if n + 4 < 32: A(f"ds_read_b128 {r(HFR+4*((n+4) % 8),4)}, v4 offset:{(n+4)*1024}")
            A(f"s_waitcnt lgkmcnt({min(4, 31-n)})")
            hf = r(HFR+4*(n % 8), 4)
            for Xe in range(2):
                wk = ar((Xe*16 + t)*4, 4)
                d = r(ACK + (Xt*2 + Xe)*4, 4)
                A(f"v_mfma_f32_16x16x32_bf16 {d}, {wk}, {hf}, {d}")
            if mode == 'kv':
                for Xe in range(2):
                    wv = ar(128 + (Xe*16 + t)*4, 4)
                    d = r(ACV + (Xt*2 + Xe)*4, 4)
                    A(f"v_mfma_f32_16x16x32_bf16 {d}, {hf}, {wv}, {d}")
        A(f"s_lshl_b32 s34, s{sS}, 18"); A(f"s_lshl_b32 s35, s{sHd}, 13"); A("s_add_u32 s34, s34, s35")
        A(f"s_add_u32 s35, s34, {WS_KX if mode == 'kv' else WS_QX}"); U.add64(52, sWS, "s35")
        A(f"s_lshl_b32 s35, s{sW}, 10"); A("v_add_u32 v5, s35, v2")
        for Xt in range(2):
            a0, a1 = ACK + (Xt*2)*4, ACK + (Xt*2+1)*4
            o = 100 + 4*Xt
            A(f"v_cvt_pk_bf16_f32 v{o}, v{a0}, v{a0+1}"); A(f"v_cvt_pk_bf16_f32 v{o+1}, v{a0+2}, v{a0+3}")
            A(f"v_cvt_pk_bf16_f32 v{o+2}, v{a1}, v{a1+1}"); A(f"v_cvt_pk_bf16_f32 v{o+3}, v{a1+2}, v{a1+3}")
        A(f"global_store_dwordx4 v5, v[100:103], s[52:53] sc1")
        A("v_add_u32 v6, 4096, v5"); A(f"global_store_dwordx4 v6, v[104:107], s[52:53] sc1")
        if mode == 'kv':
            A(f"s_add_u32 s35, s34, {WS_VX}"); U.add64(52, sWS, "s35")
            A(f"s_lshl_b32 s35, s{sW}, 11"); A("v_add_u32 v5, s35, v2")
            for Xe in range(2):
                a0, a1 = ACV + Xe*4, ACV + (2 + Xe)*4
                o = 108 + 4*Xe
                A(f"v_cvt_pk_bf16_f32 v{o}, v{a0}, v{a0+1}"); A(f"v_cvt_pk_bf16_f32 v{o+1}, v{a0+2}, v{a0+3}")
                A(f"v_cvt_pk_bf16_f32 v{o+2}, v{a1}, v{a1+1}"); A(f"v_cvt_pk_bf16_f32 v{o+3}, v{a1+2}, v{a1+3}")
                A(f"global_store_dwordx4 v5, v[{o}:{o+3}], s[52:53] offset:{Xe*1024} sc1")
        A(f"s_lshl_b32 s34, s{sS}, 6"); A(f"s_add_u32 s34, s34, {cnt_off(C_KV if mode == 'kv' else C_QD)}"); U.add64(52, sWS, "s34")
        U.signal(52)
        A(f"s_mov_b32 s{sS}, s{sN}"); A(f"s_mov_b32 s{sB}, s49")
        A(f"s_cmp_lt_u32 s{sS}, 64"); A(f"s_cbranch_scc1 G{tag}_loop")
    load_mats([(42, 0), (44, 128)])
    tl_stamp(A, TL, 0, 2)
    seg_loop("kv", "kv")
    tl_stamp(A, TL, 0, 3)
    if do_q:
        A("s_barrier")
        load_mats([(40, 0)])
        seg_loop("q", "q")
```

```python
from common import *
from roles1 import WLoad, bf_round_pair
SC_C = 0.08838834764831845 * 1.4426950408889634
MF = "v_mfma_f32_16x16x32_bf16"; MF16 = "v_mfma_f32_16x16x16_bf16"
EXP_TARGET = 32 * 0x4444

def cnt_addr(A, U, d, arr, sseg):
    A(f"s_lshl_b32 s34, s{sseg}, 6"); A(f"s_add_u32 s34, s34, {cnt_off(arr)}"); U.add64(d, sWS, "s34")

def role_A(A, U, sJ, TL=False):
    sHG, sNH, sRep, sS, sHd = 14, 15, 16, 17, 18
    A(f"s_and_b32 s{sHG}, s{sJ}, 7"); A(f"s_bfe_u32 s{sNH}, s{sJ}, 0x10003"); A(f"s_lshr_b32 s{sRep}, s{sJ}, 4")
    A(f"s_lshl_b32 s{sHd}, s{sHG}, 2"); A(f"s_add_u32 s{sHd}, s{sHd}, s{sW}")
    WL = WLoad(A, LB=0, vb=200)
    A("s_load_dwordx2 s[40:41], s[0:1], 40")
    WL.setup(1024, "split", "pair")
    A(f"s_and_b32 s34, s{sW}, 1"); A("s_lshl_b32 s34, s34, 7"); A(f"v_xor_b32 v210, s34, v{WL.vT}"); A("v_xor_b32 v211, 64, v210")
    A(f"s_lshr_b32 s34, s{sW}, 1"); A("s_lshl_b32 s34, s34, 14"); A("v_add_u32 v210, s34, v210"); A("v_add_u32 v211, s34, v211")
    A("v_add_u32 v212, 0x10000, v210"); A("v_add_u32 v213, 0x10000, v211")
    A("s_waitcnt lgkmcnt(0)")
    A(f"s_lshl_b32 s34, s{sHG}, 19"); A(f"s_lshl_b32 s35, s{sNH}, 9"); A("s_add_u32 s34, s34, s35")
    A("s_add_u32 s40, s40, s34"); A("s_addc_u32 s41, s41, 0")
    U.add64(42, 40, 256)
    def dma_pair(rb, sl):
        WL.dma(40, rb*64*1024, 2*sl); WL.dma(42, rb*64*1024, 2*sl+1)
    for rb in range(4): dma_pair(rb, rb)
    for rb in range(8):
        sl = rb % 4
        A(f"s_waitcnt vmcnt({8*min(3, 7-rb)})"); A("s_barrier")
        for u in range(2):
            kk = 2*rb + u
            for pp in range(2):
                for a in range(2):
                    q = 2*pp + a
                    for hf in range(2):
                        WL.tr(ar((kk*4 + q)*4 + 2*hf, 2), 210+pp, 212+pp, 2*sl, 32*u + 16*hf, extra=8*a)
        A("s_waitcnt lgkmcnt(0)"); A("s_barrier")
        if rb + 4 < 8: dma_pair(rb+4, sl)
    QF, KF, VF, KM, VM, SS, OO, PX, PM, ACC, ONE, HALF = 16, 48, 80, 112, 128, 144, 164, 228, 236, 240, 8, 12
    LL = 240
    A("v_lshlrev_b32 v2, 4, v0")
    for i in range(4): A(f"v_mov_b32 v{ONE+i}, 0x3f803f80")
    A("v_lshrrev_b32 v3, 4, v0"); A("v_and_b32 v4, 15, v0")
    A(f"v_cmp_gt_u32 vcc, 2, v3"); A(f"v_cndmask_b32 v{HALF}, 0, v{ONE}, vcc"); A(f"v_mov_b32 v{HALF+1}, v{HALF}")
    for j in range(4):
        A("v_lshlrev_b32 v5, 2, v3"); A(f"v_add_u32 v5, {j}, v5"); A(f"v_cmp_gt_u32 s[{20+2*j}:{21+2*j}], v5, v4")
    A(f"s_mov_b32 s28, {fbits(SC_C):#x}"); A(f"s_mov_b32 s29, {fbits(-1e30):#x}")
    A("v_lshrrev_b32 v5, 2, v0"); A("v_lshlrev_b32 v5, 4, v5"); A("v_and_b32 v6, 1, v0"); A("v_lshlrev_b32 v6, 3, v6"); A("v_add_u32 v5, v5, v6")
    A(f"s_lshl_b32 s34, s{sW}, 11"); A("s_add_u32 s30, s34, 40960"); A("v_add_u32 v5, s30, v5")
    A(f"s_lshl_b32 s34, s{sW}, 12"); A("v_add_u32 v6, s34, v2")
    A("v_lshlrev_b32 v7, 10, v4"); A("v_lshlrev_b32 v14, 4, v3"); A("v_add_u32 v7, v7, v14")
    A(f"s_lshl_b32 s34, s{sW}, 7"); A(f"s_lshl_b32 s35, s{sNH}, 9"); A("s_add_u32 s34, s34, s35"); A("v_add_u32 v7, s34, v7")
    tl_stamp(A, TL, 0, 5)
    A(f"s_mov_b32 s{sS}, s{sRep}")
    A.label("A_loop")
    cnt_addr(A, U, 42, C_QD, sS); U.wait_cnt(42, 32, sleep=SLP["q"])
    cnt_addr(A, U, 42, C_KV, sS); U.wait_cnt(42, 32)
    A(f"s_lshl_b32 s34, s{sS}, 5"); A(f"s_add_u32 s31, s34, s{sHd}")
    A("s_lshl_b32 s34, s31, 13")
    for nm, base, reg in (("q", WS_QX, QF), ("k", WS_KX, KF), ("v", WS_VX, VF)):
        A(f"s_add_u32 s35, s34, {base}"); U.add64(44, sWS, "s35")
        for f in range(8):
            if f == 4: A("s_add_u32 s44, s44, 4096"); A("s_addc_u32 s45, s45, 0")
            A(f"global_load_dwordx4 {r(reg+4*f,4)}, v2, s[44:45] offset:{(f % 4)*1024} sc1")
    A("s_waitcnt vmcnt(8)")
    tiles = [(0, 0), (0, 1), (1, 1)]
    for t in range(4):
        for i, (Y, Xq) in enumerate(tiles):
            d = r(SS+4*i, 4)
            A(f"{MF} {d}, {r(KF+(Y*4+t)*4,4)}, {r(QF+(Xq*4+t)*4,4)}, {'0' if t == 0 else d}")
    cnt_addr(A, U, 42, C_EXP, sS); A(f"s_mov_b32 s33, {EXP_TARGET}"); U.wait_cnt(42, "s33", sleep=SLP["a"])
    A("s_lshl_b32 s34, s31, 11"); A(f"s_add_u32 s34, s34, {WS_EK}"); U.add64(44, sWS, "s34")
    A("s_mov_b32 m0, s30")
    A("global_load_lds_dwordx4 v2, s[44:45] sc1"); A("global_load_lds_dwordx4 v2, s[44:45] offset:1024 sc1")
    A("s_lshl_b32 s34, s31, 13"); A(f"s_add_u32 s34, s34, {WS_EV}"); U.add64(44, sWS, "s34")
    for wp in range(4):
        if wp == 2: A("s_add_u32 s44, s44, 4096"); A("s_addc_u32 s45, s45, 0")
        A(f"global_load_dwordx4 {r(VM+4*wp,4)}, v2, s[44:45] offset:{(wp % 2)*2048} sc1")
    A("s_waitcnt vmcnt(0)")
    for t in range(4):
        for hf in range(2): A(f"ds_read_b64_tr_b16 {r(KM+4*t+2*hf,2)}, v5 offset:{t*512 + hf*256}")
    A("s_waitcnt lgkmcnt(0)")
    for t in range(4):
        for Xq in range(2):
            d = r(SS+12+4*Xq, 4)
            A(f"{MF} {d}, {r(KM+4*t,4)}, {r(QF+(Xq*4+t)*4,4)}, {'0' if t == 0 else d}")
    A("v_mov_b32 v15, s29")
    for i in (0, 2):
        for j in range(4): A(f"v_cndmask_b32 v{SS+4*i+j}, v{SS+4*i+j}, v15, s[{20+2*j}:{21+2*j}]")
    mx, t1 = 14, 15
    for Xq in range(2):
        regs = ([SS+0+j for j in range(4)] + [SS+12+j for j in range(4)]) if Xq == 0 else \
               ([SS+4+j for j in range(4)] + [SS+8+j for j in range(4)] + [SS+16+j for j in range(4)])
        A(f"v_max3_f32 v{mx}, v{regs[0]}, v{regs[1]}, v{regs[2]}")
        rest = regs[3:]
        while len(rest) >= 2: A(f"v_max3_f32 v{mx}, v{mx}, v{rest[0]}, v{rest[1]}"); rest = rest[2:]
        if rest: A(f"v_max_f32 v{mx}, v{mx}, v{rest[0]}")
        A(f"v_mov_b32 v{t1}, v{mx}"); A(f"v_permlane16_swap_b32 v{mx}, v{t1}"); A(f"v_max_f32 v{mx}, v{mx}, v{t1}")
        A(f"v_mov_b32 v{t1}, v{mx}"); A(f"v_permlane32_swap_b32 v{mx}, v{t1}"); A(f"v_max_f32 v{mx}, v{mx}, v{t1}")
        A(f"v_mul_f32 v{mx}, s28, v{mx}")
        for x in regs: A(f"v_fma_f32 v{x}, v{x}, s28, -v{mx}")
        for x in regs: A(f"v_exp_f32 v{x}, v{x}")
        px = PX + 4*Xq; pm = PM + 2*Xq
        if Xq == 0:
            A(f"v_cvt_pk_bf16_f32 v{px}, v{SS}, v{SS+1}"); A(f"v_cvt_pk_bf16_f32 v{px+1}, v{SS+2}, v{SS+3}")
            A(f"v_mov_b32 v{px+2}, 0"); A(f"v_mov_b32 v{px+3}, 0")
            m = SS+12
        else:
            A(f"v_cvt_pk_bf16_f32 v{px}, v{SS+4}, v{SS+5}"); A(f"v_cvt_pk_bf16_f32 v{px+1}, v{SS+6}, v{SS+7}")
            A(f"v_cvt_pk_bf16_f32 v{px+2}, v{SS+8}, v{SS+9}"); A(f"v_cvt_pk_bf16_f32 v{px+3}, v{SS+10}, v{SS+11}")
            m = SS+16
        A(f"v_cvt_pk_bf16_f32 v{pm}, v{m}, v{m+1}"); A(f"v_cvt_pk_bf16_f32 v{pm+1}, v{m+2}, v{m+3}")
    for Xq in range(2):
        A(f"{MF} {r(LL+4*Xq,4)}, {r(ONE,4)}, {r(PX+4*Xq,4)}, 0")
        for E in range(8): A(f"{MF} {r(OO+(E*2+Xq)*4,4)}, {r(VF+4*E,4)}, {r(PX+4*Xq,4)}, 0")
    for Xq in range(2):
        A(f"{MF16} {r(LL+4*Xq,4)}, {r(HALF,2)}, {r(PM+2*Xq,2)}, {r(LL+4*Xq,4)}")
        for E in range(8):
            d = r(OO+(E*2+Xq)*4, 4)
            A(f"{MF16} {d}, {r(VM+2*E,2)}, {r(PM+2*Xq,2)}, {d}")
    for Xq in range(2):
        A(f"v_rcp_f32 v{mx}, v{LL+4*Xq}")
        for t in range(4):
            o = QF + 4*t
            for hf in range(2):
                b = OO + ((2*t+hf)*2 + Xq)*4
                for j in range(4): A(f"v_mul_f32 v{b+j}, v{mx}, v{b+j}")
                A(f"v_cvt_pk_bf16_f32 v{o+2*hf}, v{b}, v{b+1}"); A(f"v_cvt_pk_bf16_f32 v{o+2*hf+1}, v{b+2}, v{b+3}")
            A(f"ds_write_b128 v6, {r(o,4)} offset:{Xq*16384 + t*1024}")
    A("s_waitcnt lgkmcnt(0)"); A("s_barrier")
    AC2 = KF; OFR = VF
    for i in range(0, 32, 2): A(f"v_mov_b64 {r(AC2+i,2)}, 0")
    for n in range(4): A(f"ds_read_b128 {r(OFR+4*n,4)}, v2 offset:{n*1024}")
    for n in range(32):
        Xq, kk = divmod(n, 16)
        if n + 4 < 32: A(f"ds_read_b128 {r(OFR+4*((n+4) % 8),4)}, v2 offset:{(n+4)*1024}")
        A(f"s_waitcnt lgkmcnt({min(4, 31-n)})")
        for q in range(4):
            d = r(AC2 + (q*2+Xq)*4, 4)
            A(f"{MF} {d}, {ar((kk*4+q)*4,4)}, {r(OFR+4*(n % 8),4)}, {d}")
    A(f"s_lshl_b32 s34, s{sS}, 3"); A(f"s_add_u32 s34, s34, s{sHG}"); A("s_lshl_b32 s34, s34, 15"); A(f"s_add_u32 s34, s34, {WS_YP}"); U.add64(44, sWS, "s34")
    for Xq in range(2):
        for pp in range(2):
            a0 = AC2 + ((2*pp)*2+Xq)*4; a1 = AC2 + ((2*pp+1)*2+Xq)*4
            o = QF + 4*(Xq*2+pp)
            A(f"v_cvt_pk_bf16_f32 v{o}, v{a0}, v{a0+1}"); A(f"v_cvt_pk_bf16_f32 v{o+1}, v{a0+2}, v{a0+3}")
            A(f"v_cvt_pk_bf16_f32 v{o+2}, v{a1}, v{a1+1}"); A(f"v_cvt_pk_bf16_f32 v{o+3}, v{a1+2}, v{a1+3}")
        if Xq == 1: A("s_add_u32 s44, s44, 16384"); A("s_addc_u32 s45, s45, 0")
        for pp in range(2):
            A(f"global_store_dwordx4 v7, {r(QF+4*(Xq*2+pp),4)}, s[44:45] offset:{pp*64} sc1")
    cnt_addr(A, U, 42, C_AD, sS); U.signal(42)
    A(f"s_add_u32 s{sS}, s{sS}, 4"); A(f"s_cmp_lt_u32 s{sS}, 64"); A("s_cbranch_scc1 A_loop")

def wave_sum(A, v, t):
    A(f"v_add_f32_dpp v{v}, v{v}, v{v} quad_perm:[1,0,3,2] row_mask:0xf bank_mask:0xf")
    A(f"v_add_f32_dpp v{v}, v{v}, v{v} quad_perm:[2,3,0,1] row_mask:0xf bank_mask:0xf")
    A(f"v_add_f32_dpp v{v}, v{v}, v{v} row_half_mirror row_mask:0xf bank_mask:0xf")
    A(f"v_add_f32_dpp v{v}, v{v}, v{v} row_mirror row_mask:0xf bank_mask:0xf")
    A(f"v_mov_b32 v{t}, v{v}"); A(f"v_permlane16_swap_b32 v{v}, v{t}"); A(f"v_add_f32 v{v}, v{v}, v{t}")
    A(f"v_mov_b32 v{t}, v{v}"); A(f"v_permlane32_swap_b32 v{v}, v{t}"); A(f"v_add_f32 v{v}, v{v}, v{t}")

def unpack8(A, src, dst):
    for k in range(4):
        A(f"v_lshlrev_b32 v{dst+2*k}, 16, v{src+k}"); A(f"v_and_b32 v{dst+2*k+1}, 0xffff0000, v{src+k}")

def role_R(A, U, sJ):
    sRG, sRep, sS = 14, 15, 17
    A(f"s_sub_u32 s34, s{sJ}, 108"); A(f"s_and_b32 s{sRG}, s34, 3"); A(f"s_lshr_b32 s{sRep}, s34, 2")
    A("s_load_dwordx2 s[40:41], s[0:1], 0"); A("s_load_dwordx2 s[46:47], s[0:1], 88"); A("s_load_dwordx2 s[48:49], s[0:1], 112")
    A("v_lshlrev_b32 v2, 4, v0"); A("v_lshlrev_b32 v3, 5, v0")
    U.wait_cnt(sDBG, 32, off=D_MODB*4)
    U.add64(42, sWS, WS_MOD + 2*2048)
    GA, SB, CB, GB, B2 = 16, 24, 32, 40, 48
    for i, reg in enumerate((GA, SB, CB, GB)):
        U.add64(44, 42, i*2048)
        A(f"global_load_dwordx4 {r(reg,4)}, v3, s[44:45] sc1"); A(f"global_load_dwordx4 {r(reg+4,4)}, v3, s[44:45] offset:16 sc1")
    A("s_waitcnt lgkmcnt(0)")
    A("global_load_dwordx4 v[56:59], v2, s[46:47]")
    A("s_waitcnt vmcnt(0)")
    unpack8(A, 56, B2)
    for k in range(0, 8, 2):
        A(f"v_add_f32 v{CB+k}, 1.0, v{CB+k}"); A(f"v_add_f32 v{CB+k+1}, 1.0, v{CB+k+1}"); bf_round_pair(A, CB+k, CB+k+1, 60)
    A(f"s_mov_b32 s35, {fbits(1e-5):#x}"); A("s_mov_b32 s33, s35")
    A(f"s_lshl_b32 s18, s{sRG}, 3"); A(f"s_lshl_b32 s34, s{sW}, 1"); A("s_add_u32 s18, s18, s34")
    A("v_lshrrev_b32 v4, 2, v0"); A("v_lshlrev_b32 v4, 10, v4"); A("v_and_b32 v5, 3, v0"); A("v_lshlrev_b32 v5, 8, v5"); A("v_add_u32 v4, v4, v5")
    X1R = 64
    LD = 96
    A(f"s_mov_b32 s{sS}, s{sRep}")
    A.label("R_loop")
    cnt_addr(A, U, 42, C_AD, sS); U.wait_cnt(42, 16, sleep=SLP["r"])
    for i in range(2):
        A(f"s_lshl_b32 s34, s{sS}, 18"); A(f"s_add_u32 s19, s18, {i}"); A("s_lshl_b32 s19, s19, 10"); A("s_add_u32 s34, s34, s19"); A(f"s_add_u32 s34, s34, {WS_YP}")
        U.add64(44, sWS, "s34")
        for hg in range(8):
            A(f"global_load_dwordx4 {r(LD+i*36+4*hg,4)}, v2, s[44:45] sc1"); A("s_add_u32 s44, s44, 32768"); A("s_addc_u32 s45, s45, 0")
        A(f"s_lshl_b32 s34, s{sS}, 15"); A("s_add_u32 s34, s34, s19"); U.add64(44, 40, "s34")
        A(f"global_load_dwordx4 {r(LD+i*36+32,4)}, v2, s[44:45]")
    A("s_waitcnt vmcnt(0)")
    for i in range(2):
        xr = X1R + 8*i
        ac = 80
        unpack8(A, LD+i*36, ac)
        for hg in range(1, 8):
            unpack8(A, LD+i*36+4*hg, 88)
            for k in range(8): A(f"v_add_f32 v{ac+k}, v{ac+k}, v{88+k}")
        unpack8(A, LD+i*36+32, xr)
        for k in range(0, 8, 2):
            bf_round_pair(A, ac+k, ac+k+1, 60)
            A(f"v_mul_f32 v{ac+k}, v{GA+k}, v{ac+k}"); A(f"v_mul_f32 v{ac+k+1}, v{GA+k+1}, v{ac+k+1}"); bf_round_pair(A, ac+k, ac+k+1, 60)
            A(f"v_add_f32 v{xr+k}, v{xr+k}, v{ac+k}"); A(f"v_add_f32 v{xr+k+1}, v{xr+k+1}, v{ac+k+1}"); bf_round_pair(A, xr+k, xr+k+1, 60)
        t0, t1, t2, t3, t4 = 6, 7, 8, 9, 10
        A(f"v_add_f32 v{t0}, v{xr}, v{xr+1}")
        for k in range(2, 8): A(f"v_add_f32 v{t0}, v{t0}, v{xr+k}")
        wave_sum(A, t0, t2); A(f"v_mul_f32 v{t0}, {fbits(1.0/512):#x}, v{t0}")
        A(f"v_mov_b32 v{t1}, 0")
        for k in range(8): A(f"v_sub_f32 v{t3}, v{xr+k}, v{t0}"); A(f"v_fmac_f32 v{t1}, v{t3}, v{t3}")
        wave_sum(A, t1, t2); A(f"v_mul_f32 v{t1}, {fbits(1.0/512):#x}, v{t1}")
        bf_round_pair(A, t0, t1, t2)
        A(f"v_add_f32 v{t1}, s33, v{t1}"); A(f"v_cvt_pk_bf16_f32 v{t1}, v{t1}, v{t1}"); A(f"v_lshlrev_b32 v{t1}, 16, v{t1}")
        A(f"v_sqrt_f32 v{t1}, v{t1}"); A(f"v_cvt_pk_bf16_f32 v{t1}, v{t1}, v{t1}"); A(f"v_lshlrev_b32 v{t1}, 16, v{t1}"); A(f"v_rcp_f32 v{t1}, v{t1}")
        for k in range(0, 8, 2):
            a, b = ac+k, ac+k+1
            A(f"v_sub_f32 v{a}, v{xr+k}, v{t0}"); A(f"v_sub_f32 v{b}, v{xr+k+1}, v{t0}"); bf_round_pair(A, a, b, t2)
            A(f"v_mul_f32 v{a}, v{a}, v{t1}"); A(f"v_mul_f32 v{b}, v{b}, v{t1}"); bf_round_pair(A, a, b, t2)
            A(f"v_mul_f32 v{a}, v{a}, v{CB+k}"); A(f"v_mul_f32 v{b}, v{b}, v{CB+k+1}"); bf_round_pair(A, a, b, t2)
            A(f"v_add_f32 v{a}, v{a}, v{SB+k}"); A(f"v_add_f32 v{b}, v{b}, v{SB+k+1}")
            A(f"v_cvt_pk_bf16_f32 v{88+k//2}, v{a}, v{b}")
        A(f"s_add_u32 s19, s18, {i}"); A("s_lshr_b32 s34, s19, 4"); A("s_lshl_b32 s34, s34, 14"); A("s_and_b32 s36, s19, 15"); A("s_lshl_b32 s36, s36, 4"); A("s_add_u32 s34, s34, s36")
        A(f"s_lshl_b32 s36, s{sS}, 15"); A("s_add_u32 s34, s34, s36"); A(f"s_add_u32 s34, s34, {WS_H2F}"); U.add64(44, sWS, "s34")
        A("global_store_dwordx4 v4, v[88:91], s[44:45] sc1")
        for k in range(0, 8, 2): A(f"v_cvt_pk_bf16_f32 v{92+k//2}, v{xr+k}, v{xr+k+1}")
        A(f"s_lshl_b32 s34, s{sS}, 15"); A("s_lshl_b32 s36, s19, 10"); A("s_add_u32 s34, s34, s36"); A(f"s_add_u32 s34, s34, {WS_X1}"); U.add64(44, sWS, "s34")
        A("global_store_dwordx4 v2, v[92:95], s[44:45]")
    cnt_addr(A, U, 42, C_R1, sS); U.signal(42)
    cnt_addr(A, U, 42, C_CD, sS); U.wait_cnt(42, 11, sleep=SLP["r"])
    for i in range(2):
        A(f"s_mul_i32 s34, s{sS}, {11*32768}"); A(f"s_add_u32 s19, s18, {i}"); A("s_lshl_b32 s19, s19, 10"); A("s_add_u32 s34, s34, s19"); A(f"s_add_u32 s34, s34, {WS_FP}")
        U.add64(44, sWS, "s34")
        for f in range(11):
            A(f"global_load_dwordx4 {r(LD+i*44+4*f,4)}, v2, s[44:45] sc1"); A("s_add_u32 s44, s44, 32768"); A("s_addc_u32 s45, s45, 0")
    A("s_waitcnt vmcnt(0)")
    for i in range(2):
        xr = X1R + 8*i; ac = 80
        unpack8(A, LD+i*44, ac)
        for f in range(1, 11):
            unpack8(A, LD+i*44+4*f, 88)
            for k in range(8): A(f"v_add_f32 v{ac+k}, v{ac+k}, v{88+k}")
        for k in range(0, 8, 2):
            a, b = ac+k, ac+k+1
            bf_round_pair(A, a, b, 60)
            A(f"v_add_f32 v{a}, v{a}, v{B2+k}"); A(f"v_add_f32 v{b}, v{b}, v{B2+k+1}"); bf_round_pair(A, a, b, 60)
            A(f"v_mul_f32 v{a}, v{a}, v{GB+k}"); A(f"v_mul_f32 v{b}, v{b}, v{GB+k+1}"); bf_round_pair(A, a, b, 60)
            A(f"v_add_f32 v{a}, v{a}, v{xr+k}"); A(f"v_add_f32 v{b}, v{b}, v{xr+k+1}")
            A(f"v_cvt_pk_bf16_f32 v{88+k//2}, v{a}, v{b}")
        A(f"s_add_u32 s19, s18, {i}"); A(f"s_lshl_b32 s34, s{sS}, 15"); A("s_lshl_b32 s36, s19, 10"); A("s_add_u32 s34, s34, s36"); U.add64(44, 48, "s34")
        A("global_store_dwordx4 v2, v[88:91], s[44:45]")
        A("s_nop 1")
    A(f"s_add_u32 s{sS}, s{sS}, 8"); A(f"s_cmp_lt_u32 s{sS}, 64"); A("s_cbranch_scc1 R_loop")
    A("s_waitcnt vmcnt(0)")

def role_C(A, U, sJ):
    sF, sRep, sS = 14, 15, 17
    A(f"s_sub_u32 s34, s{sJ}, 64"); A("s_mul_i32 s35, s34, 0x1746"); A(f"s_lshr_b32 s{sRep}, s35, 16")
    A(f"s_mul_i32 s35, s{sRep}, 11"); A(f"s_sub_u32 s{sF}, s34, s35")
    A("s_load_dwordx4 s[40:43], s[0:1], 64"); A("s_load_dwordx2 s[44:45], s[0:1], 80")
    WL = WLoad(A, LB=0, vb=200)
    WL.setup(2752, "nat", "tile")
    Lc = A.newlabel("Cnc")
    A(f"s_cmp_lg_u32 s{sF}, 10"); A(f"s_cbranch_scc1 {Lc}")
    for v, x in ((WL.vS0, 0), (WL.vS1, 8)):
        A("v_lshrrev_b32 v214, 4, v0"); A("v_lshlrev_b32 v214, 1, v214"); A("v_and_b32 v215, 15, v0"); A("v_xor_b32 v214, v214, v215")
        if x: A(f"v_xor_b32 v214, {x}, v214")
        A("v_cmp_le_u32 vcc, 12, v214"); A("v_lshlrev_b32 v214, 4, v214"); A(f"v_sub_u32 v214, v{v}, v214")
        A(f"v_cndmask_b32 v{v}, v{v}, v214, vcc")
    A.label(Lc)
    A(f"s_lshl_b32 s34, s{sW}, 6"); A(f"v_xor_b32 v210, s34, v{WL.vT}"); A("v_xor_b32 v211, 32, v210")
    A("v_add_u32 v212, 0x10000, v210"); A("v_add_u32 v213, 0x10000, v211")
    A("s_waitcnt lgkmcnt(0)")
    A(f"s_lshl_b32 s34, s{sF}, 8"); A("s_add_u32 s40, s40, s34"); A("s_addc_u32 s41, s41, 0")
    for c in range(8): WL.dma(40, c*64*2752, c)
    for c in range(8):
        A(f"s_waitcnt vmcnt({4*(7-c)})"); A("s_barrier")
        for X in range(2):
            for q4 in range(4): WL.tr(ar((X*8 + c)*8 + 2*q4, 2), 210+X, 212+X, c, [0, 4, 32, 36][q4])
        A("s_waitcnt lgkmcnt(0)")
    A("s_barrier")
    WL2 = WLoad(A, LB=0, vb=200)
    WL2.setup(1024, "split", "pair")
    A(f"s_lshl_b32 s34, s{sF}, 17"); A("s_add_u32 s44, s44, s34"); A("s_addc_u32 s45, s45, 0")
    A(f"s_cmp_eq_u32 s{sF}, 10"); A("s_cselect_b32 s34, 1, 0"); A(f"s_cmp_ge_u32 s{sW}, 2"); A("s_cselect_b32 s35, s34, 0"); A("s_lshl_b32 s35, s35, 15")
    for rb in range(2):
        for cq in range(4):
            U.add64(46, 44, cq*256)
            if rb == 1: A("s_sub_u32 s46, s46, s35"); A("s_subb_u32 s47, s47, 0")
            WL2.dma(46, rb*64*1024, rb*4 + cq)
    A(f"s_lshl_b32 s34, s{sW}, 14"); A(f"v_add_u32 v210, s34, v{WL2.vT}")
    A("s_waitcnt vmcnt(0)"); A("s_barrier")
    for rb in range(2):
        for p in range(4):
            A(f"v_xor_b32 v211, {p*64}, v210") if True else None
            A(f"v_add_u32 v211, {rb*65536}, v211") if rb else None
            for u2 in range(2):
                u = 2*rb + u2
                for a in range(2):
                    q = 2*p + a
                    for hf in range(2):
                        A(f"ds_read_b64_tr_b16 {ar(128 + (u*8 + q)*4 + 2*hf, 2)}, v211 offset:{(32*u2 + 16*hf)*256 + 8*a}")
    A("s_waitcnt lgkmcnt(0)"); A("s_barrier")
    A("v_lshrrev_b32 v3, 4, v0"); A("v_and_b32 v4, 15, v0")
    A("v_lshlrev_b32 v5, 3, v3"); A(f"s_lshl_b32 s34, s{sF}, 8"); A(f"s_lshl_b32 s35, s{sW}, 6"); A("s_add_u32 s34, s34, s35"); A("v_add_u32 v5, s34, v5")
    A("v_min_u32 v6, 2744, v5"); A("v_add_u32 v7, 32, v5"); A("v_min_u32 v7, 2744, v7")
    A("global_load_dwordx2 v[24:25], v6, s[42:43]"); A("global_load_dwordx2 v[26:27], v7, s[42:43]")
    A("s_waitcnt vmcnt(0)")
    B1 = 16
    for X in range(2):
        for k in range(2):
            A(f"v_lshlrev_b32 v{B1+4*X+2*k}, 16, v{24+2*X+k}"); A(f"v_and_b32 v{B1+4*X+2*k+1}, 0xffff0000, v{24+2*X+k}")
    Lz = A.newlabel("Cz")
    A(f"s_cmp_lg_u32 s{sF}, 10"); A(f"s_cbranch_scc1 {Lz}"); A(f"s_cmp_lg_u32 s{sW}, 3"); A(f"s_cbranch_scc1 {Lz}")
    for i in range(128): A(f"v_accvgpr_write_b32 a{i}, 0")
    for i in range(8): A(f"v_mov_b32 v{B1+i}, 0")
    A.label(Lz)
    A("v_lshlrev_b32 v2, 4, v0")
    A(f"s_lshl_b32 s34, s{sW}, 13"); A("v_add_u32 v8, s34, v2")
    A(f"s_lshl_b32 s34, s{sW}, 10"); A("v_add_u32 v9, s34, v2")
    A("v_lshlrev_b32 v10, 10, v4"); A("v_lshlrev_b32 v11, 4, v3"); A("v_add_u32 v10, v10, v11")
    A(f"s_lshl_b32 s34, s{sW}, 8"); A("v_add_u32 v10, s34, v10")
    A(f"s_mov_b32 s28, {fbits(0.044715):#x}"); A(f"s_mov_b32 s29, {fbits(-2.0*0.7978845608028654*1.4426950408889634):#x}")
    AC1, HFR, FF, AC2 = 32, 64, 96, 128
    A(f"s_mov_b32 s{sS}, s{sRep}")
    A.label("C_loop")
    cnt_addr(A, U, 42, C_R1, sS); U.wait_cnt(42, 4, sleep=SLP["c"])
    A(f"s_lshl_b32 s34, s{sS}, 15"); A(f"s_add_u32 s34, s34, {WS_H2F}"); U.add64(46, sWS, "s34")
    for i in range(8):
        if i % 4 == 0:
            A(f"s_lshl_b32 s34, s{sW}, 13"); A(f"s_add_u32 m0, s34, {i*1024}")
            if i: A("s_add_u32 s46, s46, 4096"); A("s_addc_u32 s47, s47, 0")
        A(f"global_load_lds_dwordx4 v8, s[46:47] offset:{(i % 4)*1024} sc1")
    for Xr in range(2):
        for X in range(2):
            for j in range(4): A(f"v_mov_b32 v{AC1+(Xr*2+X)*4+j}, v{B1+4*X+j}")
    A("s_waitcnt vmcnt(0)"); A("s_barrier")
    for n in range(4): A(f"ds_read_b128 {r(HFR+4*n,4)}, v2 offset:{n*1024}")
    for n in range(32):
        Xr, t = divmod(n, 16)
        if n + 4 < 32: A(f"ds_read_b128 {r(HFR+4*((n+4) % 8),4)}, v2 offset:{(n+4)*1024}")
        A(f"s_waitcnt lgkmcnt({min(4, 31-n)})")
        for X in range(2):
            d = r(AC1+(Xr*2+X)*4, 4)
            A(f"{MF} {d}, {ar((X*16+t)*4,4)}, {r(HFR+4*(n % 8),4)}, {d}")
    for Xr in range(2):
        for X in range(2):
            b = AC1+(Xr*2+X)*4
            for k in range(0, 4, 2): bf_round_pair(A, b+k, b+k+1, 12)
            for j in range(4):
                x = b+j
                A(f"v_mul_f32 v13, v{x}, v{x}"); A(f"v_mul_f32 v13, s28, v13"); A(f"v_fma_f32 v13, v13, v{x}, v{x}")
                A(f"v_mul_f32 v13, s29, v13"); A("v_exp_f32 v13, v13"); A("v_add_f32 v13, 1.0, v13"); A("v_rcp_f32 v13, v13")
                A(f"v_mul_f32 v{x}, v{x}, v13")
            A(f"v_cvt_pk_bf16_f32 v{24+2*X}, v{b}, v{b+1}"); A(f"v_cvt_pk_bf16_f32 v{25+2*X}, v{b+2}, v{b+3}")
        A(f"ds_write_b128 v9, v[24:27] offset:{32768 + Xr*4096}")
        A("s_nop 1")
    A("s_waitcnt lgkmcnt(0)"); A("s_barrier")
    for n in range(8): A(f"ds_read_b128 {r(FF+4*n,4)}, v2 offset:{32768 + n*1024}")
    A("s_waitcnt lgkmcnt(0)")
    for Xr in range(2):
        for q in range(8):
            d = r(AC2+(q*2+Xr)*4, 4)
            for u in range(4):
                A(f"{MF} {d}, {ar(128+(u*8+q)*4,4)}, {r(FF+(Xr*4+u)*4,4)}, {'0' if u == 0 else d}")
    A(f"s_mul_i32 s34, s{sS}, 11"); A(f"s_add_u32 s34, s34, s{sF}"); A("s_lshl_b32 s34, s34, 15"); A(f"s_add_u32 s34, s34, {WS_FP}"); U.add64(46, sWS, "s34")
    for Xr in range(2):
        if Xr == 1: A("s_add_u32 s46, s46, 16384"); A("s_addc_u32 s47, s47, 0")
        for p in range(4):
            a0 = AC2 + ((2*p)*2+Xr)*4; a1 = AC2 + ((2*p+1)*2+Xr)*4
            o = HFR + 4*(Xr*4+p)
            A(f"v_cvt_pk_bf16_f32 v{o}, v{a0}, v{a0+1}"); A(f"v_cvt_pk_bf16_f32 v{o+1}, v{a0+2}, v{a0+3}")
            A(f"v_cvt_pk_bf16_f32 v{o+2}, v{a1}, v{a1+1}"); A(f"v_cvt_pk_bf16_f32 v{o+3}, v{a1+2}, v{a1+3}")
            A(f"global_store_dwordx4 v10, {r(o,4)}, s[46:47] offset:{p*64} sc1")
    cnt_addr(A, U, 42, C_CD, sS); U.signal(42)
    A(f"s_add_u32 s{sS}, s{sS}, 4"); A(f"s_cmp_lt_u32 s{sS}, 64"); A("s_cbranch_scc1 C_loop")

SLP = dict(a=2, r=2, c=2, q=4)
def roles_ARC(A, U, sJ, TL=False, slp=None):
    if slp: SLP.update(slp)
    A("s_barrier")
    A(f"s_cmp_ge_u32 s{sJ}, 64"); A("s_cbranch_scc1 L_notA")
    role_A(A, U, sJ, TL)
    tl_stamp(A, TL, 0, 6)
    A("s_branch L_end")
    A.label("L_notA")
    A(f"s_cmp_ge_u32 s{sJ}, 108"); A("s_cbranch_scc1 L_notC")
    role_C(A, U, sJ)
    tl_stamp(A, TL, 0, 6)
    A("s_branch L_end")
    A.label("L_notC")
    A(f"s_cmp_ge_u32 s{sJ}, 140"); A("s_cbranch_scc1 L_end")
    role_R(A, U, sJ)
    tl_stamp(A, TL, 0, 6)
```

```python
from common import *
import struct
L_STG = 0; L_QB = 8192; L_OB = 161280; L_KX = 10752; L_VX = 18944; L_KB = 27136; L_WO = 30208
OSTR = 288
import os
if os.environ.get('OB_ALIAS'): L_OB = 8192
L_PF = 161280

vWoB = 1
vIDX, vL16, vAG, vWoA, vQW, vQR, vOW, vPst, vRS, vMst, vOR = range(2, 13)
vSEL = 16
vONE = 20
vHALF = 14
T0r, T1r = 0, 13
M = 24; Q = 56; K = 72; AQ = 88; AK = 96; SX = 104; SM = 112; OX = 116; LX = 124
WV = 128

SC_C = 0.08838834764831845 * 1.4426950408889634

sS = 12
sC = 14
sPst = 16
sPrd = 24
sMb = 26; sMc = 28; sKX = 30; sVX = 32
sMMSK = 40
sODD = 42
sFAIL = 44; sCNT = 45; sLO = 46
sHIST = 48
sPz = 50
sMz = 52
sMn = 54
sHn = 56
sM0K = 58
sM0V = 59
sNAG = 60
sNRS = 61
sST = 64
sEXC = 62
sEK = 92
sEV = 94
sKVC = 98
sEVp = 100
sXM = 46
sKVOK = 13
sHB2 = 20
sTAG = 50
sPrd2 = 22
sHn2 = 84
sHB = 18
sPF = 24

class Chain:
    def __init__(self, A, U, stamps=False, hist=False, nsteps=63, nv1=12, rs_wait=None, ag_delay=2, p_layout=1, rs_delay=4, masked=False, wo_spread=True, nohist=False, dump=None, rs_sets=1, rs_gap=2, ag_sets=2, ag_gap=2, late_reset=True, ag_reset=True, kvwait=True, pipe_t0=True, nocomm=False, stash_v=False, l2pf=False, noexp=False, nodma=False, mpoll=False, ag_depth=2, rs_depth=2, ackstamp=False, steplog=False, rs_var='C', opt2=True, bar=5, early_shadow=True, ptag=True, cfull=False, no_rs=False, no_ag=False, dmaflag='sc1', kbar=True, vearly=False, vexp_early=True):
        self.vexp_early = vexp_early
        self.vearly = vearly
        self.dmaflag = dmaflag; self.kbar = kbar
        self.no_rs = no_rs; self.no_ag = no_ag
        self.cfull = cfull
        self.ptag = ptag
        self.early_shadow = early_shadow
        self.bar = bar
        self.opt2 = opt2
        self.rs_var = rs_var
        self.steplog = steplog
        self.ackstamp = ackstamp
        self.mpoll = mpoll; self.ag_depth = ag_depth; self.rs_depth = rs_depth
        self.nodma = nodma; self.noexp = noexp
        self.stash_v = stash_v; self.l2pf = l2pf
        self.pipe_t0 = pipe_t0; self.nocomm = nocomm
        self.U = U; self.kv_ret = []; self.exports = not noexp; self.ag_reset = ag_reset; self.kvwait = kvwait
        self.rs_sets = rs_sets; self.rs_gap = rs_gap; self.ag_sets = ag_sets; self.ag_gap = ag_gap; self.late_reset = late_reset
        hist = hist and not nohist
        self.p_layout = p_layout; self.rs_delay = rs_delay; self.masked = masked; self.wo_spread = wo_spread
        self.nv1 = nv1; self.rs_wait = rs_wait; self.ag_delay = ag_delay
        self.A = A; self.stamps = stamps; self.hist = hist; self.nsteps = nsteps

    def stamp(self, i):
        if not self.stamps: return
        A = self.A
        A(f"s_memtime s[{sST+2*i}:{sST+2*i+1}]")

    def setup_consts(self):
        A = self.A; l = "v0"
        A(f"v_lshlrev_b32 {r(vL16)}, 4, {l}")
        A(f"s_lshl_b32 s34, s{sW}, 11"); A(f"v_add_u32 {r(vAG)}, s34, {r(vL16)}")
        A(f"s_lshl_b32 s34, s{sW}, 14"); A(f"s_add_u32 s34, s34, {L_WO}"); A(f"v_add_u32 {r(vWoA)}, s34, {r(vL16)}")
        A(f"v_add_u32 {r(vWoB)}, 0x10000, {r(vWoA)}")
        A(f"v_and_b32 v24, 15, {l}")
        A(f"v_lshrrev_b32 v25, 4, {l}")
        A(f"v_mov_b32 {r(vIDX)}, 0x4444"); A("v_mov_b32 v26, 0xeeee")
        A("v_cmp_le_u32 vcc, 8, v24")
        A(f"v_cndmask_b32 {r(vIDX)}, {r(vIDX)}, v26, vcc")
        A(f"v_lshrrev_b32 v26, 1, v25"); A("v_lshlrev_b32 v26, 8, v26")
        A("v_lshlrev_b32 v27, 4, v24"); A("v_add_u32 v26, v26, v27")
        A("v_and_b32 v27, 1, v25"); A("v_lshlrev_b32 v27, 3, v27"); A("v_add_u32 v26, v26, v27")
        A(f"s_lshl_b32 s34, s{sW}, 9"); A(f"v_add_u32 {r(vQW)}, s34, v26")
        A(f"v_lshrrev_b32 v26, 2, {l}"); A("v_lshlrev_b32 v26, 4, v26")
        A(f"v_and_b32 v27, 1, {l}"); A("v_lshlrev_b32 v27, 3, v27"); A(f"v_add_u32 {r(vQR)}, v26, v27")
        A("v_and_b32 v26, 7, v24"); A(f"v_mul_u32_u24 v26, {OSTR}, v26"); A(f"v_add_u32 {r(vOR)}, {L_OB}, v26")
        A("v_lshlrev_b32 v27, 3, v25"); A(f"v_add_u32 {r(vOW)}, {r(vOR)}, v27")
        A(f"s_lshl_b32 s34, s{sW}, 6"); A(f"v_add_u32 {r(vOW)}, s34, {r(vOW)}")
        A("v_lshlrev_b32 v27, 4, v25"); A(f"v_add_u32 {r(vOR)}, {r(vOR)}, v27")
        if self.rs_var == 'C':
            pass
        elif self.p_layout == 0:
            A(f"v_lshrrev_b32 v26, 5, {l}"); A("v_lshlrev_b32 v26, 13, v26")
            A("v_and_b32 v27, 1, v25"); A("v_lshlrev_b32 v27, 7, v27"); A("v_add_u32 v26, v26, v27")
            A("v_lshlrev_b32 v27, 3, v24"); A("v_add_u32 v26, v26, v27")
            A(f"s_lshl_b32 s34, s{sW}, 16"); A(f"s_lshl_b32 s35, s{sH}, 8"); A("s_add_u32 s34, s34, s35")
            A(f"v_add_u32 {r(vPst)}, s34, v26")
            A("v_lshlrev_b32 v26, 8, v25"); A("v_lshlrev_b32 v27, 2, v24"); A("v_add_u32 v26, v26, v27")
            A(f"s_lshl_b32 s34, s{sH}, 13"); A(f"s_lshl_b32 s35, s{sW}, 6"); A("s_add_u32 s34, s34, s35"); A("s_add_u32 s34, s34, 4096")
            A(f"v_add_u32 {r(vRS)}, s34, v26")
        else:
            A(f"v_lshrrev_b32 v26, 5, {l}"); A("v_lshlrev_b32 v26, 13, v26")
            A("v_and_b32 v27, 1, v25"); A("v_lshlrev_b32 v27, 12, v27"); A("v_add_u32 v26, v26, v27")
            A("v_lshrrev_b32 v27, 3, v24"); A("v_lshlrev_b32 v27, 11, v27"); A("v_add_u32 v26, v26, v27")
            A("v_and_b32 v27, 7, v24"); A("v_lshlrev_b32 v27, 3, v27"); A("v_add_u32 v26, v26, v27")
            A(f"s_lshl_b32 s34, s{sW}, 16"); A(f"s_lshl_b32 s35, s{sH}, 6"); A("s_add_u32 s34, s34, s35")
            A(f"v_add_u32 {r(vPst)}, s34, v26")
            A("v_lshlrev_b32 v26, 6, v25"); A("v_lshlrev_b32 v27, 2, v24"); A("v_add_u32 v26, v26, v27")
            A(f"s_lshl_b32 s34, s{sH}, 13"); A(f"s_lshl_b32 s35, s{sW}, 11"); A("s_add_u32 s34, s34, s35")
            A(f"v_add_u32 {r(vRS)}, s34, v26")
        if self.rs_var == 'C':
            if not self.cfull:
                A(f"v_lshrrev_b32 v26, 5, {l}"); A("v_lshlrev_b32 v26, 3, v26")
                A("v_and_b32 v27, 1, v25"); A("v_lshlrev_b32 v27, 2, v27"); A("v_add_u32 v26, v26, v27")
                A("v_lshrrev_b32 v27, 2, v24"); A("v_add_u32 v26, v26, v27"); A("v_lshlrev_b32 v26, 11, v26")
                A("v_and_b32 v27, 3, v24"); A("v_lshlrev_b32 v27, 4, v27"); A("v_add_u32 v26, v26, v27")
                A(f"s_lshl_b32 s34, s{sW}, 16"); A(f"s_lshl_b32 s35, s{sH}, 6"); A("s_add_u32 s34, s34, s35")
                A(f"v_add_u32 {r(vPst)}, s34, v26")
                A(f"s_lshl_b32 s34, s{sH}, 13"); A(f"v_add_u32 {r(vRS)}, s34, {r(vAG)}")
            else:
                A(f"v_lshrrev_b32 v26, 5, {l}"); A("v_lshlrev_b32 v26, 2, v26")
                A("v_and_b32 v27, 1, v25"); A("v_lshlrev_b32 v27, 1, v27"); A("v_add_u32 v26, v26, v27")
                A("v_lshrrev_b32 v27, 3, v24"); A("v_add_u32 v26, v26, v27"); A("v_lshlrev_b32 v26, 12, v26")
                A("v_and_b32 v27, 7, v24"); A("v_lshlrev_b32 v27, 4, v27"); A("v_add_u32 v26, v26, v27")
                A(f"s_lshl_b32 s34, s{sW}, 16"); A(f"s_lshl_b32 s35, s{sH}, 7"); A("s_add_u32 s34, s34, s35")
                A(f"v_add_u32 {r(vPst)}, s34, v26")
                A(f"v_lshrrev_b32 v26, 2, {l}"); A("v_lshlrev_b32 v26, 7, v26"); A(f"v_and_b32 v27, 3, {l}"); A("v_lshlrev_b32 v27, 4, v27"); A("v_add_u32 v26, v26, v27")
                A(f"s_lshl_b32 s34, s{sH}, 13"); A(f"s_lshr_b32 s35, s{sW}, 1"); A("s_lshl_b32 s35, s35, 12"); A("s_add_u32 s34, s34, s35")
                A(f"s_and_b32 s35, s{sW}, 1"); A("s_lshl_b32 s35, s35, 6"); A("s_add_u32 s34, s34, s35")
                A(f"v_add_u32 {r(vRS)}, s34, v26")
            A(f"s_lshr_b32 s34, s{sH}, 3"); A("s_lshl_b32 s34, s34, 3")
            A(f"s_bfe_u32 s35, s{sH}, 0x10002"); A("s_lshl_b32 s35, s35, 2"); A("s_add_u32 s34, s34, s35")
            A(f"s_bfe_u32 s35, s{sH}, 0x10001"); A("s_add_u32 s34, s34, s35")
            A("v_and_b32 v26, 1, v25"); A("v_lshlrev_b32 v26, 1, v26"); A("v_add_u32 v26, s34, v26")
            A(f"v_bfe_u32 v27, {l}, 2, 2"); A(f"s_and_b32 s34, s{sH}, 1"); A("s_lshl_b32 s34, s34, 2"); A("v_add_u32 v27, s34, v27")
            A(f"v_bfe_u32 v28, {l}, 1, 1"); A(f"s_lshl_b32 s34, s{sW}, 1"); A("v_add_u32 v28, s34, v28")
            A("v_and_b32 v29, 1, v28"); A("v_lshlrev_b32 v29, 3, v29"); A("v_add_u32 v29, v29, v27"); A("v_lshlrev_b32 v29, 4, v29")
            A("v_lshrrev_b32 v30, 1, v28"); A("v_lshlrev_b32 v30, 2, v30"); A("v_add_u32 v29, v29, v30")
            A("v_lshlrev_b32 v30, 8, v26"); A(f"v_add_u32 {r(vMst)}, v29, v30")
            A("v_lshlrev_b32 v27, 10, v27"); A("v_lshlrev_b32 v26, 5, v26"); A("v_lshlrev_b32 v28, 2, v28"); A("v_add_u32 v27, v27, v26"); A("v_add_u32 v127, v27, v28")
            A("v_and_b32 v26, 7, v24"); A("v_lshrrev_b32 v27, 1, v26"); A("v_and_b32 v28, 1, v26")
            A("v_mov_b32 v29, 0x3f80"); A("v_mov_b32 v30, 0x3f800000")
            A("v_cmp_eq_u32 vcc, 1, v28"); A("v_cndmask_b32 v29, v29, v30, vcc")
            for rho in range(4):
                A(f"v_cmp_eq_u32 vcc, {rho}, v27"); A(f"v_cndmask_b32 {r(vSEL+rho)}, 0, v29, vcc")
        elif self.rs_var == 'A':
            A(f"v_and_b32 v26, 3, {l}"); A(f"s_and_b32 s34, s{sW}, 1"); A("s_lshl_b32 s34, s34, 2"); A("v_add_u32 v26, s34, v26")
            A(f"s_lshr_b32 s34, s{sW}, 1"); A("s_lshl_b32 s34, s34, 2"); A("v_add_u32 v27, s34, v25")
            A("v_and_b32 v28, 1, v26"); A("v_lshlrev_b32 v28, 3, v28"); A("v_add_u32 v28, v28, v27"); A("v_lshlrev_b32 v28, 4, v28")
            A("v_lshrrev_b32 v29, 1, v26"); A("v_lshlrev_b32 v29, 2, v29"); A("v_add_u32 v28, v28, v29")
            A(f"s_lshl_b32 s34, s{sH}, 8"); A(f"v_add_u32 {r(vMst)}, s34, v28")
            A("v_lshlrev_b32 v27, 10, v27"); A("v_lshlrev_b32 v26, 2, v26"); A("v_add_u32 v27, v27, v26")
            A(f"s_lshl_b32 s34, s{sH}, 5"); A("v_add_u32 v127, s34, v27")
            A("v_and_b32 v26, 7, v24"); A("v_lshrrev_b32 v27, 1, v26"); A("v_and_b32 v28, 1, v26")
            A("v_mov_b32 v29, 0x3f80"); A("v_mov_b32 v30, 0x3f800000")
            A("v_cmp_eq_u32 vcc, 1, v28"); A("v_cndmask_b32 v29, v29, v30, vcc")
            for rho in range(4):
                A(f"v_cmp_eq_u32 vcc, {rho}, v27"); A(f"v_cndmask_b32 {r(vSEL+rho)}, 0, v29, vcc")
            A(f"s_lshl_b32 s34, s{sH}, 13"); A(f"v_add_u32 {r(vRS)}, s34, {r(vAG)}")
        else:
            A("v_lshrrev_b32 v26, 2, v24"); A(f"s_and_b32 s34, s{sW}, 1"); A("s_lshl_b32 s34, s34, 2"); A("v_add_u32 v26, s34, v26")
            A("v_and_b32 v27, 1, v24"); A("v_lshlrev_b32 v27, 1, v27"); A("v_and_b32 v28, 1, v25"); A("v_add_u32 v27, v27, v28")
            A(f"s_lshr_b32 s34, s{sW}, 1"); A("s_lshl_b32 s34, s34, 2"); A("v_add_u32 v27, s34, v27")
            A("v_and_b32 v28, 1, v26"); A("v_lshlrev_b32 v28, 3, v28"); A("v_add_u32 v28, v28, v27"); A("v_lshlrev_b32 v28, 4, v28")
            A("v_lshrrev_b32 v29, 1, v26"); A("v_lshlrev_b32 v29, 2, v29"); A("v_add_u32 v28, v28, v29")
            A(f"s_lshl_b32 s34, s{sH}, 8"); A(f"v_add_u32 {r(vMst)}, s34, v28")
            A("v_lshlrev_b32 v27, 10, v27"); A("v_lshlrev_b32 v26, 2, v26"); A("v_add_u32 v27, v27, v26")
            A(f"s_lshl_b32 s34, s{sH}, 5"); A("v_add_u32 v127, s34, v27")
            A("v_and_b32 v26, 1, v24"); A("v_mov_b32 v27, 0x3f80"); A("v_mov_b32 v28, 0x3f800000")
            A("v_cmp_eq_u32 vcc, 1, v26"); A(f"v_cndmask_b32 {r(vSEL)}, v27, v28, vcc")
            for i in range(1, 4): A(f"v_mov_b32 {r(vSEL+i)}, {r(vSEL)}")
        for i in range(4): A(f"v_mov_b32 {r(vONE+i)}, 0x3f803f80")
        A("v_cmp_gt_u32 vcc, 2, v25"); A(f"v_cndmask_b32 {r(vHALF)}, 0, {r(vONE)}, vcc"); A(f"v_mov_b32 {r(vHALF+1)}, {r(vHALF)}")
        if self.rs_var == 'C':
            A(f"s_mov_b32 s{sMMSK}, 0x55555555"); A(f"s_mov_b32 s{sMMSK+1}, 0")
            A(f"s_mov_b32 s{sHB}, 0xf0f0f0f0"); A(f"s_mov_b32 s{sHB+1}, 0xf0f0f0f0")
            A(f"s_mov_b32 s{sHB2}, 0xff00ff00"); A(f"s_mov_b32 s{sHB2+1}, 0xff00ff00")
        elif self.rs_var == 'A':
            A(f"s_mov_b32 s{sMMSK}, 0x000f000f"); A(f"s_mov_b32 s{sMMSK+1}, 0x000f000f")
            A(f"s_mov_b32 s{sODD}, 0"); A(f"s_mov_b32 s{sODD+1}, -1")
        else:
            A(f"s_mov_b32 s{sMMSK}, 0x33333333"); A(f"s_mov_b32 s{sMMSK+1}, 0")
            A(f"s_mov_b32 s{sODD}, 0xffff0000"); A(f"s_mov_b32 s{sODD+1}, 0xffff0000")
        A(f"s_mov_b32 s{sC}, {fbits(SC_C):#x}"); A(f"s_mov_b32 s{sC+1}, {fbits(SC_C):#x}")
        A(f"s_add_u32 s{sMb}, s{sWS}, {WS_MBUF}"); A(f"s_addc_u32 s{sMb+1}, s{sWS+1}, 0")
        A(f"s_add_u32 s{sHIST}, s{sWS}, {WS_MHIST}"); A(f"s_addc_u32 s{sHIST+1}, s{sWS+1}, 0")
        A(f"s_lshl_b32 s34, s{sH}, 13")
        A(f"s_add_u32 s{sKX}, s{sWS}, s34"); A(f"s_addc_u32 s{sKX+1}, s{sWS+1}, 0")
        A(f"s_add_u32 s{sVX}, s{sKX}, {WS_VX}"); A(f"s_addc_u32 s{sVX+1}, s{sKX+1}, 0")
        A(f"s_add_u32 s{sKX}, s{sKX}, {WS_KX}"); A(f"s_addc_u32 s{sKX+1}, s{sKX+1}, 0")

    def clear_slots(self):
        A = self.A
        for i in range(4): A(f"v_mov_b32 v{28+i}, -1")
        for par in range(2):
            A(f"s_lshl_b32 s34, s{sH}, 13"); A(f"s_add_u32 s34, s34, {WS_PBUF + par*0x40000}")
            A(f"s_add_u32 s36, s{sWS}, s34"); A(f"s_addc_u32 s37, s{sWS+1}, 0")
            A(f"global_store_dwordx4 {r(vAG)}, v[28:31], s[36:37]"); A(f"global_store_dwordx4 {r(vAG)}, v[28:31], s[36:37] offset:1024")
        A(f"s_mov_b64 exec, {sp(sMMSK)}")
        for i in range(4):
            A(f"s_add_u32 s36, s{sMb}, {i*8192}"); A(f"s_addc_u32 s37, s{sMb+1}, 0")
            A(f"global_store_dword {r(vMst)}, v28, s[36:37]")
        A("s_mov_b64 exec, -1")

    def load_weights(self):
        A = self.A; l = "v0"
        A("s_load_dwordx4 s[56:59], s[0:1], 16"); A("s_load_dwordx4 s[60:63], s[0:1], 32")
        A(f"v_lshrrev_b32 v24, 4, {l}")
        A(f"v_and_b32 v25, 15, {l}"); A("v_lshlrev_b32 v26, 1, v24"); A("v_xor_b32 v25, v25, v26"); A("v_lshlrev_b32 v25, 4, v25")
        A("v_lshlrev_b32 v24, 13, v24"); A("v_add_u32 v24, v24, v25")
        A(f"s_lshl_b32 s34, s{sW}, 17"); A(f"s_lshl_b32 s35, s{sH}, 8"); A("s_add_u32 s34, s34, s35")
        A("v_add_u32 v24, s34, v24"); A("v_xor_b32 v25, 128, v24")
        A(f"v_lshrrev_b32 v26, 4, {l}"); A(f"v_bfe_u32 v27, {l}, 2, 2"); A(f"v_and_b32 v28, 3, {l}")
        A("v_lshlrev_b32 v29, 3, v26"); A("v_add_u32 v29, v29, v27"); A("v_lshlrev_b32 v29, 8, v29")
        A("v_lshrrev_b32 v30, 1, v28")
        A("v_lshlrev_b32 v31, 1, v27"); A("v_and_b32 v32, 1, v26"); A("v_lshlrev_b32 v32, 3, v32"); A("v_add_u32 v31, v31, v32")
        A(f"s_lshl_b32 s34, s{sW}, 2"); A("v_add_u32 v30, s34, v30"); A("v_xor_b32 v30, v30, v31")
        A("v_lshlrev_b32 v30, 4, v30"); A("v_add_u32 v29, v29, v30")
        A("v_and_b32 v32, 1, v28"); A("v_lshlrev_b32 v32, 3, v32"); A("v_add_u32 v29, v29, v32")
        A(f"v_add_u32 v38, {L_WO}, v29"); A("v_xor_b32 v39, 32, v29"); A(f"v_add_u32 v39, {L_WO}, v39")
        A("v_add_u32 v36, 0x10000, v38"); A("v_add_u32 v37, 0x10000, v39")
        A("v_lshrrev_b32 v33, 1, v26"); A("v_lshlrev_b32 v33, 3, v33"); A("v_and_b32 v34, 1, v26"); A("v_lshlrev_b32 v34, 2, v34"); A("v_add_u32 v33, v33, v34")
        A("v_and_b32 v34, 1, v27"); A("v_add_u32 v33, v33, v34"); A("v_lshlrev_b32 v33, 10, v33"); A("v_add_u32 v33, v33, v32")
        A(f"s_lshl_b32 s34, s{sW}, 8"); A(f"s_add_u32 s34, s34, {L_WO}"); A("v_add_u32 v33, s34, v33")
        A("v_lshrrev_b32 v34, 1, v27"); A("v_lshlrev_b32 v34, 1, v34"); A("v_lshrrev_b32 v35, 1, v28"); A("v_add_u32 v34, v34, v35")
        A("v_and_b32 v35, 1, v27"); A("v_lshlrev_b32 v35, 1, v35"); A("v_lshrrev_b32 v40, 1, v26"); A("v_and_b32 v40, 1, v40"); A("v_lshlrev_b32 v40, 3, v40")
        A("v_add_u32 v35, v35, v40"); A("v_xor_b32 v34, v34, v35")
        A("s_waitcnt lgkmcnt(0)")
        def dma_qkv(c):
            mat, t = divmod(c, 8); slot = c % 8; base = 56 + 2*mat
            for i in range(4):
                off = (64*t + 4*i) * 8192
                A(f"s_add_u32 s36, s{base}, {off}"); A(f"s_addc_u32 s37, s{base+1}, 0")
                A(f"s_lshl_b32 s34, s{sW}, 12"); A(f"s_add_u32 m0, s34, {L_WO + slot*16384 + i*1024}")
                A(f"global_load_lds_dwordx4 v{24 + (i >> 1)}, s[36:37]")
        def dma_wo(slot):
            for i in range(4):
                A(f"s_lshr_b32 s34, s{sW}, 1"); A("s_lshl_b32 s34, s34, 3"); A(f"s_add_u32 s34, s34, {2*i}")
                A(f"v_xor_b32 v35, s34, {l}"); A("v_lshlrev_b32 v35, 4, v35")
                A(f"s_lshl_b32 s34, s{sH}, 17"); A(f"s_lshl_b32 s35, s{sW}, 12"); A("s_add_u32 s34, s34, s35")
                A(f"s_add_u32 s34, s34, {(16*slot + i)*1024}")
                A("s_add_u32 s36, s62, s34"); A("s_addc_u32 s37, s63, 0")
                A(f"s_lshl_b32 s34, s{sW}, 12"); A(f"s_add_u32 m0, s34, {L_WO + slot*16384 + i*1024}")
                A("global_load_lds_dwordx4 v35, s[36:37]")
        for c in range(8): dma_qkv(c)
        for c in range(24):
            mat, t = divmod(c, 8); slot = c % 8
            A("s_waitcnt vmcnt(28)"); A("s_barrier")
            for X in range(2):
                for q4 in range(4):
                    roff = [0, 4, 32, 36][q4] * 256
                    ridx = (X*8 + t)*8 + 2*q4
                    d = ar(ridx, 2) if mat == 0 else (ar(128 + ridx, 2) if mat == 1 else r(WV + ridx, 2))
                    so = slot*16384 + roff
                    if so < 65536: A(f"ds_read_b64_tr_b16 {d}, v{38+X} offset:{so}")
                    else: A(f"ds_read_b64_tr_b16 {d}, v{36+X} offset:{so-65536}")
            A("s_waitcnt lgkmcnt(0)"); A("s_barrier")
            if c + 8 < 24: dma_qkv(c + 8)
            else: dma_wo(slot)
        for hb in range(2):
            A("s_waitcnt vmcnt(16)" if hb == 0 else "s_waitcnt vmcnt(0)"); A("s_barrier")
            for dl in range(4):
                for u1 in range(2):
                    A(f"v_xor_b32 v35, {(4*dl) ^ (4*u1)}, v34"); A("v_lshlrev_b32 v35, 4, v35"); A("v_add_u32 v35, v35, v33")
                    if hb: A("v_add_u32 v35, 0x10000, v35")
                    for tl in range(2):
                        for u2 in range(2):
                            u = 2*u2 + u1
                            dst = 48 + (dl*2 + tl)*8 + 2*u
                            A(f"ds_read_b64_tr_b16 {r(dst, 2)}, v35 offset:{tl*32768 + u2*16384 + u1*2048}")
            A("s_waitcnt lgkmcnt(0)"); A("s_barrier")
            b = vWoA if hb == 0 else vWoB
            for st in range(8):
                for half in range(2):
                    A(f"ds_write_b128 {r(b)}, {r(48 + st*8 + 4*half, 4)} offset:{st*2048 + half*1024}")
            A("s_waitcnt lgkmcnt(0)")

    def dma_k(self):
        A = self.A
        A(f"s_lshl_b32 s34, s{sW}, 11"); A(f"s_add_u32 m0, s34, {L_KX}")
        A(f"global_load_lds_dwordx4 {r(vAG)}, {sp(sKX)}"); A(f"global_load_lds_dwordx4 {r(vAG)}, {sp(sKX)} offset:1024 sc1")
        A(f"s_add_u32 s{sKX}, s{sKX}, 0x40000"); A(f"s_addc_u32 s{sKX+1}, s{sKX+1}, 0")
    def dma_v(self):
        A = self.A
        A(f"s_lshl_b32 s34, s{sW}, 11"); A(f"s_add_u32 m0, s34, {L_VX}")
        A(f"global_load_lds_dwordx4 {r(vAG)}, {sp(sVX)}"); A(f"global_load_lds_dwordx4 {r(vAG)}, {sp(sVX)} offset:1024")
        A(f"s_add_u32 s{sVX}, s{sVX}, 0x40000"); A(f"s_addc_u32 s{sVX+1}, s{sVX+1}, 0")

    def publish_mem0(self):
        A = self.A
        A("s_load_dwordx2 s[36:37], s[0:1], 8"); A("s_waitcnt lgkmcnt(0)")
        A(f"s_mov_b64 exec, {sp(sMMSK)}")
        A("global_load_dword v24, v127, s[36:37]"); A("s_waitcnt vmcnt(0)")
        A(f"global_store_dword {r(vMst)}, v24, {sp(sMb)}")
        if self.hist: A(f"global_store_dword {r(vMst)}, v24, {sp(sHIST)}")
        A("s_mov_b64 exec, -1")

    def salu_step(self):
        L = []; A = L.append
        A(f"s_and_b32 s34, s{sS}, 1"); A("s_lshl_b32 s34, s34, 18"); A(f"s_add_u32 s34, s34, {WS_PBUF}")
        A(f"s_add_u32 s{sPst}, s{sWS}, s34"); A(f"s_addc_u32 s{sPst+1}, s{sWS+1}, 0")
        A(f"s_add_u32 s24, s{sPst}, 32768"); A(f"s_addc_u32 s25, s{sPst+1}, 0")
        A(f"s_bfe_u32 s{sTAG}, s{sS}, 0x10001")
        A(f"s_add_u32 s34, s{sS}, 1"); A("s_and_b32 s35, s34, 3"); A("s_lshl_b32 s35, s35, 13")
        A(f"s_add_u32 s{sMn}, s{sMb}, s35"); A(f"s_addc_u32 s{sMn+1}, s{sMb+1}, 0")
        A("s_xor_b32 s35, s35, 0x4000")
        A(f"s_add_u32 s{sMz}, s{sMb}, s35"); A(f"s_addc_u32 s{sMz+1}, s{sMb+1}, 0")
        if self.hist:
            A("s_lshl_b32 s34, s34, 13"); A(f"s_add_u32 s{sHn}, s{sHIST}, s34"); A(f"s_addc_u32 s{sHn+1}, s{sHIST+1}, 0")
        A(f"s_lshl_b32 s34, s{sS}, 5"); A(f"s_add_u32 s34, s34, s{sH}")
        A("s_lshl_b32 s35, s34, 11"); A(f"s_add_u32 s35, s35, {WS_EK}"); A(f"s_add_u32 s{sEK}, s{sWS}, s35"); A(f"s_addc_u32 s{sEK+1}, s{sWS+1}, 0")
        A("s_lshl_b32 s35, s34, 13"); A(f"s_add_u32 s35, s35, {WS_EV}"); A(f"s_add_u32 s{sEV}, s{sWS}, s35"); A(f"s_addc_u32 s{sEV+1}, s{sWS+1}, 0")
        A(f"s_lshl_b32 s34, s{sS}, 6"); A(f"s_add_u32 s35, s34, {cnt_off(C_EXP) - 64}")
        A(f"s_cmp_eq_u32 s{sS}, 0"); A("s_cselect_b32 s35, 0x7000, s35")
        A(f"s_add_u32 s{sEXC}, s{sWS}, s35"); A(f"s_addc_u32 s{sEXC+1}, s{sWS+1}, 0")
        return L
    def shadow_prep(self):
        A = self.A
        for i in range(0, 16, 2): A(f"v_mov_b64 {r(AQ+i,2)}, 0")
        A(f"v_mov_b32 {r(SX)}, -1")

    def ag_poll_m(self, P="L"):
        A = self.A; b = Q; dep = self.ag_depth
        def issue():
            A(f"global_load_dwordx4 {r(b,4)}, {r(vAG)}, {sp(sMc)} sc1")
            A(f"global_load_dwordx4 {r(b+4,4)}, {r(vAG)}, {sp(sMc)} offset:1024 sc1")
        def check():
            A(f"v_max3_u32 {r(T0r)}, {r(b)}, {r(b+1)}, {r(b+2)}"); A(f"v_max3_u32 {r(T1r)}, {r(b+3)}, {r(b+4)}, {r(b+5)}")
            A(f"v_max3_u32 {r(T0r)}, {r(T0r)}, {r(b+6)}, {r(b+7)}"); A(f"v_max_u32 {r(T0r)}, {r(T0r)}, {r(T1r)}")
            A(f"v_cmp_eq_u32 vcc, -1, {r(T0r)}")
            A(f"s_cbranch_vccz {P}_agok")
            A("s_mov_b64 exec, vcc")
            issue()
            A(f"s_add_u32 s{sNAG}, s{sNAG}, 1")
        self.stamp(0)
        A(f"s_mov_b32 s{sCNT}, 0")
        self.shadow_prep()
        for i in range(self.ag_delay): A("s_nop 15")
        for k in range(dep):
            issue()
            if k < dep-1:
                for i in range(self.ag_gap): A("s_nop 15")
        A(f"global_store_dwordx4 {r(vAG)}, {r(SX,4)}, {sp(sPz)}"); A(f"global_store_dwordx4 {r(vAG)}, {r(SX,4)}, {sp(sPz)} offset:1024")
        A(f"s_mov_b64 exec, {sp(sMMSK)}"); A(f"global_store_dword {r(vMst)}, {r(SX)}, {sp(sMz)}"); A("s_mov_b64 exec, -1")
        for k in range(dep):
            A(f"s_waitcnt vmcnt({2*(dep-1) + 3})"); check()
        A.label(f"{P}_ag")
        A(f"s_waitcnt vmcnt({2*(dep-1)})"); check()
        A(f"s_add_u32 s{sCNT}, s{sCNT}, 1")
        A(f"s_cmp_lt_u32 s{sCNT}, 6000"); A(f"s_cbranch_scc1 {P}_ag")
        A(f"s_mov_b32 s{sFAIL}, 1"); A("s_waitcnt vmcnt(0)")
        A.label(f"{P}_agok")
        A("s_mov_b64 exec, -1")
        A(f"ds_write_b128 {r(vAG)}, {r(b,4)}"); A(f"ds_write_b128 {r(vAG)}, {r(b+4,4)} offset:1024")
        self.stamp(1)
        A("s_waitcnt lgkmcnt(0)")
        A("s_barrier")

    def ag_poll(self, P="L"):
        if self.nocomm or self.no_ag:
            A = self.A
            self.stamp(0)
            A(f"ds_write_b128 {r(vAG)}, {r(WV,4)}"); A(f"ds_write_b128 {r(vAG)}, {r(WV+4,4)} offset:1024")
            self.stamp(1); A("s_waitcnt lgkmcnt(0)"); A("s_barrier"); return
        if self.mpoll: return self.ag_poll_m(P)
        A = self.A
        n = self.ag_sets
        regs = [Q, Q+8, K, K+8][:n]
        def issue(b):
            A(f"global_load_dwordx4 {r(b,4)}, {r(vAG)}, {sp(sMc)} sc1")
            A(f"global_load_dwordx4 {r(b+4,4)}, {r(vAG)}, {sp(sMc)} offset:1024 sc1")
        def check(b):
            A(f"v_max3_u32 {r(T0r)}, {r(b)}, {r(b+1)}, {r(b+2)}"); A(f"v_max3_u32 {r(T1r)}, {r(b+3)}, {r(b+4)}, {r(b+5)}")
            A(f"ds_write_b128 {r(vAG)}, {r(b,4)}")
            A(f"v_max3_u32 {r(T0r)}, {r(T0r)}, {r(b+6)}, {r(b+7)}"); A(f"v_max_u32 {r(T0r)}, {r(T0r)}, {r(T1r)}")
            A(f"ds_write_b128 {r(vAG)}, {r(b+4,4)} offset:1024")
            A(f"v_cmp_eq_u32 vcc, -1, {r(T0r)}")
            A(f"s_cbranch_vccz {P}_agok")
            issue(b)
            A(f"s_add_u32 s{sNAG}, s{sNAG}, 1")
        self.stamp(0)
        A(f"s_mov_b32 s{sCNT}, 0")
        stv = self.exports and self.stash_v
        if stv:
            A(f"ds_read_b128 {r(OX,4)}, {r(vAG)}")
            A(f"s_mov_b32 s{sEVp}, s{sEV}"); A(f"s_mov_b32 s{sEVp+1}, s{sEV+1}")
        if not self.early_shadow: self.shadow_prep()
        for i in range(self.ag_delay): A("s_nop 15")
        for k, b in enumerate(regs):
            issue(b)
            if k < n-1:
                for i in range(self.ag_gap): A("s_nop 15")
        nres = 0
        if self.ag_reset:
            if not self.ptag:
                A(f"global_store_dwordx4 {r(vAG)}, {r(SX,4)}, {sp(sPz)}"); A(f"global_store_dwordx4 {r(vAG)}, {r(SX,4)}, {sp(sPz)} offset:1024")
            A(f"s_mov_b64 exec, {sp(sMMSK)}"); A(f"global_store_dword {r(vMst)}, {r(SX)}, {sp(sMz)}"); A("s_mov_b64 exec, -1")
            nres = 1 if self.ptag else 3
            if stv:
                A("s_waitcnt lgkmcnt(0)"); A(f"global_store_dwordx4 {r(vAG)}, {r(OX,4)}, {sp(sEVp)} sc1"); nres = 4
            for k, b in enumerate(regs):
                A(f"s_waitcnt vmcnt({2*(n-1) + nres})"); check(b)
        A.label(f"{P}_ag")
        for k, b in enumerate(regs):
            A(f"s_waitcnt vmcnt({2*(n-1)})"); check(b)
        A(f"s_add_u32 s{sCNT}, s{sCNT}, 1")
        A(f"s_cmp_lt_u32 s{sCNT}, 3000"); A(f"s_cbranch_scc1 {P}_ag")
        A(f"s_mov_b32 s{sFAIL}, 1"); A("s_waitcnt vmcnt(0)")
        A.label(f"{P}_agok")
        self.stamp(1)
        A("s_waitcnt lgkmcnt(0)")
        A("s_barrier")

    def exp_flag(self):
        return [f"s_mov_b64 exec, {sp(sXM)}", f"global_atomic_add {r(vL16)}, {r(vIDX)}, {sp(sEXC)}", "s_mov_b64 exec, -1"]

    def kv_fast(self):
        L = self.A.newlabel("KVR")
        self.kv_ret.append(L)
        return [f"s_cmp_ge_u32 s{sS}, s{sKVOK}", f"s_cbranch_scc1 KVSLOW", f"KVRET:"]
    def kv_slow_code(self, lab="KVSLOW", ret="KVRET", need_off=0):
        A = self.A
        A.label(lab)
        A("s_mov_b32 s35, 0")
        A.label(lab + "_l")
        A(f"v_lshlrev_b32 {r(T1r)}, 2, {r(vL16)}")
        A(f"global_load_dword {r(T0r)}, {r(T1r)}, {sp(sKVC)} sc1"); A("s_waitcnt vmcnt(0)")
        A(f"v_cmp_gt_u32 vcc, 32, {r(T0r)}")
        A("s_nop 3"); A("s_ff1_i32_b64 s34, vcc")
        A("s_cmp_eq_u32 s34, -1"); A("s_cselect_b32 s34, 64, s34")
        A(f"s_sub_u32 s{sKVOK}, s34, 1")
        A(f"s_cmp_lt_i32 s{sS}, s{sKVOK}"); A(f"s_cbranch_scc1 {ret}")
        A("s_sleep 4"); A("s_add_u32 s35, s35, 1"); A("s_cmp_lt_u32 s35, 60000"); A(f"s_cbranch_scc1 {lab}_l")
        A(f"s_mov_b32 s{sKVOK}, 64"); A(f"s_branch {ret}")

    def kv_check(self):
        A = self.A
        L = A.newlabel("KV"); E = A.newlabel("KVE")
        out = [f"v_readlane_b32 s34, {r(vMst)}, 2", "s_cmp_ge_u32 s34, 32", f"s_cbranch_scc1 {E}", "s_mov_b32 s35, 0", "s_mov_b64 exec, 4", f"{L}:",
               f"global_load_dword {r(vMst)}, {r(vL16)}, {sp(sKVC)} offset:-96 sc1", "s_waitcnt vmcnt(0)",
               f"v_readlane_b32 s34, {r(vMst)}, 2", "s_cmp_ge_u32 s34, 32", f"s_cbranch_scc1 {E}_x", "s_sleep 2",
               "s_add_u32 s35, s35, 1", "s_cmp_lt_u32 s35, 60000", f"s_cbranch_scc1 {L}", f"{E}_x:", "s_mov_b64 exec, -1", f"{E}:"]
        return out
    def kv_prefetch(self):
        return ["s_mov_b64 exec, 4", f"global_load_dword {r(vMst)}, {r(vL16)}, {sp(sKVC)} offset:-32 sc1", "s_mov_b64 exec, -1"]

    def weave(self, main, fill):
        A = self.A
        for x in fill.get(-1, []): A(x)
        for i, m in enumerate(main):
            A(m)
            for x in fill.get(i, []): A(x)
        for k in fill:
            assert k < len(main), (k, len(main))

    def step(self):
        A = self.A
        SMF = "v_smfmac_f32_16x16x64_bf16"; MF = "v_mfma_f32_16x16x32_bf16"; MF16 = "v_mfma_f32_16x16x16_bf16"
        st = lambda i: ([f"s_memtime s[{sST+2*i}:{sST+2*i+1}]"] if self.stamps else [])
        from collections import defaultdict
        self.stamp(2)
        kx0 = [K, K+4, K+8, K+12]; kx1 = [OX, OX+4, LX, SM]
        qs = [f"{SMF} {r(AQ+4*X,4)}, {r(M+4*t,4)}, {ar((X*8+t)*8, 8)}, {r(vIDX)}" for t in range(8) for X in range(2)]
        F = defaultdict(list)
        kxr = [f"ds_read_b128 {r(kx0[t],4)}, {r(vL16)} offset:{L_KX + t*1024}" for t in range(4)] + \
              [f"ds_read_b128 {r(kx1[t],4)}, {r(vL16)} offset:{L_KX + (4+t)*1024}" for t in range(4)]
        mr = [f"ds_read_b128 {r(M+4*t,4)}, {r(vL16)} offset:{L_STG + t*1024}" for t in range(8)]
        if not self.pipe_t0:
            for x in mr: A(x)
            F[-1].append("s_waitcnt lgkmcnt(7)")
            nk = 0
            for t in range(1, 8):
                slot = 2*t - 1
                F[slot].append(f"s_waitcnt lgkmcnt({min(15, 7 - t + nk)})")
                if t >= 4:
                    F[slot].append(kxr[nk]); nk += 1
                    F[slot+1 if slot+1 < 16 else slot].append(kxr[nk]); nk += 1
        else:
            LA = 3
            for x in mr[:LA]: A(x)
            seq = mr[LA:] + kxr
            F[-1].append(f"s_waitcnt lgkmcnt({LA-1})")
            issued = LA
            for sl in range(16):
                if sl < len(seq): F[sl].append(seq[sl]); issued += 1
                if sl % 2 == 1 and sl < 15:
                    t = (sl + 1)//2
                    F[sl].append(f"s_waitcnt lgkmcnt({min(15, issued - 1 - t)})")
            nk = 8
        if not self.ag_reset:
            F[0].append(f"global_store_dwordx4 {r(vAG)}, {r(SX,4)}, {sp(sPz)}")
            F[2].append(f"global_store_dwordx4 {r(vAG)}, {r(SX,4)}, {sp(sPz)} offset:1024")
            F[4] += [f"s_mov_b64 exec, {sp(sMMSK)}", f"global_store_dword {r(vMst)}, {r(SX)}, {sp(sMz)}", "s_mov_b64 exec, -1"]
            F[6] += ["s_waitcnt vmcnt(3)"]

        sl = self.salu_step()
        chunks = []; cur = []
        for x in sl:
            cur.append(x)
            if len(cur) >= 2 and not (x.startswith("s_add_u32") or x.startswith("s_cmp")): chunks.append(cur); cur = []
        if cur: chunks.append(cur)
        qslots = [13, 14, 15]
        for i, sl_ in enumerate(qslots): F[sl_] += chunks[i]
        self.kchunks = chunks[len(qslots):]
        self.weave(qs, F)
        assert nk == 8
        self.stamp(3)
        BAR = self.bar
        ks = [f"{SMF} {r(AK+4*X,4)}, {r(M+4*t,4)}, {ar(128+(X*8+t)*8, 8)}, {r(vIDX)}" for t in range(8) for X in range(2)]
        def post(acc, lds_off):
            return [f"v_permlane32_swap_b32 {r(acc+j)}, {r(acc+4+j)}" for j in range(4)] + \
                   [f"v_pk_add_f32 {r(acc,2)}, {r(acc,2)}, {r(acc+4,2)}", f"v_pk_add_f32 {r(acc+2,2)}, {r(acc+2,2)}, {r(acc+6,2)}",
                    f"v_cvt_pk_bf16_f32 {r(acc)}, {r(acc)}, {r(acc+1)}", f"v_cvt_pk_bf16_f32 {r(acc+1)}, {r(acc+2)}, {r(acc+3)}",
                    f"ds_write_b64 {r(vQW)}, {r(acc,2)} offset:{lds_off}"]
        F = defaultdict(list)
        F[1] += post(AQ, L_QB)
        F[8] += ["s_waitcnt vmcnt(0)"]
        if self.kbar:
            F[0] += ["s_waitcnt lgkmcnt(0)", "s_barrier"]
            if self.kvwait: F[0] += self.kv_fast()
            F[9] += [f"s_mov_b32 m0, s{sM0K}", f"global_load_lds_dwordx4 {r(vAG)}, {sp(sKX)} sc1"]
            F[13] += [f"global_load_lds_dwordx4 {r(vAG)}, {sp(sKX)} offset:1024 sc1", f"s_add_u32 s{sKX}, s{sKX}, 0x40000", f"s_addc_u32 s{sKX+1}, s{sKX+1}, 0"]
        kslots = [2, 3, 4, 5, 6, 7, 8, 10, 12, 14]
        assert len(self.kchunks) <= len(kslots), len(self.kchunks)
        for i, cch in enumerate(self.kchunks): F[kslots[i]] += cch
        for j in range(0, 8, 2): F[9 + j].append(f"v_mov_b64 {r(AQ+j,2)}, 0")
        self.weave(ks, F)
        self.stamp(5)
        vs = [f"{SMF} {r(AQ+4*X,4)}, {r(M+4*t,4)}, {r(WV+(X*8+t)*8, 8)}, {r(vIDX)}" for t in range(8) for X in range(2)]
        NV1 = self.nv1
        qtr = [f"ds_read_b64_tr_b16 {r(Q+4*t+2*hf,2)}, {r(vQR)} offset:{L_QB + t*512 + hf*256}" for t in range(4) for hf in range(2)]
        KF = M + 8
        ktr = [f"ds_read_b64_tr_b16 {r(KF+4*t+2*hf,2)}, {r(vQR)} offset:{L_KB + t*512 + hf*256}" for t in range(4) for hf in range(2)]
        F = defaultdict(list)
        kp = post(AK, L_KB)
        F[1] += kp
        if self.exports: F[2] += [f"global_store_dwordx2 {r(vQW)}, {r(AK,2)}, {sp(sEK)} sc1"]
        F[BAR] += ["s_waitcnt lgkmcnt(0)", "s_barrier"] + st(6)
        if self.exports: F[BAR+1] += self.exp_flag()
        for i in range(4): F[BAR+i] += qtr[2*i:2*i+2]
        if self.kvwait and not self.kbar: F[BAR] += self.kv_fast()
        if not self.kbar: F[BAR+1] += [f"s_mov_b32 m0, s{sM0K}", f"global_load_lds_dwordx4 {r(vAG)}, {sp(sKX)} sc1"]
        if self.vearly:
            F[3] += [f"ds_read_b128 {r(M,4)}, {r(vAG)} offset:{L_VX}"]
            F[4] += [f"ds_read_b128 {r(M+4,4)}, {r(vAG)} offset:{L_VX + 1024}"]
            assert BAR >= 5
            F[BAR+1] += [f"s_mov_b32 m0, s{sM0V}", f"global_load_lds_dwordx4 {r(vAG)}, {sp(sVX)} sc1"]
            F[BAR+5] += [f"global_load_lds_dwordx4 {r(vAG)}, {sp(sVX)} offset:1024 sc1", f"s_add_u32 s{sVX}, s{sVX}, 0x40000", f"s_addc_u32 s{sVX+1}, s{sVX+1}, 0"]
        else:
            F[BAR+2] += [f"ds_read_b128 {r(M,4)}, {r(vAG)} offset:{L_VX}"]
            F[BAR+3] += [f"ds_read_b128 {r(M+4,4)}, {r(vAG)} offset:{L_VX + 1024}"]
        if not self.kbar: F[BAR+5] += [f"global_load_lds_dwordx4 {r(vAG)}, {sp(sKX)} offset:1024 sc1", f"s_add_u32 s{sKX}, s{sKX}, 0x40000", f"s_addc_u32 s{sKX+1}, s{sKX+1}, 0"]
        self.weave(vs[:NV1], F)
        assert NV1 >= 12
        for x in ktr: A(x)
        sx = [f"{MF} {r(SX+4*X,4)}, {r((kx0 if X == 0 else kx1)[t],4)}, {r(Q+4*t,4)}, {'0' if t == 0 else r(SX+4*X,4)}" for t in range(4) for X in range(2)]
        A("s_waitcnt lgkmcnt(8)")
        for x in sx: A(x)
        mx, t1 = T0r, T1r
        pre = [f"v_max3_f32 {r(mx)}, {r(SX)}, {r(SX+1)}, {r(SX+2)}", f"v_max3_f32 {r(t1)}, {r(SX+4)}, {r(SX+5)}, {r(SX+6)}",
               f"v_max3_f32 {r(mx)}, {r(mx)}, {r(SX+3)}, {r(SX+7)}", f"v_max_f32 {r(mx)}, {r(mx)}, {r(t1)}"]
        A("s_waitcnt lgkmcnt(0)")
        for t in range(4):
            A(f"{MF} {r(SM,4)}, {r(KF+4*t,4)}, {r(Q+4*t,4)}, {'0' if t == 0 else r(SM,4)}")
            if t >= 1: A(pre[t-1])
        A(pre[3])
        self.stamp(7)
        sets = [Q, Q+8, K, K+8, M+8, M+16, M+24, AQ, M]
        def ldset(idx, reg):
            dl, t = divmod(idx, 4); b = vWoA if t < 2 else vWoB; o = (dl*2 + (t & 1))*2048
            return [f"ds_read_b128 {r(reg,4)}, {r(b)} offset:{o}", f"ds_read_b128 {r(reg+4,4)}, {r(b)} offset:{o+1024}"]
        F = defaultdict(list)
        rd = ldset(0, sets[0]) + ldset(1, sets[1])
        n2 = 16 - NV1
        if self.vearly: F[0] += [rd[0]]
        else:
            F[0] += [f"s_mov_b32 m0, s{sM0V}", rd[0]]
            F[0] += [f"global_load_lds_dwordx4 {r(vAG)}, {sp(sVX)} sc1"]
        for i in range(1, 4): F[min(i, n2-1)].append(rd[i])
        self.weave(vs[NV1:], F)
        mx, t1 = T0r, T1r
        rd = ldset(2, sets[2]) + ldset(3, sets[3]) + ldset(4, sets[4]) + ldset(5, sets[5]) + ldset(6, sets[6])
        A(f"v_max3_f32 {r(mx)}, {r(mx)}, {r(SM)}, {r(SM+1)}"); A(f"v_max3_f32 {r(mx)}, {r(mx)}, {r(SM+2)}, {r(SM+3)}")
        if self.vearly:
            A(f"v_mov_b32 {r(t1)}, {r(mx)}"); A(f"v_permlane16_swap_b32 {r(mx)}, {r(t1)}"); A(f"v_max_f32 {r(mx)}, {r(mx)}, {r(t1)}")
        else:
            A(f"v_mov_b32 {r(t1)}, {r(mx)}"); A(f"global_load_lds_dwordx4 {r(vAG)}, {sp(sVX)} offset:1024 sc1"); A(f"s_add_u32 s{sVX}, s{sVX}, 0x40000")
            A(f"v_permlane16_swap_b32 {r(mx)}, {r(t1)}"); A(f"s_addc_u32 s{sVX+1}, s{sVX+1}, 0"); A(f"v_max_f32 {r(mx)}, {r(mx)}, {r(t1)}")
        vc = [f"v_cvt_pk_bf16_f32 {r(AK+2*X+h)}, {r(AQ+4*X+2*h)}, {r(AQ+4*X+2*h+1)}" for X in range(2) for h in range(2)]
        A(f"v_mov_b32 {r(t1)}, {r(mx)}"); A(rd[0]); A(rd[1])
        A(f"v_permlane32_swap_b32 {r(mx)}, {r(t1)}"); A(rd[2]); A(f"v_max_f32 {r(mx)}, {r(mx)}, {r(t1)}")
        if self.vexp_early:
            for x in vc: A(x)
            if self.exports: A(f"global_store_dwordx4 {r(vAG)}, {r(AK,4)}, {sp(sEV)} sc1")
        A(f"v_mul_f32 {r(mx)}, s{sC}, {r(mx)}")
        def pkf(b): return f"v_pk_fma_f32 {r(b,2)}, {r(b,2)}, {sp(sC)}, {r(mx,2)} op_sel_hi:[1,1,0] neg_lo:[0,0,1] neg_hi:[0,0,1]"
        for b in (SX, SX+2, SX+4, SX+6, SM, SM+2): A(pkf(b))
        ex = [SX+i for i in range(8)] + [SM+i for i in range(4)]
        ri = 3
        for n, e in enumerate(ex):
            A(f"v_exp_f32 {r(e)}, {r(e)}")
            if ri < len(rd): A(rd[ri]); ri += 1
        for i in range(4): A(f"v_cvt_pk_bf16_f32 {r(SX+i)}, {r(SX+2*i)}, {r(SX+2*i+1)}")
        for i in range(2): A(f"v_cvt_pk_bf16_f32 {r(SM+i)}, {r(SM+2*i)}, {r(SM+2*i+1)}")
        self.stamp(8)
        A("s_waitcnt lgkmcnt(14)")
        A(f"{MF} {r(LX,4)}, {r(vONE,4)}, {r(SX,4)}, 0")
        if not self.vexp_early: A(vc[0]); A(vc[1])
        A(f"{MF} {r(OX,4)}, {r(M,4)}, {r(SX,4)}, 0")
        if not self.vexp_early: A(vc[2]); A(vc[3])
        A(f"{MF} {r(OX+4,4)}, {r(M+4,4)}, {r(SX,4)}, 0")
        A(f"{MF16} {r(LX,4)}, {r(vHALF,2)}, {r(SM,2)}, {r(LX,4)}")
        for X in range(2): A(f"{MF16} {r(OX+4*X,4)}, {r(AK+2*X,2)}, {r(SM,2)}, {r(OX+4*X,4)}")
        if self.exports and not self.vexp_early: A(f"global_store_dwordx4 {r(vAG)}, {r(AK,4)}, {sp(sEV)} sc1")
        rd = ldset(7, sets[7]) + ldset(8, sets[8])
        for x in rd: A(x)
        A(f"v_rcp_f32 {r(mx)}, {r(LX)}")
        for X in range(2):
            o = OX + 4*X
            A(f"v_pk_mul_f32 {r(o,2)}, {r(o,2)}, {r(mx,2)} op_sel_hi:[1,0]"); A(f"v_pk_mul_f32 {r(o+2,2)}, {r(o+2,2)}, {r(mx,2)} op_sel_hi:[1,0]")
            A(f"v_cvt_pk_bf16_f32 {r(o)}, {r(o)}, {r(o+1)}"); A(f"v_cvt_pk_bf16_f32 {r(o+1)}, {r(o+2)}, {r(o+3)}")
            A(f"ds_write_b64 {r(vOW)}, {r(o,2)} offset:{X*32}")
        self.stamp(9)
        ACC = AK
        for i in range(0, 16, 2): A(f"v_mov_b64 {r(ACC+i,2)}, 0")
        A("s_waitcnt lgkmcnt(0)"); A("s_barrier")
        self.stamp(10)
        OF = SM
        for t in range(4): A(f"ds_read_b128 {r(OF+4*t,4)}, {r(vOR)} offset:{t*64}")
        reg_of = {i: sets[i] for i in range(9)}
        main = []; F = defaultdict(list)
        issued = []
        nxt = 9
        for idx in range(16):
            dl, t = divmod(idx, 4)
            main.append(None)
        lds_out = ['o0', 'o1', 'o2', 'o3']
        def wait_for(tag):
            if tag in lds_out:
                last = max(i for i, x in enumerate(lds_out) if x == tag)
                n = len(lds_out) - 1 - last
                A(f"s_waitcnt lgkmcnt({min(n,15)})")
                del lds_out[:last+1]
        pend = []
        for idx in range(16):
            dl, t = divmod(idx, 4)
            if dl == 0: wait_for(f'o{t}')
            if idx >= 9: wait_for(f's{idx}')
            A(f"{SMF} {r(ACC+4*dl,4)}, {r(OF+4*t,4)}, {r(reg_of[idx],8)}, {r(vIDX)}")
            if nxt < 16:
                reg_of[nxt] = reg_of[idx]
                for x in ldset(nxt, reg_of[nxt]): pend.append((x, f's{nxt}'))
                nxt += 1
            n = (1 if idx >= 3 else 2) if self.wo_spread else 99
            if self.wo_spread and idx >= 8: n = 2
            for _ in range(n):
                if pend:
                    x, tg = pend.pop(0); A(x); lds_out.append(tg)
            if self.rs_var == 'C':
                a = ACC
                if idx == 5: A(f"v_cvt_pk_bf16_f32 {r(a)}, {r(a)}, {r(a+1)}")
                if idx == 6: A(f"v_cvt_pk_bf16_f32 {r(a+1)}, {r(a+2)}, {r(a+3)}")
                if idx == 9: A(f"v_cvt_pk_bf16_f32 {r(a+2)}, {r(a+4)}, {r(a+5)}")
                if idx == 10:
                    A(f"v_cvt_pk_bf16_f32 {r(a+3)}, {r(a+6)}, {r(a+7)}")
                    if self.ptag: A(f"v_bfi_b32 {r(a)}, 1, s{sTAG}, {r(a)}")
                    A(f"global_store_dwordx4 {r(vPst)}, {r(a,4)}, {sp(sPst)}")
                a = ACC + 8
                if idx == 13: A(f"v_cvt_pk_bf16_f32 {r(a)}, {r(a)}, {r(a+1)}")
                if idx == 14: A(f"v_cvt_pk_bf16_f32 {r(a+1)}, {r(a+2)}, {r(a+3)}")
            elif t == 2 and dl >= 1:
                a = ACC + 4*(dl-1)
                A(f"v_cvt_pk_bf16_f32 {r(a)}, {r(a)}, {r(a+1)}"); A(f"v_cvt_pk_bf16_f32 {r(a+1)}, {r(a+2)}, {r(a+3)}")
                A(f"global_store_dwordx2 {r(vPst)}, {r(a,2)}, {sp(sPst+2*(dl-1))}")
        assert not pend
        if self.rs_var == 'C':
            a = ACC + 8
            A(f"v_cvt_pk_bf16_f32 {r(a+2)}, {r(a+4)}, {r(a+5)}"); A(f"v_cvt_pk_bf16_f32 {r(a+3)}, {r(a+6)}, {r(a+7)}")
            if self.ptag: A(f"v_bfi_b32 {r(a)}, 1, s{sTAG}, {r(a)}")
            A(f"global_store_dwordx4 {r(vPst)}, {r(a,4)}, s[24:25]")
        else:
            a = ACC + 12
            A(f"v_cvt_pk_bf16_f32 {r(a)}, {r(a)}, {r(a+1)}"); A(f"v_cvt_pk_bf16_f32 {r(a+1)}, {r(a+2)}, {r(a+3)}")
            A(f"global_store_dwordx2 {r(vPst)}, {r(a,2)}, {sp(sPst+6)}")
        self.stamp(11)
        if self.ackstamp:
            A("s_waitcnt vmcnt(0)"); self.stamp(4)
        sRD = sPst
        if self.early_shadow:
            sRD = sPrd2
            A(f"s_mov_b32 s{sPrd2}, s{sPst}"); A(f"s_mov_b32 s{sPrd2+1}, s{sPst+1}")
            A(f"s_mov_b32 s{sMc}, s{sMn}"); A(f"s_mov_b32 s{sMc+1}, s{sMn+1}")
            if self.hist: A(f"s_mov_b32 s{sHn2}, s{sHn}"); A(f"s_mov_b32 s{sHn2+1}, s{sHn+1}")
            if self.ptag: A(f"s_mov_b32 s{sTAG+1}, s{sTAG}")
            A(f"s_add_u32 s{sS}, s{sS}, 1")
            self.shadow_prep()
        def off(i): return i*1024-4096 if self.p_layout == 0 else i*256
        n = self.rs_sets
        regs = [Q, Q+8, K, K+8][:n]
        D = M
        def issue(b):
            if self.rs_var in 'AC':
                A(f"global_load_dwordx4 {r(b,4)}, {r(vRS)}, {sp(sRD)} sc1"); A(f"global_load_dwordx4 {r(b+4,4)}, {r(vRS)}, {sp(sRD)} offset:{2048 if self.cfull else 1024} sc1")
            else:
                for i in range(8): A(f"global_load_dword {r(b+i)}, {r(vRS)}, {sp(sRD)} offset:{off(i)} sc1")
        NLD = 2 if self.rs_var in 'AC' else 8
        if self.nocomm or self.no_rs:
            A(f"{MF} {r(D,4)}, {r(vSEL,4)}, {r(WV,4)}, 0"); A(f"{MF} {r(D,4)}, {r(vSEL,4)}, {r(WV+4,4)}, {r(D,4)}")
        elif self.mpoll:
            b = Q; dep = self.rs_depth
            A(f"s_mov_b32 s{sCNT}, 0")
            for i in range(self.rs_delay): A("s_nop 15")
            for k in range(dep):
                issue(b)
                if k < dep-1:
                    for i in range(self.rs_gap): A("s_nop 15")
            A.label("L_rs")
            A(f"s_waitcnt vmcnt({NLD*(dep-1)})")
            A(f"v_max3_u32 {r(T0r)}, {r(b)}, {r(b+1)}, {r(b+2)}"); A(f"v_max3_u32 {r(T1r)}, {r(b+3)}, {r(b+4)}, {r(b+5)}")
            A(f"v_max3_u32 {r(T0r)}, {r(T0r)}, {r(b+6)}, {r(b+7)}"); A(f"v_max_u32 {r(T0r)}, {r(T0r)}, {r(T1r)}")
            A(f"v_cmp_eq_u32 vcc, -1, {r(T0r)}")
            A("s_cbranch_vccz L_rsok0")
            A("s_mov_b64 exec, vcc")
            issue(b)
            A(f"s_add_u32 s{sNRS}, s{sNRS}, 1")
            A(f"s_add_u32 s{sCNT}, s{sCNT}, 1")
            A(f"s_cmp_lt_u32 s{sCNT}, 6000"); A("s_cbranch_scc1 L_rs")
            A(f"s_mov_b32 s{sFAIL}, 2")
            A.label("L_rsok0")
            A("s_mov_b64 exec, -1")
            A(f"{MF} {r(D,4)}, {r(vSEL,4)}, {r(b,4)}, 0"); A(f"{MF} {r(D,4)}, {r(vSEL,4)}, {r(b+4,4)}, {r(D,4)}")
        else:
            A(f"s_mov_b32 s{sCNT}, 0")
            for i in range(self.rs_delay): A("s_nop 15")
            for k, b in enumerate(regs):
                issue(b)
                if k < n-1:
                    for i in range(self.rs_gap): A("s_nop 15")
            A.label("L_rs")
            for k, b in enumerate(regs):
                A(f"s_waitcnt vmcnt({NLD*(n-1)})")
                if self.ptag:
                    A(f"v_xor_b32 {r(T0r)}, s{sTAG+1}, {r(b)}"); A(f"v_xor_b32 {r(T1r)}, s{sTAG+1}, {r(b+4)}")
                    A(f"{MF} {r(D,4)}, {r(vSEL,4)}, {r(b,4)}, 0")
                    A(f"v_or_b32 {r(T0r)}, {r(T0r)}, {r(T1r)}"); A(f"v_and_b32 {r(T0r)}, 1, {r(T0r)}")
                    A(f"{MF} {r(D,4)}, {r(vSEL,4)}, {r(b+4,4)}, {r(D,4)}")
                    A(f"v_cmp_ne_u32 vcc, 0, {r(T0r)}")
                else:
                    A(f"v_max3_u32 {r(T0r)}, {r(b)}, {r(b+1)}, {r(b+2)}"); A(f"v_max3_u32 {r(T1r)}, {r(b+3)}, {r(b+4)}, {r(b+5)}")
                    A(f"{MF} {r(D,4)}, {r(vSEL,4)}, {r(b,4)}, 0")
                    A(f"v_max3_u32 {r(T0r)}, {r(T0r)}, {r(b+6)}, {r(b+7)}"); A(f"v_max_u32 {r(T0r)}, {r(T0r)}, {r(T1r)}")
                    A(f"{MF} {r(D,4)}, {r(vSEL,4)}, {r(b+4,4)}, {r(D,4)}")
                    A(f"v_cmp_eq_u32 vcc, -1, {r(T0r)}")
                A("s_cbranch_vccz L_rsok")
                issue(b)
                A(f"s_add_u32 s{sNRS}, s{sNRS}, 1")
            A(f"s_add_u32 s{sCNT}, s{sCNT}, 1")
            A(f"s_cmp_lt_u32 s{sCNT}, 2000"); A("s_cbranch_scc1 L_rs")
            A(f"s_mov_b32 s{sFAIL}, 2")
        A.label("L_rsok")
        self.stamp(12)
        if not self.early_shadow:
            A(f"s_add_u32 s{sS}, s{sS}, 1")
            A(f"s_mov_b32 s{sMc}, s{sMn}"); A(f"s_mov_b32 s{sMc+1}, s{sMn+1}")
        D = M
        if self.rs_var == 'C':
            for j in range(4): A(f"v_add_f32_dpp {r(D+j)}, {r(D+j)}, {r(D+j)} row_ror:4 row_mask:0xf bank_mask:0xf")
            for j in range(4): A(f"v_add_f32_dpp {r(D+j)}, {r(D+j)}, {r(D+j)} row_ror:8 row_mask:0xf bank_mask:0xf")
            A(f"v_cndmask_b32 {r(D)}, {r(D)}, {r(D+1)}, {sp(sHB)}"); A(f"v_cndmask_b32 {r(D+2)}, {r(D+2)}, {r(D+3)}, {sp(sHB)}")
            A(f"v_cndmask_b32 {r(D)}, {r(D)}, {r(D+2)}, {sp(sHB2)}")
            A(f"v_mov_b32_dpp {r(D+1)}, {r(D)} quad_perm:[1,1,3,3] row_mask:0xf bank_mask:0xf")
            A(f"v_cvt_pk_bf16_f32 {r(D)}, {r(D)}, {r(D+1)}")
        elif self.rs_var == 'A':
            for j in range(4): A(f"v_add_f32_dpp {r(D+j)}, {r(D+j)}, {r(D+j)} row_ror:4 row_mask:0xf bank_mask:0xf")
            for j in range(4): A(f"v_add_f32_dpp {r(D+j)}, {r(D+j)}, {r(D+j)} row_ror:8 row_mask:0xf bank_mask:0xf")
            A(f"v_permlane16_swap_b32 {r(D)}, {r(D+1)}"); A(f"v_permlane16_swap_b32 {r(D+2)}, {r(D+3)}")
            A(f"v_cvt_pk_bf16_f32 {r(D)}, {r(D)}, {r(D+1)}"); A(f"v_cvt_pk_bf16_f32 {r(D+2)}, {r(D+2)}, {r(D+3)}")
            A(f"v_cndmask_b32 {r(D)}, {r(D)}, {r(D+2)}, {sp(sODD)}")
        else:
            A(f"v_mov_b32_dpp {r(D+2)}, {r(D)} quad_perm:[2,3,2,3] row_mask:0xf bank_mask:0xf")
            A(f"v_mov_b32_dpp {r(D+3)}, {r(D+1)} quad_perm:[2,3,2,3] row_mask:0xf bank_mask:0xf")
            A(f"v_cvt_pk_bf16_f32 {r(D)}, {r(D)}, {r(D+2)}"); A(f"v_cvt_pk_bf16_f32 {r(D+1)}, {r(D+1)}, {r(D+3)}")
            A(f"v_cndmask_b32 {r(D)}, {r(D)}, {r(D+1)}, {sp(sODD)}")
        A(f"s_mov_b64 exec, {sp(sMMSK)}")
        A(f"v_min_u32 {r(D)}, -2, {r(D)}")
        A(f"global_store_dword {r(vMst)}, {r(D)}, {sp(sMc)}")
        if self.hist: A(f"global_store_dword {r(vMst)}, {r(D)}, {sp(sHn2 if self.early_shadow else sHn)}")
        A("s_mov_b64 exec, -1")
        self.stamp(13)
        if self.steplog:
            A("s_memtime s[64:65]"); A("s_memrealtime s[66:67]"); A("s_waitcnt lgkmcnt(0)")
            A(f"s_lshl_b32 s34, s{sH}, 2"); A(f"s_add_u32 s34, s34, s{sW}"); A("s_lshl_b32 s34, s34, 6"); A(f"s_add_u32 s34, s34, s{sS}"); A("s_lshl_b32 s34, s34, 4")
            A(f"s_add_u32 s34, s34, {WS_STAMP + 0x10000}")
            A(f"v_mov_b32 {r(M+4)}, s34"); A(f"v_mov_b32 {r(M+8)}, s64"); A(f"v_mov_b32 {r(M+9)}, s{sNAG}"); A(f"v_mov_b32 {r(M+10)}, s{sNRS}"); A(f"v_mov_b32 {r(M+11)}, s66")
            A("s_mov_b64 exec, 1"); A(f"global_store_dwordx4 {r(M+4)}, {r(M+8,4)}, {sp(sWS)}"); A("s_mov_b64 exec, -1")


    def tail(self):
        A = self.A
        SMF = "v_smfmac_f32_16x16x64_bf16"
        self.ag_poll("T")
        for x in self.salu_step(): A(x)
        for t in range(8): A(f"ds_read_b128 {r(M+4*t,4)}, {r(vL16)} offset:{L_STG + t*1024}")
        for x in self.exp_flag(): A(x)
        A("s_waitcnt lgkmcnt(0)")
        for t in range(8):
            for X in range(2): A(f"{SMF} {r(AK+4*X,4)}, {r(M+4*t,4)}, {ar(128+(X*8+t)*8, 8)}, {r(vIDX)}")
        for t in range(8):
            for X in range(2): A(f"{SMF} {r(AQ+4*X,4)}, {r(M+4*t,4)}, {r(WV+(X*8+t)*8, 8)}, {r(vIDX)}")
        for j in range(4): A(f"v_permlane32_swap_b32 {r(AK+j)}, {r(AK+4+j)}")
        A(f"v_pk_add_f32 {r(AK,2)}, {r(AK,2)}, {r(AK+4,2)}"); A(f"v_pk_add_f32 {r(AK+2,2)}, {r(AK+2,2)}, {r(AK+6,2)}")
        A(f"v_cvt_pk_bf16_f32 {r(AK)}, {r(AK)}, {r(AK+1)}"); A(f"v_cvt_pk_bf16_f32 {r(AK+1)}, {r(AK+2)}, {r(AK+3)}")
        A(f"global_store_dwordx2 {r(vQW)}, {r(AK,2)}, {sp(sEK)} sc1")
        for X in range(2):
            A(f"v_cvt_pk_bf16_f32 {r(SX+2*X)}, {r(AQ+4*X)}, {r(AQ+4*X+1)}"); A(f"v_cvt_pk_bf16_f32 {r(SX+2*X+1)}, {r(AQ+4*X+2)}, {r(AQ+4*X+3)}")
        A(f"global_store_dwordx4 {r(vAG)}, {r(SX,4)}, {sp(sEV)} sc1")
        A("s_waitcnt vmcnt(0)"); A("s_barrier")
        A(f"s_add_u32 s{sEXC}, s{sEXC}, 64"); A(f"s_addc_u32 s{sEXC+1}, s{sEXC+1}, 0")
        for x in self.exp_flag(): A(x)
        A("s_waitcnt vmcnt(0)")

def gen_chain(A, U, o):
    kw = dict(o.get('chain_opts', {}))
    C = Chain(A, U, **kw)
    A(f"s_mov_b32 s{sH}, s{sROLE}")
    C.setup_consts()
    C.clear_slots()
    A("s_waitcnt vmcnt(0)"); A("s_barrier")
    L2 = A.newlabel("RC")
    A(f"s_cmp_lg_u32 s{sW}, 0"); A(f"s_cbranch_scc1 {L2}")
    A("v_mov_b32 v24, 0"); A("v_mov_b32 v25, 1"); A("s_mov_b64 exec, 1")
    A(f"global_atomic_add v24, v25, {sp(sDBG)} offset:{D_ROLL*4}")
    A("s_mov_b64 exec, -1")
    A.label(L2)
    C.load_weights()
    tl_stamp(A, o.get('tl'), 0, 1, vr=(120, 121))
    U.wait_cnt(sDBG, 32, off=D_ROLL*4, tmpv=(24, 25), tmps=(36, 37), sleep=1)
    U.wait_cnt(sDBG, 1, off=D_INIT*4, tmpv=(24, 25), tmps=(36, 37), sleep=1)
    U.add64(sKVC, sWS, cnt_off(C_KV, 0))
    A(f"s_cmp_eq_u32 s{sW}, 0"); A(f"s_cselect_b32 s{sXM}, 1, 0"); A(f"s_mov_b32 s{sXM+1}, 0")
    if C.kvwait:
        U.add64(38, sWS, cnt_off(C_KV, 0)); U.wait_cnt(38, 32, tmpv=(24, 25), tmps=(36, 37), sleep=1)
    A(f"s_mov_b32 s{sKVOK}, 0")
    tl_stamp(A, o.get('tl'), 0, 2, vr=(120, 121))
    C.dma_k(); C.dma_v()
    A(f"s_mov_b32 s{sFAIL}, 0"); A(f"s_mov_b32 s{sS}, 0"); A(f"s_mov_b32 s{sNAG}, 0"); A(f"s_mov_b32 s{sNRS}, 0")
    A(f"s_mov_b32 s{sMc}, s{sMb}"); A(f"s_mov_b32 s{sMc+1}, s{sMb+1}")
    U.add64(sEV, sWS, 0x380000)
    A(f"s_lshl_b32 s34, s{sW}, 11"); A(f"s_add_u32 s{sM0K}, s34, {L_KX}"); A(f"s_add_u32 s{sM0V}, s34, {L_VX}")
    U.add64(sMz, sMb, 2*8192)
    C.shadow_prep()
    C.publish_mem0()
    tl_stamp(A, o.get('tl'), 0, 3, vr=(120, 121))
    A.label("L_loop")
    C.ag_poll("L")
    n0 = len(A.L)
    C.step()
    if C.nodma: A.L[n0:] = [x for x in A.L[n0:] if not x.startswith("global_load_lds")]
    A.L[n0:] = [x.replace(" sc1", " " + C.dmaflag) if x.startswith("global_load_lds") else x for x in A.L[n0:]]
    A(f"s_cmp_lt_u32 s{sS}, 63"); A("s_cbranch_scc1 L_loop")
    tl_stamp(A, o.get('tl'), 0, 4, vr=(120, 121))
    C.tail()
    tl_stamp(A, o.get('tl'), 0, 5, vr=(120, 121))
    A("s_branch L_chain_done")
    if C.kvwait: C.kv_slow_code()
    A.label("L_chain_done")
    if C.stamps:
        A(f"s_lshl_b32 s34, s{sH}, 2"); A(f"s_add_u32 s34, s34, s{sW}"); A("s_lshl_b32 s34, s34, 6"); A(f"s_add_u32 s34, s34, {WS_STAMP}")
        A(f"s_add_u32 s36, s{sWS}, s34"); A(f"s_addc_u32 s37, s{sWS+1}, 0")
        A("s_mov_b64 exec, 1"); A("v_mov_b32 v24, 0")
        for q in range(4):
            for i in range(4): A(f"v_mov_b32 v{32+4*q+i}, s{sST+2*(4*q+i)}" if 4*q+i < 14 else f"v_mov_b32 v{32+4*q+i}, s{sNAG + (4*q+i-14)}")
            A(f"global_store_dwordx4 v24, v[{32+4*q}:{35+4*q}], s[36:37] offset:{16*q}")
        A("s_waitcnt vmcnt(0)"); A("s_mov_b64 exec, -1")
```

```python
import struct
from asmlib import Prog
def r(b, n=1): return f"v{b}" if n == 1 else f"v[{b}:{b+n-1}]"
def ar(b, n=1): return f"a{b}" if n == 1 else f"a[{b}:{b+n-1}]"
def sp(b, n=2): return f"s[{b}:{b+n-1}]"
def fbits(x): return struct.unpack('<I', struct.pack('<f', x))[0]

KA = dict(x=0, mem0=8, Wq=16, Wk=24, Wv=32, Wo=40, seglen=48, Bx=56, w1=64, b1=72, w2=80, b2=88, c=96, wmod=104, out=112, dbg=120, ws=128)
WS_CNT = 0x0
C_HRDY, C_KV, C_QD, C_EXP, C_AD, C_R1, C_CD = range(7)
def cnt_off(arr, s=0): return arr*4096 + s*64
WS_MOD  = 0x8000
WS_PBUF = 0x100000
WS_MBUF = 0x200000
WS_MHIST = 0x210000
WS_STAMP = 0x300000
WS_HF   = 0x400000
WS_H2F  = 0x600000
WS_X1   = 0x800000
WS_KX   = 0x2000000
WS_VX   = 0x3000000
WS_QX   = 0x4000000
WS_EK   = 0x5000000
WS_EV   = 0x5400000
WS_YP   = 0x6400000
WS_FP   = 0x7400000
D_XT = 0; D_WT = 1; D_INIT = 2; D_ROLL = 3; D_MODA = 32; D_MODB = 48
sWS = 4; sDBG = 6; sXCC = 8; sROLE = 9; sH = 10; sW = 11
LDS_TOTAL = 163584
L_MISC = 160768

class Util:
    def __init__(self, A): self.A = A
    def add64(self, d, s, off):
        A = self.A
        A(f"s_add_u32 s{d}, s{s}, {off}"); A(f"s_addc_u32 s{d+1}, s{s+1}, 0")
    def wait_cnt(self, base, target, tmpv=(250, 251), tmps=(96, 97), off=0, bound=60000, sleep=4):
        A = self.A
        L = A.newlabel("W"); E = A.newlabel("WE")
        va, vd = tmpv; sc, sv = tmps
        A(f"v_mov_b32 v{va}, 0"); A(f"s_mov_b32 s{sc}, 0")
        A.label(L)
        A(f"global_load_dword v{vd}, v{va}, {sp(base)} offset:{off} sc1")
        A("s_waitcnt vmcnt(0)")
        A(f"v_readfirstlane_b32 s{sv}, v{vd}")
        A(f"s_cmp_ge_u32 s{sv}, {target}"); A(f"s_cbranch_scc1 {E}")
        A(f"s_sleep {sleep}")
        A(f"s_add_u32 s{sc}, s{sc}, 1"); A(f"s_cmp_lt_u32 s{sc}, {bound}"); A(f"s_cbranch_scc1 {L}")
        A.label(E)
    def wait_cnt1(self, base, target, **kw):
        A = self.A
        L = A.newlabel("W1")
        A(f"s_cmp_lg_u32 s{sW}, 0"); A(f"s_cbranch_scc1 {L}")
        self.wait_cnt(base, target, **kw)
        A.label(L)
        A("s_barrier")
    def signal(self, base, off=0, tmpv=(250, 251), drain=True):
        A = self.A
        L = A.newlabel("SG")
        va, vd = tmpv
        if drain: A("s_waitcnt vmcnt(0)")
        A("s_barrier")
        A(f"s_cmp_lg_u32 s{sW}, 0"); A(f"s_cbranch_scc1 {L}")
        A(f"v_mov_b32 v{va}, 0"); A(f"v_mov_b32 v{vd}, 1")
        A("s_mov_b64 exec, 1")
        A(f"global_atomic_add v{va}, v{vd}, {sp(base)} offset:{off}")
        A("s_mov_b64 exec, -1")
        A.label(L)

def tl_stamp(A, on, slot_expr_sgpr, idx, vr=(252, 253)):
    if not on: return
    L = A.newlabel("TL")
    A(f"s_cmp_lg_u32 s{sW}, 0"); A(f"s_cbranch_scc1 {L}")
    A("s_memrealtime s[100:101]"); A("s_waitcnt lgkmcnt(0)")
    A(f"s_lshl_b32 s38, s{sROLE}, 6"); A(f"s_add_u32 s38, s38, {WS_STAMP + 0x4000 + idx*4}")
    A(f"v_mov_b32 v{vr[0]}, s38"); A(f"v_mov_b32 v{vr[1]}, s100")
    A("s_mov_b64 exec, 1"); A(f"global_store_dword v{vr[0]}, v{vr[1]}, {sp(sWS)}"); A("s_mov_b64 exec, -1")
    A.label(L)
```

```python
from common import *
from roles1 import WLoad, bf_round_pair
SC_C = 0.08838834764831845 * 1.4426950408889634
MF = "v_mfma_f32_16x16x32_bf16"; MF16 = "v_mfma_f32_16x16x16_bf16"
EXP_TARGET = 32 * 0x4444
R0 = 152
SLP = dict(a=2, r=2, c=2, q=4)
DBGX1 = False
OUTFLAG = 'sc1'

def cnt_addr(A, U, d, arr, sseg):
    A(f"s_lshl_b32 s34, s{sseg}, 6"); A(f"s_add_u32 s34, s34, {cnt_off(arr)}"); U.add64(d, sWS, "s34")

def role_A(A, U, sJ, TL=False):
    sHG, sNH, sRep, sS, sHd = 14, 15, 16, 17, 18
    A(f"s_and_b32 s{sHG}, s{sJ}, 7"); A(f"s_bfe_u32 s{sNH}, s{sJ}, 0x10003"); A(f"s_lshr_b32 s{sRep}, s{sJ}, 4")
    A(f"s_lshl_b32 s{sHd}, s{sHG}, 2"); A(f"s_add_u32 s{sHd}, s{sHd}, s{sW}")
    WL = WLoad(A, LB=0, vb=200)
    A("s_load_dwordx2 s[40:41], s[0:1], 40")
    WL.setup(1024, "split", "pair")
    A(f"s_and_b32 s34, s{sW}, 1"); A("s_lshl_b32 s34, s34, 7"); A(f"v_xor_b32 v210, s34, v{WL.vT}"); A("v_xor_b32 v211, 64, v210")
    A(f"s_lshr_b32 s34, s{sW}, 1"); A("s_lshl_b32 s34, s34, 14"); A("v_add_u32 v210, s34, v210"); A("v_add_u32 v211, s34, v211")
    A("v_add_u32 v212, 0x10000, v210"); A("v_add_u32 v213, 0x10000, v211")
    A("s_waitcnt lgkmcnt(0)")
    A(f"s_lshl_b32 s34, s{sHG}, 19"); A(f"s_lshl_b32 s35, s{sNH}, 9"); A("s_add_u32 s34, s34, s35")
    A("s_add_u32 s40, s40, s34"); A("s_addc_u32 s41, s41, 0")
    U.add64(42, 40, 256)
    def dma_pair(rb, sl):
        WL.dma(40, rb*64*1024, 2*sl); WL.dma(42, rb*64*1024, 2*sl+1)
    for rb in range(4): dma_pair(rb, rb)
    for rb in range(8):
        sl = rb % 4
        A(f"s_waitcnt vmcnt({8*min(3, 7-rb)})"); A("s_barrier")
        for u in range(2):
            kk = 2*rb + u
            for pp in range(2):
                for a in range(2):
                    q = 2*pp + a
                    for hf in range(2):
                        WL.tr(ar((kk*4 + q)*4 + 2*hf, 2), 210+pp, 212+pp, 2*sl, 32*u + 16*hf, extra=8*a)
        A("s_waitcnt lgkmcnt(0)"); A("s_barrier")
        if rb + 4 < 8: dma_pair(rb+4, sl)
    QF, KF, VF, KM, VM, SS, OO, PX, PM, ACC, ONE, HALF = 16, 48, 80, 112, 128, 144, 164, 228, 236, 240, 8, 12
    LL = 240
    A("v_lshlrev_b32 v2, 4, v0")
    for i in range(4): A(f"v_mov_b32 v{ONE+i}, 0x3f803f80")
    A("v_lshrrev_b32 v3, 4, v0"); A("v_and_b32 v4, 15, v0")
    A(f"v_cmp_gt_u32 vcc, 2, v3"); A(f"v_cndmask_b32 v{HALF}, 0, v{ONE}, vcc"); A(f"v_mov_b32 v{HALF+1}, v{HALF}")
    for j in range(4):
        A("v_lshlrev_b32 v5, 2, v3"); A(f"v_add_u32 v5, {j}, v5"); A(f"v_cmp_gt_u32 s[{20+2*j}:{21+2*j}], v5, v4")
    A(f"s_mov_b32 s28, {fbits(SC_C):#x}"); A(f"s_mov_b32 s29, {fbits(-1e30):#x}")
    A("v_lshrrev_b32 v5, 2, v0"); A("v_lshlrev_b32 v5, 4, v5"); A("v_and_b32 v6, 1, v0"); A("v_lshlrev_b32 v6, 3, v6"); A("v_add_u32 v5, v5, v6")
    A(f"s_lshl_b32 s34, s{sW}, 11"); A("s_add_u32 s30, s34, 40960"); A("v_add_u32 v5, s30, v5")
    A(f"s_lshl_b32 s34, s{sW}, 12"); A("v_add_u32 v6, s34, v2")
    A("v_lshlrev_b32 v7, 10, v4"); A("v_lshlrev_b32 v14, 4, v3"); A("v_add_u32 v7, v7, v14")
    A(f"s_lshl_b32 s34, s{sW}, 7"); A(f"s_lshl_b32 s35, s{sNH}, 9"); A("s_add_u32 s34, s34, s35"); A("v_add_u32 v7, s34, v7")
    tl_stamp(A, TL, 0, 5)
    A(f"s_mov_b32 s{sS}, s{sRep}")
    A.label("A_loop")
    cnt_addr(A, U, 42, C_QD, sS); U.WAIT(42, 32, sleep=SLP["q"])
    cnt_addr(A, U, 42, C_KV, sS); U.WAIT(42, 32)
    A(f"s_lshl_b32 s34, s{sS}, 5"); A(f"s_add_u32 s31, s34, s{sHd}")
    A("s_lshl_b32 s34, s31, 13")
    for nm, base, reg in (("q", WS_QX, QF), ("k", WS_KX, KF), ("v", WS_VX, VF)):
        A(f"s_add_u32 s35, s34, {base}"); U.add64(44, sWS, "s35")
        for f in range(8):
            if f == 4: A("s_add_u32 s44, s44, 4096"); A("s_addc_u32 s45, s45, 0")
            A(f"global_load_dwordx4 {r(reg+4*f,4)}, v2, s[44:45] offset:{(f % 4)*1024} sc1")
    A("s_waitcnt vmcnt(8)")
    tiles = [(0, 0), (0, 1), (1, 1)]
    for t in range(4):
        for i, (Y, Xq) in enumerate(tiles):
            d = r(SS+4*i, 4)
            A(f"{MF} {d}, {r(KF+(Y*4+t)*4,4)}, {r(QF+(Xq*4+t)*4,4)}, {'0' if t == 0 else d}")
    cnt_addr(A, U, 42, C_EXP, sS); A(f"s_mov_b32 s33, {EXP_TARGET}"); U.WAIT(42, "s33", sleep=SLP["a"])
    tl_stamp(A, TL, 0, 7)
    A("s_lshl_b32 s34, s31, 11"); A(f"s_add_u32 s34, s34, {WS_EK}"); U.add64(44, sWS, "s34")
    A("s_mov_b32 m0, s30")
    A("global_load_lds_dwordx4 v2, s[44:45] sc1"); A("global_load_lds_dwordx4 v2, s[44:45] offset:1024 sc1")
    A("s_lshl_b32 s34, s31, 13"); A(f"s_add_u32 s34, s34, {WS_EV}"); U.add64(44, sWS, "s34")
    for wp in range(4):
        if wp == 2: A("s_add_u32 s44, s44, 4096"); A("s_addc_u32 s45, s45, 0")
        A(f"global_load_dwordx4 {r(VM+4*wp,4)}, v2, s[44:45] offset:{(wp % 2)*2048} sc1")
    A("s_waitcnt vmcnt(0)")
    tl_stamp(A, TL, 0, 8)
    for t in range(4):
        for hf in range(2): A(f"ds_read_b64_tr_b16 {r(KM+4*t+2*hf,2)}, v5 offset:{t*512 + hf*256}")
    A("s_waitcnt lgkmcnt(0)")
    for t in range(4):
        for Xq in range(2):
            d = r(SS+12+4*Xq, 4)
            A(f"{MF} {d}, {r(KM+4*t,4)}, {r(QF+(Xq*4+t)*4,4)}, {'0' if t == 0 else d}")
    A("v_mov_b32 v15, s29")
    for i in (0, 2):
        for j in range(4): A(f"v_cndmask_b32 v{SS+4*i+j}, v{SS+4*i+j}, v15, s[{20+2*j}:{21+2*j}]")
    mx, t1 = 14, 15
    for Xq in range(2):
        regs = ([SS+0+j for j in range(4)] + [SS+12+j for j in range(4)]) if Xq == 0 else \
               ([SS+4+j for j in range(4)] + [SS+8+j for j in range(4)] + [SS+16+j for j in range(4)])
        A(f"v_max3_f32 v{mx}, v{regs[0]}, v{regs[1]}, v{regs[2]}")
        rest = regs[3:]
        while len(rest) >= 2: A(f"v_max3_f32 v{mx}, v{mx}, v{rest[0]}, v{rest[1]}"); rest = rest[2:]
        if rest: A(f"v_max_f32 v{mx}, v{mx}, v{rest[0]}")
        A(f"v_mov_b32 v{t1}, v{mx}"); A(f"v_permlane16_swap_b32 v{mx}, v{t1}"); A(f"v_max_f32 v{mx}, v{mx}, v{t1}")
        A(f"v_mov_b32 v{t1}, v{mx}"); A(f"v_permlane32_swap_b32 v{mx}, v{t1}"); A(f"v_max_f32 v{mx}, v{mx}, v{t1}")
        A(f"v_mul_f32 v{mx}, s28, v{mx}")
        for x in regs: A(f"v_fma_f32 v{x}, v{x}, s28, -v{mx}")
        for x in regs: A(f"v_exp_f32 v{x}, v{x}")
        px = PX + 4*Xq; pm = PM + 2*Xq
        if Xq == 0:
            A(f"v_cvt_pk_bf16_f32 v{px}, v{SS}, v{SS+1}"); A(f"v_cvt_pk_bf16_f32 v{px+1}, v{SS+2}, v{SS+3}")
            A(f"v_mov_b32 v{px+2}, 0"); A(f"v_mov_b32 v{px+3}, 0")
            m = SS+12
        else:
            A(f"v_cvt_pk_bf16_f32 v{px}, v{SS+4}, v{SS+5}"); A(f"v_cvt_pk_bf16_f32 v{px+1}, v{SS+6}, v{SS+7}")
            A(f"v_cvt_pk_bf16_f32 v{px+2}, v{SS+8}, v{SS+9}"); A(f"v_cvt_pk_bf16_f32 v{px+3}, v{SS+10}, v{SS+11}")
            m = SS+16
        A(f"v_cvt_pk_bf16_f32 v{pm}, v{m}, v{m+1}"); A(f"v_cvt_pk_bf16_f32 v{pm+1}, v{m+2}, v{m+3}")
    for Xq in range(2):
        A(f"{MF} {r(LL+4*Xq,4)}, {r(ONE,4)}, {r(PX+4*Xq,4)}, 0")
        for E in range(8): A(f"{MF} {r(OO+(E*2+Xq)*4,4)}, {r(VF+4*E,4)}, {r(PX+4*Xq,4)}, 0")
    for Xq in range(2):
        A(f"{MF16} {r(LL+4*Xq,4)}, {r(HALF,2)}, {r(PM+2*Xq,2)}, {r(LL+4*Xq,4)}")
        for E in range(8):
            d = r(OO+(E*2+Xq)*4, 4)
            A(f"{MF16} {d}, {r(VM+2*E,2)}, {r(PM+2*Xq,2)}, {d}")
    for Xq in range(2):
        A(f"v_rcp_f32 v{mx}, v{LL+4*Xq}")
        for t in range(4):
            o = QF + 4*t
            for hf in range(2):
                b = OO + ((2*t+hf)*2 + Xq)*4
                for j in range(4): A(f"v_mul_f32 v{b+j}, v{mx}, v{b+j}")
                A(f"v_cvt_pk_bf16_f32 v{o+2*hf}, v{b}, v{b+1}"); A(f"v_cvt_pk_bf16_f32 v{o+2*hf+1}, v{b+2}, v{b+3}")
            A(f"ds_write_b128 v6, {r(o,4)} offset:{Xq*16384 + t*1024}")
    A("s_waitcnt lgkmcnt(0)"); A("s_barrier")
    tl_stamp(A, TL, 0, 9)
    AC2 = KF; OFR = VF
    for i in range(0, 32, 2): A(f"v_mov_b64 {r(AC2+i,2)}, 0")
    for n in range(4): A(f"ds_read_b128 {r(OFR+4*n,4)}, v2 offset:{n*1024}")
    for n in range(32):
        Xq, kk = divmod(n, 16)
        if n + 4 < 32: A(f"ds_read_b128 {r(OFR+4*((n+4) % 8),4)}, v2 offset:{(n+4)*1024}")
        A(f"s_waitcnt lgkmcnt({min(4, 31-n)})")
        for q in range(4):
            d = r(AC2 + (q*2+Xq)*4, 4)
            A(f"{MF} {d}, {ar((kk*4+q)*4,4)}, {r(OFR+4*(n % 8),4)}, {d}")
    A(f"s_lshl_b32 s34, s{sS}, 3"); A(f"s_add_u32 s34, s34, s{sHG}"); A("s_lshl_b32 s34, s34, 15"); A(f"s_add_u32 s34, s34, {WS_YP}"); U.add64(44, sWS, "s34")
    for Xq in range(2):
        for pp in range(2):
            a0 = AC2 + ((2*pp)*2+Xq)*4; a1 = AC2 + ((2*pp+1)*2+Xq)*4
            o = QF + 4*(Xq*2+pp)
            A(f"v_cvt_pk_bf16_f32 v{o}, v{a0}, v{a0+1}"); A(f"v_cvt_pk_bf16_f32 v{o+1}, v{a0+2}, v{a0+3}")
            A(f"v_cvt_pk_bf16_f32 v{o+2}, v{a1}, v{a1+1}"); A(f"v_cvt_pk_bf16_f32 v{o+3}, v{a1+2}, v{a1+3}")
        if Xq == 1: A("s_add_u32 s44, s44, 16384"); A("s_addc_u32 s45, s45, 0")
        for pp in range(2):
            A(f"global_store_dwordx4 v7, {r(QF+4*(Xq*2+pp),4)}, s[44:45] offset:{pp*64} sc1")
    tl_stamp(A, TL, 0, 10)
    cnt_addr(A, U, 42, C_AD, sS); U.signal(42)
    tl_stamp(A, TL, 0, 11)
    A(f"s_add_u32 s{sS}, s{sS}, 4"); A(f"s_cmp_lt_u32 s{sS}, 64"); A("s_cbranch_scc1 A_loop")

def wave_sum(A, v, t):
    A(f"v_add_f32_dpp v{v}, v{v}, v{v} quad_perm:[1,0,3,2] row_mask:0xf bank_mask:0xf")
    A(f"v_add_f32_dpp v{v}, v{v}, v{v} quad_perm:[2,3,0,1] row_mask:0xf bank_mask:0xf")
    A(f"v_add_f32_dpp v{v}, v{v}, v{v} row_half_mirror row_mask:0xf bank_mask:0xf")
    A(f"v_add_f32_dpp v{v}, v{v}, v{v} row_mirror row_mask:0xf bank_mask:0xf")
    A(f"v_mov_b32 v{t}, v{v}"); A(f"v_permlane16_swap_b32 v{v}, v{t}"); A(f"v_add_f32 v{v}, v{v}, v{t}")
    A(f"v_mov_b32 v{t}, v{v}"); A(f"v_permlane32_swap_b32 v{v}, v{t}"); A(f"v_add_f32 v{v}, v{v}, v{t}")

def unpack8(A, src, dst):
    for k in range(4):
        A(f"v_lshlrev_b32 v{dst+2*k}, 16, v{src+k}"); A(f"v_and_b32 v{dst+2*k+1}, 0xffff0000, v{src+k}")

def role_R(A, U, sJ, TL=False):
    sRG, sRep, sS = 14, 15, 17
    A(f"s_sub_u32 s34, s{sJ}, {R0}"); A(f"s_and_b32 s{sRG}, s34, 7"); A(f"s_lshr_b32 s{sRep}, s34, 3")
    A("s_load_dwordx2 s[40:41], s[0:1], 0"); A("s_load_dwordx2 s[46:47], s[0:1], 88"); A("s_load_dwordx2 s[48:49], s[0:1], 112")
    A("v_lshlrev_b32 v2, 4, v0"); A("v_lshlrev_b32 v3, 5, v0")
    U.wait_cnt1(sDBG, 32, off=D_MODB*4, sleep=8)
    U.add64(42, sWS, WS_MOD + 2*2048)
    GA, SB, CB, GB, B2 = 16, 24, 32, 40, 48
    for i, reg in enumerate((GA, SB, CB, GB)):
        U.add64(44, 42, i*2048)
        A(f"global_load_dwordx4 {r(reg,4)}, v3, s[44:45] sc1"); A(f"global_load_dwordx4 {r(reg+4,4)}, v3, s[44:45] offset:16 sc1")
    A("s_waitcnt lgkmcnt(0)")
    A("global_load_dwordx4 v[56:59], v2, s[46:47]")
    A("s_waitcnt vmcnt(0)")
    unpack8(A, 56, B2)
    for k in range(0, 8, 2):
        A(f"v_add_f32 v{CB+k}, 1.0, v{CB+k}"); A(f"v_add_f32 v{CB+k+1}, 1.0, v{CB+k+1}"); bf_round_pair(A, CB+k, CB+k+1, 60)
    A(f"s_mov_b32 s35, {fbits(1e-5):#x}"); A("s_mov_b32 s33, s35")
    A(f"s_lshl_b32 s18, s{sRG}, 2"); A(f"s_add_u32 s18, s18, s{sW}")
    A("v_lshrrev_b32 v4, 2, v0"); A("v_lshlrev_b32 v4, 10, v4"); A("v_and_b32 v5, 3, v0"); A("v_lshlrev_b32 v5, 8, v5"); A("v_add_u32 v4, v4, v5")
    X1R = 64
    LD = 96
    A(f"s_mov_b32 s{sS}, s{sRep}")
    A.label("R_loop")
    cnt_addr(A, U, 42, C_AD, sS); U.WAIT(42, 16, sleep=SLP["r"])
    tl_stamp(A, TL, 0, 7)
    for i in range(1):
        A(f"s_lshl_b32 s34, s{sS}, 18"); A(f"s_add_u32 s19, s18, {i}"); A("s_lshl_b32 s19, s19, 10"); A("s_add_u32 s34, s34, s19"); A(f"s_add_u32 s34, s34, {WS_YP}")
        U.add64(44, sWS, "s34")
        for hg in range(8):
            A(f"global_load_dwordx4 {r(LD+i*36+4*hg,4)}, v2, s[44:45] sc1"); A("s_add_u32 s44, s44, 32768"); A("s_addc_u32 s45, s45, 0")
        A(f"s_lshl_b32 s34, s{sS}, 15"); A("s_add_u32 s34, s34, s19"); U.add64(44, 40, "s34")
        A(f"global_load_dwordx4 {r(LD+i*36+32,4)}, v2, s[44:45]")
    A("s_waitcnt vmcnt(0)")
    for i in range(1):
        xr = X1R + 8*i
        ac = 80
        unpack8(A, LD+i*36, ac)
        for hg in range(1, 8):
            unpack8(A, LD+i*36+4*hg, 88)
            for k in range(8): A(f"v_add_f32 v{ac+k}, v{ac+k}, v{88+k}")
        unpack8(A, LD+i*36+32, xr)
        for k in range(0, 8, 2):
            bf_round_pair(A, ac+k, ac+k+1, 60)
            A(f"v_mul_f32 v{ac+k}, v{GA+k}, v{ac+k}"); A(f"v_mul_f32 v{ac+k+1}, v{GA+k+1}, v{ac+k+1}"); bf_round_pair(A, ac+k, ac+k+1, 60)
            A(f"v_add_f32 v{xr+k}, v{xr+k}, v{ac+k}"); A(f"v_add_f32 v{xr+k+1}, v{xr+k+1}, v{ac+k+1}"); bf_round_pair(A, xr+k, xr+k+1, 60)
        t0, t1, t2, t3, t4 = 6, 7, 8, 9, 10
        A(f"v_add_f32 v{t0}, v{xr}, v{xr+1}")
        for k in range(2, 8): A(f"v_add_f32 v{t0}, v{t0}, v{xr+k}")
        wave_sum(A, t0, t2); A(f"v_mul_f32 v{t0}, {fbits(1.0/512):#x}, v{t0}")
        A(f"v_mov_b32 v{t1}, 0")
        for k in range(8): A(f"v_sub_f32 v{t3}, v{xr+k}, v{t0}"); A(f"v_fmac_f32 v{t1}, v{t3}, v{t3}")
        wave_sum(A, t1, t2); A(f"v_mul_f32 v{t1}, {fbits(1.0/512):#x}, v{t1}")
        bf_round_pair(A, t0, t1, t2)
        A(f"v_add_f32 v{t1}, s33, v{t1}"); A(f"v_cvt_pk_bf16_f32 v{t1}, v{t1}, v{t1}"); A(f"v_lshlrev_b32 v{t1}, 16, v{t1}")
        A(f"v_sqrt_f32 v{t1}, v{t1}"); A(f"v_cvt_pk_bf16_f32 v{t1}, v{t1}, v{t1}"); A(f"v_lshlrev_b32 v{t1}, 16, v{t1}"); A(f"v_rcp_f32 v{t1}, v{t1}")
        for k in range(0, 8, 2):
            a, b = ac+k, ac+k+1
            A(f"v_sub_f32 v{a}, v{xr+k}, v{t0}"); A(f"v_sub_f32 v{b}, v{xr+k+1}, v{t0}"); bf_round_pair(A, a, b, t2)
            A(f"v_mul_f32 v{a}, v{a}, v{t1}"); A(f"v_mul_f32 v{b}, v{b}, v{t1}"); bf_round_pair(A, a, b, t2)
            A(f"v_mul_f32 v{a}, v{a}, v{CB+k}"); A(f"v_mul_f32 v{b}, v{b}, v{CB+k+1}"); bf_round_pair(A, a, b, t2)
            A(f"v_add_f32 v{a}, v{a}, v{SB+k}"); A(f"v_add_f32 v{b}, v{b}, v{SB+k+1}")
            A(f"v_cvt_pk_bf16_f32 v{88+k//2}, v{a}, v{b}")
        A(f"s_add_u32 s19, s18, {i}"); A("s_lshr_b32 s34, s19, 4"); A("s_lshl_b32 s34, s34, 14"); A("s_and_b32 s36, s19, 15"); A("s_lshl_b32 s36, s36, 4"); A("s_add_u32 s34, s34, s36")
        A(f"s_lshl_b32 s36, s{sS}, 15"); A("s_add_u32 s34, s34, s36"); A(f"s_add_u32 s34, s34, {WS_H2F}"); U.add64(44, sWS, "s34")
        A("global_store_dwordx4 v4, v[88:91], s[44:45] sc1")
        if DBGX1:
            for k in range(0, 8, 2): A(f"v_cvt_pk_bf16_f32 v{92+k//2}, v{xr+k}, v{xr+k+1}")
            A(f"s_lshl_b32 s34, s{sS}, 15"); A("s_lshl_b32 s36, s19, 10"); A("s_add_u32 s34, s34, s36"); A(f"s_add_u32 s34, s34, {WS_X1}"); U.add64(44, sWS, "s34")
            A("global_store_dwordx4 v2, v[92:95], s[44:45]")
    tl_stamp(A, TL, 0, 8)
    cnt_addr(A, U, 42, C_R1, sS); U.signal(42)
    tl_stamp(A, TL, 0, 9)
    cnt_addr(A, U, 42, C_CD, sS); U.WAIT(42, 22, sleep=SLP["r"])
    tl_stamp(A, TL, 0, 10)
    for i in range(1):
        A(f"s_mul_i32 s34, s{sS}, {11*32768}"); A(f"s_add_u32 s19, s18, {i}"); A("s_lshl_b32 s19, s19, 10"); A("s_add_u32 s34, s34, s19"); A(f"s_add_u32 s34, s34, {WS_FP}")
        U.add64(44, sWS, "s34")
        for f in range(11):
            A(f"global_load_dwordx4 {r(LD+i*44+4*f,4)}, v2, s[44:45] sc1"); A("s_add_u32 s44, s44, 32768"); A("s_addc_u32 s45, s45, 0")
    A("s_waitcnt vmcnt(0)")
    for i in range(1):
        xr = X1R + 8*i; ac = 80
        unpack8(A, LD+i*44, ac)
        for f in range(1, 11):
            unpack8(A, LD+i*44+4*f, 88)
            for k in range(8): A(f"v_add_f32 v{ac+k}, v{ac+k}, v{88+k}")
        for k in range(0, 8, 2):
            a, b = ac+k, ac+k+1
            bf_round_pair(A, a, b, 60)
            A(f"v_add_f32 v{a}, v{a}, v{B2+k}"); A(f"v_add_f32 v{b}, v{b}, v{B2+k+1}"); bf_round_pair(A, a, b, 60)
            A(f"v_mul_f32 v{a}, v{a}, v{GB+k}"); A(f"v_mul_f32 v{b}, v{b}, v{GB+k+1}"); bf_round_pair(A, a, b, 60)
            A(f"v_add_f32 v{a}, v{a}, v{xr+k}"); A(f"v_add_f32 v{b}, v{b}, v{xr+k+1}")
            A(f"v_cvt_pk_bf16_f32 v{88+k//2}, v{a}, v{b}")
        A(f"s_add_u32 s19, s18, {i}"); A(f"s_lshl_b32 s34, s{sS}, 15"); A("s_lshl_b32 s36, s19, 10"); A("s_add_u32 s34, s34, s36"); U.add64(44, 48, "s34")
        A(f"global_store_dwordx4 v2, v[88:91], s[44:45] {OUTFLAG}")
        A("s_nop 1")
    A(f"s_add_u32 s{sS}, s{sS}, 8"); A(f"s_cmp_lt_u32 s{sS}, 64"); A("s_cbranch_scc1 R_loop")
    A("s_waitcnt vmcnt(0)")

def role_C(A, U, sJ, TL=False):
    sF, sRep, sS = 14, 15, 17
    sXR = 16
    A(f"s_sub_u32 s34, s{sJ}, 64"); A("s_mul_i32 s35, s34, 0x1746"); A("s_lshr_b32 s36, s35, 16")
    A("s_mul_i32 s35, s36, 11"); A(f"s_sub_u32 s{sF}, s34, s35")
    A(f"s_and_b32 s{sXR}, s36, 1"); A(f"s_lshr_b32 s{sRep}, s36, 1")
    A("s_load_dwordx4 s[40:43], s[0:1], 64"); A("s_load_dwordx2 s[44:45], s[0:1], 80")
    WL = WLoad(A, LB=0, vb=200)
    WL.setup(2752, "nat", "tile")
    Lc = A.newlabel("Cnc")
    A(f"s_cmp_lg_u32 s{sF}, 10"); A(f"s_cbranch_scc1 {Lc}")
    for v, x in ((WL.vS0, 0), (WL.vS1, 8)):
        A("v_lshrrev_b32 v214, 4, v0"); A("v_lshlrev_b32 v214, 1, v214"); A("v_and_b32 v215, 15, v0"); A("v_xor_b32 v214, v214, v215")
        if x: A(f"v_xor_b32 v214, {x}, v214")
        A("v_cmp_le_u32 vcc, 12, v214"); A("v_lshlrev_b32 v214, 4, v214"); A(f"v_sub_u32 v214, v{v}, v214")
        A(f"v_cndmask_b32 v{v}, v{v}, v214, vcc")
    A.label(Lc)
    A(f"s_lshl_b32 s34, s{sW}, 6"); A(f"v_xor_b32 v210, s34, v{WL.vT}"); A("v_xor_b32 v211, 32, v210")
    A("v_add_u32 v212, 0x10000, v210"); A("v_add_u32 v213, 0x10000, v211")
    A("s_waitcnt lgkmcnt(0)")
    A(f"s_lshl_b32 s34, s{sF}, 8"); A("s_add_u32 s40, s40, s34"); A("s_addc_u32 s41, s41, 0")
    for c in range(8): WL.dma(40, c*64*2752, c)
    for c in range(8):
        A(f"s_waitcnt vmcnt({4*(7-c)})"); A("s_barrier")
        for X in range(2):
            for q4 in range(4): WL.tr(ar((X*8 + c)*8 + 2*q4, 2), 210+X, 212+X, c, [0, 4, 32, 36][q4])
        A("s_waitcnt lgkmcnt(0)")
    A("s_barrier")
    WL2 = WLoad(A, LB=0, vb=200)
    WL2.setup(1024, "split", "pair")
    A(f"s_lshl_b32 s34, s{sF}, 17"); A("s_add_u32 s44, s44, s34"); A("s_addc_u32 s45, s45, 0")
    A(f"s_cmp_eq_u32 s{sF}, 10"); A("s_cselect_b32 s34, 1, 0"); A(f"s_cmp_ge_u32 s{sW}, 2"); A("s_cselect_b32 s35, s34, 0"); A("s_lshl_b32 s35, s35, 15")
    for rb in range(2):
        for cq in range(4):
            U.add64(46, 44, cq*256)
            if rb == 1: A("s_sub_u32 s46, s46, s35"); A("s_subb_u32 s47, s47, 0")
            WL2.dma(46, rb*64*1024, rb*4 + cq)
    A(f"s_lshl_b32 s34, s{sW}, 14"); A(f"v_add_u32 v210, s34, v{WL2.vT}")
    A("s_waitcnt vmcnt(0)"); A("s_barrier")
    for rb in range(2):
        for p in range(4):
            A(f"v_xor_b32 v211, {p*64}, v210") if True else None
            A(f"v_add_u32 v211, {rb*65536}, v211") if rb else None
            for u2 in range(2):
                u = 2*rb + u2
                for a in range(2):
                    q = 2*p + a
                    for hf in range(2):
                        A(f"ds_read_b64_tr_b16 {ar(128 + (u*8 + q)*4 + 2*hf, 2)}, v211 offset:{(32*u2 + 16*hf)*256 + 8*a}")
    A("s_waitcnt lgkmcnt(0)"); A("s_barrier")
    A("v_lshrrev_b32 v3, 4, v0"); A("v_and_b32 v4, 15, v0")
    A("v_lshlrev_b32 v5, 3, v3"); A(f"s_lshl_b32 s34, s{sF}, 8"); A(f"s_lshl_b32 s35, s{sW}, 6"); A("s_add_u32 s34, s34, s35"); A("v_add_u32 v5, s34, v5")
    A("v_min_u32 v6, 2744, v5"); A("v_add_u32 v7, 32, v5"); A("v_min_u32 v7, 2744, v7")
    A("global_load_dwordx2 v[24:25], v6, s[42:43]"); A("global_load_dwordx2 v[26:27], v7, s[42:43]")
    A("s_waitcnt vmcnt(0)")
    B1 = 16
    for X in range(2):
        for k in range(2):
            A(f"v_lshlrev_b32 v{B1+4*X+2*k}, 16, v{24+2*X+k}"); A(f"v_and_b32 v{B1+4*X+2*k+1}, 0xffff0000, v{24+2*X+k}")
    Lz = A.newlabel("Cz")
    A(f"s_cmp_lg_u32 s{sF}, 10"); A(f"s_cbranch_scc1 {Lz}"); A(f"s_cmp_lg_u32 s{sW}, 3"); A(f"s_cbranch_scc1 {Lz}")
    for i in range(128): A(f"v_accvgpr_write_b32 a{i}, 0")
    for i in range(8): A(f"v_mov_b32 v{B1+i}, 0")
    A.label(Lz)
    A("v_lshlrev_b32 v2, 4, v0")
    A(f"s_lshl_b32 s34, s{sW}, 12"); A("v_add_u32 v8, s34, v2")
    A(f"s_lshl_b32 s34, s{sW}, 10"); A("v_add_u32 v9, s34, v2")
    A("v_lshlrev_b32 v10, 10, v4"); A("v_lshlrev_b32 v11, 4, v3"); A("v_add_u32 v10, v10, v11")
    A(f"s_lshl_b32 s34, s{sW}, 8"); A("v_add_u32 v10, s34, v10")
    A(f"s_mov_b32 s28, {fbits(0.044715):#x}"); A(f"s_mov_b32 s29, {fbits(-2.0*0.7978845608028654*1.4426950408889634):#x}")
    AC1, HFR, FF, AC2 = 32, 64, 96, 128
    A(f"s_mov_b32 s{sS}, s{sRep}")
    A.label("C_loop")
    cnt_addr(A, U, 42, C_R1, sS); U.WAIT(42, 8, sleep=SLP["c"])
    tl_stamp(A, TL, 0, 7)
    A(f"s_lshl_b32 s34, s{sS}, 15"); A(f"s_lshl_b32 s35, s{sXR}, 14"); A("s_add_u32 s34, s34, s35"); A(f"s_add_u32 s34, s34, {WS_H2F}"); U.add64(46, sWS, "s34")
    A(f"s_lshl_b32 m0, s{sW}, 12")
    for i in range(4): A(f"global_load_lds_dwordx4 v8, s[46:47] offset:{i*1024} sc1")
    for X in range(2):
        for j in range(4): A(f"v_mov_b32 v{AC1+X*4+j}, v{B1+4*X+j}")
    A("s_waitcnt vmcnt(0)"); A("s_barrier")
    for n in range(4): A(f"ds_read_b128 {r(HFR+4*n,4)}, v2 offset:{n*1024}")
    for n in range(16):
        if n + 4 < 16: A(f"ds_read_b128 {r(HFR+4*((n+4) % 8),4)}, v2 offset:{(n+4)*1024}")
        A(f"s_waitcnt lgkmcnt({min(4, 15-n)})")
        for X in range(2):
            d = r(AC1+X*4, 4)
            A(f"{MF} {d}, {ar((X*16+n)*4,4)}, {r(HFR+4*(n % 8),4)}, {d}")
    tl_stamp(A, TL, 0, 8)
    for X in range(2):
        b = AC1+X*4
        for k in range(0, 4, 2): bf_round_pair(A, b+k, b+k+1, 12)
    vals = [AC1+i for i in range(8)]; T = 48
    for i, x in enumerate(vals): A(f"v_mul_f32 v{T+i}, v{x}, v{x}")
    for i, x in enumerate(vals): A(f"v_mul_f32 v{T+i}, s28, v{T+i}")
    for i, x in enumerate(vals): A(f"v_fma_f32 v{T+i}, v{T+i}, v{x}, v{x}")
    for i, x in enumerate(vals): A(f"v_mul_f32 v{T+i}, s29, v{T+i}")
    for i, x in enumerate(vals): A(f"v_exp_f32 v{T+i}, v{T+i}")
    for i, x in enumerate(vals): A(f"v_add_f32 v{T+i}, 1.0, v{T+i}")
    for i, x in enumerate(vals): A(f"v_rcp_f32 v{T+i}, v{T+i}")
    for i, x in enumerate(vals): A(f"v_mul_f32 v{x}, v{x}, v{T+i}")
    for X in range(2):
        b = AC1+X*4
        A(f"v_cvt_pk_bf16_f32 v{24+2*X}, v{b}, v{b+1}"); A(f"v_cvt_pk_bf16_f32 v{25+2*X}, v{b+2}, v{b+3}")
    A("ds_write_b128 v9, v[24:27] offset:32768")
    A("s_waitcnt lgkmcnt(0)"); A("s_barrier")
    for n in range(4): A(f"ds_read_b128 {r(FF+4*n,4)}, v2 offset:{32768 + n*1024}")
    A("s_waitcnt lgkmcnt(0)")
    for u in range(4):
        for q in range(8):
            d = r(AC2+q*4, 4)
            A(f"{MF} {d}, {ar(128+(u*8+q)*4,4)}, {r(FF+u*4,4)}, {'0' if u == 0 else d}")
    A(f"s_mul_i32 s34, s{sS}, 11"); A(f"s_add_u32 s34, s34, s{sF}"); A("s_lshl_b32 s34, s34, 15"); A(f"s_lshl_b32 s35, s{sXR}, 14"); A("s_add_u32 s34, s34, s35")
    A(f"s_add_u32 s34, s34, {WS_FP}"); U.add64(46, sWS, "s34")
    for p in range(4):
        a0 = AC2 + (2*p)*4; a1 = AC2 + (2*p+1)*4
        o = HFR + 4*p
        A(f"v_cvt_pk_bf16_f32 v{o}, v{a0}, v{a0+1}"); A(f"v_cvt_pk_bf16_f32 v{o+1}, v{a0+2}, v{a0+3}")
        A(f"v_cvt_pk_bf16_f32 v{o+2}, v{a1}, v{a1+1}"); A(f"v_cvt_pk_bf16_f32 v{o+3}, v{a1+2}, v{a1+3}")
        A(f"global_store_dwordx4 v10, {r(o,4)}, s[46:47] offset:{p*64} sc1")
    tl_stamp(A, TL, 0, 10)
    cnt_addr(A, U, 42, C_CD, sS); U.signal(42)
    tl_stamp(A, TL, 0, 11)
    A(f"s_add_u32 s{sS}, s{sS}, 4"); A(f"s_cmp_lt_u32 s{sS}, 64"); A("s_cbranch_scc1 C_loop")

def roles_ARC(A, U, sJ, TL=False, slp=None, w1=True):
    U.WAIT = U.wait_cnt1 if w1 else U.wait_cnt
    if slp: SLP.update(slp)
    A("s_barrier")
    A(f"s_cmp_ge_u32 s{sJ}, 64"); A("s_cbranch_scc1 L_notA")
    role_A(A, U, sJ, TL)
    tl_stamp(A, TL, 0, 6)
    A("s_branch L_end")
    A.label("L_notA")
    A(f"s_cmp_ge_u32 s{sJ}, {R0}"); A("s_cbranch_scc1 L_notC")
    role_C(A, U, sJ, TL)
    tl_stamp(A, TL, 0, 6)
    A("s_branch L_end")
    A.label("L_notC")
    A(f"s_cmp_ge_u32 s{sJ}, {R0+64}"); A("s_cbranch_scc1 L_end")
    role_R(A, U, sJ, TL)
    tl_stamp(A, TL, 0, 6)
```

```python
from common import *
import struct
L_STG = 0; L_QB = 8192; L_OB = 161280; L_KX = 10752; L_VX = 18944; L_KB = 27136; L_WO = 30208
OSTR = 288
import os
if os.environ.get('OB_ALIAS'): L_OB = 8192
L_PF = 161280

vWoB = 1
vIDX, vL16, vAG, vWoA, vQW, vQR, vOW, vPst, vRS, vMst, vOR = range(2, 13)
vSEL = 16
vONE = 20
vHALF = 14
T0r, T1r = 0, 13
M = 24; Q = 56; K = 72; AQ = 88; AK = 96; SX = 104; SM = 112; OX = 116; LX = 124
WV = 128

SC_C = 0.08838834764831845 * 1.4426950408889634

sS = 12
sC = 14
sPst = 16
sPrd = 24
sMb = 26; sMc = 28; sKX = 30; sVX = 32
sMMSK = 40
sODD = 42
sFAIL = 44; sCNT = 45; sLO = 46
sHIST = 48
sPz = 50
sMz = 52
sMn = 54
sHn = 56
sM0K = 58
sM0V = 59
sNAG = 60
sNRS = 61
sST = 64
sTHR = 8
sEXC = 62
sEK = 92
sEV = 94
sKVC = 98
sEVp = 100
sXM = 46
sKVOK = 13
sHB2 = 20
sTAG = 50
sPrd2 = 22
sHn2 = 84
sHB = 18
sPF = 24

class Chain:
    def __init__(self, A, U, stamps=False, hist=False, nsteps=63, nv1=12, rs_wait=None, ag_delay=2, p_layout=1, rs_delay=4, masked=False, wo_spread=True, nohist=False, dump=None, rs_sets=1, rs_gap=2, ag_sets=2, ag_gap=2, late_reset=True, ag_reset=True, kvwait=True, pipe_t0=True, nocomm=False, stash_v=False, l2pf=False, noexp=False, nodma=False, mpoll=False, ag_depth=2, rs_depth=2, ackstamp=False, steplog=False, rs_var='C', opt2=True, bar=5, early_shadow=True, ptag=True, cfull=False, no_rs=False, no_ag=False, dmaflag='sc1', kbar=True, vearly=False, vexp_early=True, dmalat=False, standin=False, pvearly=True, force_slow=False):
        self.standin = standin; self.pvearly = pvearly; self.force_slow = force_slow
        self.dmalat = dmalat
        self.vexp_early = vexp_early
        self.vearly = vearly
        self.dmaflag = dmaflag; self.kbar = kbar
        self.no_rs = no_rs; self.no_ag = no_ag
        self.cfull = cfull
        self.ptag = ptag
        self.early_shadow = early_shadow
        self.bar = bar
        self.opt2 = opt2
        self.rs_var = rs_var
        self.steplog = steplog
        self.ackstamp = ackstamp
        self.mpoll = mpoll; self.ag_depth = ag_depth; self.rs_depth = rs_depth
        self.nodma = nodma; self.noexp = noexp
        self.stash_v = stash_v; self.l2pf = l2pf
        self.pipe_t0 = pipe_t0; self.nocomm = nocomm
        self.U = U; self.kv_ret = []; self.exports = not noexp; self.ag_reset = ag_reset; self.kvwait = kvwait
        self.rs_sets = rs_sets; self.rs_gap = rs_gap; self.ag_sets = ag_sets; self.ag_gap = ag_gap; self.late_reset = late_reset
        hist = hist and not nohist
        self.p_layout = p_layout; self.rs_delay = rs_delay; self.masked = masked; self.wo_spread = wo_spread
        self.nv1 = nv1; self.rs_wait = rs_wait; self.ag_delay = ag_delay
        self.A = A; self.stamps = stamps; self.hist = hist; self.nsteps = nsteps

    def stamp(self, i):
        if not self.stamps: return
        A = self.A
        A(f"s_memtime s[{sST+2*i}:{sST+2*i+1}]")

    def setup_consts(self):
        A = self.A; l = "v0"
        A(f"v_lshlrev_b32 {r(vL16)}, 4, {l}")
        A(f"s_lshl_b32 s34, s{sW}, 11"); A(f"v_add_u32 {r(vAG)}, s34, {r(vL16)}")
        A(f"s_lshl_b32 s34, s{sW}, 14"); A(f"s_add_u32 s34, s34, {L_WO}"); A(f"v_add_u32 {r(vWoA)}, s34, {r(vL16)}")
        A(f"v_add_u32 {r(vWoB)}, 0x10000, {r(vWoA)}")
        A(f"v_and_b32 v24, 15, {l}")
        A(f"v_lshrrev_b32 v25, 4, {l}")
        A(f"v_mov_b32 {r(vIDX)}, 0x4444"); A("v_mov_b32 v26, 0xeeee")
        A("v_cmp_le_u32 vcc, 8, v24")
        A(f"v_cndmask_b32 {r(vIDX)}, {r(vIDX)}, v26, vcc")
        A(f"v_lshrrev_b32 v26, 1, v25"); A("v_lshlrev_b32 v26, 8, v26")
        A("v_lshlrev_b32 v27, 4, v24"); A("v_add_u32 v26, v26, v27")
        A("v_and_b32 v27, 1, v25"); A("v_lshlrev_b32 v27, 3, v27"); A("v_add_u32 v26, v26, v27")
        A(f"s_lshl_b32 s34, s{sW}, 9"); A(f"v_add_u32 {r(vQW)}, s34, v26")
        A(f"v_lshrrev_b32 v26, 2, {l}"); A("v_lshlrev_b32 v26, 4, v26")
        A(f"v_and_b32 v27, 1, {l}"); A("v_lshlrev_b32 v27, 3, v27"); A(f"v_add_u32 {r(vQR)}, v26, v27")
        A("v_and_b32 v26, 7, v24"); A(f"v_mul_u32_u24 v26, {OSTR}, v26"); A(f"v_add_u32 {r(vOR)}, {L_OB}, v26")
        A("v_lshlrev_b32 v27, 3, v25"); A(f"v_add_u32 {r(vOW)}, {r(vOR)}, v27")
        A(f"s_lshl_b32 s34, s{sW}, 6"); A(f"v_add_u32 {r(vOW)}, s34, {r(vOW)}")
        A("v_lshlrev_b32 v27, 4, v25"); A(f"v_add_u32 {r(vOR)}, {r(vOR)}, v27")
        if self.rs_var == 'C':
            pass
        elif self.p_layout == 0:
            A(f"v_lshrrev_b32 v26, 5, {l}"); A("v_lshlrev_b32 v26, 13, v26")
            A("v_and_b32 v27, 1, v25"); A("v_lshlrev_b32 v27, 7, v27"); A("v_add_u32 v26, v26, v27")
            A("v_lshlrev_b32 v27, 3, v24"); A("v_add_u32 v26, v26, v27")
            A(f"s_lshl_b32 s34, s{sW}, 16"); A(f"s_lshl_b32 s35, s{sH}, 8"); A("s_add_u32 s34, s34, s35")
            A(f"v_add_u32 {r(vPst)}, s34, v26")
            A("v_lshlrev_b32 v26, 8, v25"); A("v_lshlrev_b32 v27, 2, v24"); A("v_add_u32 v26, v26, v27")
            A(f"s_lshl_b32 s34, s{sH}, 13"); A(f"s_lshl_b32 s35, s{sW}, 6"); A("s_add_u32 s34, s34, s35"); A("s_add_u32 s34, s34, 4096")
            A(f"v_add_u32 {r(vRS)}, s34, v26")
        else:
            A(f"v_lshrrev_b32 v26, 5, {l}"); A("v_lshlrev_b32 v26, 13, v26")
            A("v_and_b32 v27, 1, v25"); A("v_lshlrev_b32 v27, 12, v27"); A("v_add_u32 v26, v26, v27")
            A("v_lshrrev_b32 v27, 3, v24"); A("v_lshlrev_b32 v27, 11, v27"); A("v_add_u32 v26, v26, v27")
            A("v_and_b32 v27, 7, v24"); A("v_lshlrev_b32 v27, 3, v27"); A("v_add_u32 v26, v26, v27")
            A(f"s_lshl_b32 s34, s{sW}, 16"); A(f"s_lshl_b32 s35, s{sH}, 6"); A("s_add_u32 s34, s34, s35")
            A(f"v_add_u32 {r(vPst)}, s34, v26")
            A("v_lshlrev_b32 v26, 6, v25"); A("v_lshlrev_b32 v27, 2, v24"); A("v_add_u32 v26, v26, v27")
            A(f"s_lshl_b32 s34, s{sH}, 13"); A(f"s_lshl_b32 s35, s{sW}, 11"); A("s_add_u32 s34, s34, s35")
            A(f"v_add_u32 {r(vRS)}, s34, v26")
        if self.rs_var == 'C':
            if not self.cfull:
                A(f"v_lshrrev_b32 v26, 5, {l}"); A("v_lshlrev_b32 v26, 3, v26")
                A("v_and_b32 v27, 1, v25"); A("v_lshlrev_b32 v27, 2, v27"); A("v_add_u32 v26, v26, v27")
                A("v_lshrrev_b32 v27, 2, v24"); A("v_add_u32 v26, v26, v27"); A("v_lshlrev_b32 v26, 11, v26")
                A("v_and_b32 v27, 3, v24"); A("v_lshlrev_b32 v27, 4, v27"); A("v_add_u32 v26, v26, v27")
                A(f"s_lshl_b32 s34, s{sW}, 16"); A(f"s_lshl_b32 s35, s{sH}, 6"); A("s_add_u32 s34, s34, s35")
                A(f"v_add_u32 {r(vPst)}, s34, v26")
                A(f"s_lshl_b32 s34, s{sH}, 13"); A(f"v_add_u32 {r(vRS)}, s34, {r(vAG)}")
            else:
                A(f"v_lshrrev_b32 v26, 5, {l}"); A("v_lshlrev_b32 v26, 2, v26")
                A("v_and_b32 v27, 1, v25"); A("v_lshlrev_b32 v27, 1, v27"); A("v_add_u32 v26, v26, v27")
                A("v_lshrrev_b32 v27, 3, v24"); A("v_add_u32 v26, v26, v27"); A("v_lshlrev_b32 v26, 12, v26")
                A("v_and_b32 v27, 7, v24"); A("v_lshlrev_b32 v27, 4, v27"); A("v_add_u32 v26, v26, v27")
                A(f"s_lshl_b32 s34, s{sW}, 16"); A(f"s_lshl_b32 s35, s{sH}, 7"); A("s_add_u32 s34, s34, s35")
                A(f"v_add_u32 {r(vPst)}, s34, v26")
                A(f"v_lshrrev_b32 v26, 2, {l}"); A("v_lshlrev_b32 v26, 7, v26"); A(f"v_and_b32 v27, 3, {l}"); A("v_lshlrev_b32 v27, 4, v27"); A("v_add_u32 v26, v26, v27")
                A(f"s_lshl_b32 s34, s{sH}, 13"); A(f"s_lshr_b32 s35, s{sW}, 1"); A("s_lshl_b32 s35, s35, 12"); A("s_add_u32 s34, s34, s35")
                A(f"s_and_b32 s35, s{sW}, 1"); A("s_lshl_b32 s35, s35, 6"); A("s_add_u32 s34, s34, s35")
                A(f"v_add_u32 {r(vRS)}, s34, v26")
            A(f"s_lshr_b32 s34, s{sH}, 3"); A("s_lshl_b32 s34, s34, 3")
            A(f"s_bfe_u32 s35, s{sH}, 0x10002"); A("s_lshl_b32 s35, s35, 2"); A("s_add_u32 s34, s34, s35")
            A(f"s_bfe_u32 s35, s{sH}, 0x10001"); A("s_add_u32 s34, s34, s35")
            A("v_and_b32 v26, 1, v25"); A("v_lshlrev_b32 v26, 1, v26"); A("v_add_u32 v26, s34, v26")
            A(f"v_bfe_u32 v27, {l}, 2, 2"); A(f"s_and_b32 s34, s{sH}, 1"); A("s_lshl_b32 s34, s34, 2"); A("v_add_u32 v27, s34, v27")
            A(f"v_bfe_u32 v28, {l}, 1, 1"); A(f"s_lshl_b32 s34, s{sW}, 1"); A("v_add_u32 v28, s34, v28")
            A("v_and_b32 v29, 1, v28"); A("v_lshlrev_b32 v29, 3, v29"); A("v_add_u32 v29, v29, v27"); A("v_lshlrev_b32 v29, 4, v29")
            A("v_lshrrev_b32 v30, 1, v28"); A("v_lshlrev_b32 v30, 2, v30"); A("v_add_u32 v29, v29, v30")
            A("v_lshlrev_b32 v30, 8, v26"); A(f"v_add_u32 {r(vMst)}, v29, v30")
            A("v_lshlrev_b32 v27, 10, v27"); A("v_lshlrev_b32 v26, 5, v26"); A("v_lshlrev_b32 v28, 2, v28"); A("v_add_u32 v27, v27, v26"); A("v_add_u32 v127, v27, v28")
            A("v_and_b32 v26, 7, v24"); A("v_lshrrev_b32 v27, 1, v26"); A("v_and_b32 v28, 1, v26")
            A("v_mov_b32 v29, 0x3f80"); A("v_mov_b32 v30, 0x3f800000")
            A("v_cmp_eq_u32 vcc, 1, v28"); A("v_cndmask_b32 v29, v29, v30, vcc")
            for rho in range(4):
                A(f"v_cmp_eq_u32 vcc, {rho}, v27"); A(f"v_cndmask_b32 {r(vSEL+rho)}, 0, v29, vcc")
        elif self.rs_var == 'A':
            A(f"v_and_b32 v26, 3, {l}"); A(f"s_and_b32 s34, s{sW}, 1"); A("s_lshl_b32 s34, s34, 2"); A("v_add_u32 v26, s34, v26")
            A(f"s_lshr_b32 s34, s{sW}, 1"); A("s_lshl_b32 s34, s34, 2"); A("v_add_u32 v27, s34, v25")
            A("v_and_b32 v28, 1, v26"); A("v_lshlrev_b32 v28, 3, v28"); A("v_add_u32 v28, v28, v27"); A("v_lshlrev_b32 v28, 4, v28")
            A("v_lshrrev_b32 v29, 1, v26"); A("v_lshlrev_b32 v29, 2, v29"); A("v_add_u32 v28, v28, v29")
            A(f"s_lshl_b32 s34, s{sH}, 8"); A(f"v_add_u32 {r(vMst)}, s34, v28")
            A("v_lshlrev_b32 v27, 10, v27"); A("v_lshlrev_b32 v26, 2, v26"); A("v_add_u32 v27, v27, v26")
            A(f"s_lshl_b32 s34, s{sH}, 5"); A("v_add_u32 v127, s34, v27")
            A("v_and_b32 v26, 7, v24"); A("v_lshrrev_b32 v27, 1, v26"); A("v_and_b32 v28, 1, v26")
            A("v_mov_b32 v29, 0x3f80"); A("v_mov_b32 v30, 0x3f800000")
            A("v_cmp_eq_u32 vcc, 1, v28"); A("v_cndmask_b32 v29, v29, v30, vcc")
            for rho in range(4):
                A(f"v_cmp_eq_u32 vcc, {rho}, v27"); A(f"v_cndmask_b32 {r(vSEL+rho)}, 0, v29, vcc")
            A(f"s_lshl_b32 s34, s{sH}, 13"); A(f"v_add_u32 {r(vRS)}, s34, {r(vAG)}")
        else:
            A("v_lshrrev_b32 v26, 2, v24"); A(f"s_and_b32 s34, s{sW}, 1"); A("s_lshl_b32 s34, s34, 2"); A("v_add_u32 v26, s34, v26")
            A("v_and_b32 v27, 1, v24"); A("v_lshlrev_b32 v27, 1, v27"); A("v_and_b32 v28, 1, v25"); A("v_add_u32 v27, v27, v28")
            A(f"s_lshr_b32 s34, s{sW}, 1"); A("s_lshl_b32 s34, s34, 2"); A("v_add_u32 v27, s34, v27")
            A("v_and_b32 v28, 1, v26"); A("v_lshlrev_b32 v28, 3, v28"); A("v_add_u32 v28, v28, v27"); A("v_lshlrev_b32 v28, 4, v28")
            A("v_lshrrev_b32 v29, 1, v26"); A("v_lshlrev_b32 v29, 2, v29"); A("v_add_u32 v28, v28, v29")
            A(f"s_lshl_b32 s34, s{sH}, 8"); A(f"v_add_u32 {r(vMst)}, s34, v28")
            A("v_lshlrev_b32 v27, 10, v27"); A("v_lshlrev_b32 v26, 2, v26"); A("v_add_u32 v27, v27, v26")
            A(f"s_lshl_b32 s34, s{sH}, 5"); A("v_add_u32 v127, s34, v27")
            A("v_and_b32 v26, 1, v24"); A("v_mov_b32 v27, 0x3f80"); A("v_mov_b32 v28, 0x3f800000")
            A("v_cmp_eq_u32 vcc, 1, v26"); A(f"v_cndmask_b32 {r(vSEL)}, v27, v28, vcc")
            for i in range(1, 4): A(f"v_mov_b32 {r(vSEL+i)}, {r(vSEL)}")
        for i in range(4): A(f"v_mov_b32 {r(vONE+i)}, 0x3f803f80")
        A("v_cmp_gt_u32 vcc, 2, v25"); A(f"v_cndmask_b32 {r(vHALF)}, 0, {r(vONE)}, vcc"); A(f"v_mov_b32 {r(vHALF+1)}, {r(vHALF)}")
        if self.rs_var == 'C':
            A(f"s_mov_b32 s{sMMSK}, 0x55555555"); A(f"s_mov_b32 s{sMMSK+1}, 0")
            A(f"s_mov_b32 s{sHB}, 0xf0f0f0f0"); A(f"s_mov_b32 s{sHB+1}, 0xf0f0f0f0")
            A(f"s_mov_b32 s{sHB2}, 0xff00ff00"); A(f"s_mov_b32 s{sHB2+1}, 0xff00ff00")
        elif self.rs_var == 'A':
            A(f"s_mov_b32 s{sMMSK}, 0x000f000f"); A(f"s_mov_b32 s{sMMSK+1}, 0x000f000f")
            A(f"s_mov_b32 s{sODD}, 0"); A(f"s_mov_b32 s{sODD+1}, -1")
        else:
            A(f"s_mov_b32 s{sMMSK}, 0x33333333"); A(f"s_mov_b32 s{sMMSK+1}, 0")
            A(f"s_mov_b32 s{sODD}, 0xffff0000"); A(f"s_mov_b32 s{sODD+1}, 0xffff0000")
        A(f"s_mov_b32 s{sC}, {fbits(SC_C):#x}"); A(f"s_mov_b32 s{sC+1}, {fbits(SC_C):#x}")
        A(f"s_mov_b32 s{sTHR}, {fbits(-1.0 if self.force_slow else 40.0/SC_C):#x}")
        A(f"s_add_u32 s{sMb}, s{sWS}, {WS_MBUF}"); A(f"s_addc_u32 s{sMb+1}, s{sWS+1}, 0")
        A(f"s_add_u32 s{sHIST}, s{sWS}, {WS_MHIST}"); A(f"s_addc_u32 s{sHIST+1}, s{sWS+1}, 0")
        A(f"s_lshl_b32 s34, s{sH}, 13")
        A(f"s_add_u32 s{sKX}, s{sWS}, s34"); A(f"s_addc_u32 s{sKX+1}, s{sWS+1}, 0")
        A(f"s_add_u32 s{sVX}, s{sKX}, {WS_VX}"); A(f"s_addc_u32 s{sVX+1}, s{sKX+1}, 0")
        A(f"s_add_u32 s{sKX}, s{sKX}, {WS_KX}"); A(f"s_addc_u32 s{sKX+1}, s{sKX+1}, 0")

    def clear_slots(self):
        A = self.A
        for i in range(4): A(f"v_mov_b32 v{28+i}, -1")
        for par in range(2):
            A(f"s_lshl_b32 s34, s{sH}, 13"); A(f"s_add_u32 s34, s34, {WS_PBUF + par*0x40000}")
            A(f"s_add_u32 s36, s{sWS}, s34"); A(f"s_addc_u32 s37, s{sWS+1}, 0")
            A(f"global_store_dwordx4 {r(vAG)}, v[28:31], s[36:37] sc1"); A(f"global_store_dwordx4 {r(vAG)}, v[28:31], s[36:37] offset:1024 sc1")
        A(f"s_mov_b64 exec, {sp(sMMSK)}")
        for i in range(4):
            A(f"s_add_u32 s36, s{sMb}, {i*8192}"); A(f"s_addc_u32 s37, s{sMb+1}, 0")
            A(f"global_store_dword {r(vMst)}, v28, s[36:37] sc1")
        A("s_mov_b64 exec, -1")

    def load_weights(self):
        A = self.A; l = "v0"
        A("s_load_dwordx4 s[56:59], s[0:1], 16"); A("s_load_dwordx4 s[60:63], s[0:1], 32")
        A(f"v_lshrrev_b32 v24, 4, {l}")
        A(f"v_and_b32 v25, 15, {l}"); A("v_lshlrev_b32 v26, 1, v24"); A("v_xor_b32 v25, v25, v26"); A("v_lshlrev_b32 v25, 4, v25")
        A("v_lshlrev_b32 v24, 13, v24"); A("v_add_u32 v24, v24, v25")
        A(f"s_lshl_b32 s34, s{sW}, 17"); A(f"s_lshl_b32 s35, s{sH}, 8"); A("s_add_u32 s34, s34, s35")
        A("v_add_u32 v24, s34, v24"); A("v_xor_b32 v25, 128, v24")
        A(f"v_lshrrev_b32 v26, 4, {l}"); A(f"v_bfe_u32 v27, {l}, 2, 2"); A(f"v_and_b32 v28, 3, {l}")
        A("v_lshlrev_b32 v29, 3, v26"); A("v_add_u32 v29, v29, v27"); A("v_lshlrev_b32 v29, 8, v29")
        A("v_lshrrev_b32 v30, 1, v28")
        A("v_lshlrev_b32 v31, 1, v27"); A("v_and_b32 v32, 1, v26"); A("v_lshlrev_b32 v32, 3, v32"); A("v_add_u32 v31, v31, v32")
        A(f"s_lshl_b32 s34, s{sW}, 2"); A("v_add_u32 v30, s34, v30"); A("v_xor_b32 v30, v30, v31")
        A("v_lshlrev_b32 v30, 4, v30"); A("v_add_u32 v29, v29, v30")
        A("v_and_b32 v32, 1, v28"); A("v_lshlrev_b32 v32, 3, v32"); A("v_add_u32 v29, v29, v32")
        A(f"v_add_u32 v38, {L_WO}, v29"); A("v_xor_b32 v39, 32, v29"); A(f"v_add_u32 v39, {L_WO}, v39")
        A("v_add_u32 v36, 0x10000, v38"); A("v_add_u32 v37, 0x10000, v39")
        A("v_lshrrev_b32 v33, 1, v26"); A("v_lshlrev_b32 v33, 3, v33"); A("v_and_b32 v34, 1, v26"); A("v_lshlrev_b32 v34, 2, v34"); A("v_add_u32 v33, v33, v34")
        A("v_and_b32 v34, 1, v27"); A("v_add_u32 v33, v33, v34"); A("v_lshlrev_b32 v33, 10, v33"); A("v_add_u32 v33, v33, v32")
        A(f"s_lshl_b32 s34, s{sW}, 8"); A(f"s_add_u32 s34, s34, {L_WO}"); A("v_add_u32 v33, s34, v33")
        A("v_lshrrev_b32 v34, 1, v27"); A("v_lshlrev_b32 v34, 1, v34"); A("v_lshrrev_b32 v35, 1, v28"); A("v_add_u32 v34, v34, v35")
        A("v_and_b32 v35, 1, v27"); A("v_lshlrev_b32 v35, 1, v35"); A("v_lshrrev_b32 v40, 1, v26"); A("v_and_b32 v40, 1, v40"); A("v_lshlrev_b32 v40, 3, v40")
        A("v_add_u32 v35, v35, v40"); A("v_xor_b32 v34, v34, v35")
        A("s_waitcnt lgkmcnt(0)")
        def dma_qkv(c):
            mat, t = divmod(c, 8); slot = c % 8; base = 56 + 2*mat
            for i in range(4):
                off = (64*t + 4*i) * 8192
                A(f"s_add_u32 s36, s{base}, {off}"); A(f"s_addc_u32 s37, s{base+1}, 0")
                A(f"s_lshl_b32 s34, s{sW}, 12"); A(f"s_add_u32 m0, s34, {L_WO + slot*16384 + i*1024}")
                A(f"global_load_lds_dwordx4 v{24 + (i >> 1)}, s[36:37]")
        def dma_wo(slot):
            for i in range(4):
                A(f"s_lshr_b32 s34, s{sW}, 1"); A("s_lshl_b32 s34, s34, 3"); A(f"s_add_u32 s34, s34, {2*i}")
                A(f"v_xor_b32 v35, s34, {l}"); A("v_lshlrev_b32 v35, 4, v35")
                A(f"s_lshl_b32 s34, s{sH}, 17"); A(f"s_lshl_b32 s35, s{sW}, 12"); A("s_add_u32 s34, s34, s35")
                A(f"s_add_u32 s34, s34, {(16*slot + i)*1024}")
                A("s_add_u32 s36, s62, s34"); A("s_addc_u32 s37, s63, 0")
                A(f"s_lshl_b32 s34, s{sW}, 12"); A(f"s_add_u32 m0, s34, {L_WO + slot*16384 + i*1024}")
                A("global_load_lds_dwordx4 v35, s[36:37]")
        for c in range(8): dma_qkv(c)
        for c in range(24):
            mat, t = divmod(c, 8); slot = c % 8
            A("s_waitcnt vmcnt(28)"); A("s_barrier")
            if c == 0:
                L2 = A.newlabel("RC")
                A(f"s_cmp_lg_u32 s{sW}, 0"); A(f"s_cbranch_scc1 {L2}")
                A("v_mov_b32 v41, 0"); A("v_mov_b32 v42, s90"); A("s_mov_b64 exec, 1")
                A(f"global_atomic_add v41, v42, {sp(sDBG)} offset:{D_ROLL*4}")
                A("s_mov_b64 exec, -1")
                A.label(L2)
            for X in range(2):
                for q4 in range(4):
                    roff = [0, 4, 32, 36][q4] * 256
                    ridx = (X*8 + t)*8 + 2*q4
                    d = ar(ridx, 2) if mat == 0 else (ar(128 + ridx, 2) if mat == 1 else r(WV + ridx, 2))
                    so = slot*16384 + roff
                    if so < 65536: A(f"ds_read_b64_tr_b16 {d}, v{38+X} offset:{so}")
                    else: A(f"ds_read_b64_tr_b16 {d}, v{36+X} offset:{so-65536}")
            A("s_waitcnt lgkmcnt(0)"); A("s_barrier")
            if c + 8 < 24: dma_qkv(c + 8)
            else: dma_wo(slot)
        for hb in range(2):
            A("s_waitcnt vmcnt(16)" if hb == 0 else "s_waitcnt vmcnt(0)"); A("s_barrier")
            for dl in range(4):
                for u1 in range(2):
                    A(f"v_xor_b32 v35, {(4*dl) ^ (4*u1)}, v34"); A("v_lshlrev_b32 v35, 4, v35"); A("v_add_u32 v35, v35, v33")
                    if hb: A("v_add_u32 v35, 0x10000, v35")
                    for tl in range(2):
                        for u2 in range(2):
                            u = 2*u2 + u1
                            dst = 48 + (dl*2 + tl)*8 + 2*u
                            A(f"ds_read_b64_tr_b16 {r(dst, 2)}, v35 offset:{tl*32768 + u2*16384 + u1*2048}")
            A("s_waitcnt lgkmcnt(0)"); A("s_barrier")
            b = vWoA if hb == 0 else vWoB
            for st in range(8):
                for half in range(2):
                    A(f"ds_write_b128 {r(b)}, {r(48 + st*8 + 4*half, 4)} offset:{st*2048 + half*1024}")
            A("s_waitcnt lgkmcnt(0)")

    def dma_k(self):
        A = self.A
        A(f"s_lshl_b32 s34, s{sW}, 11"); A(f"s_add_u32 m0, s34, {L_KX}")
        A(f"global_load_lds_dwordx4 {r(vAG)}, {sp(sKX)}"); A(f"global_load_lds_dwordx4 {r(vAG)}, {sp(sKX)} offset:1024 sc1")
        A(f"s_add_u32 s{sKX}, s{sKX}, 0x40000"); A(f"s_addc_u32 s{sKX+1}, s{sKX+1}, 0")
    def dma_v(self):
        A = self.A
        A(f"s_lshl_b32 s34, s{sW}, 11"); A(f"s_add_u32 m0, s34, {L_VX}")
        A(f"global_load_lds_dwordx4 {r(vAG)}, {sp(sVX)}"); A(f"global_load_lds_dwordx4 {r(vAG)}, {sp(sVX)} offset:1024")
        A(f"s_add_u32 s{sVX}, s{sVX}, 0x40000"); A(f"s_addc_u32 s{sVX+1}, s{sVX+1}, 0")

    def preload_mem0(self):
        A = self.A
        A("s_load_dwordx2 s[36:37], s[0:1], 8"); A("s_waitcnt lgkmcnt(0)")
        A(f"s_mov_b64 exec, {sp(sMMSK)}")
        A("global_load_dword v126, v127, s[36:37]")
        A("s_mov_b64 exec, -1")
    def publish_mem0(self):
        A = self.A
        A(f"s_mov_b64 exec, {sp(sMMSK)}")
        A(f"global_store_dword {r(vMst)}, v126, {sp(sMb)}")
        if self.hist: A(f"global_store_dword {r(vMst)}, v126, {sp(sHIST)}")
        A("s_mov_b64 exec, -1")

    def salu_step(self):
        L = []; A = L.append
        A(f"s_and_b32 s34, s{sS}, 1"); A("s_lshl_b32 s34, s34, 18"); A(f"s_add_u32 s34, s34, {WS_PBUF}")
        A(f"s_add_u32 s{sPst}, s{sWS}, s34"); A(f"s_addc_u32 s{sPst+1}, s{sWS+1}, 0")
        A(f"s_add_u32 s24, s{sPst}, 32768"); A(f"s_addc_u32 s25, s{sPst+1}, 0")
        A(f"s_bfe_u32 s{sTAG}, s{sS}, 0x10001")
        A(f"s_add_u32 s34, s{sS}, 1"); A("s_and_b32 s35, s34, 3"); A("s_lshl_b32 s35, s35, 13")
        A(f"s_add_u32 s{sMn}, s{sMb}, s35"); A(f"s_addc_u32 s{sMn+1}, s{sMb+1}, 0")
        A("s_xor_b32 s35, s35, 0x4000")
        A(f"s_add_u32 s{sMz}, s{sMb}, s35"); A(f"s_addc_u32 s{sMz+1}, s{sMb+1}, 0")
        if self.hist:
            A("s_lshl_b32 s34, s34, 13"); A(f"s_add_u32 s{sHn}, s{sHIST}, s34"); A(f"s_addc_u32 s{sHn+1}, s{sHIST+1}, 0")
        A(f"s_lshl_b32 s34, s{sS}, 5"); A(f"s_add_u32 s34, s34, s{sH}")
        A("s_lshl_b32 s35, s34, 11"); A(f"s_add_u32 s35, s35, {WS_EK}"); A(f"s_add_u32 s{sEK}, s{sWS}, s35"); A(f"s_addc_u32 s{sEK+1}, s{sWS+1}, 0")
        A("s_lshl_b32 s35, s34, 13"); A(f"s_add_u32 s35, s35, {WS_EV}"); A(f"s_add_u32 s{sEV}, s{sWS}, s35"); A(f"s_addc_u32 s{sEV+1}, s{sWS+1}, 0")
        A(f"s_lshl_b32 s34, s{sS}, 6"); A(f"s_add_u32 s35, s34, {cnt_off(C_EXP) - 64}")
        A(f"s_cmp_eq_u32 s{sS}, 0"); A("s_cselect_b32 s35, 0x7000, s35")
        A(f"s_add_u32 s{sEXC}, s{sWS}, s35"); A(f"s_addc_u32 s{sEXC+1}, s{sWS+1}, 0")
        return L
    def shadow_prep(self):
        A = self.A
        for i in range(0, 16, 2): A(f"v_mov_b64 {r(AQ+i,2)}, 0")
        A(f"v_mov_b32 {r(SX)}, -1")

    def ag_poll_m(self, P="L"):
        A = self.A; b = Q; dep = self.ag_depth
        def issue():
            A(f"global_load_dwordx4 {r(b,4)}, {r(vAG)}, {sp(sMc)} sc1")
            A(f"global_load_dwordx4 {r(b+4,4)}, {r(vAG)}, {sp(sMc)} offset:1024 sc1")
        def check():
            A(f"v_max3_u32 {r(T0r)}, {r(b)}, {r(b+1)}, {r(b+2)}"); A(f"v_max3_u32 {r(T1r)}, {r(b+3)}, {r(b+4)}, {r(b+5)}")
            A(f"v_max3_u32 {r(T0r)}, {r(T0r)}, {r(b+6)}, {r(b+7)}"); A(f"v_max_u32 {r(T0r)}, {r(T0r)}, {r(T1r)}")
            A(f"v_cmp_eq_u32 vcc, -1, {r(T0r)}")
            A(f"s_cbranch_vccz {P}_agok")
            A("s_mov_b64 exec, vcc")
            issue()
            A(f"s_add_u32 s{sNAG}, s{sNAG}, 1")
        self.stamp(0)
        A(f"s_mov_b32 s{sCNT}, 0")
        self.shadow_prep()
        for i in range(self.ag_delay): A("s_nop 15")
        for k in range(dep):
            issue()
            if k < dep-1:
                for i in range(self.ag_gap): A("s_nop 15")
        A(f"global_store_dwordx4 {r(vAG)}, {r(SX,4)}, {sp(sPz)}"); A(f"global_store_dwordx4 {r(vAG)}, {r(SX,4)}, {sp(sPz)} offset:1024")
        A(f"s_mov_b64 exec, {sp(sMMSK)}"); A(f"global_store_dword {r(vMst)}, {r(SX)}, {sp(sMz)}"); A("s_mov_b64 exec, -1")
        for k in range(dep):
            A(f"s_waitcnt vmcnt({2*(dep-1) + 3})"); check()
        A.label(f"{P}_ag")
        A(f"s_waitcnt vmcnt({2*(dep-1)})"); check()
        A(f"s_add_u32 s{sCNT}, s{sCNT}, 1")
        A(f"s_cmp_lt_u32 s{sCNT}, 6000"); A(f"s_cbranch_scc1 {P}_ag")
        A(f"s_mov_b32 s{sFAIL}, 1"); A("s_waitcnt vmcnt(0)")
        A.label(f"{P}_agok")
        A("s_mov_b64 exec, -1")
        A(f"ds_write_b128 {r(vAG)}, {r(b,4)}"); A(f"ds_write_b128 {r(vAG)}, {r(b+4,4)} offset:1024")
        self.stamp(1)
        A("s_waitcnt lgkmcnt(0)")
        A("s_barrier")

    def ag_poll(self, P="L"):
        if self.nocomm or self.no_ag:
            A = self.A
            self.stamp(0)
            A(f"ds_write_b128 {r(vAG)}, {r(WV,4)}"); A(f"ds_write_b128 {r(vAG)}, {r(WV+4,4)} offset:1024")
            self.stamp(1); A("s_waitcnt lgkmcnt(0)"); A("s_barrier"); return
        if self.mpoll: return self.ag_poll_m(P)
        A = self.A
        n = self.ag_sets
        regs = [Q, Q+8, K, K+8][:n]
        def issue(b):
            A(f"global_load_dwordx4 {r(b,4)}, {r(vAG)}, {sp(sMc)} sc1")
            A(f"global_load_dwordx4 {r(b+4,4)}, {r(vAG)}, {sp(sMc)} offset:1024 sc1")
        def check(b):
            A(f"v_max3_u32 {r(T0r)}, {r(b)}, {r(b+1)}, {r(b+2)}"); A(f"v_max3_u32 {r(T1r)}, {r(b+3)}, {r(b+4)}, {r(b+5)}")
            A(f"ds_write_b128 {r(vAG)}, {r(b,4)}")
            A(f"v_max3_u32 {r(T0r)}, {r(T0r)}, {r(b+6)}, {r(b+7)}"); A(f"v_max_u32 {r(T0r)}, {r(T0r)}, {r(T1r)}")
            A(f"ds_write_b128 {r(vAG)}, {r(b+4,4)} offset:1024")
            A(f"v_cmp_eq_u32 vcc, -1, {r(T0r)}")
            A(f"s_cbranch_vccz {P}_agok")
            issue(b)
            A(f"s_add_u32 s{sNAG}, s{sNAG}, 1")
        self.stamp(0)
        A(f"s_mov_b32 s{sCNT}, 0")
        stv = self.exports and self.stash_v
        if stv:
            A(f"ds_read_b128 {r(OX,4)}, {r(vAG)}")
            A(f"s_mov_b32 s{sEVp}, s{sEV}"); A(f"s_mov_b32 s{sEVp+1}, s{sEV+1}")
        if not self.early_shadow: self.shadow_prep()
        for i in range(self.ag_delay): A("s_nop 15")
        for k, b in enumerate(regs):
            issue(b)
            if k < n-1:
                for i in range(self.ag_gap): A("s_nop 15")
        nres = 0
        if self.ag_reset:
            if not self.ptag:
                A(f"global_store_dwordx4 {r(vAG)}, {r(SX,4)}, {sp(sPz)}"); A(f"global_store_dwordx4 {r(vAG)}, {r(SX,4)}, {sp(sPz)} offset:1024")
            A(f"s_mov_b64 exec, {sp(sMMSK)}"); A(f"global_store_dword {r(vMst)}, {r(SX)}, {sp(sMz)}"); A("s_mov_b64 exec, -1")
            nres = 1 if self.ptag else 3
            if stv:
                A("s_waitcnt lgkmcnt(0)"); A(f"global_store_dwordx4 {r(vAG)}, {r(OX,4)}, {sp(sEVp)} sc1"); nres = 4
            for k, b in enumerate(regs):
                A(f"s_waitcnt vmcnt({2*(n-1) + nres})"); check(b)
        A.label(f"{P}_ag")
        for k, b in enumerate(regs):
            A(f"s_waitcnt vmcnt({2*(n-1)})"); check(b)
        A(f"s_add_u32 s{sCNT}, s{sCNT}, 1")
        A(f"s_cmp_lt_u32 s{sCNT}, 3000"); A(f"s_cbranch_scc1 {P}_ag")
        A(f"s_mov_b32 s{sFAIL}, 1"); A("s_waitcnt vmcnt(0)")
        A.label(f"{P}_agok")
        self.stamp(1)
        A("s_waitcnt lgkmcnt(0)")
        A("s_barrier")

    def exp_flag(self):
        return [f"s_mov_b64 exec, {sp(sXM)}", f"global_atomic_add {r(vL16)}, {r(vIDX)}, {sp(sEXC)}", "s_mov_b64 exec, -1"]

    def kv_fast(self):
        L = self.A.newlabel("KVR")
        self.kv_ret.append(L)
        return [f"s_cmp_ge_u32 s{sS}, s{sKVOK}", f"s_cbranch_scc1 KVSLOW", f"KVRET:"]
    def sm_slow_code(self):
        A = self.A; mx, t1 = T0r, T1r
        A.label("SMSLOW")
        A(f"v_max3_f32 {r(mx)}, {r(SX)}, {r(SX+1)}, {r(SX+2)}"); A(f"v_max3_f32 {r(t1)}, {r(SX+3)}, {r(SX+4)}, {r(SX+5)}")
        A(f"v_max3_f32 {r(mx)}, {r(mx)}, {r(SX+6)}, {r(SX+7)}"); A(f"v_max3_f32 {r(t1)}, {r(t1)}, {r(SM)}, {r(SM+1)}")
        A(f"v_max3_f32 {r(mx)}, {r(mx)}, {r(SM+2)}, {r(SM+3)}"); A(f"v_max_f32 {r(mx)}, {r(mx)}, {r(t1)}")
        A(f"v_mov_b32 {r(t1)}, {r(mx)}"); A(f"v_permlane16_swap_b32 {r(mx)}, {r(t1)}"); A(f"v_max_f32 {r(mx)}, {r(mx)}, {r(t1)}")
        A(f"v_mov_b32 {r(t1)}, {r(mx)}"); A(f"v_permlane32_swap_b32 {r(mx)}, {r(t1)}"); A(f"v_max_f32 {r(mx)}, {r(mx)}, {r(t1)}")
        for b in list(range(SX, SX+8)) + list(range(SM, SM+4)): A(f"v_sub_f32 {r(b)}, {r(b)}, {r(mx)}")
        A("s_nop 1")
        A("s_branch SMRET")

    def kv_slow_code(self, lab="KVSLOW", ret="KVRET", need_off=0):
        A = self.A
        A.label(lab)
        A("s_mov_b32 s35, 0")
        A.label(lab + "_l")
        A(f"v_lshlrev_b32 {r(T1r)}, 2, {r(vL16)}")
        A(f"global_load_dword {r(T0r)}, {r(T1r)}, {sp(sKVC)} sc1"); A("s_waitcnt vmcnt(0)")
        A(f"v_cmp_gt_u32 vcc, 32, {r(T0r)}")
        A("s_nop 3"); A("s_ff1_i32_b64 s34, vcc")
        A("s_cmp_eq_u32 s34, -1"); A("s_cselect_b32 s34, 64, s34")
        A(f"s_sub_u32 s{sKVOK}, s34, 1")
        A(f"s_cmp_lt_i32 s{sS}, s{sKVOK}"); A(f"s_cbranch_scc1 {ret}")
        A("s_sleep 4"); A("s_add_u32 s35, s35, 1"); A("s_cmp_lt_u32 s35, 60000"); A(f"s_cbranch_scc1 {lab}_l")
        A(f"s_mov_b32 s{sKVOK}, 64"); A(f"s_branch {ret}")

    def kv_check(self):
        A = self.A
        L = A.newlabel("KV"); E = A.newlabel("KVE")
        out = [f"v_readlane_b32 s34, {r(vMst)}, 2", "s_cmp_ge_u32 s34, 32", f"s_cbranch_scc1 {E}", "s_mov_b32 s35, 0", "s_mov_b64 exec, 4", f"{L}:",
               f"global_load_dword {r(vMst)}, {r(vL16)}, {sp(sKVC)} offset:-96 sc1", "s_waitcnt vmcnt(0)",
               f"v_readlane_b32 s34, {r(vMst)}, 2", "s_cmp_ge_u32 s34, 32", f"s_cbranch_scc1 {E}_x", "s_sleep 2",
               "s_add_u32 s35, s35, 1", "s_cmp_lt_u32 s35, 60000", f"s_cbranch_scc1 {L}", f"{E}_x:", "s_mov_b64 exec, -1", f"{E}:"]
        return out
    def kv_prefetch(self):
        return ["s_mov_b64 exec, 4", f"global_load_dword {r(vMst)}, {r(vL16)}, {sp(sKVC)} offset:-32 sc1", "s_mov_b64 exec, -1"]

    def weave(self, main, fill):
        A = self.A
        for x in fill.get(-1, []): A(x)
        for i, m in enumerate(main):
            A(m)
            for x in fill.get(i, []): A(x)
        for k in fill:
            assert k < len(main), (k, len(main))

    def step(self):
        A = self.A
        SMF = "v_smfmac_f32_16x16x64_bf16"; MF = "v_mfma_f32_16x16x32_bf16"; MF16 = "v_mfma_f32_16x16x16_bf16"
        st = lambda i: ([f"s_memtime s[{sST+2*i}:{sST+2*i+1}]"] if self.stamps else [])
        from collections import defaultdict
        self.stamp(2)
        kx0 = [K, K+4, K+8, K+12]; kx1 = [OX, OX+4, LX, SM]
        qs = [f"{SMF} {r(AQ+4*X,4)}, {r(M+4*t,4)}, {ar((X*8+t)*8, 8)}, {r(vIDX)}" for t in range(8) for X in range(2)]
        F = defaultdict(list)
        kxr = [f"ds_read_b128 {r(kx0[t],4)}, {r(vL16)} offset:{L_KX + t*1024}" for t in range(4)] + \
              [f"ds_read_b128 {r(kx1[t],4)}, {r(vL16)} offset:{L_KX + (4+t)*1024}" for t in range(4)]
        mr = [f"ds_read_b128 {r(M+4*t,4)}, {r(vL16)} offset:{L_STG + t*1024}" for t in range(8)]
        if not self.pipe_t0:
            for x in mr: A(x)
            F[-1].append("s_waitcnt lgkmcnt(7)")
            nk = 0
            for t in range(1, 8):
                slot = 2*t - 1
                F[slot].append(f"s_waitcnt lgkmcnt({min(15, 7 - t + nk)})")
                if t >= 4:
                    F[slot].append(kxr[nk]); nk += 1
                    F[slot+1 if slot+1 < 16 else slot].append(kxr[nk]); nk += 1
        else:
            LA = 3
            for x in mr[:LA]: A(x)
            seq = mr[LA:] + kxr
            F[-1].append(f"s_waitcnt lgkmcnt({LA-1})")
            issued = LA
            for sl in range(16):
                if sl < len(seq): F[sl].append(seq[sl]); issued += 1
                if sl % 2 == 1 and sl < 15:
                    t = (sl + 1)//2
                    F[sl].append(f"s_waitcnt lgkmcnt({min(15, issued - 1 - t)})")
            nk = 8
        if not self.ag_reset:
            F[0].append(f"global_store_dwordx4 {r(vAG)}, {r(SX,4)}, {sp(sPz)}")
            F[2].append(f"global_store_dwordx4 {r(vAG)}, {r(SX,4)}, {sp(sPz)} offset:1024")
            F[4] += [f"s_mov_b64 exec, {sp(sMMSK)}", f"global_store_dword {r(vMst)}, {r(SX)}, {sp(sMz)}", "s_mov_b64 exec, -1"]
            F[6] += ["s_waitcnt vmcnt(3)"]

        sl = self.salu_step()
        chunks = []; cur = []
        for x in sl:
            cur.append(x)
            if len(cur) >= 2 and not (x.startswith("s_add_u32") or x.startswith("s_cmp")): chunks.append(cur); cur = []
        if cur: chunks.append(cur)
        qslots = [13, 14, 15]
        for i, sl_ in enumerate(qslots): F[sl_] += chunks[i]
        self.kchunks = chunks[len(qslots):]
        self.weave(qs, F)
        assert nk == 8
        self.stamp(3)
        BAR = self.bar
        ks = [f"{SMF} {r(AK+4*X,4)}, {r(M+4*t,4)}, {ar(128+(X*8+t)*8, 8)}, {r(vIDX)}" for t in range(8) for X in range(2)]
        def post(acc, lds_off):
            return [f"v_permlane32_swap_b32 {r(acc+j)}, {r(acc+4+j)}" for j in range(4)] + \
                   [f"v_pk_add_f32 {r(acc,2)}, {r(acc,2)}, {r(acc+4,2)}", f"v_pk_add_f32 {r(acc+2,2)}, {r(acc+2,2)}, {r(acc+6,2)}",
                    f"v_cvt_pk_bf16_f32 {r(acc)}, {r(acc)}, {r(acc+1)}", f"v_cvt_pk_bf16_f32 {r(acc+1)}, {r(acc+2)}, {r(acc+3)}",
                    f"ds_write_b64 {r(vQW)}, {r(acc,2)} offset:{lds_off}"]
        F = defaultdict(list)
        F[1] += post(AQ, L_QB)
        F[8] += ["s_waitcnt vmcnt(0)"]
        if self.kbar:
            F[0] += ["s_waitcnt lgkmcnt(0)", "s_barrier"]
            if self.kvwait: F[0] += self.kv_fast()
            F[9] += [f"s_mov_b32 m0, s{sM0K}", f"global_load_lds_dwordx4 {r(vAG)}, {sp(sKX)} sc1"]
            F[13] += [f"global_load_lds_dwordx4 {r(vAG)}, {sp(sKX)} offset:1024 sc1", f"s_add_u32 s{sKX}, s{sKX}, 0x40000", f"s_addc_u32 s{sKX+1}, s{sKX+1}, 0"]
            if self.dmalat: F[13] += st(4) + ["s_waitcnt vmcnt(0)"] + st(6)
        kslots = [2, 3, 4, 5, 6, 7, 8, 10, 12, 14]
        assert len(self.kchunks) <= len(kslots), len(self.kchunks)
        for i, cch in enumerate(self.kchunks): F[kslots[i]] += cch
        for j in range(0, 8, 2): F[9 + j].append(f"v_mov_b64 {r(AQ+j,2)}, 0")
        self.weave(ks, F)
        self.stamp(5)
        vs = [f"{SMF} {r(AQ+4*X,4)}, {r(M+4*t,4)}, {r(WV+(X*8+t)*8, 8)}, {r(vIDX)}" for t in range(8) for X in range(2)]
        NV1 = self.nv1
        qtr = [f"ds_read_b64_tr_b16 {r(Q+4*t+2*hf,2)}, {r(vQR)} offset:{L_QB + t*512 + hf*256}" for t in range(4) for hf in range(2)]
        KF = M + 8
        ktr = [f"ds_read_b64_tr_b16 {r(KF+4*t+2*hf,2)}, {r(vQR)} offset:{L_KB + t*512 + hf*256}" for t in range(4) for hf in range(2)]
        F = defaultdict(list)
        kp = post(AK, L_KB)
        F[1] += kp
        if self.exports: F[2] += [f"global_store_dwordx2 {r(vQW)}, {r(AK,2)}, {sp(sEK)} sc1"]
        F[BAR] += ["s_waitcnt lgkmcnt(0)", "s_barrier"] + ([] if self.dmalat else st(6))
        if self.exports: F[BAR+1] += self.exp_flag()
        for i in range(4): F[BAR+i] += qtr[2*i:2*i+2]
        if self.kvwait and not self.kbar: F[BAR] += self.kv_fast()
        if not self.kbar: F[BAR+1] += [f"s_mov_b32 m0, s{sM0K}", f"global_load_lds_dwordx4 {r(vAG)}, {sp(sKX)} sc1"]
        if self.vearly:
            F[3] += [f"ds_read_b128 {r(M,4)}, {r(vAG)} offset:{L_VX}"]
            F[4] += [f"ds_read_b128 {r(M+4,4)}, {r(vAG)} offset:{L_VX + 1024}"]
            assert BAR >= 5
            F[BAR+1] += [f"s_mov_b32 m0, s{sM0V}", f"global_load_lds_dwordx4 {r(vAG)}, {sp(sVX)} sc1"]
            F[BAR+5] += [f"global_load_lds_dwordx4 {r(vAG)}, {sp(sVX)} offset:1024 sc1", f"s_add_u32 s{sVX}, s{sVX}, 0x40000", f"s_addc_u32 s{sVX+1}, s{sVX+1}, 0"]
        else:
            F[BAR+2] += [f"ds_read_b128 {r(M,4)}, {r(vAG)} offset:{L_VX}"]
            F[BAR+3] += [f"ds_read_b128 {r(M+4,4)}, {r(vAG)} offset:{L_VX + 1024}"]
        if not self.kbar: F[BAR+5] += [f"global_load_lds_dwordx4 {r(vAG)}, {sp(sKX)} offset:1024 sc1", f"s_add_u32 s{sKX}, s{sKX}, 0x40000", f"s_addc_u32 s{sKX+1}, s{sKX+1}, 0"]
        self.weave(vs[:NV1], F)
        assert NV1 >= 12
        for x in ktr: A(x)
        sx = [f"{MF} {r(SX+4*X,4)}, {r((kx0 if X == 0 else kx1)[t],4)}, {r(Q+4*t,4)}, {'0' if t == 0 else r(SX+4*X,4)}" for t in range(4) for X in range(2)]
        A("s_waitcnt lgkmcnt(8)")
        for x in sx: A(x)
        mx, t1 = T0r, T1r
        ab = (lambda x: f"|{x}|") if self.standin else (lambda x: x)
        pre = [f"v_max3_f32 {r(mx)}, {ab(r(SX))}, {ab(r(SX+1))}, {ab(r(SX+2))}", f"v_max3_f32 {r(t1)}, {ab(r(SX+4))}, {ab(r(SX+5))}, {ab(r(SX+6))}",
               f"v_max3_f32 {r(mx)}, {r(mx)}, {ab(r(SX+3))}, {ab(r(SX+7))}", f"v_max_f32 {r(mx)}, {r(mx)}, {r(t1)}"]
        A("s_waitcnt lgkmcnt(0)")
        for t in range(4):
            A(f"{MF} {r(SM,4)}, {r(KF+4*t,4)}, {r(Q+4*t,4)}, {'0' if t == 0 else r(SM,4)}")
            if t >= 1: A(pre[t-1])
        A(pre[3])
        self.stamp(7)
        sets = [Q, Q+8, K, K+8, M+8, M+16, M+24, AQ, M]
        def ldset(idx, reg):
            dl, t = divmod(idx, 4); b = vWoA if t < 2 else vWoB; o = (dl*2 + (t & 1))*2048
            return [f"ds_read_b128 {r(reg,4)}, {r(b)} offset:{o}", f"ds_read_b128 {r(reg+4,4)}, {r(b)} offset:{o+1024}"]
        F = defaultdict(list)
        rd = ldset(0, sets[0]) + ldset(1, sets[1])
        n2 = 16 - NV1
        if self.vearly: F[0] += [rd[0]]
        else:
            F[0] += [f"s_mov_b32 m0, s{sM0V}", rd[0]]
            F[0] += [f"global_load_lds_dwordx4 {r(vAG)}, {sp(sVX)} sc1"]
        for i in range(1, 4): F[min(i, n2-1)].append(rd[i])
        self.weave(vs[NV1:], F)
        mx, t1 = T0r, T1r
        rd = ldset(2, sets[2]) + ldset(3, sets[3]) + ldset(4, sets[4]) + ldset(5, sets[5]) + ldset(6, sets[6])
        vc = [f"v_cvt_pk_bf16_f32 {r(AK+2*X+h)}, {r(AQ+4*X+2*h)}, {r(AQ+4*X+2*h+1)}" for X in range(2) for h in range(2)]
        vdma2 = [f"global_load_lds_dwordx4 {r(vAG)}, {sp(sVX)} offset:1024 sc1", f"s_add_u32 s{sVX}, s{sVX}, 0x40000", f"s_addc_u32 s{sVX+1}, s{sVX+1}, 0"]
        ri = 0
        if self.standin:
            ab = lambda x: f"|{x}|"
            A(f"v_max3_f32 {r(mx)}, {r(mx)}, {ab(r(SM))}, {ab(r(SM+1))}"); A(f"v_max3_f32 {r(mx)}, {r(mx)}, {ab(r(SM+2))}, {ab(r(SM+3))}")
            A(f"v_cmp_lt_f32 vcc, s{sTHR}, {r(mx)}")
            for b in (SX, SX+2, SX+4, SX+6, SM, SM+2): A(f"v_pk_mul_f32 {r(b,2)}, {r(b,2)}, {sp(sC)}")
            if not self.vearly:
                for x in vdma2: A(x)
            A("s_cbranch_vccnz SMSLOW"); A.label("SMRET")
            for x in vc: A(x)
            if self.exports: A(f"global_store_dwordx4 {r(vAG)}, {r(AK,4)}, {sp(sEV)} sc1")
        else:
            A(f"v_max3_f32 {r(mx)}, {r(mx)}, {r(SM)}, {r(SM+1)}"); A(f"v_max3_f32 {r(mx)}, {r(mx)}, {r(SM+2)}, {r(SM+3)}")
            A(f"v_mov_b32 {r(t1)}, {r(mx)}")
            if not self.vearly:
                for x in vdma2: A(x)
            A(f"v_permlane16_swap_b32 {r(mx)}, {r(t1)}"); A(f"v_max_f32 {r(mx)}, {r(mx)}, {r(t1)}")
            A(f"v_mov_b32 {r(t1)}, {r(mx)}"); A(rd[0]); A(rd[1])
            A(f"v_permlane32_swap_b32 {r(mx)}, {r(t1)}"); A(rd[2]); A(f"v_max_f32 {r(mx)}, {r(mx)}, {r(t1)}")
            ri = 3
            for x in vc: A(x)
            if self.exports: A(f"global_store_dwordx4 {r(vAG)}, {r(AK,4)}, {sp(sEV)} sc1")
            A(f"v_mul_f32 {r(mx)}, s{sC}, {r(mx)}")
            def pkf(b): return f"v_pk_fma_f32 {r(b,2)}, {r(b,2)}, {sp(sC)}, {r(mx,2)} op_sel_hi:[1,1,0] neg_lo:[0,0,1] neg_hi:[0,0,1]"
            for b in (SX, SX+2, SX+4, SX+6, SM, SM+2): A(pkf(b))
        for i in range(8):
            A(f"v_exp_f32 {r(SX+i)}, {r(SX+i)}")
            if ri < len(rd): A(rd[ri]); ri += 1
        if not self.pvearly:
            for i in range(4): A(f"v_exp_f32 {r(SM+i)}, {r(SM+i)}")
        for i in range(4): A(f"v_cvt_pk_bf16_f32 {r(SX+i)}, {r(SX+2*i)}, {r(SX+2*i+1)}")
        while ri < len(rd): A(rd[ri]); ri += 1
        if not self.pvearly:
            for i in range(2): A(f"v_cvt_pk_bf16_f32 {r(SM+i)}, {r(SM+2*i)}, {r(SM+2*i+1)}")
        self.stamp(8)
        A("s_waitcnt lgkmcnt(14)")
        A(f"{MF} {r(LX,4)}, {r(vONE,4)}, {r(SX,4)}, 0")
        if self.pvearly: A(f"v_exp_f32 {r(SM)}, {r(SM)}")
        A(f"{MF} {r(OX,4)}, {r(M,4)}, {r(SX,4)}, 0")
        if self.pvearly: A(f"v_exp_f32 {r(SM+1)}, {r(SM+1)}")
        A(f"{MF} {r(OX+4,4)}, {r(M+4,4)}, {r(SX,4)}, 0")
        if self.pvearly:
            A(f"v_exp_f32 {r(SM+2)}, {r(SM+2)}"); A(f"v_exp_f32 {r(SM+3)}, {r(SM+3)}")
            for i in range(2): A(f"v_cvt_pk_bf16_f32 {r(SM+i)}, {r(SM+2*i)}, {r(SM+2*i+1)}")
        A(f"{MF16} {r(LX,4)}, {r(vHALF,2)}, {r(SM,2)}, {r(LX,4)}")
        for X in range(2): A(f"{MF16} {r(OX+4*X,4)}, {r(AK+2*X,2)}, {r(SM,2)}, {r(OX+4*X,4)}")
        rd = ldset(7, sets[7]) + ldset(8, sets[8])
        for x in rd: A(x)
        A(f"v_rcp_f32 {r(mx)}, {r(LX)}")
        for X in range(2):
            o = OX + 4*X
            A(f"v_pk_mul_f32 {r(o,2)}, {r(o,2)}, {r(mx,2)} op_sel_hi:[1,0]"); A(f"v_pk_mul_f32 {r(o+2,2)}, {r(o+2,2)}, {r(mx,2)} op_sel_hi:[1,0]")
            A(f"v_cvt_pk_bf16_f32 {r(o)}, {r(o)}, {r(o+1)}"); A(f"v_cvt_pk_bf16_f32 {r(o+1)}, {r(o+2)}, {r(o+3)}")
            A(f"ds_write_b64 {r(vOW)}, {r(o,2)} offset:{X*32}")
        self.stamp(9)
        ACC = AK
        for i in range(0, 16, 2): A(f"v_mov_b64 {r(ACC+i,2)}, 0")
        A("s_waitcnt lgkmcnt(0)"); A("s_barrier")
        self.stamp(10)
        OF = SM
        for t in range(4): A(f"ds_read_b128 {r(OF+4*t,4)}, {r(vOR)} offset:{t*64}")
        reg_of = {i: sets[i] for i in range(9)}
        main = []; F = defaultdict(list)
        issued = []
        nxt = 9
        for idx in range(16):
            dl, t = divmod(idx, 4)
            main.append(None)
        lds_out = ['o0', 'o1', 'o2', 'o3']
        def wait_for(tag):
            if tag in lds_out:
                last = max(i for i, x in enumerate(lds_out) if x == tag)
                n = len(lds_out) - 1 - last
                A(f"s_waitcnt lgkmcnt({min(n,15)})")
                del lds_out[:last+1]
        pend = []
        for idx in range(16):
            dl, t = divmod(idx, 4)
            if dl == 0: wait_for(f'o{t}')
            if idx >= 9: wait_for(f's{idx}')
            A(f"{SMF} {r(ACC+4*dl,4)}, {r(OF+4*t,4)}, {r(reg_of[idx],8)}, {r(vIDX)}")
            if nxt < 16:
                reg_of[nxt] = reg_of[idx]
                for x in ldset(nxt, reg_of[nxt]): pend.append((x, f's{nxt}'))
                nxt += 1
            n = (1 if idx >= 3 else 2) if self.wo_spread else 99
            if self.wo_spread and idx >= 8: n = 2
            for _ in range(n):
                if pend:
                    x, tg = pend.pop(0); A(x); lds_out.append(tg)
            if self.rs_var == 'C':
                a = ACC
                if idx == 5: A(f"v_cvt_pk_bf16_f32 {r(a)}, {r(a)}, {r(a+1)}")
                if idx == 6: A(f"v_cvt_pk_bf16_f32 {r(a+1)}, {r(a+2)}, {r(a+3)}")
                if idx == 9: A(f"v_cvt_pk_bf16_f32 {r(a+2)}, {r(a+4)}, {r(a+5)}")
                if idx == 10:
                    A(f"v_cvt_pk_bf16_f32 {r(a+3)}, {r(a+6)}, {r(a+7)}")
                    if self.ptag: A(f"v_bfi_b32 {r(a)}, 1, s{sTAG}, {r(a)}")
                    A(f"global_store_dwordx4 {r(vPst)}, {r(a,4)}, {sp(sPst)}")
                a = ACC + 8
                if idx == 13: A(f"v_cvt_pk_bf16_f32 {r(a)}, {r(a)}, {r(a+1)}")
                if idx == 14: A(f"v_cvt_pk_bf16_f32 {r(a+1)}, {r(a+2)}, {r(a+3)}")
            elif t == 2 and dl >= 1:
                a = ACC + 4*(dl-1)
                A(f"v_cvt_pk_bf16_f32 {r(a)}, {r(a)}, {r(a+1)}"); A(f"v_cvt_pk_bf16_f32 {r(a+1)}, {r(a+2)}, {r(a+3)}")
                A(f"global_store_dwordx2 {r(vPst)}, {r(a,2)}, {sp(sPst+2*(dl-1))}")
        assert not pend
        if self.rs_var == 'C':
            a = ACC + 8
            A(f"v_cvt_pk_bf16_f32 {r(a+2)}, {r(a+4)}, {r(a+5)}"); A(f"v_cvt_pk_bf16_f32 {r(a+3)}, {r(a+6)}, {r(a+7)}")
            if self.ptag: A(f"v_bfi_b32 {r(a)}, 1, s{sTAG}, {r(a)}")
            A(f"global_store_dwordx4 {r(vPst)}, {r(a,4)}, s[24:25]")
        else:
            a = ACC + 12
            A(f"v_cvt_pk_bf16_f32 {r(a)}, {r(a)}, {r(a+1)}"); A(f"v_cvt_pk_bf16_f32 {r(a+1)}, {r(a+2)}, {r(a+3)}")
            A(f"global_store_dwordx2 {r(vPst)}, {r(a,2)}, {sp(sPst+6)}")
        self.stamp(11)
        if self.ackstamp:
            A("s_waitcnt vmcnt(0)"); self.stamp(4)
        sRD = sPst
        if self.early_shadow:
            sRD = sPrd2
            A(f"s_mov_b32 s{sPrd2}, s{sPst}"); A(f"s_mov_b32 s{sPrd2+1}, s{sPst+1}")
            A(f"s_mov_b32 s{sMc}, s{sMn}"); A(f"s_mov_b32 s{sMc+1}, s{sMn+1}")
            if self.hist: A(f"s_mov_b32 s{sHn2}, s{sHn}"); A(f"s_mov_b32 s{sHn2+1}, s{sHn+1}")
            if self.ptag: A(f"s_mov_b32 s{sTAG+1}, s{sTAG}")
            A(f"s_add_u32 s{sS}, s{sS}, 1")
            self.shadow_prep()
        def off(i): return i*1024-4096 if self.p_layout == 0 else i*256
        n = self.rs_sets
        regs = [Q, Q+8, K, K+8][:n]
        D = M
        def issue(b):
            if self.rs_var in 'AC':
                A(f"global_load_dwordx4 {r(b,4)}, {r(vRS)}, {sp(sRD)} sc1"); A(f"global_load_dwordx4 {r(b+4,4)}, {r(vRS)}, {sp(sRD)} offset:{2048 if self.cfull else 1024} sc1")
            else:
                for i in range(8): A(f"global_load_dword {r(b+i)}, {r(vRS)}, {sp(sRD)} offset:{off(i)} sc1")
        NLD = 2 if self.rs_var in 'AC' else 8
        if self.nocomm or self.no_rs:
            A(f"{MF} {r(D,4)}, {r(vSEL,4)}, {r(WV,4)}, 0"); A(f"{MF} {r(D,4)}, {r(vSEL,4)}, {r(WV+4,4)}, {r(D,4)}")
        elif self.mpoll:
            b = Q; dep = self.rs_depth
            A(f"s_mov_b32 s{sCNT}, 0")
            for i in range(self.rs_delay): A("s_nop 15")
            for k in range(dep):
                issue(b)
                if k < dep-1:
                    for i in range(self.rs_gap): A("s_nop 15")
            A.label("L_rs")
            A(f"s_waitcnt vmcnt({NLD*(dep-1)})")
            A(f"v_max3_u32 {r(T0r)}, {r(b)}, {r(b+1)}, {r(b+2)}"); A(f"v_max3_u32 {r(T1r)}, {r(b+3)}, {r(b+4)}, {r(b+5)}")
            A(f"v_max3_u32 {r(T0r)}, {r(T0r)}, {r(b+6)}, {r(b+7)}"); A(f"v_max_u32 {r(T0r)}, {r(T0r)}, {r(T1r)}")
            A(f"v_cmp_eq_u32 vcc, -1, {r(T0r)}")
            A("s_cbranch_vccz L_rsok0")
            A("s_mov_b64 exec, vcc")
            issue(b)
            A(f"s_add_u32 s{sNRS}, s{sNRS}, 1")
            A(f"s_add_u32 s{sCNT}, s{sCNT}, 1")
            A(f"s_cmp_lt_u32 s{sCNT}, 6000"); A("s_cbranch_scc1 L_rs")
            A(f"s_mov_b32 s{sFAIL}, 2")
            A.label("L_rsok0")
            A("s_mov_b64 exec, -1")
            A(f"{MF} {r(D,4)}, {r(vSEL,4)}, {r(b,4)}, 0"); A(f"{MF} {r(D,4)}, {r(vSEL,4)}, {r(b+4,4)}, {r(D,4)}")
        else:
            A(f"s_mov_b32 s{sCNT}, 0")
            for i in range(self.rs_delay): A("s_nop 15")
            for k, b in enumerate(regs):
                issue(b)
                if k < n-1:
                    for i in range(self.rs_gap): A("s_nop 15")
            A.label("L_rs")
            for k, b in enumerate(regs):
                A(f"s_waitcnt vmcnt({NLD*(n-1)})")
                if self.ptag:
                    A(f"v_xor_b32 {r(T0r)}, s{sTAG+1}, {r(b)}"); A(f"v_xor_b32 {r(T1r)}, s{sTAG+1}, {r(b+4)}")
                    A(f"{MF} {r(D,4)}, {r(vSEL,4)}, {r(b,4)}, 0")
                    A(f"v_or_b32 {r(T0r)}, {r(T0r)}, {r(T1r)}"); A(f"v_and_b32 {r(T0r)}, 1, {r(T0r)}")
                    A(f"{MF} {r(D,4)}, {r(vSEL,4)}, {r(b+4,4)}, {r(D,4)}")
                    A(f"v_cmp_ne_u32 vcc, 0, {r(T0r)}")
                else:
                    A(f"v_max3_u32 {r(T0r)}, {r(b)}, {r(b+1)}, {r(b+2)}"); A(f"v_max3_u32 {r(T1r)}, {r(b+3)}, {r(b+4)}, {r(b+5)}")
                    A(f"{MF} {r(D,4)}, {r(vSEL,4)}, {r(b,4)}, 0")
                    A(f"v_max3_u32 {r(T0r)}, {r(T0r)}, {r(b+6)}, {r(b+7)}"); A(f"v_max_u32 {r(T0r)}, {r(T0r)}, {r(T1r)}")
                    A(f"{MF} {r(D,4)}, {r(vSEL,4)}, {r(b+4,4)}, {r(D,4)}")
                    A(f"v_cmp_eq_u32 vcc, -1, {r(T0r)}")
                A("s_cbranch_vccz L_rsok")
                issue(b)
                A(f"s_add_u32 s{sNRS}, s{sNRS}, 1")
            A(f"s_add_u32 s{sCNT}, s{sCNT}, 1")
            A(f"s_cmp_lt_u32 s{sCNT}, 2000"); A("s_cbranch_scc1 L_rs")
            A(f"s_mov_b32 s{sFAIL}, 2")
        A.label("L_rsok")
        self.stamp(12)
        if not self.early_shadow:
            A(f"s_add_u32 s{sS}, s{sS}, 1")
            A(f"s_mov_b32 s{sMc}, s{sMn}"); A(f"s_mov_b32 s{sMc+1}, s{sMn+1}")
        D = M
        if self.rs_var == 'C':
            for j in range(4): A(f"v_add_f32_dpp {r(D+j)}, {r(D+j)}, {r(D+j)} row_ror:4 row_mask:0xf bank_mask:0xf")
            for j in range(4): A(f"v_add_f32_dpp {r(D+j)}, {r(D+j)}, {r(D+j)} row_ror:8 row_mask:0xf bank_mask:0xf")
            A(f"v_cndmask_b32 {r(D)}, {r(D)}, {r(D+1)}, {sp(sHB)}"); A(f"v_cndmask_b32 {r(D+2)}, {r(D+2)}, {r(D+3)}, {sp(sHB)}")
            A(f"v_cndmask_b32 {r(D)}, {r(D)}, {r(D+2)}, {sp(sHB2)}")
            A(f"v_mov_b32_dpp {r(D+1)}, {r(D)} quad_perm:[1,1,3,3] row_mask:0xf bank_mask:0xf")
            A(f"v_cvt_pk_bf16_f32 {r(D)}, {r(D)}, {r(D+1)}")
        elif self.rs_var == 'A':
            for j in range(4): A(f"v_add_f32_dpp {r(D+j)}, {r(D+j)}, {r(D+j)} row_ror:4 row_mask:0xf bank_mask:0xf")
            for j in range(4): A(f"v_add_f32_dpp {r(D+j)}, {r(D+j)}, {r(D+j)} row_ror:8 row_mask:0xf bank_mask:0xf")
            A(f"v_permlane16_swap_b32 {r(D)}, {r(D+1)}"); A(f"v_permlane16_swap_b32 {r(D+2)}, {r(D+3)}")
            A(f"v_cvt_pk_bf16_f32 {r(D)}, {r(D)}, {r(D+1)}"); A(f"v_cvt_pk_bf16_f32 {r(D+2)}, {r(D+2)}, {r(D+3)}")
            A(f"v_cndmask_b32 {r(D)}, {r(D)}, {r(D+2)}, {sp(sODD)}")
        else:
            A(f"v_mov_b32_dpp {r(D+2)}, {r(D)} quad_perm:[2,3,2,3] row_mask:0xf bank_mask:0xf")
            A(f"v_mov_b32_dpp {r(D+3)}, {r(D+1)} quad_perm:[2,3,2,3] row_mask:0xf bank_mask:0xf")
            A(f"v_cvt_pk_bf16_f32 {r(D)}, {r(D)}, {r(D+2)}"); A(f"v_cvt_pk_bf16_f32 {r(D+1)}, {r(D+1)}, {r(D+3)}")
            A(f"v_cndmask_b32 {r(D)}, {r(D)}, {r(D+1)}, {sp(sODD)}")
        A(f"s_mov_b64 exec, {sp(sMMSK)}")
        A(f"v_min_u32 {r(D)}, -2, {r(D)}")
        A(f"global_store_dword {r(vMst)}, {r(D)}, {sp(sMc)}")
        if self.hist: A(f"global_store_dword {r(vMst)}, {r(D)}, {sp(sHn2 if self.early_shadow else sHn)}")
        A("s_mov_b64 exec, -1")
        self.stamp(13)
        if self.steplog:
            A("s_memtime s[64:65]"); A("s_memrealtime s[66:67]"); A("s_waitcnt lgkmcnt(0)")
            A(f"s_lshl_b32 s34, s{sH}, 2"); A(f"s_add_u32 s34, s34, s{sW}"); A("s_lshl_b32 s34, s34, 6"); A(f"s_add_u32 s34, s34, s{sS}"); A("s_lshl_b32 s34, s34, 4")
            A(f"s_add_u32 s34, s34, {WS_STAMP + 0x10000}")
            A(f"v_mov_b32 {r(M+4)}, s34"); A(f"v_mov_b32 {r(M+8)}, s64"); A(f"v_mov_b32 {r(M+9)}, s{sNAG}"); A(f"v_mov_b32 {r(M+10)}, s{sNRS}"); A(f"v_mov_b32 {r(M+11)}, s66")
            A("s_mov_b64 exec, 1"); A(f"global_store_dwordx4 {r(M+4)}, {r(M+8,4)}, {sp(sWS)}"); A("s_mov_b64 exec, -1")


    def tail(self):
        A = self.A
        SMF = "v_smfmac_f32_16x16x64_bf16"
        self.ag_poll("T")
        for x in self.salu_step(): A(x)
        for t in range(8): A(f"ds_read_b128 {r(M+4*t,4)}, {r(vL16)} offset:{L_STG + t*1024}")
        for x in self.exp_flag(): A(x)
        A("s_waitcnt lgkmcnt(0)")
        for t in range(8):
            for X in range(2): A(f"{SMF} {r(AK+4*X,4)}, {r(M+4*t,4)}, {ar(128+(X*8+t)*8, 8)}, {r(vIDX)}")
        for t in range(8):
            for X in range(2): A(f"{SMF} {r(AQ+4*X,4)}, {r(M+4*t,4)}, {r(WV+(X*8+t)*8, 8)}, {r(vIDX)}")
        for j in range(4): A(f"v_permlane32_swap_b32 {r(AK+j)}, {r(AK+4+j)}")
        A(f"v_pk_add_f32 {r(AK,2)}, {r(AK,2)}, {r(AK+4,2)}"); A(f"v_pk_add_f32 {r(AK+2,2)}, {r(AK+2,2)}, {r(AK+6,2)}")
        A(f"v_cvt_pk_bf16_f32 {r(AK)}, {r(AK)}, {r(AK+1)}"); A(f"v_cvt_pk_bf16_f32 {r(AK+1)}, {r(AK+2)}, {r(AK+3)}")
        A(f"global_store_dwordx2 {r(vQW)}, {r(AK,2)}, {sp(sEK)} sc1")
        for X in range(2):
            A(f"v_cvt_pk_bf16_f32 {r(SX+2*X)}, {r(AQ+4*X)}, {r(AQ+4*X+1)}"); A(f"v_cvt_pk_bf16_f32 {r(SX+2*X+1)}, {r(AQ+4*X+2)}, {r(AQ+4*X+3)}")
        A(f"global_store_dwordx4 {r(vAG)}, {r(SX,4)}, {sp(sEV)} sc1")
        A("s_waitcnt vmcnt(0)"); A("s_barrier")
        A(f"s_add_u32 s{sEXC}, s{sEXC}, 64"); A(f"s_addc_u32 s{sEXC+1}, s{sEXC+1}, 0")
        for x in self.exp_flag(): A(x)
        A("s_waitcnt vmcnt(0)")

def gen_chain(A, U, o):
    kw = dict(o.get('chain_opts', {}))
    C = Chain(A, U, **kw)
    A(f"s_mov_b32 s{sH}, s{sROLE}")
    A(f"s_cmp_eq_u32 s{sXCC}, 0"); A("s_cselect_b32 s90, 0x10001, 1")
    C.setup_consts()
    C.preload_mem0()
    C.clear_slots()
    C.load_weights()
    tl_stamp(A, o.get('tl'), 0, 1, vr=(120, 121))
    U.add64(sKVC, sWS, cnt_off(C_KV, 0))
    A(f"s_cmp_eq_u32 s{sW}, 0"); A(f"s_cselect_b32 s{sXM}, 1, 0"); A(f"s_mov_b32 s{sXM+1}, 0")
    Lw = A.newlabel("SW"); Le = A.newlabel("SWE"); Ls = A.newlabel("SWS")
    A(f"s_cmp_lg_u32 s{sW}, 0"); A(f"s_cbranch_scc1 {Ls}")
    A("v_mov_b32 v24, 0"); A("s_mov_b32 s36, 0")
    A.label(Lw)
    A(f"global_load_dword v25, v24, {sp(sDBG)} offset:{D_ROLL*4} sc1"); A(f"global_load_dword v26, v24, {sp(sDBG)} offset:{D_INIT*4} sc1")
    A(f"global_load_dword v27, v24, {sp(sKVC)} sc1"); A("s_waitcnt vmcnt(0)")
    A("v_readfirstlane_b32 s37, v25"); A("v_readfirstlane_b32 s38, v26"); A("v_readfirstlane_b32 s39, v27")
    A("s_lshr_b32 s35, s37, 16"); A("s_and_b32 s37, s37, 0xffff")
    A("s_cmp_ge_u32 s37, 32"); A("s_cselect_b32 s37, 1, 0"); A("s_cmp_ge_u32 s38, 1"); A("s_cselect_b32 s37, s37, 0")
    if C.kvwait: A("s_cmp_ge_u32 s39, 32"); A("s_cselect_b32 s37, s37, 0")
    A("s_cmp_lg_u32 s37, 0"); A(f"s_cbranch_scc1 {Le}")
    A("s_sleep 1"); A("s_add_u32 s36, s36, 1"); A("s_cmp_lt_u32 s36, 60000"); A(f"s_cbranch_scc1 {Lw}")
    A.label(Le)
    A(f"v_mov_b32 v24, {L_KB}"); A("v_mov_b32 v25, s35"); A("ds_write_b32 v24, v25"); A("s_waitcnt lgkmcnt(0)")
    A.label(Ls)
    A("s_barrier")
    A(f"v_mov_b32 v24, {L_KB}"); A("ds_read_b32 v25, v24"); A("s_waitcnt lgkmcnt(0)"); A("v_readfirstlane_b32 s90, v25")
    A("s_barrier")
    A(f"s_mov_b32 s{sKVOK}, 0")
    tl_stamp(A, o.get('tl'), 0, 2, vr=(120, 121))
    C.dma_k(); C.dma_v()
    A(f"s_mov_b32 s{sFAIL}, 0"); A(f"s_mov_b32 s{sS}, 0"); A(f"s_mov_b32 s{sNAG}, 0"); A(f"s_mov_b32 s{sNRS}, 0")
    A(f"s_mov_b32 s{sMc}, s{sMb}"); A(f"s_mov_b32 s{sMc+1}, s{sMb+1}")
    U.add64(sEV, sWS, 0x380000)
    A(f"s_lshl_b32 s34, s{sW}, 11"); A(f"s_add_u32 s{sM0K}, s34, {L_KX}"); A(f"s_add_u32 s{sM0V}, s34, {L_VX}")
    U.add64(sMz, sMb, 2*8192)
    C.shadow_prep()
    A("s_cmp_lg_u32 s90, 32"); A("s_cbranch_scc1 L_safe_S" if not o.get('force_safe') else "s_branch L_safe_S")
    n_main = len(A.L)
    C.publish_mem0()
    tl_stamp(A, o.get('tl'), 0, 3, vr=(120, 121))
    A.label("L_loop")
    C.ag_poll("L")
    n0 = len(A.L)
    C.step()
    if C.nodma: A.L[n0:] = [x for x in A.L[n0:] if not x.startswith("global_load_lds")]
    A.L[n0:] = [x.replace(" sc1", " " + C.dmaflag) if x.startswith("global_load_lds") else x for x in A.L[n0:]]
    A(f"s_cmp_lt_u32 s{sS}, 63"); A("s_cbranch_scc1 L_loop")
    tl_stamp(A, o.get('tl'), 0, 4, vr=(120, 121))
    C.tail()
    tl_stamp(A, o.get('tl'), 0, 5, vr=(120, 121))
    A("s_branch L_chain_done")
    if C.kvwait: C.kv_slow_code()
    if C.standin: C.sm_slow_code()
    import re
    main = A.L[n_main:]
    labels = [x[:-1] for x in main if re.fullmatch(r"\w+:", x)]
    A.label("L_safe_S")
    for x in main:
        for lb in labels: x = re.sub(r"\b" + lb + r"\b", lb + "_S", x)
        if x.startswith("global_store") and " sc1" not in x: x += " sc1"
        A(x)
    A.label("L_chain_done")
    if C.stamps:
        A(f"s_lshl_b32 s34, s{sH}, 2"); A(f"s_add_u32 s34, s34, s{sW}"); A("s_lshl_b32 s34, s34, 6"); A(f"s_add_u32 s34, s34, {WS_STAMP}")
        A(f"s_add_u32 s36, s{sWS}, s34"); A(f"s_addc_u32 s37, s{sWS+1}, 0")
        A("s_mov_b64 exec, 1"); A("v_mov_b32 v24, 0")
        for q in range(4):
            for i in range(4): A(f"v_mov_b32 v{32+4*q+i}, s{sST+2*(4*q+i)}" if 4*q+i < 14 else f"v_mov_b32 v{32+4*q+i}, s{sNAG + (4*q+i-14)}")
            A(f"global_store_dwordx4 v24, v[{32+4*q}:{35+4*q}], s[36:37] offset:{16*q}")
        A("s_waitcnt vmcnt(0)"); A("s_mov_b64 exec, -1")
```

```python
from common import *
import roles1

def gen(opts=None):
    o = dict(chain=True, mh=True, g=True, q=True, arc=True)
    o.update(opts or {})
    A = Prog(); U = Util(A)
    A(f"s_load_dwordx2 {sp(sWS)}, s[0:1], 128"); A(f"s_load_dwordx2 {sp(sDBG)}, s[0:1], 120")
    A(f"s_getreg_b32 s{sXCC}, hwreg(HW_REG_XCC_ID, 0, 4)")
    A("v_lshrrev_b32 v1, 6, v0"); A("v_and_b32 v0, 63, v0")
    A(f"v_readfirstlane_b32 s{sW}, v1")
    A("s_waitcnt lgkmcnt(0)")
    A(f"s_cmp_lg_u32 s{sW}, 0"); A("s_cbranch_scc1 L_wt")
    A("s_mov_b64 exec, 1")
    A("v_mov_b32 v3, 0"); A("v_mov_b32 v4, 1")
    if o.get('fake_xcc'):
        A(f"s_and_b32 s12, s2, {o['fake_xcc']}"); A("s_cmp_lg_u32 s12, 0"); A("s_cbranch_scc1 L_wk")
    A(f"s_cmp_lg_u32 s{sXCC}, 0"); A("s_cbranch_scc1 L_wk")
    A(f"global_atomic_add v5, v3, v4, {sp(sDBG)} offset:{D_XT*4} sc0"); A("s_waitcnt vmcnt(0)")
    A("v_readfirstlane_b32 s12, v5"); A("s_cmp_lt_u32 s12, 32"); A("s_cbranch_scc1 L_got")
    A.label("L_wk")
    A(f"global_atomic_add v5, v3, v4, {sp(sDBG)} offset:{D_WT*4} sc0"); A("s_waitcnt vmcnt(0)")
    A("v_readfirstlane_b32 s12, v5"); A("v_add_u32 v5, 32, v5")
    A("s_cmp_lt_u32 s12, 224"); A("s_cbranch_scc1 L_got")
    A(f"global_atomic_add v6, v3, v4, {sp(sDBG)} offset:{D_XT*4} sc0"); A("s_waitcnt vmcnt(0)")
    A("v_readfirstlane_b32 s12, v6"); A("s_cmp_ge_u32 s12, 32"); A("s_cbranch_scc1 L_got")
    A("v_mov_b32 v5, v6")
    A.label("L_got")
    A(f"v_mov_b32 v3, {L_MISC}"); A("ds_write_b32 v3, v5"); A("s_waitcnt lgkmcnt(0)")
    A("s_mov_b64 exec, -1")
    A.label("L_wt")
    A("s_barrier")
    A(f"v_mov_b32 v3, {L_MISC}"); A("ds_read_b32 v5, v3"); A("s_waitcnt lgkmcnt(0)")
    A(f"v_readfirstlane_b32 s{sROLE}, v5")
    A("s_barrier")
    TL = o.get('tl', False)
    tl_stamp(A, TL, 0, 0)
    A(f"s_cmp_lt_u32 s{sROLE}, 32"); A("s_cbranch_scc1 L_chain")
    A(f"s_sub_u32 s12, s{sROLE}, 32")
    A("s_cmp_ge_u32 s12, 224"); A("s_cbranch_scc1 L_end")
    A("s_cmp_lg_u32 s12, 0"); A("s_cbranch_scc1 L_noinit")
    A(f"s_lshl_b32 s34, s{sW}, 10"); A("v_lshlrev_b32 v2, 4, v0"); A("v_add_u32 v2, s34, v2")
    for i in range(4): A(f"v_mov_b32 v{8+i}, 0")
    for i in range(7):
        A(f"global_store_dwordx4 v2, v[8:11], {sp(sWS)} sc1"); A("v_add_u32 v2, 4096, v2")
    A("s_waitcnt vmcnt(0)"); A("s_barrier")
    U.add64(44, sDBG, D_INIT*4); U.signal(44)
    A.label("L_noinit")
    if o['mh']:
        MH0 = o.get('mh0', 64)
        A(f"s_sub_u32 s13, s12, {MH0}"); A("s_cmp_ge_u32 s13, 64"); A("s_cbranch_scc1 L_nomh")
        A("s_cmp_lt_u32 s13, 16"); A("s_cbranch_scc1 L_nom")
        A("s_sub_u32 s19, s13, 16")
        roles1.role_M(A, U, 19, TL)
        tl_stamp(A, TL, 0, 13)
        A("s_barrier")
        A.label("L_nom")
        U.wait_cnt1(sDBG, 1, off=D_INIT*4, sleep=4)
        roles1.role_H(A, U, 13, TL)
        A("s_barrier")
        A.label("L_nomh")
    tl_stamp(A, TL, 0, 1)
    U.wait_cnt1(sDBG, 1, off=D_INIT*4, sleep=4)
    if o['g']:
        A("s_and_b32 s14, s12, 31"); A("s_lshr_b32 s15, s12, 5")
        if o.get('pfw', False):
            A("s_cmp_lt_u32 s12, 128"); A("s_cbranch_scc1 L_nopf")
            A("s_load_dwordx4 s[40:43], s[0:1], 16"); A("s_load_dwordx4 s[44:47], s[0:1], 32")
            A(f"s_sub_u32 s34, s12, 128"); A("s_lshl_b32 s34, s34, 2"); A(f"s_add_u32 s34, s34, s{sW}")
            A("v_lshlrev_b32 v2, 4, v0")
            A("s_waitcnt lgkmcnt(0)")
            for mi, b in enumerate(o.get('pforder', (40, 46, 42, 44))):
                for kk in range(11):
                    A(f"s_add_u32 s35, s34, {384*kk}"); A("s_min_u32 s35, s35, 4095"); A("s_lshl_b32 s35, s35, 10")
                    A(f"s_add_u32 s36, s{b}, s35"); A(f"s_addc_u32 s37, s{b+1}, 0")
                    A(f"global_load_dwordx4 v[{16+4*(kk % 11)}:{19+4*(kk % 11)}], v2, s[36:37]")
                A("s_waitcnt vmcnt(0)")
            A.label("L_nopf")
        if o.get('gdelay', True):
            A(f"s_cmp_lt_u32 s15, {o.get('gfirst', 2)}"); A("s_cbranch_scc1 L_gnd")
            U.add64(44, sWS, cnt_off(C_HRDY, 0)); U.wait_cnt1(44, 1, sleep=16)
            A.label("L_gnd")
        roles1.role_G(A, U, 14, 15, do_q=o['q'], TL=TL)
        tl_stamp(A, TL, 0, 4)
    if o['arc']:
        import roles2
        roles2.DBGX1 = o.get('dbgx1', False); roles2.OUTFLAG = o.get('outflag', 'sc1')
        roles2.roles_ARC(A, U, 12, TL, o.get('slp'), o.get('w1', True))
    A("s_branch L_end")
    A.label("L_chain")
    if o['chain']:
        import chainf
        chainf.gen_chain(A, U, o)
    A.label("L_end")
    return A

NAME = "adaLN_cond__memory_aug_recurrent_mem_tr__dense_activation_gelu__prompt_kernel"
def text(opts=None, name=NAME):
    from asmlib import kernel_text
    A = gen(opts)
    body = A.finalize(verbose=True)
    return kernel_text([(name, body, 512, 102, 256)], [f"; @launch grid=(256,1,1) block=(256,1,1) lds={LDS_TOTAL}"])

if __name__ == "__main__":
    t = text(dict(chain=False, arc=False))
    open("k_test.s", "w").write(t)
    print(len(t.split("\n")), "lines")
```

```python
from common import *

def bf_round_pair(A, a, b, t):
    A(f"v_cvt_pk_bf16_f32 v{t}, v{a}, v{b}")
    A(f"v_lshlrev_b32 v{a}, 16, v{t}"); A(f"v_and_b32 v{b}, 0xffff0000, v{t}")

class WLoad:
    def __init__(self, A, LB=0, vb=200):
        self.A = A; self.LB = LB
        self.vS0, self.vS1, self.vT, self.vTh, self.vX = vb, vb+1, vb+2, vb+3, vb+4
        self.vZ = vb+5
    def setup(self, RS, roworder="nat", colmode="tile"):
        A = self.A; self.RS = RS
        A(f"v_lshrrev_b32 v{self.vX}, 4, v0")
        A(f"v_and_b32 v{self.vS0}, 15, v0"); A(f"v_lshlrev_b32 v{self.vS1}, 1, v{self.vX}"); A(f"v_xor_b32 v{self.vS0}, v{self.vS0}, v{self.vS1}")
        A(f"v_lshlrev_b32 v{self.vS0}, 4, v{self.vS0}")
        A(f"v_xor_b32 v{self.vS1}, 128, v{self.vS0}")
        A(f"s_mov_b32 s34, {RS}"); A(f"v_mul_lo_u32 v{self.vX}, v{self.vX}, s34")
        A(f"s_mul_i32 s34, s{sW}, {16*RS}"); A(f"v_add_u32 v{self.vX}, s34, v{self.vX}")
        A(f"v_add_u32 v{self.vS0}, v{self.vS0}, v{self.vX}"); A(f"v_add_u32 v{self.vS1}, v{self.vS1}, v{self.vX}")
        self.setup_tr(roworder, colmode)
    def setup_tr(self, roworder, colmode):
        A = self.A; X = self.vX; T = self.vT; Z = self.vZ
        self.roworder = roworder; self.colmode = colmode
        A(f"v_lshrrev_b32 v{X}, 4, v0")
        A(f"v_bfe_u32 v{Z}, v0, 2, 2")
        if roworder == "nat":
            A(f"v_lshlrev_b32 v{T}, 3, v{X}"); A(f"v_add_u32 v{T}, v{T}, v{Z}")
            A(f"v_lshlrev_b32 v{Z}, 1, v{Z}"); A(f"v_and_b32 v{X}, 1, v{X}"); A(f"v_lshlrev_b32 v{X}, 3, v{X}"); A(f"v_add_u32 v{Z}, v{Z}, v{X}")
        else:
            A(f"v_lshlrev_b32 v{T}, 2, v{X}"); A(f"v_add_u32 v{T}, v{T}, v{Z}")
            A(f"v_lshlrev_b32 v{Z}, 1, v{Z}"); A(f"v_lshrrev_b32 v{X}, 1, v{X}"); A(f"v_lshlrev_b32 v{X}, 3, v{X}"); A(f"v_add_u32 v{Z}, v{Z}, v{X}")
        A(f"v_lshlrev_b32 v{T}, 8, v{T}")
        A(f"v_and_b32 v{X}, 3, v0")
        if colmode == "tile":
            A(f"v_lshrrev_b32 v{self.vTh}, 1, v{X}"); A(f"v_xor_b32 v{Z}, v{Z}, v{self.vTh}")
            A(f"v_lshlrev_b32 v{Z}, 4, v{Z}"); A(f"v_add_u32 v{T}, v{T}, v{Z}")
            A(f"v_and_b32 v{X}, 1, v{X}"); A(f"v_lshlrev_b32 v{X}, 3, v{X}"); A(f"v_add_u32 v{T}, v{T}, v{X}")
        else:
            A(f"v_xor_b32 v{Z}, v{Z}, v{X}"); A(f"v_lshlrev_b32 v{Z}, 4, v{Z}"); A(f"v_add_u32 v{T}, v{T}, v{Z}")
        if self.LB: A(f"v_add_u32 v{T}, {self.LB}, v{T}")
    def dma(self, sbase, rowoff_bytes, slot, flags=""):
        A = self.A
        for i in range(4):
            off = rowoff_bytes + 4*i*self.RS
            A(f"s_add_u32 s36, s{sbase}, {off}"); A(f"s_addc_u32 s37, s{sbase+1}, 0")
            A(f"s_lshl_b32 s34, s{sW}, 12"); A(f"s_add_u32 m0, s34, {self.LB + slot*16384 + i*1024}")
            A(f"global_load_lds_dwordx4 v{self.vS0 + (i >> 1)}, s[36:37] {flags}")
    def tr_addr(self, xorval, dst):
        A = self.A
        if self.LB:
            A(f"v_subrev_u32 v{dst}, {self.LB}, v{self.vT}"); A(f"v_xor_b32 v{dst}, {xorval}, v{dst}"); A(f"v_add_u32 v{dst}, {self.LB}, v{dst}")
        else:
            A(f"v_xor_b32 v{dst}, {xorval}, v{dst if False else self.vT}")
    def tr(self, dstreg, vaddr, vaddr_hi, slot, rowoff, extra=0):
        so = slot*16384 + rowoff*256 + extra
        if so < 65536: self.A(f"ds_read_b64_tr_b16 {dstreg}, v{vaddr} offset:{so}")
        else: self.A(f"ds_read_b64_tr_b16 {dstreg}, v{vaddr_hi} offset:{so-65536}")

def role_M(A, U, sJ, TL=False):
    A("s_load_dwordx2 s[40:41], s[0:1], 96"); A("s_load_dwordx2 s[42:43], s[0:1], 104")
    A(f"s_lshl_b32 s34, s{sW}, 6"); A("v_add_u32 v1, s34, v0")
    A("v_lshrrev_b32 v2, 3, v1"); A("v_and_b32 v3, 7, v1")
    A("v_mul_u32_u24 v4, 6144, v2"); A("v_lshlrev_b32 v5, 4, v3"); A("v_add_u32 v4, v4, v5")
    A(f"s_lshl_b32 s34, s{sJ}, 7"); A("v_add_u32 v4, s34, v4")
    A("v_lshlrev_b32 v5, 1, v2")
    A("s_waitcnt lgkmcnt(0)")
    for i in range(16): A(f"global_load_ushort v{16+i}, v5, s[40:41] offset:{i*64}")
    for i in range(16):
        A(f"global_load_dwordx4 v[{32+4*i}:{35+4*i}], v4, s[42:43]")
        A(f"s_add_u32 s42, s42, {32*6144}"); A("s_addc_u32 s43, s43, 0")
    for k in range(8): A(f"v_mov_b32 v{100+k}, 0")
    A("s_waitcnt vmcnt(16)")
    A(f"s_mov_b32 s34, {fbits(-1.4426950408889634):#x}")
    for i in range(16):
        x = 16+i
        A(f"v_lshlrev_b32 v{x}, 16, v{x}")
        A(f"v_mul_f32 v110, s34, v{x}"); A("v_exp_f32 v110, v110"); A("v_add_f32 v110, 1.0, v110"); A("v_rcp_f32 v110, v110")
        A(f"v_mul_f32 v{x}, v{x}, v110")
        A(f"v_cvt_pk_bf16_f32 v{x}, v{x}, v{x}"); A(f"v_lshlrev_b32 v{x}, 16, v{x}")
    A("s_waitcnt vmcnt(0)")
    tl_stamp(A, TL, 0, 12)
    for i in range(16):
        for k in range(4):
            w = 32+4*i+k
            A(f"v_lshlrev_b32 v110, 16, v{w}"); A(f"v_and_b32 v111, 0xffff0000, v{w}")
            A(f"v_fmac_f32 v{100+2*k}, v{16+i}, v110"); A(f"v_fmac_f32 v{101+2*k}, v{16+i}, v111")
    A("v_lshlrev_b32 v6, 8, v2"); A("v_lshlrev_b32 v7, 5, v3"); A("v_add_u32 v6, v6, v7")
    A("ds_write_b128 v6, v[100:103]"); A("ds_write_b128 v6, v[104:107] offset:16")
    A("s_waitcnt lgkmcnt(0)"); A("s_barrier")
    L = A.newlabel("Mskip")
    A(f"s_cmp_lg_u32 s{sW}, 0"); A(f"s_cbranch_scc1 {L}")
    A("v_lshlrev_b32 v6, 2, v0")
    for i in range(32): A(f"ds_read_b32 v{16+i}, v6 offset:{i*256}")
    A("s_waitcnt lgkmcnt(0)")
    for st in (16, 8, 4, 2, 1):
        for i in range(st): A(f"v_add_f32 v{16+i}, v{16+i}, v{16+i+st}")
    A("v_cvt_pk_bf16_f32 v16, v16, v16"); A("v_lshlrev_b32 v16, 16, v16")
    A(f"s_lshl_b32 s34, s{sJ}, 8"); A(f"s_add_u32 s34, s34, {WS_MOD}"); U.add64(44, sWS, "s34")
    A("global_store_dword v6, v16, s[44:45] sc1")
    A.label(L)
    A(f"s_cmp_lt_u32 s{sJ}, 16"); A(f"s_cselect_b32 s34, 0, {(D_MODB - D_MODA)*4}"); A(f"s_add_u32 s34, s34, {D_MODA*4}"); U.add64(44, sDBG, "s34")
    U.signal(44)

def ln_rows(A, xb, n, eps_s, tmp):
    t0, t1, t2, t3, t4, t5 = tmp
    def red8(v):
        A(f"v_add_f32_dpp v{v}, v{v}, v{v} quad_perm:[1,0,3,2] row_mask:0xf bank_mask:0xf")
        A(f"v_add_f32_dpp v{v}, v{v}, v{v} quad_perm:[2,3,0,1] row_mask:0xf bank_mask:0xf")
        A(f"v_add_f32_dpp v{v}, v{v}, v{v} row_half_mirror row_mask:0xf bank_mask:0xf")
    A(f"v_add_f32 v{t0}, v{xb}, v{xb+1}"); A(f"v_add_f32 v{t1}, v{xb+2}, v{xb+3}")
    for i in range(4, n, 2): A(f"v_add_f32 v{t0}, v{t0}, v{xb+i}"); A(f"v_add_f32 v{t1}, v{t1}, v{xb+i+1}")
    A(f"v_add_f32 v{t0}, v{t0}, v{t1}")
    red8(t0)
    A(f"v_mul_f32 v{t0}, {fbits(1.0/512):#x}, v{t0}")
    A(f"v_mov_b32 v{t1}, 0"); A(f"v_mov_b32 v{t2}, 0")
    for i in range(0, n, 2):
        A(f"v_sub_f32 v{t3}, v{xb+i}, v{t0}"); A(f"v_sub_f32 v{t4}, v{xb+i+1}, v{t0}")
        A(f"v_fmac_f32 v{t1}, v{t3}, v{t3}"); A(f"v_fmac_f32 v{t2}, v{t4}, v{t4}")
    A(f"v_add_f32 v{t1}, v{t1}, v{t2}")
    red8(t1)
    A(f"v_mul_f32 v{t1}, {fbits(1.0/512):#x}, v{t1}")
    bf_round_pair(A, t0, t1, t2)
    A(f"v_add_f32 v{t1}, s{eps_s}, v{t1}")
    A(f"v_cvt_pk_bf16_f32 v{t1}, v{t1}, v{t1}"); A(f"v_lshlrev_b32 v{t1}, 16, v{t1}")
    A(f"v_sqrt_f32 v{t1}, v{t1}")
    A(f"v_cvt_pk_bf16_f32 v{t1}, v{t1}, v{t1}"); A(f"v_lshlrev_b32 v{t1}, 16, v{t1}")
    A(f"v_rcp_f32 v{t1}, v{t1}")
    for i in range(0, n, 2):
        A(f"v_sub_f32 v{xb+i}, v{xb+i}, v{t0}"); A(f"v_sub_f32 v{xb+i+1}, v{xb+i+1}, v{t0}")
        bf_round_pair(A, xb+i, xb+i+1, t2)
        A(f"v_mul_f32 v{xb+i}, v{xb+i}, v{t1}"); A(f"v_mul_f32 v{xb+i+1}, v{xb+i+1}, v{t1}")
        bf_round_pair(A, xb+i, xb+i+1, t2)

def role_H(A, U, sJ, TL=False):
    A("s_load_dwordx2 s[40:41], s[0:1], 0")
    A("v_lshrrev_b32 v2, 3, v0"); A("v_and_b32 v3, 7, v0")
    A(f"s_lshl_b32 s34, s{sW}, 3"); A("v_add_u32 v2, s34, v2")
    A("v_lshlrev_b32 v4, 10, v2"); A("v_lshlrev_b32 v5, 4, v3"); A("v_add_u32 v4, v4, v5")
    A(f"s_lshl_b32 s34, s{sJ}, 15"); A("v_add_u32 v4, s34, v4")
    A("s_waitcnt lgkmcnt(0)")
    for i in range(8): A(f"global_load_dwordx4 v[{16+4*i}:{19+4*i}], v4, s[40:41] offset:{i*128}")
    A("s_waitcnt vmcnt(0)")
    XB = 64
    for i in range(32):
        A(f"v_lshlrev_b32 v{XB+2*i}, 16, v{16+i}"); A(f"v_and_b32 v{XB+2*i+1}, 0xffff0000, v{16+i}")
    A(f"s_mov_b32 s35, {fbits(1e-5):#x}")
    ln_rows(A, XB, 64, 35, (8, 9, 10, 11, 12, 13))
    tl_stamp(A, TL, 0, 14)
    U.wait_cnt1(sDBG, 16, off=D_MODA*4, sleep=2)
    tl_stamp(A, TL, 0, 15)
    U.add64(42, sWS, WS_MOD)
    A("v_lshlrev_b32 v6, 5, v3")
    A("v_lshrrev_b32 v7, 4, v2"); A("v_lshlrev_b32 v7, 14, v7"); A("v_lshrrev_b32 v8, 2, v3"); A("v_lshlrev_b32 v8, 10, v8"); A("v_add_u32 v7, v7, v8")
    A("v_and_b32 v8, 3, v3"); A("v_lshlrev_b32 v8, 8, v8"); A("v_add_u32 v7, v7, v8")
    A("v_and_b32 v8, 15, v2"); A("v_lshlrev_b32 v8, 4, v8"); A("v_add_u32 v7, v7, v8")
    A(f"s_lshl_b32 s34, s{sJ}, 15"); A(f"s_add_u32 s34, s34, {WS_HF}"); U.add64(44, sWS, "s34")
    SA, CA = 128, 192
    for i in range(8):
        A(f"global_load_dwordx4 {r(SA+8*i,4)}, v6, s[42:43] offset:{i*256} sc1"); A(f"global_load_dwordx4 {r(SA+8*i+4,4)}, v6, s[42:43] offset:{i*256+16} sc1")
        A(f"global_load_dwordx4 {r(CA+8*i,4)}, v6, s[42:43] offset:{2048+i*256} sc1"); A(f"global_load_dwordx4 {r(CA+8*i+4,4)}, v6, s[42:43] offset:{2048+i*256+16} sc1")
    for i in range(8):
        A(f"s_waitcnt vmcnt({4*(7-i) + min(i, 63)})" if False else f"s_waitcnt vmcnt({4*(7-i)})" if i == 0 else "s_nop 0")
        if i == 1: A("s_waitcnt vmcnt(1)")
        for k in range(0, 8, 2):
            a, b = CA+8*i+k, CA+8*i+k+1
            A(f"v_add_f32 v{a}, 1.0, v{a}"); A(f"v_add_f32 v{b}, 1.0, v{b}"); bf_round_pair(A, a, b, 10)
            x0, x1 = XB+8*i+k, XB+8*i+k+1
            A(f"v_mul_f32 v{x0}, v{x0}, v{a}"); A(f"v_mul_f32 v{x1}, v{x1}, v{b}"); bf_round_pair(A, x0, x1, 10)
            A(f"v_add_f32 v{x0}, v{x0}, v{SA+8*i+k}"); A(f"v_add_f32 v{x1}, v{x1}, v{SA+8*i+k+1}")
            A(f"v_cvt_pk_bf16_f32 v{32+4*(i%2)+k//2}, v{x0}, v{x1}")
        A(f"global_store_dwordx4 v7, v[{32+4*(i%2)}:{35+4*(i%2)}], s[44:45] sc1")
        A("v_add_u32 v7, 2048, v7")
    A(f"s_lshl_b32 s34, s{sJ}, {CS}"); A(f"s_add_u32 s34, s34, {cnt_off(C_HRDY)}"); U.add64(44, sWS, "s34")
    U.signal(44)

def role_G(A, U, sHd, sRep, nrep=7, do_q=True, TL=False):
    WL = WLoad(A, LB=0, vb=200)
    A("s_load_dwordx4 s[40:43], s[0:1], 16"); A("s_load_dwordx2 s[44:45], s[0:1], 32")
    WL.setup(8192, "nat", "tile")
    A(f"s_lshl_b32 s34, s{sW}, 6"); A(f"v_xor_b32 v210, s34, v{WL.vT}"); A("v_xor_b32 v211, 32, v210")
    A("v_add_u32 v212, 0x10000, v210"); A("v_add_u32 v213, 0x10000, v211")
    A("s_waitcnt lgkmcnt(0)")
    A(f"s_lshl_b32 s34, s{sHd}, 8")
    for b in (40, 42, 44): A(f"s_add_u32 s{b}, s{b}, s34"); A(f"s_addc_u32 s{b+1}, s{b+1}, 0")
    def load_mats(mats):
        n = 8*len(mats)
        for c in range(8): WL.dma(mats[c//8][0], (c % 8)*64*8192, c % 8)
        for c in range(n):
            mi, t = divmod(c, 8); slot = c % 8
            rem = min(n - 1 - c, 7)
            A(f"s_waitcnt vmcnt({4*rem})"); A("s_barrier")
            for X in range(2):
                for q4 in range(4):
                    WL.tr(ar(mats[mi][1] + (X*8 + t)*8 + 2*q4, 2), 210+X, 212+X, slot, [0, 4, 32, 36][q4])
            A("s_waitcnt lgkmcnt(0)"); A("s_barrier")
            if c + 8 < n: WL.dma(mats[(c+8)//8][0], ((c+8) % 8)*64*8192, slot)
    A("v_lshlrev_b32 v2, 4, v0")
    A(f"s_lshl_b32 s34, s{sW}, 13"); A("v_add_u32 v3, s34, v2")
    def seg_loop(tag, mode):
        sS, sN, sB = 46, 47, 48
        def issue_h(sseg, sbuf):
            A(f"s_lshl_b32 s34, s{sseg}, {CS}"); A(f"s_add_u32 s34, s34, {cnt_off(C_HRDY)}"); U.add64(50, sWS, "s34")
            U.wait_cnt1(50, 1, sleep=2)
            A(f"s_lshl_b32 s34, s{sseg}, 15"); A(f"s_add_u32 s34, s34, {WS_HF}"); U.add64(50, sWS, "s34")
            for i in range(8):
                if i % 4 == 0:
                    A(f"s_lshl_b32 s34, s{sW}, 13"); A(f"s_add_u32 s34, s34, s{sbuf}"); A(f"s_add_u32 m0, s34, {i*1024}")
                    if i: A("s_add_u32 s50, s50, 4096"); A("s_addc_u32 s51, s51, 0")
                A(f"global_load_lds_dwordx4 v3, s[50:51] offset:{(i % 4)*1024} sc1")
        A(f"s_mov_b32 s{sS}, s{sRep}"); A(f"s_mov_b32 s{sB}, 0")
        issue_h(sS, sB)
        A.label(f"G{tag}_loop")
        A(f"s_add_u32 s{sN}, s{sS}, {nrep}")
        A("s_waitcnt vmcnt(0)"); A("s_barrier")
        Ls = A.newlabel("Gn")
        A(f"s_xor_b32 s49, s{sB}, 32768")
        A(f"s_cmp_ge_u32 s{sN}, 64"); A(f"s_cbranch_scc1 {Ls}")
        issue_h(sN, 49)
        A.label(Ls)
        A(f"v_add_u32 v4, s{sB}, v2")
        ACK, ACV, HFR = 16, 32, 64
        nacc = 32 if mode == 'kv' else 16
        for i in range(0, nacc, 2): A(f"v_mov_b64 {r(16+i,2)}, 0")
        for n in range(4): A(f"ds_read_b128 {r(HFR+4*n,4)}, v4 offset:{n*1024}")
        for n in range(32):
            Xt, t = divmod(n, 16)
            if n + 4 < 32: A(f"ds_read_b128 {r(HFR+4*((n+4) % 8),4)}, v4 offset:{(n+4)*1024}")
            A(f"s_waitcnt lgkmcnt({min(4, 31-n)})")
            hf = r(HFR+4*(n % 8), 4)
            for Xe in range(2):
                wk = ar((Xe*16 + t)*4, 4)
                d = r(ACK + (Xt*2 + Xe)*4, 4)
                A(f"v_mfma_f32_16x16x32_bf16 {d}, {wk}, {hf}, {d}")
            if mode == 'kv':
                for Xe in range(2):
                    wv = ar(128 + (Xe*16 + t)*4, 4)
                    d = r(ACV + (Xt*2 + Xe)*4, 4)
                    A(f"v_mfma_f32_16x16x32_bf16 {d}, {hf}, {wv}, {d}")
        A(f"s_lshl_b32 s34, s{sS}, 18"); A(f"s_lshl_b32 s35, s{sHd}, 13"); A("s_add_u32 s34, s34, s35")
        A(f"s_add_u32 s35, s34, {WS_KX if mode == 'kv' else WS_QX}"); U.add64(52, sWS, "s35")
        A(f"s_lshl_b32 s35, s{sW}, 10"); A("v_add_u32 v5, s35, v2")
        for Xt in range(2):
            a0, a1 = ACK + (Xt*2)*4, ACK + (Xt*2+1)*4
            o = 100 + 4*Xt
            A(f"v_cvt_pk_bf16_f32 v{o}, v{a0}, v{a0+1}"); A(f"v_cvt_pk_bf16_f32 v{o+1}, v{a0+2}, v{a0+3}")
            A(f"v_cvt_pk_bf16_f32 v{o+2}, v{a1}, v{a1+1}"); A(f"v_cvt_pk_bf16_f32 v{o+3}, v{a1+2}, v{a1+3}")
        A(f"global_store_dwordx4 v5, v[100:103], s[52:53] sc1")
        A("v_add_u32 v6, 4096, v5"); A(f"global_store_dwordx4 v6, v[104:107], s[52:53] sc1")
        if mode == 'kv':
            A(f"s_add_u32 s35, s34, {WS_VX}"); U.add64(52, sWS, "s35")
            A(f"s_lshl_b32 s35, s{sW}, 11"); A("v_add_u32 v5, s35, v2")
            for Xe in range(2):
                a0, a1 = ACV + Xe*4, ACV + (2 + Xe)*4
                o = 108 + 4*Xe
                A(f"v_cvt_pk_bf16_f32 v{o}, v{a0}, v{a0+1}"); A(f"v_cvt_pk_bf16_f32 v{o+1}, v{a0+2}, v{a0+3}")
                A(f"v_cvt_pk_bf16_f32 v{o+2}, v{a1}, v{a1+1}"); A(f"v_cvt_pk_bf16_f32 v{o+3}, v{a1+2}, v{a1+3}")
                A(f"global_store_dwordx4 v5, v[{o}:{o+3}], s[52:53] offset:{Xe*1024} sc1")
        A(f"s_lshl_b32 s34, s{sS}, {CS}"); A(f"s_add_u32 s34, s34, {cnt_off(C_KV if mode == 'kv' else C_QD)}"); U.add64(52, sWS, "s34")
        U.signal(52)
        A(f"s_mov_b32 s{sS}, s{sN}"); A(f"s_mov_b32 s{sB}, s49")
        A(f"s_cmp_lt_u32 s{sS}, 64"); A(f"s_cbranch_scc1 G{tag}_loop")
    load_mats([(42, 0), (44, 128)])
    tl_stamp(A, TL, 0, 2)
    seg_loop("kv", "kv")
    tl_stamp(A, TL, 0, 3)
    if do_q:
        A("s_barrier")
        load_mats([(40, 0)])
        seg_loop("q", "q")
```

```python
from common import *
import struct
L_STG = 0; L_QB = 8192; L_OB = 161280; L_KX = 10752; L_VX = 18944; L_KB = 27136; L_WO = 30208
OSTR = 288
import os
if os.environ.get('OB_ALIAS'): L_OB = 8192
L_PF = 161280

vWoB = 1
vIDX, vL16, vAG, vWoA, vQW, vQR, vOW, vPst, vRS, vMst, vOR = range(2, 13)
vSEL = 16
vONE = 20
vHALF = 14
T0r, T1r = 0, 13
M = 24; Q = 56; K = 72; AQ = 88; AK = 96; SX = 104; SM = 112; OX = 116; LX = 124
WV = 128

SC_C = 0.08838834764831845 * 1.4426950408889634

sS = 12
sC = 14
sPst = 16
sPrd = 24
sMb = 26; sMc = 28; sKX = 30; sVX = 32
sMMSK = 40
sODD = 42
sFAIL = 44; sCNT = 45; sLO = 46
sHIST = 48
sPz = 50
sMz = 52
sMn = 54
sHn = 56
sM0K = 58
sM0V = 59
sNAG = 60
sNRS = 61
sST = 64
sTHR = 8
sEXC = 62
sEK = 92
sEV = 94
sKVC = 98
sEVp = 100
sXM = 46
sKVOK = 13
sHB2 = 20
sTAG = 50
sPrd2 = 22
sHn2 = 84
sHB = 18
sPF = 24

class Chain:
    def __init__(self, A, U, stamps=False, hist=False, nsteps=63, nv1=12, rs_wait=None, ag_delay=2, p_layout=1, rs_delay=4, masked=False, wo_spread=True, nohist=False, dump=None, rs_sets=1, rs_gap=2, ag_sets=2, ag_gap=2, late_reset=True, ag_reset=True, kvwait=True, pipe_t0=True, nocomm=False, stash_v=False, l2pf=False, noexp=False, nodma=False, mpoll=False, ag_depth=2, rs_depth=2, ackstamp=False, steplog=False, rs_var='C', opt2=True, bar=5, early_shadow=True, ptag=True, cfull=False, no_rs=False, no_ag=False, dmaflag='sc1', kbar=True, vearly=False, vexp_early=True, dmalat=False, standin=False, pvearly=True, force_slow=False, looptail=True):
        self.looptail = looptail
        self.standin = standin; self.pvearly = pvearly; self.force_slow = force_slow
        self.dmalat = dmalat
        self.vexp_early = vexp_early
        self.vearly = vearly
        self.dmaflag = dmaflag; self.kbar = kbar
        self.no_rs = no_rs; self.no_ag = no_ag
        self.cfull = cfull
        self.ptag = ptag
        self.early_shadow = early_shadow
        self.bar = bar
        self.opt2 = opt2
        self.rs_var = rs_var
        self.steplog = steplog
        self.ackstamp = ackstamp
        self.mpoll = mpoll; self.ag_depth = ag_depth; self.rs_depth = rs_depth
        self.nodma = nodma; self.noexp = noexp
        self.stash_v = stash_v; self.l2pf = l2pf
        self.pipe_t0 = pipe_t0; self.nocomm = nocomm
        self.U = U; self.kv_ret = []; self.exports = not noexp; self.ag_reset = ag_reset; self.kvwait = kvwait
        self.rs_sets = rs_sets; self.rs_gap = rs_gap; self.ag_sets = ag_sets; self.ag_gap = ag_gap; self.late_reset = late_reset
        hist = hist and not nohist
        self.p_layout = p_layout; self.rs_delay = rs_delay; self.masked = masked; self.wo_spread = wo_spread
        self.nv1 = nv1; self.rs_wait = rs_wait; self.ag_delay = ag_delay
        self.A = A; self.stamps = stamps; self.hist = hist; self.nsteps = nsteps

    def stamp(self, i):
        if not self.stamps: return
        A = self.A
        A(f"s_memtime s[{sST+2*i}:{sST+2*i+1}]")

    def setup_consts(self):
        A = self.A; l = "v0"
        A(f"v_lshlrev_b32 {r(vL16)}, 4, {l}")
        A(f"s_lshl_b32 s34, s{sW}, 11"); A(f"v_add_u32 {r(vAG)}, s34, {r(vL16)}")
        A(f"s_lshl_b32 s34, s{sW}, 14"); A(f"s_add_u32 s34, s34, {L_WO}"); A(f"v_add_u32 {r(vWoA)}, s34, {r(vL16)}")
        A(f"v_add_u32 {r(vWoB)}, 0x10000, {r(vWoA)}")
        A(f"v_and_b32 v24, 15, {l}")
        A(f"v_lshrrev_b32 v25, 4, {l}")
        A(f"v_mov_b32 {r(vIDX)}, 0x4444"); A("v_mov_b32 v26, 0xeeee")
        A("v_cmp_le_u32 vcc, 8, v24")
        A(f"v_cndmask_b32 {r(vIDX)}, {r(vIDX)}, v26, vcc")
        A(f"v_lshrrev_b32 v26, 1, v25"); A("v_lshlrev_b32 v26, 8, v26")
        A("v_lshlrev_b32 v27, 4, v24"); A("v_add_u32 v26, v26, v27")
        A("v_and_b32 v27, 1, v25"); A("v_lshlrev_b32 v27, 3, v27"); A("v_add_u32 v26, v26, v27")
        A(f"s_lshl_b32 s34, s{sW}, 9"); A(f"v_add_u32 {r(vQW)}, s34, v26")
        A(f"v_lshrrev_b32 v26, 2, {l}"); A("v_lshlrev_b32 v26, 4, v26")
        A(f"v_and_b32 v27, 1, {l}"); A("v_lshlrev_b32 v27, 3, v27"); A(f"v_add_u32 {r(vQR)}, v26, v27")
        A("v_and_b32 v26, 7, v24"); A(f"v_mul_u32_u24 v26, {OSTR}, v26"); A(f"v_add_u32 {r(vOR)}, {L_OB}, v26")
        A("v_lshlrev_b32 v27, 3, v25"); A(f"v_add_u32 {r(vOW)}, {r(vOR)}, v27")
        A(f"s_lshl_b32 s34, s{sW}, 6"); A(f"v_add_u32 {r(vOW)}, s34, {r(vOW)}")
        A("v_lshlrev_b32 v27, 4, v25"); A(f"v_add_u32 {r(vOR)}, {r(vOR)}, v27")
        if self.rs_var == 'C':
            pass
        elif self.p_layout == 0:
            A(f"v_lshrrev_b32 v26, 5, {l}"); A("v_lshlrev_b32 v26, 13, v26")
            A("v_and_b32 v27, 1, v25"); A("v_lshlrev_b32 v27, 7, v27"); A("v_add_u32 v26, v26, v27")
            A("v_lshlrev_b32 v27, 3, v24"); A("v_add_u32 v26, v26, v27")
            A(f"s_lshl_b32 s34, s{sW}, 16"); A(f"s_lshl_b32 s35, s{sH}, 8"); A("s_add_u32 s34, s34, s35")
            A(f"v_add_u32 {r(vPst)}, s34, v26")
            A("v_lshlrev_b32 v26, 8, v25"); A("v_lshlrev_b32 v27, 2, v24"); A("v_add_u32 v26, v26, v27")
            A(f"s_lshl_b32 s34, s{sH}, 13"); A(f"s_lshl_b32 s35, s{sW}, 6"); A("s_add_u32 s34, s34, s35"); A("s_add_u32 s34, s34, 4096")
            A(f"v_add_u32 {r(vRS)}, s34, v26")
        else:
            A(f"v_lshrrev_b32 v26, 5, {l}"); A("v_lshlrev_b32 v26, 13, v26")
            A("v_and_b32 v27, 1, v25"); A("v_lshlrev_b32 v27, 12, v27"); A("v_add_u32 v26, v26, v27")
            A("v_lshrrev_b32 v27, 3, v24"); A("v_lshlrev_b32 v27, 11, v27"); A("v_add_u32 v26, v26, v27")
            A("v_and_b32 v27, 7, v24"); A("v_lshlrev_b32 v27, 3, v27"); A("v_add_u32 v26, v26, v27")
            A(f"s_lshl_b32 s34, s{sW}, 16"); A(f"s_lshl_b32 s35, s{sH}, 6"); A("s_add_u32 s34, s34, s35")
            A(f"v_add_u32 {r(vPst)}, s34, v26")
            A("v_lshlrev_b32 v26, 6, v25"); A("v_lshlrev_b32 v27, 2, v24"); A("v_add_u32 v26, v26, v27")
            A(f"s_lshl_b32 s34, s{sH}, 13"); A(f"s_lshl_b32 s35, s{sW}, 11"); A("s_add_u32 s34, s34, s35")
            A(f"v_add_u32 {r(vRS)}, s34, v26")
        if self.rs_var == 'C':
            if not self.cfull:
                A(f"v_lshrrev_b32 v26, 5, {l}"); A("v_lshlrev_b32 v26, 3, v26")
                A("v_and_b32 v27, 1, v25"); A("v_lshlrev_b32 v27, 2, v27"); A("v_add_u32 v26, v26, v27")
                A("v_lshrrev_b32 v27, 2, v24"); A("v_add_u32 v26, v26, v27"); A("v_lshlrev_b32 v26, 11, v26")
                A("v_and_b32 v27, 3, v24"); A("v_lshlrev_b32 v27, 4, v27"); A("v_add_u32 v26, v26, v27")
                A(f"s_lshl_b32 s34, s{sW}, 16"); A(f"s_lshl_b32 s35, s{sH}, 6"); A("s_add_u32 s34, s34, s35")
                A(f"v_add_u32 {r(vPst)}, s34, v26")
                A(f"s_lshl_b32 s34, s{sH}, 13"); A(f"v_add_u32 {r(vRS)}, s34, {r(vAG)}")
            else:
                A(f"v_lshrrev_b32 v26, 5, {l}"); A("v_lshlrev_b32 v26, 2, v26")
                A("v_and_b32 v27, 1, v25"); A("v_lshlrev_b32 v27, 1, v27"); A("v_add_u32 v26, v26, v27")
                A("v_lshrrev_b32 v27, 3, v24"); A("v_add_u32 v26, v26, v27"); A("v_lshlrev_b32 v26, 12, v26")
                A("v_and_b32 v27, 7, v24"); A("v_lshlrev_b32 v27, 4, v27"); A("v_add_u32 v26, v26, v27")
                A(f"s_lshl_b32 s34, s{sW}, 16"); A(f"s_lshl_b32 s35, s{sH}, 7"); A("s_add_u32 s34, s34, s35")
                A(f"v_add_u32 {r(vPst)}, s34, v26")
                A(f"v_lshrrev_b32 v26, 2, {l}"); A("v_lshlrev_b32 v26, 7, v26"); A(f"v_and_b32 v27, 3, {l}"); A("v_lshlrev_b32 v27, 4, v27"); A("v_add_u32 v26, v26, v27")
                A(f"s_lshl_b32 s34, s{sH}, 13"); A(f"s_lshr_b32 s35, s{sW}, 1"); A("s_lshl_b32 s35, s35, 12"); A("s_add_u32 s34, s34, s35")
                A(f"s_and_b32 s35, s{sW}, 1"); A("s_lshl_b32 s35, s35, 6"); A("s_add_u32 s34, s34, s35")
                A(f"v_add_u32 {r(vRS)}, s34, v26")
            A(f"s_lshr_b32 s34, s{sH}, 3"); A("s_lshl_b32 s34, s34, 3")
            A(f"s_bfe_u32 s35, s{sH}, 0x10002"); A("s_lshl_b32 s35, s35, 2"); A("s_add_u32 s34, s34, s35")
            A(f"s_bfe_u32 s35, s{sH}, 0x10001"); A("s_add_u32 s34, s34, s35")
            A("v_and_b32 v26, 1, v25"); A("v_lshlrev_b32 v26, 1, v26"); A("v_add_u32 v26, s34, v26")
            A(f"v_bfe_u32 v27, {l}, 2, 2"); A(f"s_and_b32 s34, s{sH}, 1"); A("s_lshl_b32 s34, s34, 2"); A("v_add_u32 v27, s34, v27")
            A(f"v_bfe_u32 v28, {l}, 1, 1"); A(f"s_lshl_b32 s34, s{sW}, 1"); A("v_add_u32 v28, s34, v28")
            A("v_and_b32 v29, 1, v28"); A("v_lshlrev_b32 v29, 3, v29"); A("v_add_u32 v29, v29, v27"); A("v_lshlrev_b32 v29, 4, v29")
            A("v_lshrrev_b32 v30, 1, v28"); A("v_lshlrev_b32 v30, 2, v30"); A("v_add_u32 v29, v29, v30")
            A("v_lshlrev_b32 v30, 8, v26"); A(f"v_add_u32 {r(vMst)}, v29, v30")
            A("v_lshlrev_b32 v27, 10, v27"); A("v_lshlrev_b32 v26, 5, v26"); A("v_lshlrev_b32 v28, 2, v28"); A("v_add_u32 v27, v27, v26"); A("v_add_u32 v127, v27, v28")
            A("v_and_b32 v26, 7, v24"); A("v_lshrrev_b32 v27, 1, v26"); A("v_and_b32 v28, 1, v26")
            A("v_mov_b32 v29, 0x3f80"); A("v_mov_b32 v30, 0x3f800000")
            A("v_cmp_eq_u32 vcc, 1, v28"); A("v_cndmask_b32 v29, v29, v30, vcc")
            for rho in range(4):
                A(f"v_cmp_eq_u32 vcc, {rho}, v27"); A(f"v_cndmask_b32 {r(vSEL+rho)}, 0, v29, vcc")
        elif self.rs_var == 'A':
            A(f"v_and_b32 v26, 3, {l}"); A(f"s_and_b32 s34, s{sW}, 1"); A("s_lshl_b32 s34, s34, 2"); A("v_add_u32 v26, s34, v26")
            A(f"s_lshr_b32 s34, s{sW}, 1"); A("s_lshl_b32 s34, s34, 2"); A("v_add_u32 v27, s34, v25")
            A("v_and_b32 v28, 1, v26"); A("v_lshlrev_b32 v28, 3, v28"); A("v_add_u32 v28, v28, v27"); A("v_lshlrev_b32 v28, 4, v28")
            A("v_lshrrev_b32 v29, 1, v26"); A("v_lshlrev_b32 v29, 2, v29"); A("v_add_u32 v28, v28, v29")
            A(f"s_lshl_b32 s34, s{sH}, 8"); A(f"v_add_u32 {r(vMst)}, s34, v28")
            A("v_lshlrev_b32 v27, 10, v27"); A("v_lshlrev_b32 v26, 2, v26"); A("v_add_u32 v27, v27, v26")
            A(f"s_lshl_b32 s34, s{sH}, 5"); A("v_add_u32 v127, s34, v27")
            A("v_and_b32 v26, 7, v24"); A("v_lshrrev_b32 v27, 1, v26"); A("v_and_b32 v28, 1, v26")
            A("v_mov_b32 v29, 0x3f80"); A("v_mov_b32 v30, 0x3f800000")
            A("v_cmp_eq_u32 vcc, 1, v28"); A("v_cndmask_b32 v29, v29, v30, vcc")
            for rho in range(4):
                A(f"v_cmp_eq_u32 vcc, {rho}, v27"); A(f"v_cndmask_b32 {r(vSEL+rho)}, 0, v29, vcc")
            A(f"s_lshl_b32 s34, s{sH}, 13"); A(f"v_add_u32 {r(vRS)}, s34, {r(vAG)}")
        else:
            A("v_lshrrev_b32 v26, 2, v24"); A(f"s_and_b32 s34, s{sW}, 1"); A("s_lshl_b32 s34, s34, 2"); A("v_add_u32 v26, s34, v26")
            A("v_and_b32 v27, 1, v24"); A("v_lshlrev_b32 v27, 1, v27"); A("v_and_b32 v28, 1, v25"); A("v_add_u32 v27, v27, v28")
            A(f"s_lshr_b32 s34, s{sW}, 1"); A("s_lshl_b32 s34, s34, 2"); A("v_add_u32 v27, s34, v27")
            A("v_and_b32 v28, 1, v26"); A("v_lshlrev_b32 v28, 3, v28"); A("v_add_u32 v28, v28, v27"); A("v_lshlrev_b32 v28, 4, v28")
            A("v_lshrrev_b32 v29, 1, v26"); A("v_lshlrev_b32 v29, 2, v29"); A("v_add_u32 v28, v28, v29")
            A(f"s_lshl_b32 s34, s{sH}, 8"); A(f"v_add_u32 {r(vMst)}, s34, v28")
            A("v_lshlrev_b32 v27, 10, v27"); A("v_lshlrev_b32 v26, 2, v26"); A("v_add_u32 v27, v27, v26")
            A(f"s_lshl_b32 s34, s{sH}, 5"); A("v_add_u32 v127, s34, v27")
            A("v_and_b32 v26, 1, v24"); A("v_mov_b32 v27, 0x3f80"); A("v_mov_b32 v28, 0x3f800000")
            A("v_cmp_eq_u32 vcc, 1, v26"); A(f"v_cndmask_b32 {r(vSEL)}, v27, v28, vcc")
            for i in range(1, 4): A(f"v_mov_b32 {r(vSEL+i)}, {r(vSEL)}")
        for i in range(4): A(f"v_mov_b32 {r(vONE+i)}, 0x3f803f80")
        A("v_cmp_gt_u32 vcc, 2, v25"); A(f"v_cndmask_b32 {r(vHALF)}, 0, {r(vONE)}, vcc"); A(f"v_mov_b32 {r(vHALF+1)}, {r(vHALF)}")
        if self.rs_var == 'C':
            A(f"s_mov_b32 s{sMMSK}, 0x55555555"); A(f"s_mov_b32 s{sMMSK+1}, 0")
            A(f"s_mov_b32 s{sHB}, 0xf0f0f0f0"); A(f"s_mov_b32 s{sHB+1}, 0xf0f0f0f0")
            A(f"s_mov_b32 s{sHB2}, 0xff00ff00"); A(f"s_mov_b32 s{sHB2+1}, 0xff00ff00")
        elif self.rs_var == 'A':
            A(f"s_mov_b32 s{sMMSK}, 0x000f000f"); A(f"s_mov_b32 s{sMMSK+1}, 0x000f000f")
            A(f"s_mov_b32 s{sODD}, 0"); A(f"s_mov_b32 s{sODD+1}, -1")
        else:
            A(f"s_mov_b32 s{sMMSK}, 0x33333333"); A(f"s_mov_b32 s{sMMSK+1}, 0")
            A(f"s_mov_b32 s{sODD}, 0xffff0000"); A(f"s_mov_b32 s{sODD+1}, 0xffff0000")
        A(f"s_mov_b32 s{sC}, {fbits(SC_C):#x}"); A(f"s_mov_b32 s{sC+1}, {fbits(SC_C):#x}")
        A(f"s_mov_b32 s{sTHR}, {fbits(-1.0 if self.force_slow else 40.0/SC_C):#x}")
        A(f"s_add_u32 s{sMb}, s{sWS}, {WS_MBUF}"); A(f"s_addc_u32 s{sMb+1}, s{sWS+1}, 0")
        A(f"s_add_u32 s{sHIST}, s{sWS}, {WS_MHIST}"); A(f"s_addc_u32 s{sHIST+1}, s{sWS+1}, 0")
        A(f"s_lshl_b32 s34, s{sH}, 13")
        A(f"s_add_u32 s{sKX}, s{sWS}, s34"); A(f"s_addc_u32 s{sKX+1}, s{sWS+1}, 0")
        A(f"s_add_u32 s{sVX}, s{sKX}, {WS_VX}"); A(f"s_addc_u32 s{sVX+1}, s{sKX+1}, 0")
        A(f"s_add_u32 s{sKX}, s{sKX}, {WS_KX}"); A(f"s_addc_u32 s{sKX+1}, s{sKX+1}, 0")

    def clear_slots(self):
        A = self.A
        for i in range(4): A(f"v_mov_b32 v{28+i}, -1")
        for par in range(2):
            A(f"s_lshl_b32 s34, s{sH}, 13"); A(f"s_add_u32 s34, s34, {WS_PBUF + par*0x40000}")
            A(f"s_add_u32 s36, s{sWS}, s34"); A(f"s_addc_u32 s37, s{sWS+1}, 0")
            A(f"global_store_dwordx4 {r(vAG)}, v[28:31], s[36:37] sc1"); A(f"global_store_dwordx4 {r(vAG)}, v[28:31], s[36:37] offset:1024 sc1")
        A(f"s_mov_b64 exec, {sp(sMMSK)}")
        for i in range(4):
            A(f"s_add_u32 s36, s{sMb}, {i*8192}"); A(f"s_addc_u32 s37, s{sMb+1}, 0")
            A(f"global_store_dword {r(vMst)}, v28, s[36:37] sc1")
        A("s_mov_b64 exec, -1")

    def load_weights(self):
        A = self.A; l = "v0"
        A("s_load_dwordx4 s[56:59], s[0:1], 16"); A("s_load_dwordx4 s[60:63], s[0:1], 32")
        A(f"v_lshrrev_b32 v24, 4, {l}")
        A(f"v_and_b32 v25, 15, {l}"); A("v_lshlrev_b32 v26, 1, v24"); A("v_xor_b32 v25, v25, v26"); A("v_lshlrev_b32 v25, 4, v25")
        A("v_lshlrev_b32 v24, 13, v24"); A("v_add_u32 v24, v24, v25")
        A(f"s_lshl_b32 s34, s{sW}, 17"); A(f"s_lshl_b32 s35, s{sH}, 8"); A("s_add_u32 s34, s34, s35")
        A("v_add_u32 v24, s34, v24"); A("v_xor_b32 v25, 128, v24")
        A(f"v_lshrrev_b32 v26, 4, {l}"); A(f"v_bfe_u32 v27, {l}, 2, 2"); A(f"v_and_b32 v28, 3, {l}")
        A("v_lshlrev_b32 v29, 3, v26"); A("v_add_u32 v29, v29, v27"); A("v_lshlrev_b32 v29, 8, v29")
        A("v_lshrrev_b32 v30, 1, v28")
        A("v_lshlrev_b32 v31, 1, v27"); A("v_and_b32 v32, 1, v26"); A("v_lshlrev_b32 v32, 3, v32"); A("v_add_u32 v31, v31, v32")
        A(f"s_lshl_b32 s34, s{sW}, 2"); A("v_add_u32 v30, s34, v30"); A("v_xor_b32 v30, v30, v31")
        A("v_lshlrev_b32 v30, 4, v30"); A("v_add_u32 v29, v29, v30")
        A("v_and_b32 v32, 1, v28"); A("v_lshlrev_b32 v32, 3, v32"); A("v_add_u32 v29, v29, v32")
        A(f"v_add_u32 v38, {L_WO}, v29"); A("v_xor_b32 v39, 32, v29"); A(f"v_add_u32 v39, {L_WO}, v39")
        A("v_add_u32 v36, 0x10000, v38"); A("v_add_u32 v37, 0x10000, v39")
        A("v_lshrrev_b32 v33, 1, v26"); A("v_lshlrev_b32 v33, 3, v33"); A("v_and_b32 v34, 1, v26"); A("v_lshlrev_b32 v34, 2, v34"); A("v_add_u32 v33, v33, v34")
        A("v_and_b32 v34, 1, v27"); A("v_add_u32 v33, v33, v34"); A("v_lshlrev_b32 v33, 10, v33"); A("v_add_u32 v33, v33, v32")
        A(f"s_lshl_b32 s34, s{sW}, 8"); A(f"s_add_u32 s34, s34, {L_WO}"); A("v_add_u32 v33, s34, v33")
        A("v_lshrrev_b32 v34, 1, v27"); A("v_lshlrev_b32 v34, 1, v34"); A("v_lshrrev_b32 v35, 1, v28"); A("v_add_u32 v34, v34, v35")
        A("v_and_b32 v35, 1, v27"); A("v_lshlrev_b32 v35, 1, v35"); A("v_lshrrev_b32 v40, 1, v26"); A("v_and_b32 v40, 1, v40"); A("v_lshlrev_b32 v40, 3, v40")
        A("v_add_u32 v35, v35, v40"); A("v_xor_b32 v34, v34, v35")
        A("s_waitcnt lgkmcnt(0)")
        def dma_qkv(c):
            mat, t = divmod(c, 8); slot = c % 8; base = 56 + 2*mat
            for i in range(4):
                off = (64*t + 4*i) * 8192
                A(f"s_add_u32 s36, s{base}, {off}"); A(f"s_addc_u32 s37, s{base+1}, 0")
                A(f"s_lshl_b32 s34, s{sW}, 12"); A(f"s_add_u32 m0, s34, {L_WO + slot*16384 + i*1024}")
                A(f"global_load_lds_dwordx4 v{24 + (i >> 1)}, s[36:37]")
        def dma_wo(slot):
            for i in range(4):
                A(f"s_lshr_b32 s34, s{sW}, 1"); A("s_lshl_b32 s34, s34, 3"); A(f"s_add_u32 s34, s34, {2*i}")
                A(f"v_xor_b32 v35, s34, {l}"); A("v_lshlrev_b32 v35, 4, v35")
                A(f"s_lshl_b32 s34, s{sH}, 17"); A(f"s_lshl_b32 s35, s{sW}, 12"); A("s_add_u32 s34, s34, s35")
                A(f"s_add_u32 s34, s34, {(16*slot + i)*1024}")
                A("s_add_u32 s36, s62, s34"); A("s_addc_u32 s37, s63, 0")
                A(f"s_lshl_b32 s34, s{sW}, 12"); A(f"s_add_u32 m0, s34, {L_WO + slot*16384 + i*1024}")
                A("global_load_lds_dwordx4 v35, s[36:37]")
        for c in range(8): dma_qkv(c)
        for c in range(24):
            mat, t = divmod(c, 8); slot = c % 8
            A("s_waitcnt vmcnt(28)"); A("s_barrier")
            if c == 0:
                L2 = A.newlabel("RC")
                A(f"s_cmp_lg_u32 s{sW}, 0"); A(f"s_cbranch_scc1 {L2}")
                A("v_mov_b32 v41, 0"); A("v_mov_b32 v42, s90"); A("s_mov_b64 exec, 1")
                A(f"global_atomic_add v41, v42, {sp(sDBG)} offset:{D_ROLL*4}")
                A("s_mov_b64 exec, -1")
                A.label(L2)
            for X in range(2):
                for q4 in range(4):
                    roff = [0, 4, 32, 36][q4] * 256
                    ridx = (X*8 + t)*8 + 2*q4
                    d = ar(ridx, 2) if mat == 0 else (ar(128 + ridx, 2) if mat == 1 else r(WV + ridx, 2))
                    so = slot*16384 + roff
                    if so < 65536: A(f"ds_read_b64_tr_b16 {d}, v{38+X} offset:{so}")
                    else: A(f"ds_read_b64_tr_b16 {d}, v{36+X} offset:{so-65536}")
            A("s_waitcnt lgkmcnt(0)"); A("s_barrier")
            if c + 8 < 24: dma_qkv(c + 8)
            else: dma_wo(slot)
        for hb in range(2):
            A("s_waitcnt vmcnt(16)" if hb == 0 else "s_waitcnt vmcnt(0)"); A("s_barrier")
            for dl in range(4):
                for u1 in range(2):
                    A(f"v_xor_b32 v35, {(4*dl) ^ (4*u1)}, v34"); A("v_lshlrev_b32 v35, 4, v35"); A("v_add_u32 v35, v35, v33")
                    if hb: A("v_add_u32 v35, 0x10000, v35")
                    for tl in range(2):
                        for u2 in range(2):
                            u = 2*u2 + u1
                            dst = 48 + (dl*2 + tl)*8 + 2*u
                            A(f"ds_read_b64_tr_b16 {r(dst, 2)}, v35 offset:{tl*32768 + u2*16384 + u1*2048}")
            A("s_waitcnt lgkmcnt(0)"); A("s_barrier")
            b = vWoA if hb == 0 else vWoB
            for st in range(8):
                for half in range(2):
                    A(f"ds_write_b128 {r(b)}, {r(48 + st*8 + 4*half, 4)} offset:{st*2048 + half*1024}")
            A("s_waitcnt lgkmcnt(0)")

    def dma_k(self):
        A = self.A
        A(f"s_lshl_b32 s34, s{sW}, 11"); A(f"s_add_u32 m0, s34, {L_KX}")
        A(f"global_load_lds_dwordx4 {r(vAG)}, {sp(sKX)}"); A(f"global_load_lds_dwordx4 {r(vAG)}, {sp(sKX)} offset:1024 sc1")
        A(f"s_add_u32 s{sKX}, s{sKX}, 0x40000"); A(f"s_addc_u32 s{sKX+1}, s{sKX+1}, 0")
    def dma_v(self):
        A = self.A
        A(f"s_lshl_b32 s34, s{sW}, 11"); A(f"s_add_u32 m0, s34, {L_VX}")
        A(f"global_load_lds_dwordx4 {r(vAG)}, {sp(sVX)}"); A(f"global_load_lds_dwordx4 {r(vAG)}, {sp(sVX)} offset:1024")
        A(f"s_add_u32 s{sVX}, s{sVX}, 0x40000"); A(f"s_addc_u32 s{sVX+1}, s{sVX+1}, 0")

    def preload_mem0(self):
        A = self.A
        A("s_load_dwordx2 s[36:37], s[0:1], 8"); A("s_waitcnt lgkmcnt(0)")
        A(f"s_mov_b64 exec, {sp(sMMSK)}")
        A("global_load_dword v126, v127, s[36:37]")
        A("s_mov_b64 exec, -1")
    def publish_mem0(self):
        A = self.A
        A(f"s_mov_b64 exec, {sp(sMMSK)}")
        A(f"global_store_dword {r(vMst)}, v126, {sp(sMb)}")
        if self.hist: A(f"global_store_dword {r(vMst)}, v126, {sp(sHIST)}")
        A("s_mov_b64 exec, -1")

    def salu_step(self):
        L = []; A = L.append
        A(f"s_and_b32 s34, s{sS}, 1"); A("s_lshl_b32 s34, s34, 18"); A(f"s_add_u32 s34, s34, {WS_PBUF}")
        A(f"s_add_u32 s{sPst}, s{sWS}, s34"); A(f"s_addc_u32 s{sPst+1}, s{sWS+1}, 0")
        A(f"s_add_u32 s24, s{sPst}, 32768"); A(f"s_addc_u32 s25, s{sPst+1}, 0")
        A(f"s_bfe_u32 s{sTAG}, s{sS}, 0x10001")
        A(f"s_add_u32 s34, s{sS}, 1"); A("s_and_b32 s35, s34, 3"); A("s_lshl_b32 s35, s35, 13")
        A(f"s_add_u32 s{sMn}, s{sMb}, s35"); A(f"s_addc_u32 s{sMn+1}, s{sMb+1}, 0")
        A("s_xor_b32 s35, s35, 0x4000")
        A(f"s_add_u32 s{sMz}, s{sMb}, s35"); A(f"s_addc_u32 s{sMz+1}, s{sMb+1}, 0")
        if self.hist:
            A("s_lshl_b32 s34, s34, 13"); A(f"s_add_u32 s{sHn}, s{sHIST}, s34"); A(f"s_addc_u32 s{sHn+1}, s{sHIST+1}, 0")
        A(f"s_lshl_b32 s34, s{sS}, 5"); A(f"s_add_u32 s34, s34, s{sH}")
        A("s_lshl_b32 s35, s34, 11"); A(f"s_add_u32 s35, s35, {WS_EK}"); A(f"s_add_u32 s{sEK}, s{sWS}, s35"); A(f"s_addc_u32 s{sEK+1}, s{sWS+1}, 0")
        A("s_lshl_b32 s35, s34, 13"); A(f"s_add_u32 s35, s35, {WS_EV}"); A(f"s_add_u32 s{sEV}, s{sWS}, s35"); A(f"s_addc_u32 s{sEV+1}, s{sWS+1}, 0")
        A(f"s_lshl_b32 s34, s{sS}, {CS}"); A(f"s_add_u32 s35, s34, {cnt_off(C_EXP) - 128}")
        A(f"s_cmp_eq_u32 s{sS}, 0"); A(f"s_cselect_b32 s35, {CNT_DUMMY}, s35")
        A(f"s_add_u32 s{sEXC}, s{sWS}, s35"); A(f"s_addc_u32 s{sEXC+1}, s{sWS+1}, 0")
        return L
    def shadow_prep(self):
        A = self.A
        for i in range(0, 16, 2): A(f"v_mov_b64 {r(AQ+i,2)}, 0")
        A(f"v_mov_b32 {r(SX)}, -1")

    def ag_poll_m(self, P="L"):
        A = self.A; b = Q; dep = self.ag_depth
        def issue():
            A(f"global_load_dwordx4 {r(b,4)}, {r(vAG)}, {sp(sMc)} sc1")
            A(f"global_load_dwordx4 {r(b+4,4)}, {r(vAG)}, {sp(sMc)} offset:1024 sc1")
        def check():
            A(f"v_max3_u32 {r(T0r)}, {r(b)}, {r(b+1)}, {r(b+2)}"); A(f"v_max3_u32 {r(T1r)}, {r(b+3)}, {r(b+4)}, {r(b+5)}")
            A(f"v_max3_u32 {r(T0r)}, {r(T0r)}, {r(b+6)}, {r(b+7)}"); A(f"v_max_u32 {r(T0r)}, {r(T0r)}, {r(T1r)}")
            A(f"v_cmp_eq_u32 vcc, -1, {r(T0r)}")
            A(f"s_cbranch_vccz {P}_agok")
            A("s_mov_b64 exec, vcc")
            issue()
            A(f"s_add_u32 s{sNAG}, s{sNAG}, 1")
        self.stamp(0)
        A(f"s_mov_b32 s{sCNT}, 0")
        self.shadow_prep()
        for i in range(self.ag_delay): A("s_nop 15")
        for k in range(dep):
            issue()
            if k < dep-1:
                for i in range(self.ag_gap): A("s_nop 15")
        A(f"global_store_dwordx4 {r(vAG)}, {r(SX,4)}, {sp(sPz)}"); A(f"global_store_dwordx4 {r(vAG)}, {r(SX,4)}, {sp(sPz)} offset:1024")
        A(f"s_mov_b64 exec, {sp(sMMSK)}"); A(f"global_store_dword {r(vMst)}, {r(SX)}, {sp(sMz)}"); A("s_mov_b64 exec, -1")
        for k in range(dep):
            A(f"s_waitcnt vmcnt({2*(dep-1) + 3})"); check()
        A.label(f"{P}_ag")
        A(f"s_waitcnt vmcnt({2*(dep-1)})"); check()
        A(f"s_add_u32 s{sCNT}, s{sCNT}, 1")
        A(f"s_cmp_lt_u32 s{sCNT}, 6000"); A(f"s_cbranch_scc1 {P}_ag")
        A(f"s_mov_b32 s{sFAIL}, 1"); A("s_waitcnt vmcnt(0)")
        A.label(f"{P}_agok")
        A("s_mov_b64 exec, -1")
        A(f"ds_write_b128 {r(vAG)}, {r(b,4)}"); A(f"ds_write_b128 {r(vAG)}, {r(b+4,4)} offset:1024")
        self.stamp(1)
        A("s_waitcnt lgkmcnt(0)")
        A("s_barrier")

    def ag_poll(self, P="L"):
        if self.nocomm or self.no_ag:
            A = self.A
            self.stamp(0)
            A(f"ds_write_b128 {r(vAG)}, {r(WV,4)}"); A(f"ds_write_b128 {r(vAG)}, {r(WV+4,4)} offset:1024")
            self.stamp(1); A("s_waitcnt lgkmcnt(0)"); A("s_barrier"); return
        if self.mpoll: return self.ag_poll_m(P)
        A = self.A
        n = self.ag_sets
        regs = [Q, Q+8, K, K+8][:n]
        def issue(b):
            A(f"global_load_dwordx4 {r(b,4)}, {r(vAG)}, {sp(sMc)} sc1")
            A(f"global_load_dwordx4 {r(b+4,4)}, {r(vAG)}, {sp(sMc)} offset:1024 sc1")
        def check(b):
            A(f"v_max3_u32 {r(T0r)}, {r(b)}, {r(b+1)}, {r(b+2)}"); A(f"v_max3_u32 {r(T1r)}, {r(b+3)}, {r(b+4)}, {r(b+5)}")
            A(f"ds_write_b128 {r(vAG)}, {r(b,4)}")
            A(f"v_max3_u32 {r(T0r)}, {r(T0r)}, {r(b+6)}, {r(b+7)}"); A(f"v_max_u32 {r(T0r)}, {r(T0r)}, {r(T1r)}")
            A(f"ds_write_b128 {r(vAG)}, {r(b+4,4)} offset:1024")
            A(f"v_cmp_eq_u32 vcc, -1, {r(T0r)}")
            A(f"s_cbranch_vccz {P}_agok")
            issue(b)
            A(f"s_add_u32 s{sNAG}, s{sNAG}, 1")
        self.stamp(0)
        A(f"s_mov_b32 s{sCNT}, 0")
        stv = self.exports and self.stash_v
        if stv:
            A(f"ds_read_b128 {r(OX,4)}, {r(vAG)}")
            A(f"s_mov_b32 s{sEVp}, s{sEV}"); A(f"s_mov_b32 s{sEVp+1}, s{sEV+1}")
        if not self.early_shadow: self.shadow_prep()
        for i in range(self.ag_delay): A("s_nop 15")
        for k, b in enumerate(regs):
            issue(b)
            if k < n-1:
                for i in range(self.ag_gap): A("s_nop 15")
        nres = 0
        if self.ag_reset:
            if not self.ptag:
                A(f"global_store_dwordx4 {r(vAG)}, {r(SX,4)}, {sp(sPz)}"); A(f"global_store_dwordx4 {r(vAG)}, {r(SX,4)}, {sp(sPz)} offset:1024")
            A(f"s_mov_b64 exec, {sp(sMMSK)}"); A(f"global_store_dword {r(vMst)}, {r(SX)}, {sp(sMz)}"); A("s_mov_b64 exec, -1")
            nres = 1 if self.ptag else 3
            if stv:
                A("s_waitcnt lgkmcnt(0)"); A(f"global_store_dwordx4 {r(vAG)}, {r(OX,4)}, {sp(sEVp)} sc1"); nres = 4
            for k, b in enumerate(regs):
                A(f"s_waitcnt vmcnt({2*(n-1) + nres})"); check(b)
        A.label(f"{P}_ag")
        for k, b in enumerate(regs):
            A(f"s_waitcnt vmcnt({2*(n-1)})"); check(b)
        A(f"s_add_u32 s{sCNT}, s{sCNT}, 1")
        A(f"s_cmp_lt_u32 s{sCNT}, 3000"); A(f"s_cbranch_scc1 {P}_ag")
        A(f"s_mov_b32 s{sFAIL}, 1"); A("s_waitcnt vmcnt(0)")
        A.label(f"{P}_agok")
        self.stamp(1)
        A("s_waitcnt lgkmcnt(0)")
        A("s_barrier")

    def exp_flag(self):
        return [f"s_mov_b64 exec, {sp(sXM)}", f"global_atomic_add {r(vL16)}, {r(vIDX)}, {sp(sEXC)}", "s_mov_b64 exec, -1"]

    def kv_fast(self):
        L = self.A.newlabel("KVR")
        self.kv_ret.append(L)
        return [f"s_cmp_ge_u32 s{sS}, s{sKVOK}", f"s_cbranch_scc1 KVSLOW", f"KVRET:"]
    def sm_slow_code(self):
        A = self.A; mx, t1 = T0r, T1r
        A.label("SMSLOW")
        A(f"v_max3_f32 {r(mx)}, {r(SX)}, {r(SX+1)}, {r(SX+2)}"); A(f"v_max3_f32 {r(t1)}, {r(SX+3)}, {r(SX+4)}, {r(SX+5)}")
        A(f"v_max3_f32 {r(mx)}, {r(mx)}, {r(SX+6)}, {r(SX+7)}"); A(f"v_max3_f32 {r(t1)}, {r(t1)}, {r(SM)}, {r(SM+1)}")
        A(f"v_max3_f32 {r(mx)}, {r(mx)}, {r(SM+2)}, {r(SM+3)}"); A(f"v_max_f32 {r(mx)}, {r(mx)}, {r(t1)}")
        A(f"v_mov_b32 {r(t1)}, {r(mx)}"); A(f"v_permlane16_swap_b32 {r(mx)}, {r(t1)}"); A(f"v_max_f32 {r(mx)}, {r(mx)}, {r(t1)}")
        A(f"v_mov_b32 {r(t1)}, {r(mx)}"); A(f"v_permlane32_swap_b32 {r(mx)}, {r(t1)}"); A(f"v_max_f32 {r(mx)}, {r(mx)}, {r(t1)}")
        for b in list(range(SX, SX+8)) + list(range(SM, SM+4)): A(f"v_sub_f32 {r(b)}, {r(b)}, {r(mx)}")
        A("s_nop 1")
        A("s_branch SMRET")

    def kv_slow_code(self, lab="KVSLOW", ret="KVRET", need_off=0):
        A = self.A
        A.label(lab)
        A("s_mov_b32 s35, 0")
        A.label(lab + "_l")
        A(f"v_lshlrev_b32 {r(T1r)}, 3, {r(vL16)}")
        A(f"global_load_dword {r(T0r)}, {r(T1r)}, {sp(sKVC)} sc1"); A("s_waitcnt vmcnt(0)")
        A(f"v_cmp_gt_u32 vcc, 32, {r(T0r)}")
        A("s_nop 3"); A("s_ff1_i32_b64 s34, vcc")
        A("s_cmp_eq_u32 s34, -1"); A("s_cselect_b32 s34, 64, s34")
        A(f"s_sub_u32 s{sKVOK}, s34, 1"); A("s_cmp_eq_u32 s34, 64"); A(f"s_cselect_b32 s{sKVOK}, 64, s{sKVOK}")
        A(f"s_cmp_lt_i32 s{sS}, s{sKVOK}"); A(f"s_cbranch_scc1 {ret}")
        A("s_sleep 4"); A("s_add_u32 s35, s35, 1"); A("s_cmp_lt_u32 s35, 60000"); A(f"s_cbranch_scc1 {lab}_l")
        A(f"s_mov_b32 s{sKVOK}, 64"); A(f"s_branch {ret}")

    def kv_check(self):
        A = self.A
        L = A.newlabel("KV"); E = A.newlabel("KVE")
        out = [f"v_readlane_b32 s34, {r(vMst)}, 2", "s_cmp_ge_u32 s34, 32", f"s_cbranch_scc1 {E}", "s_mov_b32 s35, 0", "s_mov_b64 exec, 4", f"{L}:",
               f"global_load_dword {r(vMst)}, {r(vL16)}, {sp(sKVC)} offset:-96 sc1", "s_waitcnt vmcnt(0)",
               f"v_readlane_b32 s34, {r(vMst)}, 2", "s_cmp_ge_u32 s34, 32", f"s_cbranch_scc1 {E}_x", "s_sleep 2",
               "s_add_u32 s35, s35, 1", "s_cmp_lt_u32 s35, 60000", f"s_cbranch_scc1 {L}", f"{E}_x:", "s_mov_b64 exec, -1", f"{E}:"]
        return out
    def kv_prefetch(self):
        return ["s_mov_b64 exec, 4", f"global_load_dword {r(vMst)}, {r(vL16)}, {sp(sKVC)} offset:-32 sc1", "s_mov_b64 exec, -1"]

    def weave(self, main, fill):
        A = self.A
        for x in fill.get(-1, []): A(x)
        for i, m in enumerate(main):
            A(m)
            for x in fill.get(i, []): A(x)
        for k in fill:
            assert k < len(main), (k, len(main))

    def step(self):
        A = self.A
        SMF = "v_smfmac_f32_16x16x64_bf16"; MF = "v_mfma_f32_16x16x32_bf16"; MF16 = "v_mfma_f32_16x16x16_bf16"
        st = lambda i: ([f"s_memtime s[{sST+2*i}:{sST+2*i+1}]"] if self.stamps else [])
        from collections import defaultdict
        self.stamp(2)
        kx0 = [K, K+4, K+8, K+12]; kx1 = [OX, OX+4, LX, SM]
        qs = [f"{SMF} {r(AQ+4*X,4)}, {r(M+4*t,4)}, {ar((X*8+t)*8, 8)}, {r(vIDX)}" for t in range(8) for X in range(2)]
        F = defaultdict(list)
        kxr = [f"ds_read_b128 {r(kx0[t],4)}, {r(vL16)} offset:{L_KX + t*1024}" for t in range(4)] + \
              [f"ds_read_b128 {r(kx1[t],4)}, {r(vL16)} offset:{L_KX + (4+t)*1024}" for t in range(4)]
        mr = [f"ds_read_b128 {r(M+4*t,4)}, {r(vL16)} offset:{L_STG + t*1024}" for t in range(8)]
        if not self.pipe_t0:
            for x in mr: A(x)
            F[-1].append("s_waitcnt lgkmcnt(7)")
            nk = 0
            for t in range(1, 8):
                slot = 2*t - 1
                F[slot].append(f"s_waitcnt lgkmcnt({min(15, 7 - t + nk)})")
                if t >= 4:
                    F[slot].append(kxr[nk]); nk += 1
                    F[slot+1 if slot+1 < 16 else slot].append(kxr[nk]); nk += 1
        else:
            LA = 3
            for x in mr[:LA]: A(x)
            seq = mr[LA:] + kxr
            F[-1].append(f"s_waitcnt lgkmcnt({LA-1})")
            issued = LA
            for sl in range(16):
                if sl < len(seq): F[sl].append(seq[sl]); issued += 1
                if sl % 2 == 1 and sl < 15:
                    t = (sl + 1)//2
                    F[sl].append(f"s_waitcnt lgkmcnt({min(15, issued - 1 - t)})")
            nk = 8
        if not self.ag_reset:
            F[0].append(f"global_store_dwordx4 {r(vAG)}, {r(SX,4)}, {sp(sPz)}")
            F[2].append(f"global_store_dwordx4 {r(vAG)}, {r(SX,4)}, {sp(sPz)} offset:1024")
            F[4] += [f"s_mov_b64 exec, {sp(sMMSK)}", f"global_store_dword {r(vMst)}, {r(SX)}, {sp(sMz)}", "s_mov_b64 exec, -1"]
            F[6] += ["s_waitcnt vmcnt(3)"]

        sl = self.salu_step()
        chunks = []; cur = []
        for x in sl:
            cur.append(x)
            if len(cur) >= 2 and not (x.startswith("s_add_u32") or x.startswith("s_cmp")): chunks.append(cur); cur = []
        if cur: chunks.append(cur)
        qslots = [13, 14, 15]
        for i, sl_ in enumerate(qslots): F[sl_] += chunks[i]
        self.kchunks = chunks[len(qslots):]
        self.weave(qs, F)
        assert nk == 8
        self.stamp(3)
        BAR = self.bar
        ks = [f"{SMF} {r(AK+4*X,4)}, {r(M+4*t,4)}, {ar(128+(X*8+t)*8, 8)}, {r(vIDX)}" for t in range(8) for X in range(2)]
        def post(acc, lds_off):
            return [f"v_permlane32_swap_b32 {r(acc+j)}, {r(acc+4+j)}" for j in range(4)] + \
                   [f"v_pk_add_f32 {r(acc,2)}, {r(acc,2)}, {r(acc+4,2)}", f"v_pk_add_f32 {r(acc+2,2)}, {r(acc+2,2)}, {r(acc+6,2)}",
                    f"v_cvt_pk_bf16_f32 {r(acc)}, {r(acc)}, {r(acc+1)}", f"v_cvt_pk_bf16_f32 {r(acc+1)}, {r(acc+2)}, {r(acc+3)}",
                    f"ds_write_b64 {r(vQW)}, {r(acc,2)} offset:{lds_off}"]
        F = defaultdict(list)
        F[1] += post(AQ, L_QB)
        F[8] += ["s_waitcnt vmcnt(0)"]
        if self.kbar:
            F[0] += ["s_waitcnt lgkmcnt(0)", "s_barrier"]
            if self.kvwait: F[0] += self.kv_fast()
            F[9] += [f"s_mov_b32 m0, s{sM0K}", f"global_load_lds_dwordx4 {r(vAG)}, {sp(sKX)} sc1"]
            F[13] += [f"global_load_lds_dwordx4 {r(vAG)}, {sp(sKX)} offset:1024 sc1", f"s_add_u32 s{sKX}, s{sKX}, 0x40000", f"s_addc_u32 s{sKX+1}, s{sKX+1}, 0"]
            if self.dmalat: F[13] += st(4) + ["s_waitcnt vmcnt(0)"] + st(6)
        kslots = [2, 3, 4, 5, 6, 7, 8, 10, 12, 14]
        assert len(self.kchunks) <= len(kslots), len(self.kchunks)
        for i, cch in enumerate(self.kchunks): F[kslots[i]] += cch
        for j in range(0, 8, 2): F[9 + j].append(f"v_mov_b64 {r(AQ+j,2)}, 0")
        self.weave(ks, F)
        self.stamp(5)
        vs = [f"{SMF} {r(AQ+4*X,4)}, {r(M+4*t,4)}, {r(WV+(X*8+t)*8, 8)}, {r(vIDX)}" for t in range(8) for X in range(2)]
        NV1 = self.nv1
        qtr = [f"ds_read_b64_tr_b16 {r(Q+4*t+2*hf,2)}, {r(vQR)} offset:{L_QB + t*512 + hf*256}" for t in range(4) for hf in range(2)]
        KF = M + 8
        ktr = [f"ds_read_b64_tr_b16 {r(KF+4*t+2*hf,2)}, {r(vQR)} offset:{L_KB + t*512 + hf*256}" for t in range(4) for hf in range(2)]
        F = defaultdict(list)
        kp = post(AK, L_KB)
        F[1] += kp
        if self.exports: F[2] += [f"global_store_dwordx2 {r(vQW)}, {r(AK,2)}, {sp(sEK)} sc1"]
        F[BAR] += ["s_waitcnt lgkmcnt(0)", "s_barrier"] + ([] if self.dmalat else st(6))
        if self.exports: F[BAR+1] += self.exp_flag()
        for i in range(4): F[BAR+i] += qtr[2*i:2*i+2]
        if self.kvwait and not self.kbar: F[BAR] += self.kv_fast()
        if not self.kbar: F[BAR+1] += [f"s_mov_b32 m0, s{sM0K}", f"global_load_lds_dwordx4 {r(vAG)}, {sp(sKX)} sc1"]
        if self.vearly:
            F[3] += [f"ds_read_b128 {r(M,4)}, {r(vAG)} offset:{L_VX}"]
            F[4] += [f"ds_read_b128 {r(M+4,4)}, {r(vAG)} offset:{L_VX + 1024}"]
            assert BAR >= 5
            F[BAR+1] += [f"s_mov_b32 m0, s{sM0V}", f"global_load_lds_dwordx4 {r(vAG)}, {sp(sVX)} sc1"]
            F[BAR+5] += [f"global_load_lds_dwordx4 {r(vAG)}, {sp(sVX)} offset:1024 sc1", f"s_add_u32 s{sVX}, s{sVX}, 0x40000", f"s_addc_u32 s{sVX+1}, s{sVX+1}, 0"]
        else:
            F[BAR+2] += [f"ds_read_b128 {r(M,4)}, {r(vAG)} offset:{L_VX}"]
            F[BAR+3] += [f"ds_read_b128 {r(M+4,4)}, {r(vAG)} offset:{L_VX + 1024}"]
        if not self.kbar: F[BAR+5] += [f"global_load_lds_dwordx4 {r(vAG)}, {sp(sKX)} offset:1024 sc1", f"s_add_u32 s{sKX}, s{sKX}, 0x40000", f"s_addc_u32 s{sKX+1}, s{sKX+1}, 0"]
        self.weave(vs[:NV1], F)
        assert NV1 >= 12
        for x in ktr: A(x)
        sx = [f"{MF} {r(SX+4*X,4)}, {r((kx0 if X == 0 else kx1)[t],4)}, {r(Q+4*t,4)}, {'0' if t == 0 else r(SX+4*X,4)}" for t in range(4) for X in range(2)]
        A("s_waitcnt lgkmcnt(8)")
        for x in sx: A(x)
        mx, t1 = T0r, T1r
        ab = (lambda x: f"|{x}|") if self.standin else (lambda x: x)
        pre = [f"v_max3_f32 {r(mx)}, {ab(r(SX))}, {ab(r(SX+1))}, {ab(r(SX+2))}", f"v_max3_f32 {r(t1)}, {ab(r(SX+4))}, {ab(r(SX+5))}, {ab(r(SX+6))}",
               f"v_max3_f32 {r(mx)}, {r(mx)}, {ab(r(SX+3))}, {ab(r(SX+7))}", f"v_max_f32 {r(mx)}, {r(mx)}, {r(t1)}"]
        A("s_waitcnt lgkmcnt(0)")
        for t in range(4):
            A(f"{MF} {r(SM,4)}, {r(KF+4*t,4)}, {r(Q+4*t,4)}, {'0' if t == 0 else r(SM,4)}")
            if t >= 1: A(pre[t-1])
        A(pre[3])
        self.stamp(7)
        sets = [Q, Q+8, K, K+8, M+8, M+16, M+24, AQ, M]
        def ldset(idx, reg):
            dl, t = divmod(idx, 4); b = vWoA if t < 2 else vWoB; o = (dl*2 + (t & 1))*2048
            return [f"ds_read_b128 {r(reg,4)}, {r(b)} offset:{o}", f"ds_read_b128 {r(reg+4,4)}, {r(b)} offset:{o+1024}"]
        F = defaultdict(list)
        rd = ldset(0, sets[0]) + ldset(1, sets[1])
        n2 = 16 - NV1
        if self.vearly: F[0] += [rd[0]]
        else:
            F[0] += [f"s_mov_b32 m0, s{sM0V}", rd[0]]
            F[0] += [f"global_load_lds_dwordx4 {r(vAG)}, {sp(sVX)} sc1"]
        for i in range(1, 4): F[min(i, n2-1)].append(rd[i])
        self.weave(vs[NV1:], F)
        mx, t1 = T0r, T1r
        rd = ldset(2, sets[2]) + ldset(3, sets[3]) + ldset(4, sets[4]) + ldset(5, sets[5]) + ldset(6, sets[6])
        vc = [f"v_cvt_pk_bf16_f32 {r(AK+2*X+h)}, {r(AQ+4*X+2*h)}, {r(AQ+4*X+2*h+1)}" for X in range(2) for h in range(2)]
        vdma2 = [f"global_load_lds_dwordx4 {r(vAG)}, {sp(sVX)} offset:1024 sc1", f"s_add_u32 s{sVX}, s{sVX}, 0x40000", f"s_addc_u32 s{sVX+1}, s{sVX+1}, 0"]
        ri = 0
        if self.standin:
            ab = lambda x: f"|{x}|"
            A(f"v_max3_f32 {r(mx)}, {r(mx)}, {ab(r(SM))}, {ab(r(SM+1))}"); A(f"v_max3_f32 {r(mx)}, {r(mx)}, {ab(r(SM+2))}, {ab(r(SM+3))}")
            A(f"v_cmp_lt_f32 vcc, s{sTHR}, {r(mx)}")
            for b in (SX, SX+2, SX+4, SX+6, SM, SM+2): A(f"v_pk_mul_f32 {r(b,2)}, {r(b,2)}, {sp(sC)}")
            if not self.vearly:
                for x in vdma2: A(x)
            A("s_cbranch_vccnz SMSLOW"); A.label("SMRET")
            for x in vc: A(x)
            if self.exports: A(f"global_store_dwordx4 {r(vAG)}, {r(AK,4)}, {sp(sEV)} sc1")
            if self.looptail: A(f"s_cmp_eq_u32 s{sS}, 63"); A("s_cbranch_scc1 L_fin")
        else:
            A(f"v_max3_f32 {r(mx)}, {r(mx)}, {r(SM)}, {r(SM+1)}"); A(f"v_max3_f32 {r(mx)}, {r(mx)}, {r(SM+2)}, {r(SM+3)}")
            A(f"v_mov_b32 {r(t1)}, {r(mx)}")
            if not self.vearly:
                for x in vdma2: A(x)
            A(f"v_permlane16_swap_b32 {r(mx)}, {r(t1)}"); A(f"v_max_f32 {r(mx)}, {r(mx)}, {r(t1)}")
            A(f"v_mov_b32 {r(t1)}, {r(mx)}"); A(rd[0]); A(rd[1])
            A(f"v_permlane32_swap_b32 {r(mx)}, {r(t1)}"); A(rd[2]); A(f"v_max_f32 {r(mx)}, {r(mx)}, {r(t1)}")
            ri = 3
            for x in vc: A(x)
            if self.exports: A(f"global_store_dwordx4 {r(vAG)}, {r(AK,4)}, {sp(sEV)} sc1")
            if self.looptail: A(f"s_cmp_eq_u32 s{sS}, 63"); A("s_cbranch_scc1 L_fin")
            A(f"v_mul_f32 {r(mx)}, s{sC}, {r(mx)}")
            def pkf(b): return f"v_pk_fma_f32 {r(b,2)}, {r(b,2)}, {sp(sC)}, {r(mx,2)} op_sel_hi:[1,1,0] neg_lo:[0,0,1] neg_hi:[0,0,1]"
            for b in (SX, SX+2, SX+4, SX+6, SM, SM+2): A(pkf(b))
        for i in range(8):
            A(f"v_exp_f32 {r(SX+i)}, {r(SX+i)}")
            if ri < len(rd): A(rd[ri]); ri += 1
        if not self.pvearly:
            for i in range(4): A(f"v_exp_f32 {r(SM+i)}, {r(SM+i)}")
        for i in range(4): A(f"v_cvt_pk_bf16_f32 {r(SX+i)}, {r(SX+2*i)}, {r(SX+2*i+1)}")
        while ri < len(rd): A(rd[ri]); ri += 1
        if not self.pvearly:
            for i in range(2): A(f"v_cvt_pk_bf16_f32 {r(SM+i)}, {r(SM+2*i)}, {r(SM+2*i+1)}")
        self.stamp(8)
        A("s_waitcnt lgkmcnt(14)")
        A(f"{MF} {r(LX,4)}, {r(vONE,4)}, {r(SX,4)}, 0")
        if self.pvearly: A(f"v_exp_f32 {r(SM)}, {r(SM)}")
        A(f"{MF} {r(OX,4)}, {r(M,4)}, {r(SX,4)}, 0")
        if self.pvearly: A(f"v_exp_f32 {r(SM+1)}, {r(SM+1)}")
        A(f"{MF} {r(OX+4,4)}, {r(M+4,4)}, {r(SX,4)}, 0")
        if self.pvearly:
            A(f"v_exp_f32 {r(SM+2)}, {r(SM+2)}"); A(f"v_exp_f32 {r(SM+3)}, {r(SM+3)}")
            for i in range(2): A(f"v_cvt_pk_bf16_f32 {r(SM+i)}, {r(SM+2*i)}, {r(SM+2*i+1)}")
        A(f"{MF16} {r(LX,4)}, {r(vHALF,2)}, {r(SM,2)}, {r(LX,4)}")
        for X in range(2): A(f"{MF16} {r(OX+4*X,4)}, {r(AK+2*X,2)}, {r(SM,2)}, {r(OX+4*X,4)}")
        rd = ldset(7, sets[7]) + ldset(8, sets[8])
        for x in rd: A(x)
        A(f"v_rcp_f32 {r(mx)}, {r(LX)}")
        for X in range(2):
            o = OX + 4*X
            A(f"v_pk_mul_f32 {r(o,2)}, {r(o,2)}, {r(mx,2)} op_sel_hi:[1,0]"); A(f"v_pk_mul_f32 {r(o+2,2)}, {r(o+2,2)}, {r(mx,2)} op_sel_hi:[1,0]")
            A(f"v_cvt_pk_bf16_f32 {r(o)}, {r(o)}, {r(o+1)}"); A(f"v_cvt_pk_bf16_f32 {r(o+1)}, {r(o+2)}, {r(o+3)}")
            A(f"ds_write_b64 {r(vOW)}, {r(o,2)} offset:{X*32}")
        self.stamp(9)
        ACC = AK
        for i in range(0, 16, 2): A(f"v_mov_b64 {r(ACC+i,2)}, 0")
        A("s_waitcnt lgkmcnt(0)"); A("s_barrier")
        self.stamp(10)
        OF = SM
        for t in range(4): A(f"ds_read_b128 {r(OF+4*t,4)}, {r(vOR)} offset:{t*64}")
        reg_of = {i: sets[i] for i in range(9)}
        main = []; F = defaultdict(list)
        issued = []
        nxt = 9
        for idx in range(16):
            dl, t = divmod(idx, 4)
            main.append(None)
        lds_out = ['o0', 'o1', 'o2', 'o3']
        def wait_for(tag):
            if tag in lds_out:
                last = max(i for i, x in enumerate(lds_out) if x == tag)
                n = len(lds_out) - 1 - last
                A(f"s_waitcnt lgkmcnt({min(n,15)})")
                del lds_out[:last+1]
        pend = []
        for idx in range(16):
            dl, t = divmod(idx, 4)
            if dl == 0: wait_for(f'o{t}')
            if idx >= 9: wait_for(f's{idx}')
            A(f"{SMF} {r(ACC+4*dl,4)}, {r(OF+4*t,4)}, {r(reg_of[idx],8)}, {r(vIDX)}")
            if nxt < 16:
                reg_of[nxt] = reg_of[idx]
                for x in ldset(nxt, reg_of[nxt]): pend.append((x, f's{nxt}'))
                nxt += 1
            n = (1 if idx >= 3 else 2) if self.wo_spread else 99
            if self.wo_spread and idx >= 8: n = 2
            for _ in range(n):
                if pend:
                    x, tg = pend.pop(0); A(x); lds_out.append(tg)
            if self.rs_var == 'C':
                a = ACC
                if idx == 5: A(f"v_cvt_pk_bf16_f32 {r(a)}, {r(a)}, {r(a+1)}")
                if idx == 6: A(f"v_cvt_pk_bf16_f32 {r(a+1)}, {r(a+2)}, {r(a+3)}")
                if idx == 9: A(f"v_cvt_pk_bf16_f32 {r(a+2)}, {r(a+4)}, {r(a+5)}")
                if idx == 10:
                    A(f"v_cvt_pk_bf16_f32 {r(a+3)}, {r(a+6)}, {r(a+7)}")
                    if self.ptag: A(f"v_bfi_b32 {r(a)}, 1, s{sTAG}, {r(a)}")
                    A(f"global_store_dwordx4 {r(vPst)}, {r(a,4)}, {sp(sPst)}")
                a = ACC + 8
                if idx == 13: A(f"v_cvt_pk_bf16_f32 {r(a)}, {r(a)}, {r(a+1)}")
                if idx == 14: A(f"v_cvt_pk_bf16_f32 {r(a+1)}, {r(a+2)}, {r(a+3)}")
            elif t == 2 and dl >= 1:
                a = ACC + 4*(dl-1)
                A(f"v_cvt_pk_bf16_f32 {r(a)}, {r(a)}, {r(a+1)}"); A(f"v_cvt_pk_bf16_f32 {r(a+1)}, {r(a+2)}, {r(a+3)}")
                A(f"global_store_dwordx2 {r(vPst)}, {r(a,2)}, {sp(sPst+2*(dl-1))}")
        assert not pend
        if self.rs_var == 'C':
            a = ACC + 8
            A(f"v_cvt_pk_bf16_f32 {r(a+2)}, {r(a+4)}, {r(a+5)}"); A(f"v_cvt_pk_bf16_f32 {r(a+3)}, {r(a+6)}, {r(a+7)}")
            if self.ptag: A(f"v_bfi_b32 {r(a)}, 1, s{sTAG}, {r(a)}")
            A(f"global_store_dwordx4 {r(vPst)}, {r(a,4)}, s[24:25]")
        else:
            a = ACC + 12
            A(f"v_cvt_pk_bf16_f32 {r(a)}, {r(a)}, {r(a+1)}"); A(f"v_cvt_pk_bf16_f32 {r(a+1)}, {r(a+2)}, {r(a+3)}")
            A(f"global_store_dwordx2 {r(vPst)}, {r(a,2)}, {sp(sPst+6)}")
        self.stamp(11)
        if self.ackstamp:
            A("s_waitcnt vmcnt(0)"); self.stamp(4)
        sRD = sPst
        if self.early_shadow:
            sRD = sPrd2
            A(f"s_mov_b32 s{sPrd2}, s{sPst}"); A(f"s_mov_b32 s{sPrd2+1}, s{sPst+1}")
            A(f"s_mov_b32 s{sMc}, s{sMn}"); A(f"s_mov_b32 s{sMc+1}, s{sMn+1}")
            if self.hist: A(f"s_mov_b32 s{sHn2}, s{sHn}"); A(f"s_mov_b32 s{sHn2+1}, s{sHn+1}")
            if self.ptag: A(f"s_mov_b32 s{sTAG+1}, s{sTAG}")
            A(f"s_add_u32 s{sS}, s{sS}, 1")
            self.shadow_prep()
        def off(i): return i*1024-4096 if self.p_layout == 0 else i*256
        n = self.rs_sets
        regs = [Q, Q+8, K, K+8][:n]
        D = M
        def issue(b):
            if self.rs_var in 'AC':
                A(f"global_load_dwordx4 {r(b,4)}, {r(vRS)}, {sp(sRD)} sc1"); A(f"global_load_dwordx4 {r(b+4,4)}, {r(vRS)}, {sp(sRD)} offset:{2048 if self.cfull else 1024} sc1")
            else:
                for i in range(8): A(f"global_load_dword {r(b+i)}, {r(vRS)}, {sp(sRD)} offset:{off(i)} sc1")
        NLD = 2 if self.rs_var in 'AC' else 8
        if self.nocomm or self.no_rs:
            A(f"{MF} {r(D,4)}, {r(vSEL,4)}, {r(WV,4)}, 0"); A(f"{MF} {r(D,4)}, {r(vSEL,4)}, {r(WV+4,4)}, {r(D,4)}")
        elif self.mpoll:
            b = Q; dep = self.rs_depth
            A(f"s_mov_b32 s{sCNT}, 0")
            for i in range(self.rs_delay): A("s_nop 15")
            for k in range(dep):
                issue(b)
                if k < dep-1:
                    for i in range(self.rs_gap): A("s_nop 15")
            A.label("L_rs")
            A(f"s_waitcnt vmcnt({NLD*(dep-1)})")
            A(f"v_max3_u32 {r(T0r)}, {r(b)}, {r(b+1)}, {r(b+2)}"); A(f"v_max3_u32 {r(T1r)}, {r(b+3)}, {r(b+4)}, {r(b+5)}")
            A(f"v_max3_u32 {r(T0r)}, {r(T0r)}, {r(b+6)}, {r(b+7)}"); A(f"v_max_u32 {r(T0r)}, {r(T0r)}, {r(T1r)}")
            A(f"v_cmp_eq_u32 vcc, -1, {r(T0r)}")
            A("s_cbranch_vccz L_rsok0")
            A("s_mov_b64 exec, vcc")
            issue(b)
            A(f"s_add_u32 s{sNRS}, s{sNRS}, 1")
            A(f"s_add_u32 s{sCNT}, s{sCNT}, 1")
            A(f"s_cmp_lt_u32 s{sCNT}, 6000"); A("s_cbranch_scc1 L_rs")
            A(f"s_mov_b32 s{sFAIL}, 2")
            A.label("L_rsok0")
            A("s_mov_b64 exec, -1")
            A(f"{MF} {r(D,4)}, {r(vSEL,4)}, {r(b,4)}, 0"); A(f"{MF} {r(D,4)}, {r(vSEL,4)}, {r(b+4,4)}, {r(D,4)}")
        else:
            A(f"s_mov_b32 s{sCNT}, 0")
            for i in range(self.rs_delay): A("s_nop 15")
            for k, b in enumerate(regs):
                issue(b)
                if k < n-1:
                    for i in range(self.rs_gap): A("s_nop 15")
            A.label("L_rs")
            for k, b in enumerate(regs):
                A(f"s_waitcnt vmcnt({NLD*(n-1)})")
                if self.ptag:
                    A(f"v_xor_b32 {r(T0r)}, s{sTAG+1}, {r(b)}"); A(f"v_xor_b32 {r(T1r)}, s{sTAG+1}, {r(b+4)}")
                    A(f"{MF} {r(D,4)}, {r(vSEL,4)}, {r(b,4)}, 0")
                    A(f"v_or_b32 {r(T0r)}, {r(T0r)}, {r(T1r)}"); A(f"v_and_b32 {r(T0r)}, 1, {r(T0r)}")
                    A(f"{MF} {r(D,4)}, {r(vSEL,4)}, {r(b+4,4)}, {r(D,4)}")
                    A(f"v_cmp_ne_u32 vcc, 0, {r(T0r)}")
                else:
                    A(f"v_max3_u32 {r(T0r)}, {r(b)}, {r(b+1)}, {r(b+2)}"); A(f"v_max3_u32 {r(T1r)}, {r(b+3)}, {r(b+4)}, {r(b+5)}")
                    A(f"{MF} {r(D,4)}, {r(vSEL,4)}, {r(b,4)}, 0")
                    A(f"v_max3_u32 {r(T0r)}, {r(T0r)}, {r(b+6)}, {r(b+7)}"); A(f"v_max_u32 {r(T0r)}, {r(T0r)}, {r(T1r)}")
                    A(f"{MF} {r(D,4)}, {r(vSEL,4)}, {r(b+4,4)}, {r(D,4)}")
                    A(f"v_cmp_eq_u32 vcc, -1, {r(T0r)}")
                A("s_cbranch_vccz L_rsok")
                issue(b)
                A(f"s_add_u32 s{sNRS}, s{sNRS}, 1")
            A(f"s_add_u32 s{sCNT}, s{sCNT}, 1")
            A(f"s_cmp_lt_u32 s{sCNT}, 2000"); A("s_cbranch_scc1 L_rs")
            A(f"s_mov_b32 s{sFAIL}, 2")
        A.label("L_rsok")
        self.stamp(12)
        if not self.early_shadow:
            A(f"s_add_u32 s{sS}, s{sS}, 1")
            A(f"s_mov_b32 s{sMc}, s{sMn}"); A(f"s_mov_b32 s{sMc+1}, s{sMn+1}")
        D = M
        if self.rs_var == 'C':
            for j in range(4): A(f"v_add_f32_dpp {r(D+j)}, {r(D+j)}, {r(D+j)} row_ror:4 row_mask:0xf bank_mask:0xf")
            for j in range(4): A(f"v_add_f32_dpp {r(D+j)}, {r(D+j)}, {r(D+j)} row_ror:8 row_mask:0xf bank_mask:0xf")
            A(f"v_cndmask_b32 {r(D)}, {r(D)}, {r(D+1)}, {sp(sHB)}"); A(f"v_cndmask_b32 {r(D+2)}, {r(D+2)}, {r(D+3)}, {sp(sHB)}")
            A(f"v_cndmask_b32 {r(D)}, {r(D)}, {r(D+2)}, {sp(sHB2)}")
            A(f"v_mov_b32_dpp {r(D+1)}, {r(D)} quad_perm:[1,1,3,3] row_mask:0xf bank_mask:0xf")
            A(f"v_cvt_pk_bf16_f32 {r(D)}, {r(D)}, {r(D+1)}")
        elif self.rs_var == 'A':
            for j in range(4): A(f"v_add_f32_dpp {r(D+j)}, {r(D+j)}, {r(D+j)} row_ror:4 row_mask:0xf bank_mask:0xf")
            for j in range(4): A(f"v_add_f32_dpp {r(D+j)}, {r(D+j)}, {r(D+j)} row_ror:8 row_mask:0xf bank_mask:0xf")
            A(f"v_permlane16_swap_b32 {r(D)}, {r(D+1)}"); A(f"v_permlane16_swap_b32 {r(D+2)}, {r(D+3)}")
            A(f"v_cvt_pk_bf16_f32 {r(D)}, {r(D)}, {r(D+1)}"); A(f"v_cvt_pk_bf16_f32 {r(D+2)}, {r(D+2)}, {r(D+3)}")
            A(f"v_cndmask_b32 {r(D)}, {r(D)}, {r(D+2)}, {sp(sODD)}")
        else:
            A(f"v_mov_b32_dpp {r(D+2)}, {r(D)} quad_perm:[2,3,2,3] row_mask:0xf bank_mask:0xf")
            A(f"v_mov_b32_dpp {r(D+3)}, {r(D+1)} quad_perm:[2,3,2,3] row_mask:0xf bank_mask:0xf")
            A(f"v_cvt_pk_bf16_f32 {r(D)}, {r(D)}, {r(D+2)}"); A(f"v_cvt_pk_bf16_f32 {r(D+1)}, {r(D+1)}, {r(D+3)}")
            A(f"v_cndmask_b32 {r(D)}, {r(D)}, {r(D+1)}, {sp(sODD)}")
        A(f"s_mov_b64 exec, {sp(sMMSK)}")
        A(f"v_min_u32 {r(D)}, -2, {r(D)}")
        A(f"global_store_dword {r(vMst)}, {r(D)}, {sp(sMc)}")
        if self.hist: A(f"global_store_dword {r(vMst)}, {r(D)}, {sp(sHn2 if self.early_shadow else sHn)}")
        A("s_mov_b64 exec, -1")
        self.stamp(13)
        if self.steplog:
            A("s_memtime s[64:65]"); A("s_memrealtime s[66:67]"); A("s_waitcnt lgkmcnt(0)")
            A(f"s_lshl_b32 s34, s{sH}, 2"); A(f"s_add_u32 s34, s34, s{sW}"); A("s_lshl_b32 s34, s34, 6"); A(f"s_add_u32 s34, s34, s{sS}"); A("s_lshl_b32 s34, s34, 4")
            A(f"s_add_u32 s34, s34, {WS_STAMP + 0x10000}")
            A(f"v_mov_b32 {r(M+4)}, s34"); A(f"v_mov_b32 {r(M+8)}, s64"); A(f"v_mov_b32 {r(M+9)}, s{sNAG}"); A(f"v_mov_b32 {r(M+10)}, s{sNRS}"); A(f"v_mov_b32 {r(M+11)}, s66")
            A("s_mov_b64 exec, 1"); A(f"global_store_dwordx4 {r(M+4)}, {r(M+8,4)}, {sp(sWS)}"); A("s_mov_b64 exec, -1")


    def tail(self):
        A = self.A
        SMF = "v_smfmac_f32_16x16x64_bf16"
        self.ag_poll("T")
        for x in self.salu_step(): A(x)
        for t in range(8): A(f"ds_read_b128 {r(M+4*t,4)}, {r(vL16)} offset:{L_STG + t*1024}")
        for x in self.exp_flag(): A(x)
        A("s_waitcnt lgkmcnt(0)")
        for t in range(8):
            for X in range(2): A(f"{SMF} {r(AK+4*X,4)}, {r(M+4*t,4)}, {ar(128+(X*8+t)*8, 8)}, {r(vIDX)}")
        for t in range(8):
            for X in range(2): A(f"{SMF} {r(AQ+4*X,4)}, {r(M+4*t,4)}, {r(WV+(X*8+t)*8, 8)}, {r(vIDX)}")
        for j in range(4): A(f"v_permlane32_swap_b32 {r(AK+j)}, {r(AK+4+j)}")
        A(f"v_pk_add_f32 {r(AK,2)}, {r(AK,2)}, {r(AK+4,2)}"); A(f"v_pk_add_f32 {r(AK+2,2)}, {r(AK+2,2)}, {r(AK+6,2)}")
        A(f"v_cvt_pk_bf16_f32 {r(AK)}, {r(AK)}, {r(AK+1)}"); A(f"v_cvt_pk_bf16_f32 {r(AK+1)}, {r(AK+2)}, {r(AK+3)}")
        A(f"global_store_dwordx2 {r(vQW)}, {r(AK,2)}, {sp(sEK)} sc1")
        for X in range(2):
            A(f"v_cvt_pk_bf16_f32 {r(SX+2*X)}, {r(AQ+4*X)}, {r(AQ+4*X+1)}"); A(f"v_cvt_pk_bf16_f32 {r(SX+2*X+1)}, {r(AQ+4*X+2)}, {r(AQ+4*X+3)}")
        A(f"global_store_dwordx4 {r(vAG)}, {r(SX,4)}, {sp(sEV)} sc1")
        A("s_waitcnt vmcnt(0)"); A("s_barrier")
        A(f"s_add_u32 s{sEXC}, s{sEXC}, 128"); A(f"s_addc_u32 s{sEXC+1}, s{sEXC+1}, 0")
        for x in self.exp_flag(): A(x)
        A("s_waitcnt vmcnt(0)")

def gen_chain(A, U, o):
    kw = dict(o.get('chain_opts', {}))
    C = Chain(A, U, **kw)
    A(f"s_mov_b32 s{sH}, s{sROLE}")
    A(f"s_cmp_eq_u32 s{sXCC}, 0"); A("s_cselect_b32 s90, 0x10001, 1")
    C.setup_consts()
    C.preload_mem0()
    C.clear_slots()
    C.load_weights()
    tl_stamp(A, o.get('tl'), 0, 1, vr=(120, 121))
    U.add64(sKVC, sWS, cnt_off(C_KV, 0))
    A(f"s_cmp_eq_u32 s{sW}, 0"); A(f"s_cselect_b32 s{sXM}, 1, 0"); A(f"s_mov_b32 s{sXM+1}, 0")
    Lw = A.newlabel("SW"); Le = A.newlabel("SWE"); Ls = A.newlabel("SWS")
    A(f"s_cmp_lg_u32 s{sW}, 0"); A(f"s_cbranch_scc1 {Ls}")
    A("v_mov_b32 v24, 0"); A("s_mov_b32 s36, 0")
    A.label(Lw)
    A(f"global_load_dword v25, v24, {sp(sDBG)} offset:{D_ROLL*4} sc1"); A(f"global_load_dword v26, v24, {sp(sDBG)} offset:{D_INIT*4} sc1")
    A(f"global_load_dword v27, v24, {sp(sKVC)} sc1"); A(f"global_load_dword v28, v24, {sp(sDBG)} offset:{D_CLR*4} sc1"); A("s_waitcnt vmcnt(0)")
    A("v_readfirstlane_b32 s37, v25"); A("v_readfirstlane_b32 s38, v26"); A("v_readfirstlane_b32 s39, v27")
    A("s_lshr_b32 s35, s37, 16"); A("s_and_b32 s37, s37, 0xffff")
    A("s_cmp_ge_u32 s37, 32"); A("s_cselect_b32 s37, 1, 0"); A("s_cmp_ge_u32 s38, 1"); A("s_cselect_b32 s37, s37, 0")
    if C.kvwait: A("s_cmp_ge_u32 s39, 32"); A("s_cselect_b32 s37, s37, 0")
    if o.get('dpoll', True): A("v_readfirstlane_b32 s38, v28"); A("s_cmp_ge_u32 s38, 8"); A("s_cselect_b32 s37, s37, 0")
    A("s_cmp_lg_u32 s37, 0"); A(f"s_cbranch_scc1 {Le}")
    A("s_sleep 1"); A("s_add_u32 s36, s36, 1"); A("s_cmp_lt_u32 s36, 60000"); A(f"s_cbranch_scc1 {Lw}")
    A.label(Le)
    A(f"v_mov_b32 v24, {L_KB}"); A("v_mov_b32 v25, s35"); A("ds_write_b32 v24, v25"); A("s_waitcnt lgkmcnt(0)")
    A.label(Ls)
    A("s_barrier")
    A(f"v_mov_b32 v24, {L_KB}"); A("ds_read_b32 v25, v24"); A("s_waitcnt lgkmcnt(0)"); A("v_readfirstlane_b32 s90, v25")
    A("s_barrier")
    A(f"s_mov_b32 s{sKVOK}, 0")
    tl_stamp(A, o.get('tl'), 0, 2, vr=(120, 121))
    C.dma_k(); C.dma_v()
    A(f"s_mov_b32 s{sFAIL}, 0"); A(f"s_mov_b32 s{sS}, 0"); A(f"s_mov_b32 s{sNAG}, 0"); A(f"s_mov_b32 s{sNRS}, 0")
    A(f"s_mov_b32 s{sMc}, s{sMb}"); A(f"s_mov_b32 s{sMc+1}, s{sMb+1}")
    U.add64(sEV, sWS, 0x380000)
    A(f"s_lshl_b32 s34, s{sW}, 11"); A(f"s_add_u32 s{sM0K}, s34, {L_KX}"); A(f"s_add_u32 s{sM0V}, s34, {L_VX}")
    U.add64(sMz, sMb, 2*8192)
    C.shadow_prep()
    A("s_cmp_lg_u32 s90, 32"); A("s_cbranch_scc1 L_safe_S" if not o.get('force_safe') else "s_branch L_safe_S")
    n_main = len(A.L)
    C.publish_mem0()
    tl_stamp(A, o.get('tl'), 0, 3, vr=(120, 121))
    A.label("L_loop")
    C.ag_poll("L")
    n0 = len(A.L)
    C.step()
    if C.nodma: A.L[n0:] = [x for x in A.L[n0:] if not x.startswith("global_load_lds")]
    A.L[n0:] = [x.replace(" sc1", " " + C.dmaflag) if x.startswith("global_load_lds") else x for x in A.L[n0:]]
    if C.looptail:
        A("s_branch L_loop")
        A.label("L_fin")
        tl_stamp(A, o.get('tl'), 0, 4, vr=(120, 121))
        A("s_waitcnt vmcnt(0) lgkmcnt(0)"); A("s_barrier")
        A(f"s_add_u32 s{sEXC}, s{sEXC}, 128"); A(f"s_addc_u32 s{sEXC+1}, s{sEXC+1}, 0")
        for x in C.exp_flag(): A(x)
        A("s_waitcnt vmcnt(0)")
    else:
        A(f"s_cmp_lt_u32 s{sS}, 63"); A("s_cbranch_scc1 L_loop")
        tl_stamp(A, o.get('tl'), 0, 4, vr=(120, 121))
        C.tail()
    tl_stamp(A, o.get('tl'), 0, 5, vr=(120, 121))
    A("s_branch L_chain_done")
    if C.kvwait: C.kv_slow_code()
    if C.standin: C.sm_slow_code()
    import re
    main = A.L[n_main:]
    labels = [x[:-1] for x in main if re.fullmatch(r"\w+:", x)]
    A.label("L_safe_S")
    for x in main:
        for lb in labels: x = re.sub(r"\b" + lb + r"\b", lb + "_S", x)
        if x.startswith("global_store") and " sc1" not in x: x += " sc1"
        A(x)
    A.label("L_chain_done")
    if C.stamps:
        A(f"s_lshl_b32 s34, s{sH}, 2"); A(f"s_add_u32 s34, s34, s{sW}"); A("s_lshl_b32 s34, s34, 6"); A(f"s_add_u32 s34, s34, {WS_STAMP}")
        A(f"s_add_u32 s36, s{sWS}, s34"); A(f"s_addc_u32 s37, s{sWS+1}, 0")
        A("s_mov_b64 exec, 1"); A("v_mov_b32 v24, 0")
        for q in range(4):
            for i in range(4): A(f"v_mov_b32 v{32+4*q+i}, s{sST+2*(4*q+i)}" if 4*q+i < 14 else f"v_mov_b32 v{32+4*q+i}, s{sNAG + (4*q+i-14)}")
            A(f"global_store_dwordx4 v24, v[{32+4*q}:{35+4*q}], s[36:37] offset:{16*q}")
        A("s_waitcnt vmcnt(0)"); A("s_mov_b64 exec, -1")
```

```python
import struct
from asmlib import Prog
def r(b, n=1): return f"v{b}" if n == 1 else f"v[{b}:{b+n-1}]"
def ar(b, n=1): return f"a{b}" if n == 1 else f"a[{b}:{b+n-1}]"
def sp(b, n=2): return f"s[{b}:{b+n-1}]"
def fbits(x): return struct.unpack('<I', struct.pack('<f', x))[0]

KA = dict(x=0, mem0=8, Wq=16, Wk=24, Wv=32, Wo=40, seglen=48, Bx=56, w1=64, b1=72, w2=80, b2=88, c=96, wmod=104, out=112, dbg=120, ws=128)
WS_CNT = 0x0
C_HRDY, C_KV, C_QD, C_EXP, C_AD, C_R1, C_R1B, C_CD, C_CDB = range(9)
NCNT = 9
CS = 7
def cnt_off(arr, s=0): return arr*8192 + s*128
CNT_DUMMY = NCNT*8192
WS_MOD  = 0x20000
WS_PBUF = 0x100000
WS_MBUF = 0x200000
WS_MHIST = 0x210000
WS_STAMP = 0x300000
WS_HF   = 0x400000
WS_H2F  = 0x600000
WS_X1   = 0x800000
WS_KX   = 0x2000000
WS_VX   = 0x3000000
WS_QX   = 0x4000000
WS_EK   = 0x5000000
WS_EV   = 0x5400000
WS_YP   = 0x6400000
WS_FP   = 0x7400000
D_XT = 0; D_WT = 1; D_INIT = 2; D_ROLL = 3; D_MODA = 32; D_MODB = 48; D_CLR = 40
LASTSEG = 61
sWS = 4; sDBG = 6; sXCC = 8; sROLE = 9; sH = 10; sW = 11
LDS_TOTAL = 163584
L_MISC = 160768

class Util:
    def __init__(self, A): self.A = A
    def add64(self, d, s, off):
        A = self.A
        A(f"s_add_u32 s{d}, s{s}, {off}"); A(f"s_addc_u32 s{d+1}, s{s+1}, 0")
    def wait_cnt(self, base, target, tmpv=(250, 251), tmps=(96, 97), off=0, bound=200000, sleep=4):
        A = self.A
        L = A.newlabel("W"); E = A.newlabel("WE")
        va, vd = tmpv; sc, sv = tmps
        A(f"v_mov_b32 v{va}, 0"); A(f"s_mov_b32 s{sc}, 0")
        A.label(L)
        A(f"global_load_dword v{vd}, v{va}, {sp(base)} offset:{off} sc1")
        A("s_waitcnt vmcnt(0)")
        A(f"v_readfirstlane_b32 s{sv}, v{vd}")
        A(f"s_cmp_ge_u32 s{sv}, {target}"); A(f"s_cbranch_scc1 {E}")
        A(f"s_sleep {sleep}")
        A(f"s_add_u32 s{sc}, s{sc}, 1"); A(f"s_cmp_lt_u32 s{sc}, {bound}"); A(f"s_cbranch_scc1 {L}")
        A.label(E)
    def wait_cnt2(self, base, target, tmpv=(250, 251, 249), tmps=(96, 97), off=0, bound=200000, sleep=0):
        A = self.A
        L = A.newlabel("W2"); E = A.newlabel("W2E")
        va, v0_, v1_ = tmpv; sc, sv = tmps
        A(f"v_mov_b32 v{va}, 0"); A(f"s_mov_b32 s{sc}, 0")
        A(f"global_load_dword v{v0_}, v{va}, {sp(base)} offset:{off} sc1")
        A("s_sleep 2")
        A.label(L)
        for a, b in ((v0_, v1_), (v1_, v0_)):
            A(f"global_load_dword v{b}, v{va}, {sp(base)} offset:{off} sc1")
            A("s_waitcnt vmcnt(1)")
            A(f"v_readfirstlane_b32 s{sv}, v{a}")
            A(f"s_cmp_ge_u32 s{sv}, {target}"); A(f"s_cbranch_scc1 {E}")
            if sleep: A(f"s_sleep {sleep}")
        A(f"s_add_u32 s{sc}, s{sc}, 1"); A(f"s_cmp_lt_u32 s{sc}, {bound}"); A(f"s_cbranch_scc1 {L}")
        A.label(E)
    def wait_cnt1(self, base, target, fast=False, seg=None, last=61, **kw):
        A = self.A
        L = A.newlabel("W1")
        A(f"s_cmp_lg_u32 s{sW}, 0"); A(f"s_cbranch_scc1 {L}")
        if fast:
            F = A.newlabel("W1F")
            A(f"s_cmp_ge_u32 s{seg}, {last}"); A(f"s_cbranch_scc1 {F}")
            self.wait_cnt(base, target, **kw)
            A(f"s_branch {L}")
            A.label(F)
            kw2 = dict(kw); kw2['sleep'] = 1
            self.wait_cnt2(base, target, **kw2)
        else: self.wait_cnt(base, target, **kw)
        A.label(L)
        A("s_barrier")
    def load_valid(self, issue, regs, tmp, bound=20000, sleep=2):
        A = self.A
        L = A.newlabel("LV"); E = A.newlabel("LVE")
        A("s_mov_b32 s96, 0")
        A.label(L)
        issue()
        A("s_waitcnt vmcnt(0)")
        rs = list(regs)
        A(f"v_max3_u32 v{tmp}, v{rs[0]}, v{rs[1]}, v{rs[2]}")
        rest = rs[3:]
        while len(rest) >= 2: A(f"v_max3_u32 v{tmp}, v{tmp}, v{rest[0]}, v{rest[1]}"); rest = rest[2:]
        if rest: A(f"v_max_u32 v{tmp}, v{tmp}, v{rest[0]}")
        A(f"v_cmp_eq_u32 vcc, -1, v{tmp}")
        A(f"s_cbranch_vccz {E}")
        A(f"s_sleep {sleep}"); A("s_add_u32 s96, s96, 1"); A(f"s_cmp_lt_u32 s96, {bound}"); A(f"s_cbranch_scc1 {L}")
        A.label(E)
    def signal(self, base, off=0, tmpv=(250, 251), drain=True):
        A = self.A
        L = A.newlabel("SG")
        va, vd = tmpv
        if drain: A("s_waitcnt vmcnt(0)")
        A("s_barrier")
        A(f"s_cmp_lg_u32 s{sW}, 0"); A(f"s_cbranch_scc1 {L}")
        A(f"v_mov_b32 v{va}, 0"); A(f"v_mov_b32 v{vd}, 1")
        A("s_mov_b64 exec, 1")
        A(f"global_atomic_add v{va}, v{vd}, {sp(base)} offset:{off}")
        A("s_mov_b64 exec, -1")
        A.label(L)

def tl_stamp(A, on, slot_expr_sgpr, idx, vr=(252, 253)):
    if not on: return
    L = A.newlabel("TL")
    A(f"s_cmp_lg_u32 s{sW}, 0"); A(f"s_cbranch_scc1 {L}")
    A("s_memrealtime s[100:101]"); A("s_waitcnt lgkmcnt(0)")
    A(f"s_lshl_b32 s38, s{sROLE}, 6"); A(f"s_add_u32 s38, s38, {WS_STAMP + 0x4000 + idx*4}")
    A(f"v_mov_b32 v{vr[0]}, s38"); A(f"v_mov_b32 v{vr[1]}, s100")
    A("s_mov_b64 exec, 1"); A(f"global_store_dword v{vr[0]}, v{vr[1]}, {sp(sWS)}"); A("s_mov_b64 exec, -1")
    A.label(L)
```

```python
from common import *
import roles1

def gen(opts=None):
    o = dict(chain=True, mh=True, g=True, q=True, arc=True)
    o.update(opts or {})
    A = Prog(); U = Util(A)
    A(f"s_load_dwordx2 {sp(sWS)}, s[0:1], 128"); A(f"s_load_dwordx2 {sp(sDBG)}, s[0:1], 120")
    A(f"s_getreg_b32 s{sXCC}, hwreg(HW_REG_XCC_ID, 0, 4)")
    A("v_lshrrev_b32 v1, 6, v0"); A("v_and_b32 v0, 63, v0")
    A(f"v_readfirstlane_b32 s{sW}, v1")
    A("s_waitcnt lgkmcnt(0)")
    A(f"s_cmp_lg_u32 s{sW}, 0"); A("s_cbranch_scc1 L_wt")
    A("s_mov_b64 exec, 1")
    A("v_mov_b32 v3, 0"); A("v_mov_b32 v4, 1")
    if o.get('fake_xcc'):
        A(f"s_and_b32 s12, s2, {o['fake_xcc']}"); A("s_cmp_lg_u32 s12, 0"); A("s_cbranch_scc1 L_wk")
    A(f"s_cmp_lg_u32 s{sXCC}, 0"); A("s_cbranch_scc1 L_wk")
    A(f"global_atomic_add v5, v3, v4, {sp(sDBG)} offset:{D_XT*4} sc0"); A("s_waitcnt vmcnt(0)")
    A("v_readfirstlane_b32 s12, v5"); A("s_cmp_lt_u32 s12, 32"); A("s_cbranch_scc1 L_got")
    A.label("L_wk")
    A(f"global_atomic_add v5, v3, v4, {sp(sDBG)} offset:{D_WT*4} sc0"); A("s_waitcnt vmcnt(0)")
    A("v_readfirstlane_b32 s12, v5"); A("v_add_u32 v5, 32, v5")
    A("s_cmp_lt_u32 s12, 224"); A("s_cbranch_scc1 L_got")
    A(f"global_atomic_add v6, v3, v4, {sp(sDBG)} offset:{D_XT*4} sc0"); A("s_waitcnt vmcnt(0)")
    A("v_readfirstlane_b32 s12, v6"); A("s_cmp_ge_u32 s12, 32"); A("s_cbranch_scc1 L_got")
    A("v_mov_b32 v5, v6")
    A.label("L_got")
    A(f"v_mov_b32 v3, {L_MISC}"); A("ds_write_b32 v3, v5"); A("s_waitcnt lgkmcnt(0)")
    A("s_mov_b64 exec, -1")
    A.label("L_wt")
    A("s_barrier")
    A(f"v_mov_b32 v3, {L_MISC}"); A("ds_read_b32 v5, v3"); A("s_waitcnt lgkmcnt(0)")
    A(f"v_readfirstlane_b32 s{sROLE}, v5")
    A("s_barrier")
    TL = o.get('tl', False)
    tl_stamp(A, TL, 0, 0)
    A(f"s_cmp_lt_u32 s{sROLE}, 32"); A("s_cbranch_scc1 L_chain")
    A(f"s_sub_u32 s12, s{sROLE}, 32")
    A("s_cmp_ge_u32 s12, 224"); A("s_cbranch_scc1 L_end")
    A("s_cmp_lg_u32 s12, 0"); A("s_cbranch_scc1 L_noinit")
    A(f"s_lshl_b32 s34, s{sW}, 10"); A("v_lshlrev_b32 v2, 4, v0"); A("v_add_u32 v2, s34, v2")
    for i in range(4): A(f"v_mov_b32 v{8+i}, 0")
    for i in range(2*NCNT):
        A(f"global_store_dwordx4 v2, v[8:11], {sp(sWS)} sc1"); A("v_add_u32 v2, 4096, v2")
    A("s_waitcnt vmcnt(0)"); A("s_barrier")
    U.add64(44, sDBG, D_INIT*4); U.signal(44)
    A.label("L_noinit")
    if o.get('dpoll', True):
        A("s_cmp_lt_u32 s12, 216"); A("s_cbranch_scc1 L_noclr")
        A("s_sub_u32 s13, s12, 216")
        A(f"s_lshl_b32 s34, s{sW}, 10"); A("v_lshlrev_b32 v2, 4, v0"); A("v_add_u32 v2, s34, v2")
        for i in range(4): A(f"v_mov_b32 v{8+i}, -1")
        nl = 64 - LASTSEG
        for base, per_seg in ((WS_EK, 65536), (WS_EV, 262144), (WS_YP, 262144), (WS_H2F, 32768), (WS_FP, 11*32768)):
            tot = nl*per_seg; part = tot // 8
            assert part % 4096 == 0
            A(f"s_mul_i32 s34, s13, {part}"); A(f"s_add_u32 s34, s34, {base + LASTSEG*per_seg}"); U.add64(44, sWS, "s34")
            for i in range(part // 4096):
                A("global_store_dwordx4 v2, v[8:11], s[44:45] sc1"); A("s_add_u32 s44, s44, 4096"); A("s_addc_u32 s45, s45, 0")
        U.add64(44, sDBG, D_CLR*4); U.signal(44)
        A.label("L_noclr")
    if o['mh']:
        MH0 = o.get('mh0', 64)
        A(f"s_sub_u32 s13, s12, {MH0}"); A("s_cmp_ge_u32 s13, 64"); A("s_cbranch_scc1 L_nomh")
        A("s_cmp_lt_u32 s13, 16"); A("s_cbranch_scc1 L_nom")
        A("s_sub_u32 s19, s13, 16")
        roles1.role_M(A, U, 19, TL)
        tl_stamp(A, TL, 0, 13)
        A("s_barrier")
        A.label("L_nom")
        U.wait_cnt1(sDBG, 1, off=D_INIT*4, sleep=4)
        roles1.role_H(A, U, 13, TL)
        A("s_barrier")
        A.label("L_nomh")
    tl_stamp(A, TL, 0, 1)
    U.wait_cnt1(sDBG, 1, off=D_INIT*4, sleep=4)
    if o['g']:
        A("s_and_b32 s14, s12, 31"); A("s_lshr_b32 s15, s12, 5")
        if o.get('pfw', False):
            A("s_cmp_lt_u32 s12, 128"); A("s_cbranch_scc1 L_nopf")
            A("s_load_dwordx4 s[40:43], s[0:1], 16"); A("s_load_dwordx4 s[44:47], s[0:1], 32")
            A(f"s_sub_u32 s34, s12, 128"); A("s_lshl_b32 s34, s34, 2"); A(f"s_add_u32 s34, s34, s{sW}")
            A("v_lshlrev_b32 v2, 4, v0")
            A("s_waitcnt lgkmcnt(0)")
            for mi, b in enumerate(o.get('pforder', (40, 46, 42, 44))):
                for kk in range(11):
                    A(f"s_add_u32 s35, s34, {384*kk}"); A("s_min_u32 s35, s35, 4095"); A("s_lshl_b32 s35, s35, 10")
                    A(f"s_add_u32 s36, s{b}, s35"); A(f"s_addc_u32 s37, s{b+1}, 0")
                    A(f"global_load_dwordx4 v[{16+4*(kk % 11)}:{19+4*(kk % 11)}], v2, s[36:37]")
                A("s_waitcnt vmcnt(0)")
            A.label("L_nopf")
        if o.get('gdelay', True):
            A(f"s_cmp_lt_u32 s15, {o.get('gfirst', 2)}"); A("s_cbranch_scc1 L_gnd")
            U.add64(44, sWS, cnt_off(C_HRDY, 0)); U.wait_cnt1(44, 1, sleep=16)
            A.label("L_gnd")
        roles1.role_G(A, U, 14, 15, do_q=o['q'], TL=TL)
        tl_stamp(A, TL, 0, 4)
    if o['arc']:
        import roles2
        roles2.DBGX1 = o.get('dbgx1', False); roles2.FAST = o.get('fastpoll', True); roles2.DPOLL = o.get('dpoll', True); roles2.PRE = dict(a=34, r1=66, c=34, r2=70); roles2.PRE.update(o.get('pre', {})); roles2.LVS = o.get('lvs', 4); roles2.OUTFLAG = o.get('outflag', 'sc1')
        roles2.roles_ARC(A, U, 12, TL, o.get('slp'), o.get('w1', True))
    A("s_branch L_end")
    A.label("L_chain")
    if o['chain']:
        import chainf
        chainf.gen_chain(A, U, o)
    A.label("L_end")
    return A

NAME = "adaLN_cond__memory_aug_recurrent_mem_tr__dense_activation_gelu__prompt_kernel"
def text(opts=None, name=NAME):
    from asmlib import kernel_text
    A = gen(opts)
    body = A.finalize(verbose=True)
    return kernel_text([(name, body, 512, 102, 256)], [f"; @launch grid=(256,1,1) block=(256,1,1) lds={LDS_TOTAL}"])

if __name__ == "__main__":
    t = text(dict(chain=False, arc=False))
    open("k_test.s", "w").write(t)
    print(len(t.split("\n")), "lines")
```

```python
from common import *
from roles1 import WLoad, bf_round_pair
SC_C = 0.08838834764831845 * 1.4426950408889634
MF = "v_mfma_f32_16x16x32_bf16"; MF16 = "v_mfma_f32_16x16x16_bf16"
EXP_TARGET = 32 * 0x4444
R0 = 152
SLP = dict(a=16, r=16, c=16, q=16)
DBGX1 = False
DPOLL = True
PRE = dict(a=30, r1=60, c=30, r2=64)
LVS = 4
FAST = True
OUTFLAG = 'sc1'

def cnt_addr(A, U, d, arr, sseg, ssub=None):
    A(f"s_lshl_b32 s34, s{sseg}, {CS}"); A(f"s_add_u32 s34, s34, {cnt_off(arr)}")
    if ssub is not None: A(f"s_lshl_b32 s35, s{ssub}, 13"); A("s_add_u32 s34, s34, s35")
    U.add64(d, sWS, "s34")

def gate(A, U, sS, normal, early, sleep, ssub=None, presleep=0):
    def addr(arr, segoff, sub):
        A(f"s_lshl_b32 s34, s{sS}, {CS}"); A(f"s_add_u32 s34, s34, {cnt_off(arr) + segoff*128}")
        if sub: A(f"s_lshl_b32 s35, s{ssub}, 13"); A("s_add_u32 s34, s34, s35")
    if not DPOLL:
        addr(normal[0], normal[2], normal[3]); U.add64(42, sWS, "s34"); A(f"s_mov_b32 s33, {normal[1]}")
        U.WAIT(42, "s33", sleep=sleep, fast=FAST, seg=sS); return
    Le = A.newlabel("GE"); Lj = A.newlabel("GJ")
    A(f"s_cmp_ge_u32 s{sS}, {LASTSEG}"); A(f"s_cbranch_scc1 {Le}")
    addr(normal[0], normal[2], normal[3]); A(f"s_mov_b32 s33, {normal[1]}"); A(f"s_branch {Lj}")
    A.label(Le)
    addr(early[0], early[2], early[3]); A(f"s_mov_b32 s33, {early[1]}")
    A.label(Lj)
    U.add64(42, sWS, "s34")
    U.WAIT(42, "s33", sleep=sleep, fast=False)
    if presleep:
        Ls = A.newlabel("GS")
        A(f"s_cmp_lt_u32 s{sS}, {LASTSEG}"); A(f"s_cbranch_scc1 {Ls}")
        A(f"s_sleep {presleep}")
        A.label(Ls)

def role_A(A, U, sJ, TL=False):
    sHG, sNH, sRep, sS, sHd = 14, 15, 16, 17, 18
    A(f"s_and_b32 s{sHG}, s{sJ}, 7"); A(f"s_bfe_u32 s{sNH}, s{sJ}, 0x10003"); A(f"s_lshr_b32 s{sRep}, s{sJ}, 4")
    A(f"s_lshl_b32 s{sHd}, s{sHG}, 2"); A(f"s_add_u32 s{sHd}, s{sHd}, s{sW}")
    WL = WLoad(A, LB=0, vb=200)
    A("s_load_dwordx2 s[40:41], s[0:1], 40")
    WL.setup(1024, "split", "pair")
    A(f"s_and_b32 s34, s{sW}, 1"); A("s_lshl_b32 s34, s34, 7"); A(f"v_xor_b32 v210, s34, v{WL.vT}"); A("v_xor_b32 v211, 64, v210")
    A(f"s_lshr_b32 s34, s{sW}, 1"); A("s_lshl_b32 s34, s34, 14"); A("v_add_u32 v210, s34, v210"); A("v_add_u32 v211, s34, v211")
    A("v_add_u32 v212, 0x10000, v210"); A("v_add_u32 v213, 0x10000, v211")
    A("s_waitcnt lgkmcnt(0)")
    A(f"s_lshl_b32 s34, s{sHG}, 19"); A(f"s_lshl_b32 s35, s{sNH}, 9"); A("s_add_u32 s34, s34, s35")
    A("s_add_u32 s40, s40, s34"); A("s_addc_u32 s41, s41, 0")
    U.add64(42, 40, 256)
    def dma_pair(rb, sl):
        WL.dma(40, rb*64*1024, 2*sl); WL.dma(42, rb*64*1024, 2*sl+1)
    for rb in range(4): dma_pair(rb, rb)
    for rb in range(8):
        sl = rb % 4
        A(f"s_waitcnt vmcnt({8*min(3, 7-rb)})"); A("s_barrier")
        for u in range(2):
            kk = 2*rb + u
            for pp in range(2):
                for a in range(2):
                    q = 2*pp + a
                    for hf in range(2):
                        WL.tr(ar((kk*4 + q)*4 + 2*hf, 2), 210+pp, 212+pp, 2*sl, 32*u + 16*hf, extra=8*a)
        A("s_waitcnt lgkmcnt(0)"); A("s_barrier")
        if rb + 4 < 8: dma_pair(rb+4, sl)
    QF, KF, VF, KM, VM, SS, OO, PX, PM, ACC, ONE, HALF = 16, 48, 80, 112, 128, 144, 164, 228, 236, 240, 8, 12
    LL = 240
    A("v_lshlrev_b32 v2, 4, v0")
    for i in range(4): A(f"v_mov_b32 v{ONE+i}, 0x3f803f80")
    A("v_lshrrev_b32 v3, 4, v0"); A("v_and_b32 v4, 15, v0")
    A(f"v_cmp_gt_u32 vcc, 2, v3"); A(f"v_cndmask_b32 v{HALF}, 0, v{ONE}, vcc"); A(f"v_mov_b32 v{HALF+1}, v{HALF}")
    for j in range(4):
        A("v_lshlrev_b32 v5, 2, v3"); A(f"v_add_u32 v5, {j}, v5"); A(f"v_cmp_gt_u32 s[{20+2*j}:{21+2*j}], v5, v4")
    A(f"s_mov_b32 s28, {fbits(SC_C):#x}"); A(f"s_mov_b32 s29, {fbits(-1e30):#x}")
    A("v_lshrrev_b32 v5, 2, v0"); A("v_lshlrev_b32 v5, 4, v5"); A("v_and_b32 v6, 1, v0"); A("v_lshlrev_b32 v6, 3, v6"); A("v_add_u32 v5, v5, v6")
    A(f"s_lshl_b32 s34, s{sW}, 11"); A("s_add_u32 s30, s34, 40960"); A("v_add_u32 v5, s30, v5")
    A(f"s_lshl_b32 s34, s{sW}, 12"); A("v_add_u32 v6, s34, v2")
    A("v_lshlrev_b32 v7, 10, v4"); A("v_lshlrev_b32 v14, 4, v3"); A("v_add_u32 v7, v7, v14")
    A(f"s_lshl_b32 s34, s{sW}, 7"); A(f"s_lshl_b32 s35, s{sNH}, 9"); A("s_add_u32 s34, s34, s35"); A("v_add_u32 v7, s34, v7")
    tl_stamp(A, TL, 0, 5)
    A(f"s_mov_b32 s{sS}, s{sRep}")
    A.label("A_loop")
    cnt_addr(A, U, 42, C_QD, sS); U.WAIT(42, 32, sleep=SLP["q"])
    cnt_addr(A, U, 42, C_KV, sS); U.WAIT(42, 32)
    A(f"s_lshl_b32 s34, s{sS}, 5"); A(f"s_add_u32 s31, s34, s{sHd}")
    A("s_lshl_b32 s34, s31, 13")
    for nm, base, reg in (("q", WS_QX, QF), ("k", WS_KX, KF), ("v", WS_VX, VF)):
        A(f"s_add_u32 s35, s34, {base}"); U.add64(44, sWS, "s35")
        for f in range(8):
            if f == 4: A("s_add_u32 s44, s44, 4096"); A("s_addc_u32 s45, s45, 0")
            A(f"global_load_dwordx4 {r(reg+4*f,4)}, v2, s[44:45] offset:{(f % 4)*1024} sc1")
    A("s_waitcnt vmcnt(8)")
    tiles = [(0, 0), (0, 1), (1, 1)]
    for t in range(4):
        for i, (Y, Xq) in enumerate(tiles):
            d = r(SS+4*i, 4)
            A(f"{MF} {d}, {r(KF+(Y*4+t)*4,4)}, {r(QF+(Xq*4+t)*4,4)}, {'0' if t == 0 else d}")
    gate(A, U, sS, (C_EXP, EXP_TARGET, 0, False), (C_EXP, EXP_TARGET, -1, False), SLP["a"], presleep=PRE["a"])
    tl_stamp(A, TL, 0, 7)
    A("s_lshl_b32 s34, s31, 11"); A(f"s_add_u32 s34, s34, {WS_EK}"); U.add64(44, sWS, "s34")
    A("s_lshl_b32 s34, s31, 13"); A(f"s_add_u32 s34, s34, {WS_EV}"); U.add64(46, sWS, "s34"); U.add64(48, 46, 4096)
    def issueA():
        A(f"global_load_dwordx4 {r(KM,4)}, v2, s[44:45] sc1"); A(f"global_load_dwordx4 {r(KM+4,4)}, v2, s[44:45] offset:1024 sc1")
        for wp in range(4):
            A(f"global_load_dwordx4 {r(VM+4*wp,4)}, v2, s[{46 + 2*(wp//2)}:{47 + 2*(wp//2)}] offset:{(wp % 2)*2048} sc1")
    U.load_valid(issueA, list(range(KM, KM+8)) + list(range(VM, VM+16)), 14, sleep=LVS)
    A("v_add_u32 v14, s30, v2")
    A(f"ds_write_b128 v14, {r(KM,4)}"); A(f"ds_write_b128 v14, {r(KM+4,4)} offset:1024")
    A("s_waitcnt lgkmcnt(0)")
    tl_stamp(A, TL, 0, 8)
    for t in range(4):
        for hf in range(2): A(f"ds_read_b64_tr_b16 {r(KM+4*t+2*hf,2)}, v5 offset:{t*512 + hf*256}")
    A("s_waitcnt lgkmcnt(0)")
    for t in range(4):
        for Xq in range(2):
            d = r(SS+12+4*Xq, 4)
            A(f"{MF} {d}, {r(KM+4*t,4)}, {r(QF+(Xq*4+t)*4,4)}, {'0' if t == 0 else d}")
    A("v_mov_b32 v15, s29")
    for i in (0, 2):
        for j in range(4): A(f"v_cndmask_b32 v{SS+4*i+j}, v{SS+4*i+j}, v15, s[{20+2*j}:{21+2*j}]")
    mx, t1 = 14, 15
    for Xq in range(2):
        regs = ([SS+0+j for j in range(4)] + [SS+12+j for j in range(4)]) if Xq == 0 else \
               ([SS+4+j for j in range(4)] + [SS+8+j for j in range(4)] + [SS+16+j for j in range(4)])
        A(f"v_max3_f32 v{mx}, v{regs[0]}, v{regs[1]}, v{regs[2]}")
        rest = regs[3:]
        while len(rest) >= 2: A(f"v_max3_f32 v{mx}, v{mx}, v{rest[0]}, v{rest[1]}"); rest = rest[2:]
        if rest: A(f"v_max_f32 v{mx}, v{mx}, v{rest[0]}")
        A(f"v_mov_b32 v{t1}, v{mx}"); A(f"v_permlane16_swap_b32 v{mx}, v{t1}"); A(f"v_max_f32 v{mx}, v{mx}, v{t1}")
        A(f"v_mov_b32 v{t1}, v{mx}"); A(f"v_permlane32_swap_b32 v{mx}, v{t1}"); A(f"v_max_f32 v{mx}, v{mx}, v{t1}")
        A(f"v_mul_f32 v{mx}, s28, v{mx}")
        for x in regs: A(f"v_fma_f32 v{x}, v{x}, s28, -v{mx}")
        for x in regs: A(f"v_exp_f32 v{x}, v{x}")
        px = PX + 4*Xq; pm = PM + 2*Xq
        if Xq == 0:
            A(f"v_cvt_pk_bf16_f32 v{px}, v{SS}, v{SS+1}"); A(f"v_cvt_pk_bf16_f32 v{px+1}, v{SS+2}, v{SS+3}")
            A(f"v_mov_b32 v{px+2}, 0"); A(f"v_mov_b32 v{px+3}, 0")
            m = SS+12
        else:
            A(f"v_cvt_pk_bf16_f32 v{px}, v{SS+4}, v{SS+5}"); A(f"v_cvt_pk_bf16_f32 v{px+1}, v{SS+6}, v{SS+7}")
            A(f"v_cvt_pk_bf16_f32 v{px+2}, v{SS+8}, v{SS+9}"); A(f"v_cvt_pk_bf16_f32 v{px+3}, v{SS+10}, v{SS+11}")
            m = SS+16
        A(f"v_cvt_pk_bf16_f32 v{pm}, v{m}, v{m+1}"); A(f"v_cvt_pk_bf16_f32 v{pm+1}, v{m+2}, v{m+3}")
    for Xq in range(2):
        A(f"{MF} {r(LL+4*Xq,4)}, {r(ONE,4)}, {r(PX+4*Xq,4)}, 0")
        for E in range(8): A(f"{MF} {r(OO+(E*2+Xq)*4,4)}, {r(VF+4*E,4)}, {r(PX+4*Xq,4)}, 0")
    for Xq in range(2):
        A(f"{MF16} {r(LL+4*Xq,4)}, {r(HALF,2)}, {r(PM+2*Xq,2)}, {r(LL+4*Xq,4)}")
        for E in range(8):
            d = r(OO+(E*2+Xq)*4, 4)
            A(f"{MF16} {d}, {r(VM+2*E,2)}, {r(PM+2*Xq,2)}, {d}")
    for Xq in range(2):
        A(f"v_rcp_f32 v{mx}, v{LL+4*Xq}")
        for t in range(4):
            o = QF + 4*t
            for hf in range(2):
                b = OO + ((2*t+hf)*2 + Xq)*4
                for j in range(4): A(f"v_mul_f32 v{b+j}, v{mx}, v{b+j}")
                A(f"v_cvt_pk_bf16_f32 v{o+2*hf}, v{b}, v{b+1}"); A(f"v_cvt_pk_bf16_f32 v{o+2*hf+1}, v{b+2}, v{b+3}")
            A(f"ds_write_b128 v6, {r(o,4)} offset:{Xq*16384 + t*1024}")
    A("s_waitcnt lgkmcnt(0)"); A("s_barrier")
    tl_stamp(A, TL, 0, 9)
    AC2 = KF; OFR = VF
    for i in range(0, 32, 2): A(f"v_mov_b64 {r(AC2+i,2)}, 0")
    for n in range(4): A(f"ds_read_b128 {r(OFR+4*n,4)}, v2 offset:{n*1024}")
    for n in range(32):
        Xq, kk = divmod(n, 16)
        if n + 4 < 32: A(f"ds_read_b128 {r(OFR+4*((n+4) % 8),4)}, v2 offset:{(n+4)*1024}")
        A(f"s_waitcnt lgkmcnt({min(4, 31-n)})")
        for q in range(4):
            d = r(AC2 + (q*2+Xq)*4, 4)
            A(f"{MF} {d}, {ar((kk*4+q)*4,4)}, {r(OFR+4*(n % 8),4)}, {d}")
    A(f"s_lshl_b32 s34, s{sS}, 3"); A(f"s_add_u32 s34, s34, s{sHG}"); A("s_lshl_b32 s34, s34, 15"); A(f"s_add_u32 s34, s34, {WS_YP}"); U.add64(44, sWS, "s34")
    for Xq in range(2):
        for pp in range(2):
            a0 = AC2 + ((2*pp)*2+Xq)*4; a1 = AC2 + ((2*pp+1)*2+Xq)*4
            o = QF + 4*(Xq*2+pp)
            A(f"v_cvt_pk_bf16_f32 v{o}, v{a0}, v{a0+1}"); A(f"v_cvt_pk_bf16_f32 v{o+1}, v{a0+2}, v{a0+3}")
            A(f"v_cvt_pk_bf16_f32 v{o+2}, v{a1}, v{a1+1}"); A(f"v_cvt_pk_bf16_f32 v{o+3}, v{a1+2}, v{a1+3}")
        if Xq == 1: A("s_add_u32 s44, s44, 16384"); A("s_addc_u32 s45, s45, 0")
        for pp in range(2):
            A(f"global_store_dwordx4 v7, {r(QF+4*(Xq*2+pp),4)}, s[44:45] offset:{pp*64} sc1")
    tl_stamp(A, TL, 0, 10)
    cnt_addr(A, U, 42, C_AD, sS); U.signal(42)
    tl_stamp(A, TL, 0, 11)
    A(f"s_add_u32 s{sS}, s{sS}, 4"); A(f"s_cmp_lt_u32 s{sS}, 64"); A("s_cbranch_scc1 A_loop")

def wave_sum(A, v, t):
    A(f"v_add_f32_dpp v{v}, v{v}, v{v} quad_perm:[1,0,3,2] row_mask:0xf bank_mask:0xf")
    A(f"v_add_f32_dpp v{v}, v{v}, v{v} quad_perm:[2,3,0,1] row_mask:0xf bank_mask:0xf")
    A(f"v_add_f32_dpp v{v}, v{v}, v{v} row_half_mirror row_mask:0xf bank_mask:0xf")
    A(f"v_add_f32_dpp v{v}, v{v}, v{v} row_mirror row_mask:0xf bank_mask:0xf")
    A(f"v_mov_b32 v{t}, v{v}"); A(f"v_permlane16_swap_b32 v{v}, v{t}"); A(f"v_add_f32 v{v}, v{v}, v{t}")
    A(f"v_mov_b32 v{t}, v{v}"); A(f"v_permlane32_swap_b32 v{v}, v{t}"); A(f"v_add_f32 v{v}, v{v}, v{t}")

def unpack8(A, src, dst):
    for k in range(4):
        A(f"v_lshlrev_b32 v{dst+2*k}, 16, v{src+k}"); A(f"v_and_b32 v{dst+2*k+1}, 0xffff0000, v{src+k}")

def role_R(A, U, sJ, TL=False):
    sRG, sRep, sS = 14, 15, 17
    A(f"s_sub_u32 s34, s{sJ}, {R0}"); A(f"s_and_b32 s{sRG}, s34, 7"); A(f"s_lshr_b32 s{sRep}, s34, 3")
    A("s_load_dwordx2 s[40:41], s[0:1], 0"); A("s_load_dwordx2 s[46:47], s[0:1], 88"); A("s_load_dwordx2 s[48:49], s[0:1], 112")
    A("v_lshlrev_b32 v2, 4, v0"); A("v_lshlrev_b32 v3, 5, v0")
    U.wait_cnt1(sDBG, 32, off=D_MODB*4, sleep=8)
    U.add64(42, sWS, WS_MOD + 2*2048)
    GA, SB, CB, GB, B2 = 16, 24, 32, 40, 48
    for i, reg in enumerate((GA, SB, CB, GB)):
        U.add64(44, 42, i*2048)
        A(f"global_load_dwordx4 {r(reg,4)}, v3, s[44:45] sc1"); A(f"global_load_dwordx4 {r(reg+4,4)}, v3, s[44:45] offset:16 sc1")
    A("s_waitcnt lgkmcnt(0)")
    A("global_load_dwordx4 v[56:59], v2, s[46:47]")
    A("s_waitcnt vmcnt(0)")
    unpack8(A, 56, B2)
    for k in range(0, 8, 2):
        A(f"v_add_f32 v{CB+k}, 1.0, v{CB+k}"); A(f"v_add_f32 v{CB+k+1}, 1.0, v{CB+k+1}"); bf_round_pair(A, CB+k, CB+k+1, 60)
    A(f"s_mov_b32 s21, {fbits(1e-5):#x}")
    A(f"s_lshl_b32 s18, s{sRG}, 2"); A(f"s_add_u32 s18, s18, s{sW}"); A(f"s_lshr_b32 s20, s{sRG}, 2")
    A("v_lshrrev_b32 v4, 2, v0"); A("v_lshlrev_b32 v4, 10, v4"); A("v_and_b32 v5, 3, v0"); A("v_lshlrev_b32 v5, 8, v5"); A("v_add_u32 v4, v4, v5")
    X1R = 64
    LD = 96
    A(f"s_mov_b32 s{sS}, s{sRep}")
    A.label("R_loop")
    gate(A, U, sS, (C_AD, 16, 0, False), (C_EXP, EXP_TARGET, 0, False), SLP["r"], presleep=PRE["r1"])
    tl_stamp(A, TL, 0, 7)
    for i in range(1):
        A(f"s_lshl_b32 s34, s{sS}, 18"); A(f"s_add_u32 s19, s18, {i}"); A("s_lshl_b32 s19, s19, 10"); A("s_add_u32 s34, s34, s19"); A(f"s_add_u32 s34, s34, {WS_YP}")
        U.add64(50, sWS, "s34")
        A(f"s_lshl_b32 s34, s{sS}, 15"); A("s_add_u32 s34, s34, s19"); U.add64(44, 40, "s34")
        A(f"global_load_dwordx4 {r(LD+i*36+32,4)}, v2, s[44:45]")
        def issueR1():
            A("s_mov_b32 s44, s50"); A("s_mov_b32 s45, s51")
            for hg in range(8):
                A(f"global_load_dwordx4 {r(LD+i*36+4*hg,4)}, v2, s[44:45] sc1"); A("s_add_u32 s44, s44, 32768"); A("s_addc_u32 s45, s45, 0")
        U.load_valid(issueR1, list(range(LD, LD+32)), 60, sleep=LVS)
    for i in range(1):
        xr = X1R + 8*i
        ac = 80
        unpack8(A, LD+i*36, ac)
        for hg in range(1, 8):
            unpack8(A, LD+i*36+4*hg, 88)
            for k in range(8): A(f"v_add_f32 v{ac+k}, v{ac+k}, v{88+k}")
        unpack8(A, LD+i*36+32, xr)
        for k in range(0, 8, 2):
            bf_round_pair(A, ac+k, ac+k+1, 60)
            A(f"v_mul_f32 v{ac+k}, v{GA+k}, v{ac+k}"); A(f"v_mul_f32 v{ac+k+1}, v{GA+k+1}, v{ac+k+1}"); bf_round_pair(A, ac+k, ac+k+1, 60)
            A(f"v_add_f32 v{xr+k}, v{xr+k}, v{ac+k}"); A(f"v_add_f32 v{xr+k+1}, v{xr+k+1}, v{ac+k+1}"); bf_round_pair(A, xr+k, xr+k+1, 60)
        t0, t1, t2, t3, t4 = 6, 7, 8, 9, 10
        A(f"v_add_f32 v{t0}, v{xr}, v{xr+1}")
        for k in range(2, 8): A(f"v_add_f32 v{t0}, v{t0}, v{xr+k}")
        wave_sum(A, t0, t2); A(f"v_mul_f32 v{t0}, {fbits(1.0/512):#x}, v{t0}")
        A(f"v_mov_b32 v{t1}, 0")
        for k in range(8): A(f"v_sub_f32 v{t3}, v{xr+k}, v{t0}"); A(f"v_fmac_f32 v{t1}, v{t3}, v{t3}")
        wave_sum(A, t1, t2); A(f"v_mul_f32 v{t1}, {fbits(1.0/512):#x}, v{t1}")
        bf_round_pair(A, t0, t1, t2)
        A(f"v_add_f32 v{t1}, s21, v{t1}"); A(f"v_cvt_pk_bf16_f32 v{t1}, v{t1}, v{t1}"); A(f"v_lshlrev_b32 v{t1}, 16, v{t1}")
        A(f"v_sqrt_f32 v{t1}, v{t1}"); A(f"v_cvt_pk_bf16_f32 v{t1}, v{t1}, v{t1}"); A(f"v_lshlrev_b32 v{t1}, 16, v{t1}"); A(f"v_rcp_f32 v{t1}, v{t1}")
        for k in range(0, 8, 2):
            a, b = ac+k, ac+k+1
            A(f"v_sub_f32 v{a}, v{xr+k}, v{t0}"); A(f"v_sub_f32 v{b}, v{xr+k+1}, v{t0}"); bf_round_pair(A, a, b, t2)
            A(f"v_mul_f32 v{a}, v{a}, v{t1}"); A(f"v_mul_f32 v{b}, v{b}, v{t1}"); bf_round_pair(A, a, b, t2)
            A(f"v_mul_f32 v{a}, v{a}, v{CB+k}"); A(f"v_mul_f32 v{b}, v{b}, v{CB+k+1}"); bf_round_pair(A, a, b, t2)
            A(f"v_add_f32 v{a}, v{a}, v{SB+k}"); A(f"v_add_f32 v{b}, v{b}, v{SB+k+1}")
            A(f"v_cvt_pk_bf16_f32 v{88+k//2}, v{a}, v{b}")
        A(f"s_add_u32 s19, s18, {i}"); A("s_lshr_b32 s34, s19, 4"); A("s_lshl_b32 s34, s34, 14"); A("s_and_b32 s36, s19, 15"); A("s_lshl_b32 s36, s36, 4"); A("s_add_u32 s34, s34, s36")
        A(f"s_lshl_b32 s36, s{sS}, 15"); A("s_add_u32 s34, s34, s36"); A(f"s_add_u32 s34, s34, {WS_H2F}"); U.add64(44, sWS, "s34")
        A("global_store_dwordx4 v4, v[88:91], s[44:45] sc1")
        if DBGX1:
            for k in range(0, 8, 2): A(f"v_cvt_pk_bf16_f32 v{92+k//2}, v{xr+k}, v{xr+k+1}")
            A(f"s_lshl_b32 s34, s{sS}, 15"); A("s_lshl_b32 s36, s19, 10"); A("s_add_u32 s34, s34, s36"); A(f"s_add_u32 s34, s34, {WS_X1}"); U.add64(44, sWS, "s34")
            A("global_store_dwordx4 v2, v[92:95], s[44:45]")
    tl_stamp(A, TL, 0, 8)
    cnt_addr(A, U, 42, C_R1, sS, 20); U.signal(42)
    tl_stamp(A, TL, 0, 9)
    if PRE["r2"] is None:
        cnt_addr(A, U, 42, C_CD, sS, 20); U.WAIT(42, 11, sleep=SLP["r"], fast=FAST, seg=sS)
    else:
        gate(A, U, sS, (C_CD, 11, 0, True), (C_R1, 4, 0, True), SLP["r"], ssub=20, presleep=PRE["r2"])
    tl_stamp(A, TL, 0, 10)
    for i in range(1):
        A(f"s_mul_i32 s34, s{sS}, {11*32768}"); A(f"s_add_u32 s19, s18, {i}"); A("s_lshl_b32 s19, s19, 10"); A("s_add_u32 s34, s34, s19"); A(f"s_add_u32 s34, s34, {WS_FP}")
        U.add64(50, sWS, "s34")
        def issueR2():
            A("s_mov_b32 s44, s50"); A("s_mov_b32 s45, s51")
            for f in range(11):
                A(f"global_load_dwordx4 {r(LD+i*44+4*f,4)}, v2, s[44:45] sc1"); A("s_add_u32 s44, s44, 32768"); A("s_addc_u32 s45, s45, 0")
        U.load_valid(issueR2, list(range(LD, LD+44)), 60, sleep=LVS)
    for i in range(1):
        xr = X1R + 8*i; ac = 80
        unpack8(A, LD+i*44, ac)
        for f in range(1, 11):
            unpack8(A, LD+i*44+4*f, 88)
            for k in range(8): A(f"v_add_f32 v{ac+k}, v{ac+k}, v{88+k}")
        for k in range(0, 8, 2):
            a, b = ac+k, ac+k+1
            bf_round_pair(A, a, b, 60)
            A(f"v_add_f32 v{a}, v{a}, v{B2+k}"); A(f"v_add_f32 v{b}, v{b}, v{B2+k+1}"); bf_round_pair(A, a, b, 60)
            A(f"v_mul_f32 v{a}, v{a}, v{GB+k}"); A(f"v_mul_f32 v{b}, v{b}, v{GB+k+1}"); bf_round_pair(A, a, b, 60)
            A(f"v_add_f32 v{a}, v{a}, v{xr+k}"); A(f"v_add_f32 v{b}, v{b}, v{xr+k+1}")
            A(f"v_cvt_pk_bf16_f32 v{88+k//2}, v{a}, v{b}")
        A(f"s_add_u32 s19, s18, {i}"); A(f"s_lshl_b32 s34, s{sS}, 15"); A("s_lshl_b32 s36, s19, 10"); A("s_add_u32 s34, s34, s36"); U.add64(44, 48, "s34")
        A(f"global_store_dwordx4 v2, v[88:91], s[44:45] {OUTFLAG}")
        A("s_nop 1")
    A(f"s_add_u32 s{sS}, s{sS}, 8"); A(f"s_cmp_lt_u32 s{sS}, 64"); A("s_cbranch_scc1 R_loop")
    A("s_waitcnt vmcnt(0)")

def role_C(A, U, sJ, TL=False):
    sF, sRep, sS = 14, 15, 17
    sXR = 16
    A(f"s_sub_u32 s34, s{sJ}, 64"); A("s_mul_i32 s35, s34, 0x1746"); A("s_lshr_b32 s36, s35, 16")
    A("s_mul_i32 s35, s36, 11"); A(f"s_sub_u32 s{sF}, s34, s35")
    A(f"s_and_b32 s{sXR}, s36, 1"); A(f"s_lshr_b32 s{sRep}, s36, 1")
    A("s_load_dwordx4 s[40:43], s[0:1], 64"); A("s_load_dwordx2 s[44:45], s[0:1], 80")
    WL = WLoad(A, LB=0, vb=200)
    WL.setup(2752, "nat", "tile")
    Lc = A.newlabel("Cnc")
    A(f"s_cmp_lg_u32 s{sF}, 10"); A(f"s_cbranch_scc1 {Lc}")
    for v, x in ((WL.vS0, 0), (WL.vS1, 8)):
        A("v_lshrrev_b32 v214, 4, v0"); A("v_lshlrev_b32 v214, 1, v214"); A("v_and_b32 v215, 15, v0"); A("v_xor_b32 v214, v214, v215")
        if x: A(f"v_xor_b32 v214, {x}, v214")
        A("v_cmp_le_u32 vcc, 12, v214"); A("v_lshlrev_b32 v214, 4, v214"); A(f"v_sub_u32 v214, v{v}, v214")
        A(f"v_cndmask_b32 v{v}, v{v}, v214, vcc")
    A.label(Lc)
    A(f"s_lshl_b32 s34, s{sW}, 6"); A(f"v_xor_b32 v210, s34, v{WL.vT}"); A("v_xor_b32 v211, 32, v210")
    A("v_add_u32 v212, 0x10000, v210"); A("v_add_u32 v213, 0x10000, v211")
    A("s_waitcnt lgkmcnt(0)")
    A(f"s_lshl_b32 s34, s{sF}, 8"); A("s_add_u32 s40, s40, s34"); A("s_addc_u32 s41, s41, 0")
    for c in range(8): WL.dma(40, c*64*2752, c)
    for c in range(8):
        A(f"s_waitcnt vmcnt({4*(7-c)})"); A("s_barrier")
        for X in range(2):
            for q4 in range(4): WL.tr(ar((X*8 + c)*8 + 2*q4, 2), 210+X, 212+X, c, [0, 4, 32, 36][q4])
        A("s_waitcnt lgkmcnt(0)")
    A("s_barrier")
    WL2 = WLoad(A, LB=0, vb=200)
    WL2.setup(1024, "split", "pair")
    A(f"s_lshl_b32 s34, s{sF}, 17"); A("s_add_u32 s44, s44, s34"); A("s_addc_u32 s45, s45, 0")
    A(f"s_cmp_eq_u32 s{sF}, 10"); A("s_cselect_b32 s34, 1, 0"); A(f"s_cmp_ge_u32 s{sW}, 2"); A("s_cselect_b32 s35, s34, 0"); A("s_lshl_b32 s35, s35, 15")
    for rb in range(2):
        for cq in range(4):
            U.add64(46, 44, cq*256)
            if rb == 1: A("s_sub_u32 s46, s46, s35"); A("s_subb_u32 s47, s47, 0")
            WL2.dma(46, rb*64*1024, rb*4 + cq)
    A(f"s_lshl_b32 s34, s{sW}, 14"); A(f"v_add_u32 v210, s34, v{WL2.vT}")
    A("s_waitcnt vmcnt(0)"); A("s_barrier")
    for rb in range(2):
        for p in range(4):
            A(f"v_xor_b32 v211, {p*64}, v210") if True else None
            A(f"v_add_u32 v211, {rb*65536}, v211") if rb else None
            for u2 in range(2):
                u = 2*rb + u2
                for a in range(2):
                    q = 2*p + a
                    for hf in range(2):
                        A(f"ds_read_b64_tr_b16 {ar(128 + (u*8 + q)*4 + 2*hf, 2)}, v211 offset:{(32*u2 + 16*hf)*256 + 8*a}")
    A("s_waitcnt lgkmcnt(0)"); A("s_barrier")
    A("v_lshrrev_b32 v3, 4, v0"); A("v_and_b32 v4, 15, v0")
    A("v_lshlrev_b32 v5, 3, v3"); A(f"s_lshl_b32 s34, s{sF}, 8"); A(f"s_lshl_b32 s35, s{sW}, 6"); A("s_add_u32 s34, s34, s35"); A("v_add_u32 v5, s34, v5")
    A("v_min_u32 v6, 2744, v5"); A("v_add_u32 v7, 32, v5"); A("v_min_u32 v7, 2744, v7")
    A("global_load_dwordx2 v[24:25], v6, s[42:43]"); A("global_load_dwordx2 v[26:27], v7, s[42:43]")
    A("s_waitcnt vmcnt(0)")
    B1 = 16
    for X in range(2):
        for k in range(2):
            A(f"v_lshlrev_b32 v{B1+4*X+2*k}, 16, v{24+2*X+k}"); A(f"v_and_b32 v{B1+4*X+2*k+1}, 0xffff0000, v{24+2*X+k}")
    Lz = A.newlabel("Cz")
    A(f"s_cmp_lg_u32 s{sF}, 10"); A(f"s_cbranch_scc1 {Lz}"); A(f"s_cmp_lg_u32 s{sW}, 3"); A(f"s_cbranch_scc1 {Lz}")
    for i in range(128): A(f"v_accvgpr_write_b32 a{i}, 0")
    for i in range(8): A(f"v_mov_b32 v{B1+i}, 0")
    A.label(Lz)
    A("v_lshlrev_b32 v2, 4, v0")
    A(f"s_lshl_b32 s34, s{sW}, 12"); A("v_add_u32 v8, s34, v2")
    A(f"s_lshl_b32 s34, s{sW}, 10"); A("v_add_u32 v9, s34, v2")
    A("v_lshlrev_b32 v10, 10, v4"); A("v_lshlrev_b32 v11, 4, v3"); A("v_add_u32 v10, v10, v11")
    A(f"s_lshl_b32 s34, s{sW}, 8"); A("v_add_u32 v10, s34, v10")
    A(f"s_mov_b32 s28, {fbits(0.044715):#x}"); A(f"s_mov_b32 s29, {fbits(-2.0*0.7978845608028654*1.4426950408889634):#x}")
    AC1, HFR, FF, AC2 = 32, 64, 96, 128
    A(f"s_mov_b32 s{sS}, s{sRep}")
    A.label("C_loop")
    gate(A, U, sS, (C_R1, 4, 0, True), (C_AD, 16, 0, False), SLP["c"], ssub=sXR, presleep=PRE["c"])
    tl_stamp(A, TL, 0, 7)
    A(f"s_lshl_b32 s34, s{sS}, 15"); A(f"s_lshl_b32 s35, s{sXR}, 14"); A("s_add_u32 s34, s34, s35"); A(f"s_add_u32 s34, s34, {WS_H2F}"); U.add64(46, sWS, "s34")
    for X in range(2):
        for j in range(4): A(f"v_mov_b32 v{AC1+X*4+j}, v{B1+4*X+j}")
    def issueC():
        for i in range(4): A(f"global_load_dwordx4 {r(FF+4*i,4)}, v8, s[46:47] offset:{i*1024} sc1")
    U.load_valid(issueC, list(range(FF, FF+16)), 12, sleep=LVS)
    for i in range(4): A(f"ds_write_b128 v8, {r(FF+4*i,4)} offset:{i*1024}")
    A("s_waitcnt lgkmcnt(0)"); A("s_barrier")
    for n in range(4): A(f"ds_read_b128 {r(HFR+4*n,4)}, v2 offset:{n*1024}")
    for n in range(16):
        if n + 4 < 16: A(f"ds_read_b128 {r(HFR+4*((n+4) % 8),4)}, v2 offset:{(n+4)*1024}")
        A(f"s_waitcnt lgkmcnt({min(4, 15-n)})")
        for X in range(2):
            d = r(AC1+X*4, 4)
            A(f"{MF} {d}, {ar((X*16+n)*4,4)}, {r(HFR+4*(n % 8),4)}, {d}")
    tl_stamp(A, TL, 0, 8)
    for X in range(2):
        b = AC1+X*4
        for k in range(0, 4, 2): bf_round_pair(A, b+k, b+k+1, 12)
    vals = [AC1+i for i in range(8)]; T = 48
    for i, x in enumerate(vals): A(f"v_mul_f32 v{T+i}, v{x}, v{x}")
    for i, x in enumerate(vals): A(f"v_mul_f32 v{T+i}, s28, v{T+i}")
    for i, x in enumerate(vals): A(f"v_fma_f32 v{T+i}, v{T+i}, v{x}, v{x}")
    for i, x in enumerate(vals): A(f"v_mul_f32 v{T+i}, s29, v{T+i}")
    for i, x in enumerate(vals): A(f"v_exp_f32 v{T+i}, v{T+i}")
    for i, x in enumerate(vals): A(f"v_add_f32 v{T+i}, 1.0, v{T+i}")
    for i, x in enumerate(vals): A(f"v_rcp_f32 v{T+i}, v{T+i}")
    for i, x in enumerate(vals): A(f"v_mul_f32 v{x}, v{x}, v{T+i}")
    for X in range(2):
        b = AC1+X*4
        A(f"v_cvt_pk_bf16_f32 v{24+2*X}, v{b}, v{b+1}"); A(f"v_cvt_pk_bf16_f32 v{25+2*X}, v{b+2}, v{b+3}")
    A("ds_write_b128 v9, v[24:27] offset:32768")
    A("s_waitcnt lgkmcnt(0)"); A("s_barrier")
    for n in range(4): A(f"ds_read_b128 {r(FF+4*n,4)}, v2 offset:{32768 + n*1024}")
    A("s_waitcnt lgkmcnt(0)")
    for u in range(4):
        for q in range(8):
            d = r(AC2+q*4, 4)
            A(f"{MF} {d}, {ar(128+(u*8+q)*4,4)}, {r(FF+u*4,4)}, {'0' if u == 0 else d}")
    A(f"s_mul_i32 s34, s{sS}, 11"); A(f"s_add_u32 s34, s34, s{sF}"); A("s_lshl_b32 s34, s34, 15"); A(f"s_lshl_b32 s35, s{sXR}, 14"); A("s_add_u32 s34, s34, s35")
    A(f"s_add_u32 s34, s34, {WS_FP}"); U.add64(46, sWS, "s34")
    for p in range(4):
        a0 = AC2 + (2*p)*4; a1 = AC2 + (2*p+1)*4
        o = HFR + 4*p
        A(f"v_cvt_pk_bf16_f32 v{o}, v{a0}, v{a0+1}"); A(f"v_cvt_pk_bf16_f32 v{o+1}, v{a0+2}, v{a0+3}")
        A(f"v_cvt_pk_bf16_f32 v{o+2}, v{a1}, v{a1+1}"); A(f"v_cvt_pk_bf16_f32 v{o+3}, v{a1+2}, v{a1+3}")
        A(f"global_store_dwordx4 v10, {r(o,4)}, s[46:47] offset:{p*64} sc1")
    tl_stamp(A, TL, 0, 10)
    cnt_addr(A, U, 42, C_CD, sS, sXR); U.signal(42)
    tl_stamp(A, TL, 0, 11)
    A(f"s_add_u32 s{sS}, s{sS}, 4"); A(f"s_cmp_lt_u32 s{sS}, 64"); A("s_cbranch_scc1 C_loop")

def roles_ARC(A, U, sJ, TL=False, slp=None, w1=True):
    U.WAIT = U.wait_cnt1 if w1 else U.wait_cnt
    if slp: SLP.update(slp)
    A("s_barrier")
    if DPOLL: U.wait_cnt1(sDBG, 8, off=D_CLR*4, sleep=4)
    A(f"s_cmp_ge_u32 s{sJ}, 64"); A("s_cbranch_scc1 L_notA")
    role_A(A, U, sJ, TL)
    tl_stamp(A, TL, 0, 6)
    A("s_branch L_end")
    A.label("L_notA")
    A(f"s_cmp_ge_u32 s{sJ}, {R0}"); A("s_cbranch_scc1 L_notC")
    role_C(A, U, sJ, TL)
    tl_stamp(A, TL, 0, 6)
    A("s_branch L_end")
    A.label("L_notC")
    A(f"s_cmp_ge_u32 s{sJ}, {R0+64}"); A("s_cbranch_scc1 L_end")
    role_R(A, U, sJ, TL)
    tl_stamp(A, TL, 0, 6)
```

```python
from common import *
import struct
L_STG = 0; L_QB = 8192; L_OB = 161280; L_KX = 10752; L_VX = 18944; L_KB = 27136; L_WO = 30208
OSTR = 288
import os
if os.environ.get('OB_ALIAS'): L_OB = 8192
L_PF = 161280

vWoB = 1
vIDX, vL16, vAG, vWoA, vQW, vQR, vOW, vPst, vRS, vMst, vOR = range(2, 13)
vSEL = 16
vONE = 20
vHALF = 14
T0r, T1r = 0, 13
M = 24; Q = 56; K = 72; AQ = 88; AK = 96; SX = 104; SM = 112; OX = 116; LX = 124
WV = 128

SC_C = 0.08838834764831845 * 1.4426950408889634

sS = 12
sC = 14
sPst = 16
sPrd = 24
sMb = 26; sMc = 28; sKX = 30; sVX = 32
sMMSK = 40
sODD = 42
sFAIL = 44; sCNT = 45; sLO = 46
sHIST = 48
sPz = 50
sMz = 52
sMn = 54
sHn = 56
sM0K = 58
sM0V = 59
sNAG = 60
sNRS = 61
sST = 64
sTHR = 8
sEXC = 62
sEK = 92
sEV = 94
sKVC = 98
sEVp = 100
sXM = 46
sKVOK = 13
sHB2 = 20
sTAG = 50
sPrd2 = 22
sHn2 = 84
sHB = 18
sPF = 24

class Chain:
    def __init__(self, A, U, stamps=False, hist=False, nsteps=63, nv1=12, rs_wait=None, ag_delay=2, p_layout=1, rs_delay=2, masked=False, wo_spread=True, nohist=False, dump=None, rs_sets=2, rs_gap=2, ag_sets=2, ag_gap=2, late_reset=True, ag_reset=True, kvwait=True, pipe_t0=True, nocomm=False, stash_v=False, l2pf=False, noexp=False, nodma=False, mpoll=False, ag_depth=2, rs_depth=2, ackstamp=False, steplog=False, rs_var='C', opt2=True, bar=5, early_shadow=True, ptag=True, cfull=False, no_rs=False, no_ag=False, dmaflag='sc1', kbar=True, vearly=False, vexp_early=True, dmalat=False, standin=True, pvearly=True, force_slow=False, looptail=True, dma_rs=False):
        self.dma_rs = dma_rs
        if dma_rs: kbar = False; self.kbar = False
        self.looptail = looptail
        self.standin = standin; self.pvearly = pvearly; self.force_slow = force_slow
        self.dmalat = dmalat
        self.vexp_early = vexp_early
        self.vearly = vearly
        self.dmaflag = dmaflag; self.kbar = kbar and not dma_rs
        self.no_rs = no_rs; self.no_ag = no_ag
        self.cfull = cfull
        self.ptag = ptag
        self.early_shadow = early_shadow
        self.bar = bar
        self.opt2 = opt2
        self.rs_var = rs_var
        self.steplog = steplog
        self.ackstamp = ackstamp
        self.mpoll = mpoll; self.ag_depth = ag_depth; self.rs_depth = rs_depth
        self.nodma = nodma; self.noexp = noexp
        self.stash_v = stash_v; self.l2pf = l2pf
        self.pipe_t0 = pipe_t0; self.nocomm = nocomm
        self.U = U; self.kv_ret = []; self.exports = not noexp; self.ag_reset = ag_reset; self.kvwait = kvwait
        self.rs_sets = rs_sets; self.rs_gap = rs_gap; self.ag_sets = ag_sets; self.ag_gap = ag_gap; self.late_reset = late_reset
        hist = hist and not nohist
        self.p_layout = p_layout; self.rs_delay = rs_delay; self.masked = masked; self.wo_spread = wo_spread
        self.nv1 = nv1; self.rs_wait = rs_wait; self.ag_delay = ag_delay
        self.A = A; self.stamps = stamps; self.hist = hist; self.nsteps = nsteps

    def delay(self, x):
        n = int(round(x*16))
        while n > 0:
            k = min(n, 16); self.A(f"s_nop {k-1}"); n -= k

    def stamp(self, i):
        if not self.stamps: return
        A = self.A
        A(f"s_memtime s[{sST+2*i}:{sST+2*i+1}]")

    def setup_consts(self):
        A = self.A; l = "v0"
        A(f"v_lshlrev_b32 {r(vL16)}, 4, {l}")
        A(f"s_lshl_b32 s34, s{sW}, 11"); A(f"v_add_u32 {r(vAG)}, s34, {r(vL16)}")
        A(f"s_lshl_b32 s34, s{sW}, 14"); A(f"s_add_u32 s34, s34, {L_WO}"); A(f"v_add_u32 {r(vWoA)}, s34, {r(vL16)}")
        A(f"v_add_u32 {r(vWoB)}, 0x10000, {r(vWoA)}")
        A(f"v_and_b32 v24, 15, {l}")
        A(f"v_lshrrev_b32 v25, 4, {l}")
        A(f"v_mov_b32 {r(vIDX)}, 0x4444"); A("v_mov_b32 v26, 0xeeee")
        A("v_cmp_le_u32 vcc, 8, v24")
        A(f"v_cndmask_b32 {r(vIDX)}, {r(vIDX)}, v26, vcc")
        A(f"v_lshrrev_b32 v26, 1, v25"); A("v_lshlrev_b32 v26, 8, v26")
        A("v_lshlrev_b32 v27, 4, v24"); A("v_add_u32 v26, v26, v27")
        A("v_and_b32 v27, 1, v25"); A("v_lshlrev_b32 v27, 3, v27"); A("v_add_u32 v26, v26, v27")
        A(f"s_lshl_b32 s34, s{sW}, 9"); A(f"v_add_u32 {r(vQW)}, s34, v26")
        A(f"v_lshrrev_b32 v26, 2, {l}"); A("v_lshlrev_b32 v26, 4, v26")
        A(f"v_and_b32 v27, 1, {l}"); A("v_lshlrev_b32 v27, 3, v27"); A(f"v_add_u32 {r(vQR)}, v26, v27")
        A("v_and_b32 v26, 7, v24"); A(f"v_mul_u32_u24 v26, {OSTR}, v26"); A(f"v_add_u32 {r(vOR)}, {L_OB}, v26")
        A("v_lshlrev_b32 v27, 3, v25"); A(f"v_add_u32 {r(vOW)}, {r(vOR)}, v27")
        A(f"s_lshl_b32 s34, s{sW}, 6"); A(f"v_add_u32 {r(vOW)}, s34, {r(vOW)}")
        A("v_lshlrev_b32 v27, 4, v25"); A(f"v_add_u32 {r(vOR)}, {r(vOR)}, v27")
        if self.rs_var == 'C':
            pass
        elif self.p_layout == 0:
            A(f"v_lshrrev_b32 v26, 5, {l}"); A("v_lshlrev_b32 v26, 13, v26")
            A("v_and_b32 v27, 1, v25"); A("v_lshlrev_b32 v27, 7, v27"); A("v_add_u32 v26, v26, v27")
            A("v_lshlrev_b32 v27, 3, v24"); A("v_add_u32 v26, v26, v27")
            A(f"s_lshl_b32 s34, s{sW}, 16"); A(f"s_lshl_b32 s35, s{sH}, 8"); A("s_add_u32 s34, s34, s35")
            A(f"v_add_u32 {r(vPst)}, s34, v26")
            A("v_lshlrev_b32 v26, 8, v25"); A("v_lshlrev_b32 v27, 2, v24"); A("v_add_u32 v26, v26, v27")
            A(f"s_lshl_b32 s34, s{sH}, 13"); A(f"s_lshl_b32 s35, s{sW}, 6"); A("s_add_u32 s34, s34, s35"); A("s_add_u32 s34, s34, 4096")
            A(f"v_add_u32 {r(vRS)}, s34, v26")
        else:
            A(f"v_lshrrev_b32 v26, 5, {l}"); A("v_lshlrev_b32 v26, 13, v26")
            A("v_and_b32 v27, 1, v25"); A("v_lshlrev_b32 v27, 12, v27"); A("v_add_u32 v26, v26, v27")
            A("v_lshrrev_b32 v27, 3, v24"); A("v_lshlrev_b32 v27, 11, v27"); A("v_add_u32 v26, v26, v27")
            A("v_and_b32 v27, 7, v24"); A("v_lshlrev_b32 v27, 3, v27"); A("v_add_u32 v26, v26, v27")
            A(f"s_lshl_b32 s34, s{sW}, 16"); A(f"s_lshl_b32 s35, s{sH}, 6"); A("s_add_u32 s34, s34, s35")
            A(f"v_add_u32 {r(vPst)}, s34, v26")
            A("v_lshlrev_b32 v26, 6, v25"); A("v_lshlrev_b32 v27, 2, v24"); A("v_add_u32 v26, v26, v27")
            A(f"s_lshl_b32 s34, s{sH}, 13"); A(f"s_lshl_b32 s35, s{sW}, 11"); A("s_add_u32 s34, s34, s35")
            A(f"v_add_u32 {r(vRS)}, s34, v26")
        if self.rs_var == 'C':
            if not self.cfull:
                A(f"v_lshrrev_b32 v26, 5, {l}"); A("v_lshlrev_b32 v26, 3, v26")
                A("v_and_b32 v27, 1, v25"); A("v_lshlrev_b32 v27, 2, v27"); A("v_add_u32 v26, v26, v27")
                A("v_lshrrev_b32 v27, 2, v24"); A("v_add_u32 v26, v26, v27"); A("v_lshlrev_b32 v26, 11, v26")
                A("v_and_b32 v27, 3, v24"); A("v_lshlrev_b32 v27, 4, v27"); A("v_add_u32 v26, v26, v27")
                A(f"s_lshl_b32 s34, s{sW}, 16"); A(f"s_lshl_b32 s35, s{sH}, 6"); A("s_add_u32 s34, s34, s35")
                A(f"v_add_u32 {r(vPst)}, s34, v26")
                A(f"s_lshl_b32 s34, s{sH}, 13"); A(f"v_add_u32 {r(vRS)}, s34, {r(vAG)}")
            else:
                A(f"v_lshrrev_b32 v26, 5, {l}"); A("v_lshlrev_b32 v26, 2, v26")
                A("v_and_b32 v27, 1, v25"); A("v_lshlrev_b32 v27, 1, v27"); A("v_add_u32 v26, v26, v27")
                A("v_lshrrev_b32 v27, 3, v24"); A("v_add_u32 v26, v26, v27"); A("v_lshlrev_b32 v26, 12, v26")
                A("v_and_b32 v27, 7, v24"); A("v_lshlrev_b32 v27, 4, v27"); A("v_add_u32 v26, v26, v27")
                A(f"s_lshl_b32 s34, s{sW}, 16"); A(f"s_lshl_b32 s35, s{sH}, 7"); A("s_add_u32 s34, s34, s35")
                A(f"v_add_u32 {r(vPst)}, s34, v26")
                A(f"v_lshrrev_b32 v26, 2, {l}"); A("v_lshlrev_b32 v26, 7, v26"); A(f"v_and_b32 v27, 3, {l}"); A("v_lshlrev_b32 v27, 4, v27"); A("v_add_u32 v26, v26, v27")
                A(f"s_lshl_b32 s34, s{sH}, 13"); A(f"s_lshr_b32 s35, s{sW}, 1"); A("s_lshl_b32 s35, s35, 12"); A("s_add_u32 s34, s34, s35")
                A(f"s_and_b32 s35, s{sW}, 1"); A("s_lshl_b32 s35, s35, 6"); A("s_add_u32 s34, s34, s35")
                A(f"v_add_u32 {r(vRS)}, s34, v26")
            A(f"s_lshr_b32 s34, s{sH}, 3"); A("s_lshl_b32 s34, s34, 3")
            A(f"s_bfe_u32 s35, s{sH}, 0x10002"); A("s_lshl_b32 s35, s35, 2"); A("s_add_u32 s34, s34, s35")
            A(f"s_bfe_u32 s35, s{sH}, 0x10001"); A("s_add_u32 s34, s34, s35")
            A("v_and_b32 v26, 1, v25"); A("v_lshlrev_b32 v26, 1, v26"); A("v_add_u32 v26, s34, v26")
            A(f"v_bfe_u32 v27, {l}, 2, 2"); A(f"s_and_b32 s34, s{sH}, 1"); A("s_lshl_b32 s34, s34, 2"); A("v_add_u32 v27, s34, v27")
            A(f"v_bfe_u32 v28, {l}, 1, 1"); A(f"s_lshl_b32 s34, s{sW}, 1"); A("v_add_u32 v28, s34, v28")
            A("v_and_b32 v29, 1, v28"); A("v_lshlrev_b32 v29, 3, v29"); A("v_add_u32 v29, v29, v27"); A("v_lshlrev_b32 v29, 4, v29")
            A("v_lshrrev_b32 v30, 1, v28"); A("v_lshlrev_b32 v30, 2, v30"); A("v_add_u32 v29, v29, v30")
            A("v_lshlrev_b32 v30, 8, v26"); A(f"v_add_u32 {r(vMst)}, v29, v30")
            A("v_lshlrev_b32 v27, 10, v27"); A("v_lshlrev_b32 v26, 5, v26"); A("v_lshlrev_b32 v28, 2, v28"); A("v_add_u32 v27, v27, v26"); A("v_add_u32 v127, v27, v28")
            A("v_and_b32 v26, 7, v24"); A("v_lshrrev_b32 v27, 1, v26"); A("v_and_b32 v28, 1, v26")
            A("v_mov_b32 v29, 0x3f80"); A("v_mov_b32 v30, 0x3f800000")
            A("v_cmp_eq_u32 vcc, 1, v28"); A("v_cndmask_b32 v29, v29, v30, vcc")
            for rho in range(4):
                A(f"v_cmp_eq_u32 vcc, {rho}, v27"); A(f"v_cndmask_b32 {r(vSEL+rho)}, 0, v29, vcc")
        elif self.rs_var == 'A':
            A(f"v_and_b32 v26, 3, {l}"); A(f"s_and_b32 s34, s{sW}, 1"); A("s_lshl_b32 s34, s34, 2"); A("v_add_u32 v26, s34, v26")
            A(f"s_lshr_b32 s34, s{sW}, 1"); A("s_lshl_b32 s34, s34, 2"); A("v_add_u32 v27, s34, v25")
            A("v_and_b32 v28, 1, v26"); A("v_lshlrev_b32 v28, 3, v28"); A("v_add_u32 v28, v28, v27"); A("v_lshlrev_b32 v28, 4, v28")
            A("v_lshrrev_b32 v29, 1, v26"); A("v_lshlrev_b32 v29, 2, v29"); A("v_add_u32 v28, v28, v29")
            A(f"s_lshl_b32 s34, s{sH}, 8"); A(f"v_add_u32 {r(vMst)}, s34, v28")
            A("v_lshlrev_b32 v27, 10, v27"); A("v_lshlrev_b32 v26, 2, v26"); A("v_add_u32 v27, v27, v26")
            A(f"s_lshl_b32 s34, s{sH}, 5"); A("v_add_u32 v127, s34, v27")
            A("v_and_b32 v26, 7, v24"); A("v_lshrrev_b32 v27, 1, v26"); A("v_and_b32 v28, 1, v26")
            A("v_mov_b32 v29, 0x3f80"); A("v_mov_b32 v30, 0x3f800000")
            A("v_cmp_eq_u32 vcc, 1, v28"); A("v_cndmask_b32 v29, v29, v30, vcc")
            for rho in range(4):
                A(f"v_cmp_eq_u32 vcc, {rho}, v27"); A(f"v_cndmask_b32 {r(vSEL+rho)}, 0, v29, vcc")
            A(f"s_lshl_b32 s34, s{sH}, 13"); A(f"v_add_u32 {r(vRS)}, s34, {r(vAG)}")
        else:
            A("v_lshrrev_b32 v26, 2, v24"); A(f"s_and_b32 s34, s{sW}, 1"); A("s_lshl_b32 s34, s34, 2"); A("v_add_u32 v26, s34, v26")
            A("v_and_b32 v27, 1, v24"); A("v_lshlrev_b32 v27, 1, v27"); A("v_and_b32 v28, 1, v25"); A("v_add_u32 v27, v27, v28")
            A(f"s_lshr_b32 s34, s{sW}, 1"); A("s_lshl_b32 s34, s34, 2"); A("v_add_u32 v27, s34, v27")
            A("v_and_b32 v28, 1, v26"); A("v_lshlrev_b32 v28, 3, v28"); A("v_add_u32 v28, v28, v27"); A("v_lshlrev_b32 v28, 4, v28")
            A("v_lshrrev_b32 v29, 1, v26"); A("v_lshlrev_b32 v29, 2, v29"); A("v_add_u32 v28, v28, v29")
            A(f"s_lshl_b32 s34, s{sH}, 8"); A(f"v_add_u32 {r(vMst)}, s34, v28")
            A("v_lshlrev_b32 v27, 10, v27"); A("v_lshlrev_b32 v26, 2, v26"); A("v_add_u32 v27, v27, v26")
            A(f"s_lshl_b32 s34, s{sH}, 5"); A("v_add_u32 v127, s34, v27")
            A("v_and_b32 v26, 1, v24"); A("v_mov_b32 v27, 0x3f80"); A("v_mov_b32 v28, 0x3f800000")
            A("v_cmp_eq_u32 vcc, 1, v26"); A(f"v_cndmask_b32 {r(vSEL)}, v27, v28, vcc")
            for i in range(1, 4): A(f"v_mov_b32 {r(vSEL+i)}, {r(vSEL)}")
        for i in range(4): A(f"v_mov_b32 {r(vONE+i)}, 0x3f803f80")
        A("v_cmp_gt_u32 vcc, 2, v25"); A(f"v_cndmask_b32 {r(vHALF)}, 0, {r(vONE)}, vcc"); A(f"v_mov_b32 {r(vHALF+1)}, {r(vHALF)}")
        if self.rs_var == 'C':
            A(f"s_mov_b32 s{sMMSK}, 0x55555555"); A(f"s_mov_b32 s{sMMSK+1}, 0")
            A(f"s_mov_b32 s{sHB}, 0xf0f0f0f0"); A(f"s_mov_b32 s{sHB+1}, 0xf0f0f0f0")
            A(f"s_mov_b32 s{sHB2}, 0xff00ff00"); A(f"s_mov_b32 s{sHB2+1}, 0xff00ff00")
        elif self.rs_var == 'A':
            A(f"s_mov_b32 s{sMMSK}, 0x000f000f"); A(f"s_mov_b32 s{sMMSK+1}, 0x000f000f")
            A(f"s_mov_b32 s{sODD}, 0"); A(f"s_mov_b32 s{sODD+1}, -1")
        else:
            A(f"s_mov_b32 s{sMMSK}, 0x33333333"); A(f"s_mov_b32 s{sMMSK+1}, 0")
            A(f"s_mov_b32 s{sODD}, 0xffff0000"); A(f"s_mov_b32 s{sODD+1}, 0xffff0000")
        A(f"s_mov_b32 s{sC}, {fbits(SC_C):#x}"); A(f"s_mov_b32 s{sC+1}, {fbits(SC_C):#x}")
        A(f"s_mov_b32 s{sTHR}, {fbits(-1.0 if self.force_slow else 40.0/SC_C):#x}")
        A(f"s_add_u32 s{sMb}, s{sWS}, {WS_MBUF}"); A(f"s_addc_u32 s{sMb+1}, s{sWS+1}, 0")
        A(f"s_add_u32 s{sHIST}, s{sWS}, {WS_MHIST}"); A(f"s_addc_u32 s{sHIST+1}, s{sWS+1}, 0")
        A(f"s_lshl_b32 s34, s{sH}, 13")
        A(f"s_add_u32 s{sKX}, s{sWS}, s34"); A(f"s_addc_u32 s{sKX+1}, s{sWS+1}, 0")
        A(f"s_add_u32 s{sVX}, s{sKX}, {WS_VX}"); A(f"s_addc_u32 s{sVX+1}, s{sKX+1}, 0")
        A(f"s_add_u32 s{sKX}, s{sKX}, {WS_KX}"); A(f"s_addc_u32 s{sKX+1}, s{sKX+1}, 0")

    def clear_slots(self):
        A = self.A
        for i in range(4): A(f"v_mov_b32 v{28+i}, -1")
        for par in range(2):
            A(f"s_lshl_b32 s34, s{sH}, 13"); A(f"s_add_u32 s34, s34, {WS_PBUF + par*0x40000}")
            A(f"s_add_u32 s36, s{sWS}, s34"); A(f"s_addc_u32 s37, s{sWS+1}, 0")
            A(f"global_store_dwordx4 {r(vAG)}, v[28:31], s[36:37] sc1"); A(f"global_store_dwordx4 {r(vAG)}, v[28:31], s[36:37] offset:1024 sc1")
        A(f"s_mov_b64 exec, {sp(sMMSK)}")
        for i in range(4):
            A(f"s_add_u32 s36, s{sMb}, {i*8192}"); A(f"s_addc_u32 s37, s{sMb+1}, 0")
            A(f"global_store_dword {r(vMst)}, v28, s[36:37] sc1")
        A("s_mov_b64 exec, -1")

    def load_weights(self):
        A = self.A; l = "v0"
        A("s_load_dwordx4 s[56:59], s[0:1], 16"); A("s_load_dwordx4 s[60:63], s[0:1], 32")
        A(f"v_lshrrev_b32 v24, 4, {l}")
        A(f"v_and_b32 v25, 15, {l}"); A("v_lshlrev_b32 v26, 1, v24"); A("v_xor_b32 v25, v25, v26"); A("v_lshlrev_b32 v25, 4, v25")
        A("v_lshlrev_b32 v24, 13, v24"); A("v_add_u32 v24, v24, v25")
        A(f"s_lshl_b32 s34, s{sW}, 17"); A(f"s_lshl_b32 s35, s{sH}, 8"); A("s_add_u32 s34, s34, s35")
        A("v_add_u32 v24, s34, v24"); A("v_xor_b32 v25, 128, v24")
        A(f"v_lshrrev_b32 v26, 4, {l}"); A(f"v_bfe_u32 v27, {l}, 2, 2"); A(f"v_and_b32 v28, 3, {l}")
        A("v_lshlrev_b32 v29, 3, v26"); A("v_add_u32 v29, v29, v27"); A("v_lshlrev_b32 v29, 8, v29")
        A("v_lshrrev_b32 v30, 1, v28")
        A("v_lshlrev_b32 v31, 1, v27"); A("v_and_b32 v32, 1, v26"); A("v_lshlrev_b32 v32, 3, v32"); A("v_add_u32 v31, v31, v32")
        A(f"s_lshl_b32 s34, s{sW}, 2"); A("v_add_u32 v30, s34, v30"); A("v_xor_b32 v30, v30, v31")
        A("v_lshlrev_b32 v30, 4, v30"); A("v_add_u32 v29, v29, v30")
        A("v_and_b32 v32, 1, v28"); A("v_lshlrev_b32 v32, 3, v32"); A("v_add_u32 v29, v29, v32")
        A(f"v_add_u32 v38, {L_WO}, v29"); A("v_xor_b32 v39, 32, v29"); A(f"v_add_u32 v39, {L_WO}, v39")
        A("v_add_u32 v36, 0x10000, v38"); A("v_add_u32 v37, 0x10000, v39")
        A("v_lshrrev_b32 v33, 1, v26"); A("v_lshlrev_b32 v33, 3, v33"); A("v_and_b32 v34, 1, v26"); A("v_lshlrev_b32 v34, 2, v34"); A("v_add_u32 v33, v33, v34")
        A("v_and_b32 v34, 1, v27"); A("v_add_u32 v33, v33, v34"); A("v_lshlrev_b32 v33, 10, v33"); A("v_add_u32 v33, v33, v32")
        A(f"s_lshl_b32 s34, s{sW}, 8"); A(f"s_add_u32 s34, s34, {L_WO}"); A("v_add_u32 v33, s34, v33")
        A("v_lshrrev_b32 v34, 1, v27"); A("v_lshlrev_b32 v34, 1, v34"); A("v_lshrrev_b32 v35, 1, v28"); A("v_add_u32 v34, v34, v35")
        A("v_and_b32 v35, 1, v27"); A("v_lshlrev_b32 v35, 1, v35"); A("v_lshrrev_b32 v40, 1, v26"); A("v_and_b32 v40, 1, v40"); A("v_lshlrev_b32 v40, 3, v40")
        A("v_add_u32 v35, v35, v40"); A("v_xor_b32 v34, v34, v35")
        A("s_waitcnt lgkmcnt(0)")
        def dma_qkv(c):
            mat, t = divmod(c, 8); slot = c % 8; base = 56 + 2*mat
            for i in range(4):
                off = (64*t + 4*i) * 8192
                A(f"s_add_u32 s36, s{base}, {off}"); A(f"s_addc_u32 s37, s{base+1}, 0")
                A(f"s_lshl_b32 s34, s{sW}, 12"); A(f"s_add_u32 m0, s34, {L_WO + slot*16384 + i*1024}")
                A(f"global_load_lds_dwordx4 v{24 + (i >> 1)}, s[36:37]")
        def dma_wo(slot):
            for i in range(4):
                A(f"s_lshr_b32 s34, s{sW}, 1"); A("s_lshl_b32 s34, s34, 3"); A(f"s_add_u32 s34, s34, {2*i}")
                A(f"v_xor_b32 v35, s34, {l}"); A("v_lshlrev_b32 v35, 4, v35")
                A(f"s_lshl_b32 s34, s{sH}, 17"); A(f"s_lshl_b32 s35, s{sW}, 12"); A("s_add_u32 s34, s34, s35")
                A(f"s_add_u32 s34, s34, {(16*slot + i)*1024}")
                A("s_add_u32 s36, s62, s34"); A("s_addc_u32 s37, s63, 0")
                A(f"s_lshl_b32 s34, s{sW}, 12"); A(f"s_add_u32 m0, s34, {L_WO + slot*16384 + i*1024}")
                A("global_load_lds_dwordx4 v35, s[36:37]")
        for c in range(8): dma_qkv(c)
        for c in range(24):
            mat, t = divmod(c, 8); slot = c % 8
            A("s_waitcnt vmcnt(28)"); A("s_barrier")
            if c == 0:
                L2 = A.newlabel("RC")
                A(f"s_cmp_lg_u32 s{sW}, 0"); A(f"s_cbranch_scc1 {L2}")
                A("v_mov_b32 v41, 0"); A("v_mov_b32 v42, s90"); A("s_mov_b64 exec, 1")
                A(f"global_atomic_add v41, v42, {sp(sDBG)} offset:{D_ROLL*4}")
                A("s_mov_b64 exec, -1")
                A.label(L2)
            for X in range(2):
                for q4 in range(4):
                    roff = [0, 4, 32, 36][q4] * 256
                    ridx = (X*8 + t)*8 + 2*q4
                    d = ar(ridx, 2) if mat == 0 else (ar(128 + ridx, 2) if mat == 1 else r(WV + ridx, 2))
                    so = slot*16384 + roff
                    if so < 65536: A(f"ds_read_b64_tr_b16 {d}, v{38+X} offset:{so}")
                    else: A(f"ds_read_b64_tr_b16 {d}, v{36+X} offset:{so-65536}")
            A("s_waitcnt lgkmcnt(0)"); A("s_barrier")
            if c + 8 < 24: dma_qkv(c + 8)
            else: dma_wo(slot)
        for hb in range(2):
            A("s_waitcnt vmcnt(16)" if hb == 0 else "s_waitcnt vmcnt(0)"); A("s_barrier")
            for dl in range(4):
                for u1 in range(2):
                    A(f"v_xor_b32 v35, {(4*dl) ^ (4*u1)}, v34"); A("v_lshlrev_b32 v35, 4, v35"); A("v_add_u32 v35, v35, v33")
                    if hb: A("v_add_u32 v35, 0x10000, v35")
                    for tl in range(2):
                        for u2 in range(2):
                            u = 2*u2 + u1
                            dst = 48 + (dl*2 + tl)*8 + 2*u
                            A(f"ds_read_b64_tr_b16 {r(dst, 2)}, v35 offset:{tl*32768 + u2*16384 + u1*2048}")
            A("s_waitcnt lgkmcnt(0)"); A("s_barrier")
            b = vWoA if hb == 0 else vWoB
            for st in range(8):
                for half in range(2):
                    A(f"ds_write_b128 {r(b)}, {r(48 + st*8 + 4*half, 4)} offset:{st*2048 + half*1024}")
            A("s_waitcnt lgkmcnt(0)")

    def dma_k(self):
        A = self.A
        A(f"s_lshl_b32 s34, s{sW}, 11"); A(f"s_add_u32 m0, s34, {L_KX}")
        A(f"global_load_lds_dwordx4 {r(vAG)}, {sp(sKX)}"); A(f"global_load_lds_dwordx4 {r(vAG)}, {sp(sKX)} offset:1024 sc1")
        A(f"s_add_u32 s{sKX}, s{sKX}, 0x40000"); A(f"s_addc_u32 s{sKX+1}, s{sKX+1}, 0")
    def dma_v(self):
        A = self.A
        A(f"s_lshl_b32 s34, s{sW}, 11"); A(f"s_add_u32 m0, s34, {L_VX}")
        A(f"global_load_lds_dwordx4 {r(vAG)}, {sp(sVX)}"); A(f"global_load_lds_dwordx4 {r(vAG)}, {sp(sVX)} offset:1024")
        A(f"s_add_u32 s{sVX}, s{sVX}, 0x40000"); A(f"s_addc_u32 s{sVX+1}, s{sVX+1}, 0")

    def preload_mem0(self):
        A = self.A
        A("s_load_dwordx2 s[36:37], s[0:1], 8"); A("s_waitcnt lgkmcnt(0)")
        A(f"s_mov_b64 exec, {sp(sMMSK)}")
        A("global_load_dword v126, v127, s[36:37]")
        A("s_mov_b64 exec, -1")
    def publish_mem0(self):
        A = self.A
        A(f"s_mov_b64 exec, {sp(sMMSK)}")
        A(f"global_store_dword {r(vMst)}, v126, {sp(sMb)}")
        if self.hist: A(f"global_store_dword {r(vMst)}, v126, {sp(sHIST)}")
        A("s_mov_b64 exec, -1")

    def salu_step(self):
        L = []; A = L.append
        A(f"s_and_b32 s34, s{sS}, 1"); A("s_lshl_b32 s34, s34, 18"); A(f"s_add_u32 s34, s34, {WS_PBUF}")
        A(f"s_add_u32 s{sPst}, s{sWS}, s34"); A(f"s_addc_u32 s{sPst+1}, s{sWS+1}, 0")
        A(f"s_add_u32 s24, s{sPst}, 32768"); A(f"s_addc_u32 s25, s{sPst+1}, 0")
        A(f"s_bfe_u32 s{sTAG}, s{sS}, 0x10001")
        A(f"s_add_u32 s34, s{sS}, 1"); A("s_and_b32 s35, s34, 3"); A("s_lshl_b32 s35, s35, 13")
        A(f"s_add_u32 s{sMn}, s{sMb}, s35"); A(f"s_addc_u32 s{sMn+1}, s{sMb+1}, 0")
        A("s_xor_b32 s35, s35, 0x4000")
        A(f"s_add_u32 s{sMz}, s{sMb}, s35"); A(f"s_addc_u32 s{sMz+1}, s{sMb+1}, 0")
        if self.hist:
            A("s_lshl_b32 s34, s34, 13"); A(f"s_add_u32 s{sHn}, s{sHIST}, s34"); A(f"s_addc_u32 s{sHn+1}, s{sHIST+1}, 0")
        A(f"s_lshl_b32 s34, s{sS}, 5"); A(f"s_add_u32 s34, s34, s{sH}")
        A("s_lshl_b32 s35, s34, 11"); A(f"s_add_u32 s35, s35, {WS_EK}"); A(f"s_add_u32 s{sEK}, s{sWS}, s35"); A(f"s_addc_u32 s{sEK+1}, s{sWS+1}, 0")
        A("s_lshl_b32 s35, s34, 13"); A(f"s_add_u32 s35, s35, {WS_EV}"); A(f"s_add_u32 s{sEV}, s{sWS}, s35"); A(f"s_addc_u32 s{sEV+1}, s{sWS+1}, 0")
        A(f"s_lshl_b32 s34, s{sS}, {CS}"); A(f"s_add_u32 s35, s34, {cnt_off(C_EXP) - 128}")
        A(f"s_cmp_eq_u32 s{sS}, 0"); A(f"s_cselect_b32 s35, {CNT_DUMMY}, s35")
        A(f"s_add_u32 s{sEXC}, s{sWS}, s35"); A(f"s_addc_u32 s{sEXC+1}, s{sWS+1}, 0")
        return L
    def shadow_prep(self):
        A = self.A
        for i in range(0, 16, 2): A(f"v_mov_b64 {r(AQ+i,2)}, 0")
        A(f"v_mov_b32 {r(SX)}, -1")

    def ag_poll_m(self, P="L"):
        A = self.A; b = Q; dep = self.ag_depth
        def issue():
            A(f"global_load_dwordx4 {r(b,4)}, {r(vAG)}, {sp(sMc)} sc1")
            A(f"global_load_dwordx4 {r(b+4,4)}, {r(vAG)}, {sp(sMc)} offset:1024 sc1")
        def check():
            A(f"v_max3_u32 {r(T0r)}, {r(b)}, {r(b+1)}, {r(b+2)}"); A(f"v_max3_u32 {r(T1r)}, {r(b+3)}, {r(b+4)}, {r(b+5)}")
            A(f"v_max3_u32 {r(T0r)}, {r(T0r)}, {r(b+6)}, {r(b+7)}"); A(f"v_max_u32 {r(T0r)}, {r(T0r)}, {r(T1r)}")
            A(f"v_cmp_eq_u32 vcc, -1, {r(T0r)}")
            A(f"s_cbranch_vccz {P}_agok")
            A("s_mov_b64 exec, vcc")
            issue()
            A(f"s_add_u32 s{sNAG}, s{sNAG}, 1")
        self.stamp(0)
        A(f"s_mov_b32 s{sCNT}, 0")
        self.shadow_prep()
        self.delay(self.ag_delay)
        for k in range(dep):
            issue()
            if k < dep-1:
                self.delay(self.ag_gap)
        A(f"global_store_dwordx4 {r(vAG)}, {r(SX,4)}, {sp(sPz)}"); A(f"global_store_dwordx4 {r(vAG)}, {r(SX,4)}, {sp(sPz)} offset:1024")
        A(f"s_mov_b64 exec, {sp(sMMSK)}"); A(f"global_store_dword {r(vMst)}, {r(SX)}, {sp(sMz)}"); A("s_mov_b64 exec, -1")
        for k in range(dep):
            A(f"s_waitcnt vmcnt({2*(dep-1) + 3})"); check()
        A.label(f"{P}_ag")
        A(f"s_waitcnt vmcnt({2*(dep-1)})"); check()
        A(f"s_add_u32 s{sCNT}, s{sCNT}, 1")
        A(f"s_cmp_lt_u32 s{sCNT}, 6000"); A(f"s_cbranch_scc1 {P}_ag")
        A(f"s_mov_b32 s{sFAIL}, 1"); A("s_waitcnt vmcnt(0)")
        A.label(f"{P}_agok")
        A("s_mov_b64 exec, -1")
        A(f"ds_write_b128 {r(vAG)}, {r(b,4)}"); A(f"ds_write_b128 {r(vAG)}, {r(b+4,4)} offset:1024")
        self.stamp(1)
        A("s_waitcnt lgkmcnt(0)")
        A("s_barrier")

    def ag_poll(self, P="L"):
        if self.nocomm or self.no_ag:
            A = self.A
            self.stamp(0)
            A(f"ds_write_b128 {r(vAG)}, {r(WV,4)}"); A(f"ds_write_b128 {r(vAG)}, {r(WV+4,4)} offset:1024")
            self.stamp(1); A("s_waitcnt lgkmcnt(0)"); A("s_barrier"); return
        if self.mpoll: return self.ag_poll_m(P)
        A = self.A
        n = self.ag_sets
        regs = [Q, Q+8, K, K+8][:n]
        def issue(b):
            A(f"global_load_dwordx4 {r(b,4)}, {r(vAG)}, {sp(sMc)} sc1")
            A(f"global_load_dwordx4 {r(b+4,4)}, {r(vAG)}, {sp(sMc)} offset:1024 sc1")
        def check(b):
            A(f"v_max3_u32 {r(T0r)}, {r(b)}, {r(b+1)}, {r(b+2)}"); A(f"v_max3_u32 {r(T1r)}, {r(b+3)}, {r(b+4)}, {r(b+5)}")
            A(f"ds_write_b128 {r(vAG)}, {r(b,4)}")
            A(f"v_max3_u32 {r(T0r)}, {r(T0r)}, {r(b+6)}, {r(b+7)}"); A(f"v_max_u32 {r(T0r)}, {r(T0r)}, {r(T1r)}")
            A(f"ds_write_b128 {r(vAG)}, {r(b+4,4)} offset:1024")
            A(f"v_cmp_eq_u32 vcc, -1, {r(T0r)}")
            A(f"s_cbranch_vccz {P}_agok")
            issue(b)
            A(f"s_add_u32 s{sNAG}, s{sNAG}, 1")
        self.stamp(0)
        A(f"s_mov_b32 s{sCNT}, 0")
        stv = self.exports and self.stash_v
        if stv:
            A(f"ds_read_b128 {r(OX,4)}, {r(vAG)}")
            A(f"s_mov_b32 s{sEVp}, s{sEV}"); A(f"s_mov_b32 s{sEVp+1}, s{sEV+1}")
        if not self.early_shadow: self.shadow_prep()
        self.delay(self.ag_delay)
        for k, b in enumerate(regs):
            issue(b)
            if k < n-1:
                self.delay(self.ag_gap)
        nres = 0
        if self.ag_reset:
            if not self.ptag:
                A(f"global_store_dwordx4 {r(vAG)}, {r(SX,4)}, {sp(sPz)}"); A(f"global_store_dwordx4 {r(vAG)}, {r(SX,4)}, {sp(sPz)} offset:1024")
            A(f"s_mov_b64 exec, {sp(sMMSK)}"); A(f"global_store_dword {r(vMst)}, {r(SX)}, {sp(sMz)}"); A("s_mov_b64 exec, -1")
            nres = 1 if self.ptag else 3
            if stv:
                A("s_waitcnt lgkmcnt(0)"); A(f"global_store_dwordx4 {r(vAG)}, {r(OX,4)}, {sp(sEVp)} sc1"); nres = 4
            for k, b in enumerate(regs):
                A(f"s_waitcnt vmcnt({2*(n-1) + nres})"); check(b)
        A.label(f"{P}_ag")
        for k, b in enumerate(regs):
            A(f"s_waitcnt vmcnt({2*(n-1)})"); check(b)
        A(f"s_add_u32 s{sCNT}, s{sCNT}, 1")
        A(f"s_cmp_lt_u32 s{sCNT}, 3000"); A(f"s_cbranch_scc1 {P}_ag")
        A(f"s_mov_b32 s{sFAIL}, 1"); A("s_waitcnt vmcnt(0)")
        A.label(f"{P}_agok")
        self.stamp(1)
        A("s_waitcnt lgkmcnt(0)")
        A("s_barrier")

    def rs_check(self, b, D, MF):
        A = self.A
        assert self.ptag
        A(f"v_xor_b32 {r(T0r)}, s{sTAG+1}, {r(b)}"); A(f"v_xor_b32 {r(T1r)}, s{sTAG+1}, {r(b+4)}")
        A(f"{MF} {r(D,4)}, {r(vSEL,4)}, {r(b,4)}, 0")
        A(f"v_or_b32 {r(T0r)}, {r(T0r)}, {r(T1r)}"); A(f"v_and_b32 {r(T0r)}, 1, {r(T0r)}")
        A(f"{MF} {r(D,4)}, {r(vSEL,4)}, {r(b+4,4)}, {r(D,4)}")
        A(f"v_cmp_ne_u32 vcc, 0, {r(T0r)}")
        A("s_cbranch_vccz L_rsok")

    def exp_flag(self):
        L = self.A.newlabel("XF")
        return [f"s_mov_b64 exec, {sp(sXM)}", f"s_cbranch_execz {L}", f"global_atomic_add {r(vL16)}, {r(vIDX)}, {sp(sEXC)}", f"{L}:", "s_mov_b64 exec, -1"]

    def kv_fast(self):
        L = self.A.newlabel("KVR")
        self.kv_ret.append(L)
        return [f"s_cmp_ge_u32 s{sS}, s{sKVOK}", f"s_cbranch_scc1 KVSLOW", f"KVRET:"]
    def sm_slow_code(self):
        A = self.A; mx, t1 = T0r, T1r
        A.label("SMSLOW")
        A(f"v_max3_f32 {r(mx)}, {r(SX)}, {r(SX+1)}, {r(SX+2)}"); A(f"v_max3_f32 {r(t1)}, {r(SX+3)}, {r(SX+4)}, {r(SX+5)}")
        A(f"v_max3_f32 {r(mx)}, {r(mx)}, {r(SX+6)}, {r(SX+7)}"); A(f"v_max3_f32 {r(t1)}, {r(t1)}, {r(SM)}, {r(SM+1)}")
        A(f"v_max3_f32 {r(mx)}, {r(mx)}, {r(SM+2)}, {r(SM+3)}"); A(f"v_max_f32 {r(mx)}, {r(mx)}, {r(t1)}")
        A(f"v_mov_b32 {r(t1)}, {r(mx)}"); A(f"v_permlane16_swap_b32 {r(mx)}, {r(t1)}"); A(f"v_max_f32 {r(mx)}, {r(mx)}, {r(t1)}")
        A(f"v_mov_b32 {r(t1)}, {r(mx)}"); A(f"v_permlane32_swap_b32 {r(mx)}, {r(t1)}"); A(f"v_max_f32 {r(mx)}, {r(mx)}, {r(t1)}")
        for b in list(range(SX, SX+8)) + list(range(SM, SM+4)): A(f"v_sub_f32 {r(b)}, {r(b)}, {r(mx)}")
        A("s_nop 1")
        A("s_branch SMRET")

    def kv_slow_code(self, lab="KVSLOW", ret="KVRET", need_off=0):
        A = self.A
        A.label(lab)
        A("s_mov_b32 s35, 0")
        A.label(lab + "_l")
        A(f"v_lshlrev_b32 {r(T1r)}, 3, {r(vL16)}")
        A(f"global_load_dword {r(T0r)}, {r(T1r)}, {sp(sKVC)} sc1"); A("s_waitcnt vmcnt(0)")
        A(f"v_cmp_gt_u32 vcc, 32, {r(T0r)}")
        A("s_nop 3"); A("s_ff1_i32_b64 s34, vcc")
        A("s_cmp_eq_u32 s34, -1"); A("s_cselect_b32 s34, 64, s34")
        if self.dma_rs: A(f"s_mov_b32 s{sKVOK}, s34")
        else: A(f"s_sub_u32 s{sKVOK}, s34, 1"); A("s_cmp_eq_u32 s34, 64"); A(f"s_cselect_b32 s{sKVOK}, 64, s{sKVOK}")
        A(f"s_cmp_lt_i32 s{sS}, s{sKVOK}"); A(f"s_cbranch_scc1 {ret}")
        A("s_sleep 4"); A("s_add_u32 s35, s35, 1"); A("s_cmp_lt_u32 s35, 60000"); A(f"s_cbranch_scc1 {lab}_l")
        A(f"s_mov_b32 s{sKVOK}, 64"); A(f"s_branch {ret}")

    def kv_check(self):
        A = self.A
        L = A.newlabel("KV"); E = A.newlabel("KVE")
        out = [f"v_readlane_b32 s34, {r(vMst)}, 2", "s_cmp_ge_u32 s34, 32", f"s_cbranch_scc1 {E}", "s_mov_b32 s35, 0", "s_mov_b64 exec, 4", f"{L}:",
               f"global_load_dword {r(vMst)}, {r(vL16)}, {sp(sKVC)} offset:-96 sc1", "s_waitcnt vmcnt(0)",
               f"v_readlane_b32 s34, {r(vMst)}, 2", "s_cmp_ge_u32 s34, 32", f"s_cbranch_scc1 {E}_x", "s_sleep 2",
               "s_add_u32 s35, s35, 1", "s_cmp_lt_u32 s35, 60000", f"s_cbranch_scc1 {L}", f"{E}_x:", "s_mov_b64 exec, -1", f"{E}:"]
        return out
    def kv_prefetch(self):
        return ["s_mov_b64 exec, 4", f"global_load_dword {r(vMst)}, {r(vL16)}, {sp(sKVC)} offset:-32 sc1", "s_mov_b64 exec, -1"]

    def weave(self, main, fill):
        A = self.A
        for x in fill.get(-1, []): A(x)
        for i, m in enumerate(main):
            A(m)
            for x in fill.get(i, []): A(x)
        for k in fill:
            assert k < len(main), (k, len(main))

    def step(self):
        A = self.A
        SMF = "v_smfmac_f32_16x16x64_bf16"; MF = "v_mfma_f32_16x16x32_bf16"; MF16 = "v_mfma_f32_16x16x16_bf16"
        st = lambda i: ([f"s_memtime s[{sST+2*i}:{sST+2*i+1}]"] if self.stamps else [])
        from collections import defaultdict
        self.stamp(2)
        kx0 = [K, K+4, K+8, K+12]; kx1 = [OX, OX+4, LX, SM]
        qs = [f"{SMF} {r(AQ+4*X,4)}, {r(M+4*t,4)}, {ar((X*8+t)*8, 8)}, {r(vIDX)}" for t in range(8) for X in range(2)]
        F = defaultdict(list)
        kxr = [f"ds_read_b128 {r(kx0[t],4)}, {r(vL16)} offset:{L_KX + t*1024}" for t in range(4)] + \
              [f"ds_read_b128 {r(kx1[t],4)}, {r(vL16)} offset:{L_KX + (4+t)*1024}" for t in range(4)]
        mr = [f"ds_read_b128 {r(M+4*t,4)}, {r(vL16)} offset:{L_STG + t*1024}" for t in range(8)]
        if not self.pipe_t0:
            for x in mr: A(x)
            F[-1].append("s_waitcnt lgkmcnt(7)")
            nk = 0
            for t in range(1, 8):
                slot = 2*t - 1
                F[slot].append(f"s_waitcnt lgkmcnt({min(15, 7 - t + nk)})")
                if t >= 4:
                    F[slot].append(kxr[nk]); nk += 1
                    F[slot+1 if slot+1 < 16 else slot].append(kxr[nk]); nk += 1
        else:
            LA = 3
            for x in mr[:LA]: A(x)
            seq = mr[LA:] + kxr
            F[-1].append(f"s_waitcnt lgkmcnt({LA-1})")
            issued = LA
            for sl in range(16):
                if sl < len(seq): F[sl].append(seq[sl]); issued += 1
                if sl % 2 == 1 and sl < 15:
                    t = (sl + 1)//2
                    F[sl].append(f"s_waitcnt lgkmcnt({min(15, issued - 1 - t)})")
            nk = 8
        if not self.ag_reset:
            F[0].append(f"global_store_dwordx4 {r(vAG)}, {r(SX,4)}, {sp(sPz)}")
            F[2].append(f"global_store_dwordx4 {r(vAG)}, {r(SX,4)}, {sp(sPz)} offset:1024")
            F[4] += [f"s_mov_b64 exec, {sp(sMMSK)}", f"global_store_dword {r(vMst)}, {r(SX)}, {sp(sMz)}", "s_mov_b64 exec, -1"]
            F[6] += ["s_waitcnt vmcnt(3)"]

        sl = self.salu_step()
        chunks = []; cur = []
        for x in sl:
            cur.append(x)
            if len(cur) >= 2 and not (x.startswith("s_add_u32") or x.startswith("s_cmp")): chunks.append(cur); cur = []
        if cur: chunks.append(cur)
        qslots = [13, 14, 15]
        for i, sl_ in enumerate(qslots): F[sl_] += chunks[i]
        self.kchunks = chunks[len(qslots):]
        self.weave(qs, F)
        assert nk == 8
        self.stamp(3)
        BAR = self.bar
        ks = [f"{SMF} {r(AK+4*X,4)}, {r(M+4*t,4)}, {ar(128+(X*8+t)*8, 8)}, {r(vIDX)}" for t in range(8) for X in range(2)]
        def post(acc, lds_off):
            return [f"v_permlane32_swap_b32 {r(acc+j)}, {r(acc+4+j)}" for j in range(4)] + \
                   [f"v_pk_add_f32 {r(acc,2)}, {r(acc,2)}, {r(acc+4,2)}", f"v_pk_add_f32 {r(acc+2,2)}, {r(acc+2,2)}, {r(acc+6,2)}",
                    f"v_cvt_pk_bf16_f32 {r(acc)}, {r(acc)}, {r(acc+1)}", f"v_cvt_pk_bf16_f32 {r(acc+1)}, {r(acc+2)}, {r(acc+3)}",
                    f"ds_write_b64 {r(vQW)}, {r(acc,2)} offset:{lds_off}"]
        F = defaultdict(list)
        F[1] += post(AQ, L_QB)
        F[8] += ["s_waitcnt vmcnt(0)"]
        if self.kbar:
            F[0] += ["s_waitcnt lgkmcnt(0)", "s_barrier"]
            if self.kvwait: F[0] += self.kv_fast()
            F[9] += [f"s_mov_b32 m0, s{sM0K}", f"global_load_lds_dwordx4 {r(vAG)}, {sp(sKX)} sc1"]
            F[13] += [f"global_load_lds_dwordx4 {r(vAG)}, {sp(sKX)} offset:1024 sc1", f"s_add_u32 s{sKX}, s{sKX}, 0x40000", f"s_addc_u32 s{sKX+1}, s{sKX+1}, 0"]
            if self.dmalat: F[13] += st(4) + ["s_waitcnt vmcnt(0)"] + st(6)
        kslots = [2, 3, 4, 5, 6, 7, 8, 10, 12, 14]
        assert len(self.kchunks) <= len(kslots), len(self.kchunks)
        for i, cch in enumerate(self.kchunks): F[kslots[i]] += cch
        for j in range(0, 8, 2): F[9 + j].append(f"v_mov_b64 {r(AQ+j,2)}, 0")
        self.weave(ks, F)
        self.stamp(5)
        vs = [f"{SMF} {r(AQ+4*X,4)}, {r(M+4*t,4)}, {r(WV+(X*8+t)*8, 8)}, {r(vIDX)}" for t in range(8) for X in range(2)]
        NV1 = self.nv1
        qtr = [f"ds_read_b64_tr_b16 {r(Q+4*t+2*hf,2)}, {r(vQR)} offset:{L_QB + t*512 + hf*256}" for t in range(4) for hf in range(2)]
        KF = M + 8
        ktr = [f"ds_read_b64_tr_b16 {r(KF+4*t+2*hf,2)}, {r(vQR)} offset:{L_KB + t*512 + hf*256}" for t in range(4) for hf in range(2)]
        F = defaultdict(list)
        kp = post(AK, L_KB)
        F[1] += kp
        if self.exports: F[2] += [f"global_store_dwordx2 {r(vQW)}, {r(AK,2)}, {sp(sEK)} sc1"]
        F[BAR] += ["s_waitcnt lgkmcnt(0)", "s_barrier"] + ([] if self.dmalat else st(6))
        if self.exports: F[BAR+1] += self.exp_flag()
        for i in range(4): F[BAR+i] += qtr[2*i:2*i+2]
        if self.kvwait and not self.kbar and not self.dma_rs: F[BAR] += self.kv_fast()
        if not self.kbar and not self.dma_rs: F[BAR+1] += [f"s_mov_b32 m0, s{sM0K}", f"global_load_lds_dwordx4 {r(vAG)}, {sp(sKX)} sc1"]
        if self.vearly:
            F[3] += [f"ds_read_b128 {r(M,4)}, {r(vAG)} offset:{L_VX}"]
            F[4] += [f"ds_read_b128 {r(M+4,4)}, {r(vAG)} offset:{L_VX + 1024}"]
            assert BAR >= 5
            F[BAR+1] += [f"s_mov_b32 m0, s{sM0V}", f"global_load_lds_dwordx4 {r(vAG)}, {sp(sVX)} sc1"]
            F[BAR+5] += [f"global_load_lds_dwordx4 {r(vAG)}, {sp(sVX)} offset:1024 sc1", f"s_add_u32 s{sVX}, s{sVX}, 0x40000", f"s_addc_u32 s{sVX+1}, s{sVX+1}, 0"]
        else:
            F[BAR+2] += [f"ds_read_b128 {r(M,4)}, {r(vAG)} offset:{L_VX}"]
            F[BAR+3] += [f"ds_read_b128 {r(M+4,4)}, {r(vAG)} offset:{L_VX + 1024}"]
        if not self.kbar and not self.dma_rs: F[BAR+5] += [f"global_load_lds_dwordx4 {r(vAG)}, {sp(sKX)} offset:1024 sc1", f"s_add_u32 s{sKX}, s{sKX}, 0x40000", f"s_addc_u32 s{sKX+1}, s{sKX+1}, 0"]
        self.weave(vs[:NV1], F)
        assert NV1 >= 12
        for x in ktr: A(x)
        sx = [f"{MF} {r(SX+4*X,4)}, {r((kx0 if X == 0 else kx1)[t],4)}, {r(Q+4*t,4)}, {'0' if t == 0 else r(SX+4*X,4)}" for t in range(4) for X in range(2)]
        A("s_waitcnt lgkmcnt(8)")
        for x in sx: A(x)
        mx, t1 = T0r, T1r
        ab = (lambda x: f"|{x}|") if self.standin else (lambda x: x)
        pre = [f"v_max3_f32 {r(mx)}, {ab(r(SX))}, {ab(r(SX+1))}, {ab(r(SX+2))}", f"v_max3_f32 {r(t1)}, {ab(r(SX+4))}, {ab(r(SX+5))}, {ab(r(SX+6))}",
               f"v_max3_f32 {r(mx)}, {r(mx)}, {ab(r(SX+3))}, {ab(r(SX+7))}", f"v_max_f32 {r(mx)}, {r(mx)}, {r(t1)}"]
        A("s_waitcnt lgkmcnt(0)")
        for t in range(4):
            A(f"{MF} {r(SM,4)}, {r(KF+4*t,4)}, {r(Q+4*t,4)}, {'0' if t == 0 else r(SM,4)}")
            if t >= 1: A(pre[t-1])
        A(pre[3])
        self.stamp(7)
        sets = [Q, Q+8, K, K+8, M+8, M+16, M+24, AQ, M]
        def ldset(idx, reg):
            dl, t = divmod(idx, 4); b = vWoA if t < 2 else vWoB; o = (dl*2 + (t & 1))*2048
            return [f"ds_read_b128 {r(reg,4)}, {r(b)} offset:{o}", f"ds_read_b128 {r(reg+4,4)}, {r(b)} offset:{o+1024}"]
        F = defaultdict(list)
        rd = ldset(0, sets[0]) + ldset(1, sets[1])
        n2 = 16 - NV1
        if self.vearly or self.dma_rs: F[0] += [rd[0]]
        else:
            F[0] += [f"s_mov_b32 m0, s{sM0V}", rd[0]]
            F[0] += [f"global_load_lds_dwordx4 {r(vAG)}, {sp(sVX)} sc1"]
        for i in range(1, 4): F[min(i, n2-1)].append(rd[i])
        self.weave(vs[NV1:], F)
        mx, t1 = T0r, T1r
        rd = ldset(2, sets[2]) + ldset(3, sets[3]) + ldset(4, sets[4]) + ldset(5, sets[5]) + ldset(6, sets[6])
        vc = [f"v_cvt_pk_bf16_f32 {r(AK+2*X+h)}, {r(AQ+4*X+2*h)}, {r(AQ+4*X+2*h+1)}" for X in range(2) for h in range(2)]
        vdma2 = [f"global_load_lds_dwordx4 {r(vAG)}, {sp(sVX)} offset:1024 sc1", f"s_add_u32 s{sVX}, s{sVX}, 0x40000", f"s_addc_u32 s{sVX+1}, s{sVX+1}, 0"]
        ri = 0
        if self.standin:
            ab = lambda x: f"|{x}|"
            A(f"v_max3_f32 {r(mx)}, {r(mx)}, {ab(r(SM))}, {ab(r(SM+1))}"); A(f"v_max3_f32 {r(mx)}, {r(mx)}, {ab(r(SM+2))}, {ab(r(SM+3))}")
            A(f"v_cmp_lt_f32 vcc, s{sTHR}, {r(mx)}")
            for b in (SX, SX+2, SX+4, SX+6, SM, SM+2): A(f"v_pk_mul_f32 {r(b,2)}, {r(b,2)}, {sp(sC)}")
            if not self.vearly and not self.dma_rs:
                for x in vdma2: A(x)
            A("s_cbranch_vccnz SMSLOW"); A.label("SMRET")
            for x in vc: A(x)
            if self.exports: A(f"global_store_dwordx4 {r(vAG)}, {r(AK,4)}, {sp(sEV)} sc1")
            if self.looptail: A(f"s_cmp_eq_u32 s{sS}, 63"); A("s_cbranch_scc1 L_fin")
        else:
            A(f"v_max3_f32 {r(mx)}, {r(mx)}, {r(SM)}, {r(SM+1)}"); A(f"v_max3_f32 {r(mx)}, {r(mx)}, {r(SM+2)}, {r(SM+3)}")
            A(f"v_mov_b32 {r(t1)}, {r(mx)}")
            if not self.vearly and not self.dma_rs:
                for x in vdma2: A(x)
            A(f"v_permlane16_swap_b32 {r(mx)}, {r(t1)}"); A(f"v_max_f32 {r(mx)}, {r(mx)}, {r(t1)}")
            A(f"v_mov_b32 {r(t1)}, {r(mx)}"); A(rd[0]); A(rd[1])
            A(f"v_permlane32_swap_b32 {r(mx)}, {r(t1)}"); A(rd[2]); A(f"v_max_f32 {r(mx)}, {r(mx)}, {r(t1)}")
            ri = 3
            for x in vc: A(x)
            if self.exports: A(f"global_store_dwordx4 {r(vAG)}, {r(AK,4)}, {sp(sEV)} sc1")
            if self.looptail: A(f"s_cmp_eq_u32 s{sS}, 63"); A("s_cbranch_scc1 L_fin")
            A(f"v_mul_f32 {r(mx)}, s{sC}, {r(mx)}")
            def pkf(b): return f"v_pk_fma_f32 {r(b,2)}, {r(b,2)}, {sp(sC)}, {r(mx,2)} op_sel_hi:[1,1,0] neg_lo:[0,0,1] neg_hi:[0,0,1]"
            for b in (SX, SX+2, SX+4, SX+6, SM, SM+2): A(pkf(b))
        for i in range(8):
            A(f"v_exp_f32 {r(SX+i)}, {r(SX+i)}")
            if ri < len(rd): A(rd[ri]); ri += 1
        if not self.pvearly:
            for i in range(4): A(f"v_exp_f32 {r(SM+i)}, {r(SM+i)}")
        for i in range(4): A(f"v_cvt_pk_bf16_f32 {r(SX+i)}, {r(SX+2*i)}, {r(SX+2*i+1)}")
        while ri < len(rd): A(rd[ri]); ri += 1
        if not self.pvearly:
            for i in range(2): A(f"v_cvt_pk_bf16_f32 {r(SM+i)}, {r(SM+2*i)}, {r(SM+2*i+1)}")
        self.stamp(8)
        A("s_waitcnt lgkmcnt(14)")
        A(f"{MF} {r(LX,4)}, {r(vONE,4)}, {r(SX,4)}, 0")
        if self.pvearly: A(f"v_exp_f32 {r(SM)}, {r(SM)}")
        A(f"{MF} {r(OX,4)}, {r(M,4)}, {r(SX,4)}, 0")
        if self.pvearly: A(f"v_exp_f32 {r(SM+1)}, {r(SM+1)}")
        A(f"{MF} {r(OX+4,4)}, {r(M+4,4)}, {r(SX,4)}, 0")
        if self.pvearly:
            A(f"v_exp_f32 {r(SM+2)}, {r(SM+2)}"); A(f"v_exp_f32 {r(SM+3)}, {r(SM+3)}")
            for i in range(2): A(f"v_cvt_pk_bf16_f32 {r(SM+i)}, {r(SM+2*i)}, {r(SM+2*i+1)}")
        A(f"{MF16} {r(LX,4)}, {r(vHALF,2)}, {r(SM,2)}, {r(LX,4)}")
        for X in range(2): A(f"{MF16} {r(OX+4*X,4)}, {r(AK+2*X,2)}, {r(SM,2)}, {r(OX+4*X,4)}")
        rd = ldset(7, sets[7]) + ldset(8, sets[8])
        for x in rd: A(x)
        A(f"v_rcp_f32 {r(mx)}, {r(LX)}")
        for X in range(2):
            o = OX + 4*X
            A(f"v_pk_mul_f32 {r(o,2)}, {r(o,2)}, {r(mx,2)} op_sel_hi:[1,0]"); A(f"v_pk_mul_f32 {r(o+2,2)}, {r(o+2,2)}, {r(mx,2)} op_sel_hi:[1,0]")
            A(f"v_cvt_pk_bf16_f32 {r(o)}, {r(o)}, {r(o+1)}"); A(f"v_cvt_pk_bf16_f32 {r(o+1)}, {r(o+2)}, {r(o+3)}")
            A(f"ds_write_b64 {r(vOW)}, {r(o,2)} offset:{X*32}")
        self.stamp(9)
        ACC = AK
        for i in range(0, 16, 2): A(f"v_mov_b64 {r(ACC+i,2)}, 0")
        A("s_waitcnt lgkmcnt(0)"); A("s_barrier")
        self.stamp(10)
        OF = SM
        for t in range(4): A(f"ds_read_b128 {r(OF+4*t,4)}, {r(vOR)} offset:{t*64}")
        reg_of = {i: sets[i] for i in range(9)}
        main = []; F = defaultdict(list)
        issued = []
        nxt = 9
        for idx in range(16):
            dl, t = divmod(idx, 4)
            main.append(None)
        lds_out = ['o0', 'o1', 'o2', 'o3']
        def wait_for(tag):
            if tag in lds_out:
                last = max(i for i, x in enumerate(lds_out) if x == tag)
                n = len(lds_out) - 1 - last
                A(f"s_waitcnt lgkmcnt({min(n,15)})")
                del lds_out[:last+1]
        pend = []
        for idx in range(16):
            dl, t = divmod(idx, 4)
            if dl == 0: wait_for(f'o{t}')
            if idx >= 9: wait_for(f's{idx}')
            A(f"{SMF} {r(ACC+4*dl,4)}, {r(OF+4*t,4)}, {r(reg_of[idx],8)}, {r(vIDX)}")
            if nxt < 16:
                reg_of[nxt] = reg_of[idx]
                for x in ldset(nxt, reg_of[nxt]): pend.append((x, f's{nxt}'))
                nxt += 1
            n = (1 if idx >= 3 else 2) if self.wo_spread else 99
            if self.wo_spread and idx >= 8: n = 2
            for _ in range(n):
                if pend:
                    x, tg = pend.pop(0); A(x); lds_out.append(tg)
            if self.rs_var == 'C':
                a = ACC
                if idx == 5: A(f"v_cvt_pk_bf16_f32 {r(a)}, {r(a)}, {r(a+1)}")
                if idx == 6: A(f"v_cvt_pk_bf16_f32 {r(a+1)}, {r(a+2)}, {r(a+3)}")
                if idx == 9: A(f"v_cvt_pk_bf16_f32 {r(a+2)}, {r(a+4)}, {r(a+5)}")
                if idx == 10:
                    A(f"v_cvt_pk_bf16_f32 {r(a+3)}, {r(a+6)}, {r(a+7)}")
                    if self.ptag: A(f"v_bfi_b32 {r(a)}, 1, s{sTAG}, {r(a)}")
                    A(f"global_store_dwordx4 {r(vPst)}, {r(a,4)}, {sp(sPst)}")
                a = ACC + 8
                if idx == 13: A(f"v_cvt_pk_bf16_f32 {r(a)}, {r(a)}, {r(a+1)}")
                if idx == 14: A(f"v_cvt_pk_bf16_f32 {r(a+1)}, {r(a+2)}, {r(a+3)}")
            elif t == 2 and dl >= 1:
                a = ACC + 4*(dl-1)
                A(f"v_cvt_pk_bf16_f32 {r(a)}, {r(a)}, {r(a+1)}"); A(f"v_cvt_pk_bf16_f32 {r(a+1)}, {r(a+2)}, {r(a+3)}")
                A(f"global_store_dwordx2 {r(vPst)}, {r(a,2)}, {sp(sPst+2*(dl-1))}")
        assert not pend
        if self.rs_var == 'C':
            a = ACC + 8
            A(f"v_cvt_pk_bf16_f32 {r(a+2)}, {r(a+4)}, {r(a+5)}"); A(f"v_cvt_pk_bf16_f32 {r(a+3)}, {r(a+6)}, {r(a+7)}")
            if self.ptag: A(f"v_bfi_b32 {r(a)}, 1, s{sTAG}, {r(a)}")
            A(f"global_store_dwordx4 {r(vPst)}, {r(a,4)}, s[24:25]")
        else:
            a = ACC + 12
            A(f"v_cvt_pk_bf16_f32 {r(a)}, {r(a)}, {r(a+1)}"); A(f"v_cvt_pk_bf16_f32 {r(a+1)}, {r(a+2)}, {r(a+3)}")
            A(f"global_store_dwordx2 {r(vPst)}, {r(a,2)}, {sp(sPst+6)}")
        self.stamp(11)
        if self.ackstamp:
            A("s_waitcnt vmcnt(0)"); self.stamp(4)
        sRD = sPst
        if self.early_shadow:
            sRD = sPrd2
            A(f"s_mov_b32 s{sPrd2}, s{sPst}"); A(f"s_mov_b32 s{sPrd2+1}, s{sPst+1}")
            A(f"s_mov_b32 s{sMc}, s{sMn}"); A(f"s_mov_b32 s{sMc+1}, s{sMn+1}")
            if self.hist: A(f"s_mov_b32 s{sHn2}, s{sHn}"); A(f"s_mov_b32 s{sHn2+1}, s{sHn+1}")
            if self.ptag: A(f"s_mov_b32 s{sTAG+1}, s{sTAG}")
            A(f"s_add_u32 s{sS}, s{sS}, 1")
            self.shadow_prep()
        def off(i): return i*1024-4096 if self.p_layout == 0 else i*256
        n = self.rs_sets
        regs = [Q, Q+8, K, K+8][:n]
        D = M
        def issue(b):
            if self.rs_var in 'AC':
                A(f"global_load_dwordx4 {r(b,4)}, {r(vRS)}, {sp(sRD)} sc1"); A(f"global_load_dwordx4 {r(b+4,4)}, {r(vRS)}, {sp(sRD)} offset:{2048 if self.cfull else 1024} sc1")
            else:
                for i in range(8): A(f"global_load_dword {r(b+i)}, {r(vRS)}, {sp(sRD)} offset:{off(i)} sc1")
        NLD = 2 if self.rs_var in 'AC' else 8
        self._rs_issue = issue
        if self.nocomm or self.no_rs:
            A(f"{MF} {r(D,4)}, {r(vSEL,4)}, {r(WV,4)}, 0"); A(f"{MF} {r(D,4)}, {r(vSEL,4)}, {r(WV+4,4)}, {r(D,4)}")
        elif self.mpoll:
            b = Q; dep = self.rs_depth
            A(f"s_mov_b32 s{sCNT}, 0")
            self.delay(self.rs_delay)
            for k in range(dep):
                issue(b)
                if k < dep-1:
                    self.delay(self.rs_gap)
            A.label("L_rs")
            A(f"s_waitcnt vmcnt({NLD*(dep-1)})")
            A(f"v_max3_u32 {r(T0r)}, {r(b)}, {r(b+1)}, {r(b+2)}"); A(f"v_max3_u32 {r(T1r)}, {r(b+3)}, {r(b+4)}, {r(b+5)}")
            A(f"v_max3_u32 {r(T0r)}, {r(T0r)}, {r(b+6)}, {r(b+7)}"); A(f"v_max_u32 {r(T0r)}, {r(T0r)}, {r(T1r)}")
            A(f"v_cmp_eq_u32 vcc, -1, {r(T0r)}")
            A("s_cbranch_vccz L_rsok0")
            A("s_mov_b64 exec, vcc")
            issue(b)
            A(f"s_add_u32 s{sNRS}, s{sNRS}, 1")
            A(f"s_add_u32 s{sCNT}, s{sCNT}, 1")
            A(f"s_cmp_lt_u32 s{sCNT}, 6000"); A("s_cbranch_scc1 L_rs")
            A(f"s_mov_b32 s{sFAIL}, 2")
            A.label("L_rsok0")
            A("s_mov_b64 exec, -1")
            A(f"{MF} {r(D,4)}, {r(vSEL,4)}, {r(b,4)}, 0"); A(f"{MF} {r(D,4)}, {r(vSEL,4)}, {r(b+4,4)}, {r(D,4)}")
        else:
            A(f"s_mov_b32 s{sCNT}, 0")
            self.delay(self.rs_delay)
            for k, b in enumerate(regs):
                issue(b)
                if k < n-1:
                    self.delay(self.rs_gap)
            if self.dma_rs:
                assert n == 1
                if self.kvwait:
                    for x in self.kv_fast(): A(x)
                if not self.nodma:
                    A(f"s_mov_b32 m0, s{sM0K}"); A(f"global_load_lds_dwordx4 {r(vAG)}, {sp(sKX)} sc1"); A(f"global_load_lds_dwordx4 {r(vAG)}, {sp(sKX)} offset:1024 sc1")
                    A(f"s_mov_b32 m0, s{sM0V}"); A(f"global_load_lds_dwordx4 {r(vAG)}, {sp(sVX)} sc1"); A(f"global_load_lds_dwordx4 {r(vAG)}, {sp(sVX)} offset:1024 sc1")
                A(f"s_add_u32 s{sKX}, s{sKX}, 0x40000"); A(f"s_addc_u32 s{sKX+1}, s{sKX+1}, 0"); A(f"s_add_u32 s{sVX}, s{sVX}, 0x40000"); A(f"s_addc_u32 s{sVX+1}, s{sVX+1}, 0")
                b = regs[0]
                A(f"s_waitcnt vmcnt({0 if self.nodma else 4})")
                self.rs_check(b, D, MF)
                issue(b)
            A.label("L_rs")
            for k, b in enumerate(regs):
                A(f"s_waitcnt vmcnt({NLD*(n-1)})")
                self.rs_check(b, D, MF)
                self._rs_issue(b)
                A(f"s_add_u32 s{sNRS}, s{sNRS}, 1")
            A(f"s_add_u32 s{sCNT}, s{sCNT}, 1")
            A(f"s_cmp_lt_u32 s{sCNT}, 2000"); A("s_cbranch_scc1 L_rs")
            A(f"s_mov_b32 s{sFAIL}, 2")
        A.label("L_rsok")
        self.stamp(12)
        if not self.early_shadow:
            A(f"s_add_u32 s{sS}, s{sS}, 1")
            A(f"s_mov_b32 s{sMc}, s{sMn}"); A(f"s_mov_b32 s{sMc+1}, s{sMn+1}")
        D = M
        if self.rs_var == 'C':
            for j in range(4): A(f"v_add_f32_dpp {r(D+j)}, {r(D+j)}, {r(D+j)} row_ror:4 row_mask:0xf bank_mask:0xf")
            for j in range(4): A(f"v_add_f32_dpp {r(D+j)}, {r(D+j)}, {r(D+j)} row_ror:8 row_mask:0xf bank_mask:0xf")
            A(f"v_cndmask_b32 {r(D)}, {r(D)}, {r(D+1)}, {sp(sHB)}"); A(f"v_cndmask_b32 {r(D+2)}, {r(D+2)}, {r(D+3)}, {sp(sHB)}")
            A(f"v_cndmask_b32 {r(D)}, {r(D)}, {r(D+2)}, {sp(sHB2)}")
            A(f"v_mov_b32_dpp {r(D+1)}, {r(D)} quad_perm:[1,1,3,3] row_mask:0xf bank_mask:0xf")
            A(f"v_cvt_pk_bf16_f32 {r(D)}, {r(D)}, {r(D+1)}")
        elif self.rs_var == 'A':
            for j in range(4): A(f"v_add_f32_dpp {r(D+j)}, {r(D+j)}, {r(D+j)} row_ror:4 row_mask:0xf bank_mask:0xf")
            for j in range(4): A(f"v_add_f32_dpp {r(D+j)}, {r(D+j)}, {r(D+j)} row_ror:8 row_mask:0xf bank_mask:0xf")
            A(f"v_permlane16_swap_b32 {r(D)}, {r(D+1)}"); A(f"v_permlane16_swap_b32 {r(D+2)}, {r(D+3)}")
            A(f"v_cvt_pk_bf16_f32 {r(D)}, {r(D)}, {r(D+1)}"); A(f"v_cvt_pk_bf16_f32 {r(D+2)}, {r(D+2)}, {r(D+3)}")
            A(f"v_cndmask_b32 {r(D)}, {r(D)}, {r(D+2)}, {sp(sODD)}")
        else:
            A(f"v_mov_b32_dpp {r(D+2)}, {r(D)} quad_perm:[2,3,2,3] row_mask:0xf bank_mask:0xf")
            A(f"v_mov_b32_dpp {r(D+3)}, {r(D+1)} quad_perm:[2,3,2,3] row_mask:0xf bank_mask:0xf")
            A(f"v_cvt_pk_bf16_f32 {r(D)}, {r(D)}, {r(D+2)}"); A(f"v_cvt_pk_bf16_f32 {r(D+1)}, {r(D+1)}, {r(D+3)}")
            A(f"v_cndmask_b32 {r(D)}, {r(D)}, {r(D+1)}, {sp(sODD)}")
        A(f"s_mov_b64 exec, {sp(sMMSK)}")
        A(f"v_min_u32 {r(D)}, -2, {r(D)}")
        A(f"global_store_dword {r(vMst)}, {r(D)}, {sp(sMc)}")
        if self.hist: A(f"global_store_dword {r(vMst)}, {r(D)}, {sp(sHn2 if self.early_shadow else sHn)}")
        A("s_mov_b64 exec, -1")
        self.stamp(13)
        if self.steplog:
            A("s_memtime s[64:65]"); A("s_memrealtime s[66:67]"); A("s_waitcnt lgkmcnt(0)")
            A(f"s_lshl_b32 s34, s{sH}, 2"); A(f"s_add_u32 s34, s34, s{sW}"); A("s_lshl_b32 s34, s34, 6"); A(f"s_add_u32 s34, s34, s{sS}"); A("s_lshl_b32 s34, s34, 4")
            A(f"s_add_u32 s34, s34, {WS_STAMP + 0x10000}")
            A(f"v_mov_b32 {r(M+4)}, s34"); A(f"v_mov_b32 {r(M+8)}, s64"); A(f"v_mov_b32 {r(M+9)}, s{sNAG}"); A(f"v_mov_b32 {r(M+10)}, s{sNRS}"); A(f"v_mov_b32 {r(M+11)}, s66")
            A("s_mov_b64 exec, 1"); A(f"global_store_dwordx4 {r(M+4)}, {r(M+8,4)}, {sp(sWS)}"); A("s_mov_b64 exec, -1")


    def tail(self):
        A = self.A
        SMF = "v_smfmac_f32_16x16x64_bf16"
        self.ag_poll("T")
        for x in self.salu_step(): A(x)
        for t in range(8): A(f"ds_read_b128 {r(M+4*t,4)}, {r(vL16)} offset:{L_STG + t*1024}")
        for x in self.exp_flag(): A(x)
        A("s_waitcnt lgkmcnt(0)")
        for t in range(8):
            for X in range(2): A(f"{SMF} {r(AK+4*X,4)}, {r(M+4*t,4)}, {ar(128+(X*8+t)*8, 8)}, {r(vIDX)}")
        for t in range(8):
            for X in range(2): A(f"{SMF} {r(AQ+4*X,4)}, {r(M+4*t,4)}, {r(WV+(X*8+t)*8, 8)}, {r(vIDX)}")
        for j in range(4): A(f"v_permlane32_swap_b32 {r(AK+j)}, {r(AK+4+j)}")
        A(f"v_pk_add_f32 {r(AK,2)}, {r(AK,2)}, {r(AK+4,2)}"); A(f"v_pk_add_f32 {r(AK+2,2)}, {r(AK+2,2)}, {r(AK+6,2)}")
        A(f"v_cvt_pk_bf16_f32 {r(AK)}, {r(AK)}, {r(AK+1)}"); A(f"v_cvt_pk_bf16_f32 {r(AK+1)}, {r(AK+2)}, {r(AK+3)}")
        A(f"global_store_dwordx2 {r(vQW)}, {r(AK,2)}, {sp(sEK)} sc1")
        for X in range(2):
            A(f"v_cvt_pk_bf16_f32 {r(SX+2*X)}, {r(AQ+4*X)}, {r(AQ+4*X+1)}"); A(f"v_cvt_pk_bf16_f32 {r(SX+2*X+1)}, {r(AQ+4*X+2)}, {r(AQ+4*X+3)}")
        A(f"global_store_dwordx4 {r(vAG)}, {r(SX,4)}, {sp(sEV)} sc1")
        A("s_waitcnt vmcnt(0)"); A("s_barrier")
        A(f"s_add_u32 s{sEXC}, s{sEXC}, 128"); A(f"s_addc_u32 s{sEXC+1}, s{sEXC+1}, 0")
        for x in self.exp_flag(): A(x)
        A("s_waitcnt vmcnt(0)")

def gen_chain(A, U, o):
    kw = dict(o.get('chain_opts', {}))
    C = Chain(A, U, **kw)
    A(f"s_mov_b32 s{sH}, s{sROLE}")
    A(f"s_cmp_eq_u32 s{sXCC}, 0"); A("s_cselect_b32 s90, 0x10001, 1")
    C.setup_consts()
    C.preload_mem0()
    C.clear_slots()
    C.load_weights()
    tl_stamp(A, o.get('tl'), 0, 1, vr=(120, 121))
    U.add64(sKVC, sWS, cnt_off(C_KV, 0))
    A(f"s_cmp_eq_u32 s{sW}, 0"); A(f"s_cselect_b32 s{sXM}, 1, 0"); A(f"s_mov_b32 s{sXM+1}, 0")
    Lw = A.newlabel("SW"); Le = A.newlabel("SWE"); Ls = A.newlabel("SWS")
    A(f"s_cmp_lg_u32 s{sW}, 0"); A(f"s_cbranch_scc1 {Ls}")
    A("v_mov_b32 v24, 0"); A("s_mov_b32 s36, 0")
    A.label(Lw)
    A(f"global_load_dword v25, v24, {sp(sDBG)} offset:{D_ROLL*4} sc1"); A(f"global_load_dword v26, v24, {sp(sDBG)} offset:{D_INIT*4} sc1")
    A(f"global_load_dword v27, v24, {sp(sKVC)} sc1"); A(f"global_load_dword v28, v24, {sp(sDBG)} offset:{D_CLR*4} sc1"); A("s_waitcnt vmcnt(0)")
    A("v_readfirstlane_b32 s37, v25"); A("v_readfirstlane_b32 s38, v26"); A("v_readfirstlane_b32 s39, v27")
    A("s_lshr_b32 s35, s37, 16"); A("s_and_b32 s37, s37, 0xffff")
    A("s_cmp_ge_u32 s37, 32"); A("s_cselect_b32 s37, 1, 0"); A("s_cmp_ge_u32 s38, 1"); A("s_cselect_b32 s37, s37, 0")
    if C.kvwait: A("s_cmp_ge_u32 s39, 32"); A("s_cselect_b32 s37, s37, 0")
    if o.get('dpoll', True): A("v_readfirstlane_b32 s38, v28"); A("s_cmp_ge_u32 s38, 8"); A("s_cselect_b32 s37, s37, 0")
    A("s_cmp_lg_u32 s37, 0"); A(f"s_cbranch_scc1 {Le}")
    A("s_sleep 1"); A("s_add_u32 s36, s36, 1"); A("s_cmp_lt_u32 s36, 60000"); A(f"s_cbranch_scc1 {Lw}")
    A.label(Le)
    A(f"v_mov_b32 v24, {L_KB}"); A("v_mov_b32 v25, s35"); A("ds_write_b32 v24, v25"); A("s_waitcnt lgkmcnt(0)")
    A.label(Ls)
    A("s_barrier")
    A(f"v_mov_b32 v24, {L_KB}"); A("ds_read_b32 v25, v24"); A("s_waitcnt lgkmcnt(0)"); A("v_readfirstlane_b32 s90, v25")
    A("s_barrier")
    A(f"s_mov_b32 s{sKVOK}, 0")
    tl_stamp(A, o.get('tl'), 0, 2, vr=(120, 121))
    C.dma_k(); C.dma_v()
    A(f"s_mov_b32 s{sFAIL}, 0"); A(f"s_mov_b32 s{sS}, 0"); A(f"s_mov_b32 s{sNAG}, 0"); A(f"s_mov_b32 s{sNRS}, 0")
    A(f"s_mov_b32 s{sMc}, s{sMb}"); A(f"s_mov_b32 s{sMc+1}, s{sMb+1}")
    U.add64(sEV, sWS, 0x380000)
    A(f"s_lshl_b32 s34, s{sW}, 11"); A(f"s_add_u32 s{sM0K}, s34, {L_KX}"); A(f"s_add_u32 s{sM0V}, s34, {L_VX}")
    U.add64(sMz, sMb, 2*8192)
    C.shadow_prep()
    A("s_cmp_lg_u32 s90, 32"); A("s_cbranch_scc1 L_safe_S" if not o.get('force_safe') else "s_branch L_safe_S")
    n_main = len(A.L)
    C.publish_mem0()
    tl_stamp(A, o.get('tl'), 0, 3, vr=(120, 121))
    A.label("L_loop")
    C.ag_poll("L")
    n0 = len(A.L)
    C.step()
    if C.nodma: A.L[n0:] = [x for x in A.L[n0:] if not x.startswith("global_load_lds")]
    A.L[n0:] = [x.replace(" sc1", " " + C.dmaflag) if x.startswith("global_load_lds") else x for x in A.L[n0:]]
    if C.looptail:
        A("s_branch L_loop")
        A.label("L_fin")
        tl_stamp(A, o.get('tl'), 0, 4, vr=(120, 121))
        A("s_waitcnt vmcnt(0) lgkmcnt(0)"); A("s_barrier")
        A(f"s_add_u32 s{sEXC}, s{sEXC}, 128"); A(f"s_addc_u32 s{sEXC+1}, s{sEXC+1}, 0")
        for x in C.exp_flag(): A(x)
        A("s_waitcnt vmcnt(0)")
    else:
        A(f"s_cmp_lt_u32 s{sS}, 63"); A("s_cbranch_scc1 L_loop")
        tl_stamp(A, o.get('tl'), 0, 4, vr=(120, 121))
        C.tail()
    tl_stamp(A, o.get('tl'), 0, 5, vr=(120, 121))
    A("s_branch L_chain_done")
    if C.kvwait: C.kv_slow_code()
    if C.standin: C.sm_slow_code()
    import re
    main = A.L[n_main:]
    labels = [x[:-1] for x in main if re.fullmatch(r"\w+:", x)]
    A.label("L_safe_S")
    for x in main:
        for lb in labels: x = re.sub(r"\b" + lb + r"\b", lb + "_S", x)
        if x.startswith("global_store") and " sc1" not in x: x += " sc1"
        A(x)
    A.label("L_chain_done")
    if C.stamps:
        A(f"s_lshl_b32 s34, s{sH}, 2"); A(f"s_add_u32 s34, s34, s{sW}"); A("s_lshl_b32 s34, s34, 6"); A(f"s_add_u32 s34, s34, {WS_STAMP}")
        A(f"s_add_u32 s36, s{sWS}, s34"); A(f"s_addc_u32 s37, s{sWS+1}, 0")
        A("s_mov_b64 exec, 1"); A("v_mov_b32 v24, 0")
        for q in range(4):
            for i in range(4): A(f"v_mov_b32 v{32+4*q+i}, s{sST+2*(4*q+i)}" if 4*q+i < 14 else f"v_mov_b32 v{32+4*q+i}, s{sNAG + (4*q+i-14)}")
            A(f"global_store_dwordx4 v24, v[{32+4*q}:{35+4*q}], s[36:37] offset:{16*q}")
        A("s_waitcnt vmcnt(0)"); A("s_mov_b64 exec, -1")
```

```python
from common import *
import struct
L_STG = 0; L_QB = 8192; L_OB = 161280; L_KX = 10752; L_VX = 18944; L_KB = 27136; L_WO = 30208
OSTR = 288
import os
if os.environ.get('OB_ALIAS'): L_OB = 8192
L_PF = 161280

vWoB = 1
vIDX, vL16, vAG, vWoA, vQW, vQR, vOW, vPst, vRS, vMst, vOR = range(2, 13)
vSEL = 16
vONE = 20
vHALF = 14
T0r, T1r = 0, 13
M = 24; Q = 56; K = 72; AQ = 88; AK = 96; SX = 104; SM = 112; OX = 116; LX = 124
WV = 128

SC_C = 0.08838834764831845 * 1.4426950408889634

sS = 12
sC = 14
sPst = 16
sPrd = 24
sMb = 26; sMc = 28; sKX = 30; sVX = 32
sMMSK = 40
sODD = 42
sFAIL = 44; sCNT = 45; sLO = 46
sHIST = 48
sPz = 50
sMz = 52
sMn = 54
sHn = 56
sM0K = 58
sM0V = 59
sNAG = 60
sNRS = 61
sST = 64
sTHR = 8
sEXC = 62
sEK = 92
sEV = 94
sKVC = 98
sEVp = 100
sXM = 46
sKVOK = 13
sHB2 = 20
sTAG = 50
sPrd2 = 22
sHn2 = 84
sHB = 18
sPF = 24

class Chain:
    def __init__(self, A, U, stamps=False, hist=False, nsteps=63, nv1=12, rs_wait=None, ag_delay=2, p_layout=1, rs_delay=2, masked=False, wo_spread=True, nohist=False, dump=None, rs_sets=2, rs_gap=2, ag_sets=2, ag_gap=2, late_reset=True, ag_reset=True, kvwait=True, pipe_t0=True, nocomm=False, stash_v=False, l2pf=False, noexp=False, nodma=False, mpoll=False, ag_depth=2, rs_depth=2, ackstamp=False, steplog=False, rs_var='C', opt2=True, bar=5, early_shadow=True, ptag=True, cfull=False, no_rs=False, no_ag=False, dmaflag='sc1', kbar=True, vearly=False, vexp_early=True, dmalat=False, standin=True, pvearly=True, force_slow=False, looptail=True, dma_rs=False, ft=True):
        self.ft = ft; self.ool = []
        self.dma_rs = dma_rs
        if dma_rs: kbar = False; self.kbar = False
        self.looptail = looptail
        self.standin = standin; self.pvearly = pvearly; self.force_slow = force_slow
        self.dmalat = dmalat
        self.vexp_early = vexp_early
        self.vearly = vearly
        self.dmaflag = dmaflag; self.kbar = kbar and not dma_rs
        self.no_rs = no_rs; self.no_ag = no_ag
        self.cfull = cfull
        self.ptag = ptag
        self.early_shadow = early_shadow
        self.bar = bar
        self.opt2 = opt2
        self.rs_var = rs_var
        self.steplog = steplog
        self.ackstamp = ackstamp
        self.mpoll = mpoll; self.ag_depth = ag_depth; self.rs_depth = rs_depth
        self.nodma = nodma; self.noexp = noexp
        self.stash_v = stash_v; self.l2pf = l2pf
        self.pipe_t0 = pipe_t0; self.nocomm = nocomm
        self.U = U; self.kv_ret = []; self.exports = not noexp; self.ag_reset = ag_reset; self.kvwait = kvwait
        self.rs_sets = rs_sets; self.rs_gap = rs_gap; self.ag_sets = ag_sets; self.ag_gap = ag_gap; self.late_reset = late_reset
        hist = hist and not nohist
        self.p_layout = p_layout; self.rs_delay = rs_delay; self.masked = masked; self.wo_spread = wo_spread
        self.nv1 = nv1; self.rs_wait = rs_wait; self.ag_delay = ag_delay
        self.A = A; self.stamps = stamps; self.hist = hist; self.nsteps = nsteps

    def delay(self, x):
        n = int(round(x*16))
        while n > 0:
            k = min(n, 16); self.A(f"s_nop {k-1}"); n -= k

    def stamp(self, i):
        if not self.stamps: return
        A = self.A
        A(f"s_memtime s[{sST+2*i}:{sST+2*i+1}]")

    def setup_consts(self):
        A = self.A; l = "v0"
        A(f"v_lshlrev_b32 {r(vL16)}, 4, {l}")
        A(f"s_lshl_b32 s34, s{sW}, 11"); A(f"v_add_u32 {r(vAG)}, s34, {r(vL16)}")
        A(f"s_lshl_b32 s34, s{sW}, 14"); A(f"s_add_u32 s34, s34, {L_WO}"); A(f"v_add_u32 {r(vWoA)}, s34, {r(vL16)}")
        A(f"v_add_u32 {r(vWoB)}, 0x10000, {r(vWoA)}")
        A(f"v_and_b32 v24, 15, {l}")
        A(f"v_lshrrev_b32 v25, 4, {l}")
        A(f"v_mov_b32 {r(vIDX)}, 0x4444"); A("v_mov_b32 v26, 0xeeee")
        A("v_cmp_le_u32 vcc, 8, v24")
        A(f"v_cndmask_b32 {r(vIDX)}, {r(vIDX)}, v26, vcc")
        A(f"v_lshrrev_b32 v26, 1, v25"); A("v_lshlrev_b32 v26, 8, v26")
        A("v_lshlrev_b32 v27, 4, v24"); A("v_add_u32 v26, v26, v27")
        A("v_and_b32 v27, 1, v25"); A("v_lshlrev_b32 v27, 3, v27"); A("v_add_u32 v26, v26, v27")
        A(f"s_lshl_b32 s34, s{sW}, 9"); A(f"v_add_u32 {r(vQW)}, s34, v26")
        A(f"v_lshrrev_b32 v26, 2, {l}"); A("v_lshlrev_b32 v26, 4, v26")
        A(f"v_and_b32 v27, 1, {l}"); A("v_lshlrev_b32 v27, 3, v27"); A(f"v_add_u32 {r(vQR)}, v26, v27")
        A("v_and_b32 v26, 7, v24"); A(f"v_mul_u32_u24 v26, {OSTR}, v26"); A(f"v_add_u32 {r(vOR)}, {L_OB}, v26")
        A("v_lshlrev_b32 v27, 3, v25"); A(f"v_add_u32 {r(vOW)}, {r(vOR)}, v27")
        A(f"s_lshl_b32 s34, s{sW}, 6"); A(f"v_add_u32 {r(vOW)}, s34, {r(vOW)}")
        A("v_lshlrev_b32 v27, 4, v25"); A(f"v_add_u32 {r(vOR)}, {r(vOR)}, v27")
        if self.rs_var == 'C':
            pass
        elif self.p_layout == 0:
            A(f"v_lshrrev_b32 v26, 5, {l}"); A("v_lshlrev_b32 v26, 13, v26")
            A("v_and_b32 v27, 1, v25"); A("v_lshlrev_b32 v27, 7, v27"); A("v_add_u32 v26, v26, v27")
            A("v_lshlrev_b32 v27, 3, v24"); A("v_add_u32 v26, v26, v27")
            A(f"s_lshl_b32 s34, s{sW}, 16"); A(f"s_lshl_b32 s35, s{sH}, 8"); A("s_add_u32 s34, s34, s35")
            A(f"v_add_u32 {r(vPst)}, s34, v26")
            A("v_lshlrev_b32 v26, 8, v25"); A("v_lshlrev_b32 v27, 2, v24"); A("v_add_u32 v26, v26, v27")
            A(f"s_lshl_b32 s34, s{sH}, 13"); A(f"s_lshl_b32 s35, s{sW}, 6"); A("s_add_u32 s34, s34, s35"); A("s_add_u32 s34, s34, 4096")
            A(f"v_add_u32 {r(vRS)}, s34, v26")
        else:
            A(f"v_lshrrev_b32 v26, 5, {l}"); A("v_lshlrev_b32 v26, 13, v26")
            A("v_and_b32 v27, 1, v25"); A("v_lshlrev_b32 v27, 12, v27"); A("v_add_u32 v26, v26, v27")
            A("v_lshrrev_b32 v27, 3, v24"); A("v_lshlrev_b32 v27, 11, v27"); A("v_add_u32 v26, v26, v27")
            A("v_and_b32 v27, 7, v24"); A("v_lshlrev_b32 v27, 3, v27"); A("v_add_u32 v26, v26, v27")
            A(f"s_lshl_b32 s34, s{sW}, 16"); A(f"s_lshl_b32 s35, s{sH}, 6"); A("s_add_u32 s34, s34, s35")
            A(f"v_add_u32 {r(vPst)}, s34, v26")
            A("v_lshlrev_b32 v26, 6, v25"); A("v_lshlrev_b32 v27, 2, v24"); A("v_add_u32 v26, v26, v27")
            A(f"s_lshl_b32 s34, s{sH}, 13"); A(f"s_lshl_b32 s35, s{sW}, 11"); A("s_add_u32 s34, s34, s35")
            A(f"v_add_u32 {r(vRS)}, s34, v26")
        if self.rs_var == 'C':
            if not self.cfull:
                A(f"v_lshrrev_b32 v26, 5, {l}"); A("v_lshlrev_b32 v26, 3, v26")
                A("v_and_b32 v27, 1, v25"); A("v_lshlrev_b32 v27, 2, v27"); A("v_add_u32 v26, v26, v27")
                A("v_lshrrev_b32 v27, 2, v24"); A("v_add_u32 v26, v26, v27"); A("v_lshlrev_b32 v26, 11, v26")
                A("v_and_b32 v27, 3, v24"); A("v_lshlrev_b32 v27, 4, v27"); A("v_add_u32 v26, v26, v27")
                A(f"s_lshl_b32 s34, s{sW}, 16"); A(f"s_lshl_b32 s35, s{sH}, 6"); A("s_add_u32 s34, s34, s35")
                A(f"v_add_u32 {r(vPst)}, s34, v26")
                A(f"s_lshl_b32 s34, s{sH}, 13"); A(f"v_add_u32 {r(vRS)}, s34, {r(vAG)}")
            else:
                A(f"v_lshrrev_b32 v26, 5, {l}"); A("v_lshlrev_b32 v26, 2, v26")
                A("v_and_b32 v27, 1, v25"); A("v_lshlrev_b32 v27, 1, v27"); A("v_add_u32 v26, v26, v27")
                A("v_lshrrev_b32 v27, 3, v24"); A("v_add_u32 v26, v26, v27"); A("v_lshlrev_b32 v26, 12, v26")
                A("v_and_b32 v27, 7, v24"); A("v_lshlrev_b32 v27, 4, v27"); A("v_add_u32 v26, v26, v27")
                A(f"s_lshl_b32 s34, s{sW}, 16"); A(f"s_lshl_b32 s35, s{sH}, 7"); A("s_add_u32 s34, s34, s35")
                A(f"v_add_u32 {r(vPst)}, s34, v26")
                A(f"v_lshrrev_b32 v26, 2, {l}"); A("v_lshlrev_b32 v26, 7, v26"); A(f"v_and_b32 v27, 3, {l}"); A("v_lshlrev_b32 v27, 4, v27"); A("v_add_u32 v26, v26, v27")
                A(f"s_lshl_b32 s34, s{sH}, 13"); A(f"s_lshr_b32 s35, s{sW}, 1"); A("s_lshl_b32 s35, s35, 12"); A("s_add_u32 s34, s34, s35")
                A(f"s_and_b32 s35, s{sW}, 1"); A("s_lshl_b32 s35, s35, 6"); A("s_add_u32 s34, s34, s35")
                A(f"v_add_u32 {r(vRS)}, s34, v26")
            A(f"s_lshr_b32 s34, s{sH}, 3"); A("s_lshl_b32 s34, s34, 3")
            A(f"s_bfe_u32 s35, s{sH}, 0x10002"); A("s_lshl_b32 s35, s35, 2"); A("s_add_u32 s34, s34, s35")
            A(f"s_bfe_u32 s35, s{sH}, 0x10001"); A("s_add_u32 s34, s34, s35")
            A("v_and_b32 v26, 1, v25"); A("v_lshlrev_b32 v26, 1, v26"); A("v_add_u32 v26, s34, v26")
            A(f"v_bfe_u32 v27, {l}, 2, 2"); A(f"s_and_b32 s34, s{sH}, 1"); A("s_lshl_b32 s34, s34, 2"); A("v_add_u32 v27, s34, v27")
            A(f"v_bfe_u32 v28, {l}, 1, 1"); A(f"s_lshl_b32 s34, s{sW}, 1"); A("v_add_u32 v28, s34, v28")
            A("v_and_b32 v29, 1, v28"); A("v_lshlrev_b32 v29, 3, v29"); A("v_add_u32 v29, v29, v27"); A("v_lshlrev_b32 v29, 4, v29")
            A("v_lshrrev_b32 v30, 1, v28"); A("v_lshlrev_b32 v30, 2, v30"); A("v_add_u32 v29, v29, v30")
            A("v_lshlrev_b32 v30, 8, v26"); A(f"v_add_u32 {r(vMst)}, v29, v30")
            A("v_lshlrev_b32 v27, 10, v27"); A("v_lshlrev_b32 v26, 5, v26"); A("v_lshlrev_b32 v28, 2, v28"); A("v_add_u32 v27, v27, v26"); A("v_add_u32 v127, v27, v28")
            A("v_and_b32 v26, 7, v24"); A("v_lshrrev_b32 v27, 1, v26"); A("v_and_b32 v28, 1, v26")
            A("v_mov_b32 v29, 0x3f80"); A("v_mov_b32 v30, 0x3f800000")
            A("v_cmp_eq_u32 vcc, 1, v28"); A("v_cndmask_b32 v29, v29, v30, vcc")
            for rho in range(4):
                A(f"v_cmp_eq_u32 vcc, {rho}, v27"); A(f"v_cndmask_b32 {r(vSEL+rho)}, 0, v29, vcc")
        elif self.rs_var == 'A':
            A(f"v_and_b32 v26, 3, {l}"); A(f"s_and_b32 s34, s{sW}, 1"); A("s_lshl_b32 s34, s34, 2"); A("v_add_u32 v26, s34, v26")
            A(f"s_lshr_b32 s34, s{sW}, 1"); A("s_lshl_b32 s34, s34, 2"); A("v_add_u32 v27, s34, v25")
            A("v_and_b32 v28, 1, v26"); A("v_lshlrev_b32 v28, 3, v28"); A("v_add_u32 v28, v28, v27"); A("v_lshlrev_b32 v28, 4, v28")
            A("v_lshrrev_b32 v29, 1, v26"); A("v_lshlrev_b32 v29, 2, v29"); A("v_add_u32 v28, v28, v29")
            A(f"s_lshl_b32 s34, s{sH}, 8"); A(f"v_add_u32 {r(vMst)}, s34, v28")
            A("v_lshlrev_b32 v27, 10, v27"); A("v_lshlrev_b32 v26, 2, v26"); A("v_add_u32 v27, v27, v26")
            A(f"s_lshl_b32 s34, s{sH}, 5"); A("v_add_u32 v127, s34, v27")
            A("v_and_b32 v26, 7, v24"); A("v_lshrrev_b32 v27, 1, v26"); A("v_and_b32 v28, 1, v26")
            A("v_mov_b32 v29, 0x3f80"); A("v_mov_b32 v30, 0x3f800000")
            A("v_cmp_eq_u32 vcc, 1, v28"); A("v_cndmask_b32 v29, v29, v30, vcc")
            for rho in range(4):
                A(f"v_cmp_eq_u32 vcc, {rho}, v27"); A(f"v_cndmask_b32 {r(vSEL+rho)}, 0, v29, vcc")
            A(f"s_lshl_b32 s34, s{sH}, 13"); A(f"v_add_u32 {r(vRS)}, s34, {r(vAG)}")
        else:
            A("v_lshrrev_b32 v26, 2, v24"); A(f"s_and_b32 s34, s{sW}, 1"); A("s_lshl_b32 s34, s34, 2"); A("v_add_u32 v26, s34, v26")
            A("v_and_b32 v27, 1, v24"); A("v_lshlrev_b32 v27, 1, v27"); A("v_and_b32 v28, 1, v25"); A("v_add_u32 v27, v27, v28")
            A(f"s_lshr_b32 s34, s{sW}, 1"); A("s_lshl_b32 s34, s34, 2"); A("v_add_u32 v27, s34, v27")
            A("v_and_b32 v28, 1, v26"); A("v_lshlrev_b32 v28, 3, v28"); A("v_add_u32 v28, v28, v27"); A("v_lshlrev_b32 v28, 4, v28")
            A("v_lshrrev_b32 v29, 1, v26"); A("v_lshlrev_b32 v29, 2, v29"); A("v_add_u32 v28, v28, v29")
            A(f"s_lshl_b32 s34, s{sH}, 8"); A(f"v_add_u32 {r(vMst)}, s34, v28")
            A("v_lshlrev_b32 v27, 10, v27"); A("v_lshlrev_b32 v26, 2, v26"); A("v_add_u32 v27, v27, v26")
            A(f"s_lshl_b32 s34, s{sH}, 5"); A("v_add_u32 v127, s34, v27")
            A("v_and_b32 v26, 1, v24"); A("v_mov_b32 v27, 0x3f80"); A("v_mov_b32 v28, 0x3f800000")
            A("v_cmp_eq_u32 vcc, 1, v26"); A(f"v_cndmask_b32 {r(vSEL)}, v27, v28, vcc")
            for i in range(1, 4): A(f"v_mov_b32 {r(vSEL+i)}, {r(vSEL)}")
        for i in range(4): A(f"v_mov_b32 {r(vONE+i)}, 0x3f803f80")
        A("v_cmp_gt_u32 vcc, 2, v25"); A(f"v_cndmask_b32 {r(vHALF)}, 0, {r(vONE)}, vcc"); A(f"v_mov_b32 {r(vHALF+1)}, {r(vHALF)}")
        if self.rs_var == 'C':
            A(f"s_mov_b32 s{sMMSK}, 0x55555555"); A(f"s_mov_b32 s{sMMSK+1}, 0")
            A(f"s_mov_b32 s{sHB}, 0xf0f0f0f0"); A(f"s_mov_b32 s{sHB+1}, 0xf0f0f0f0")
            A(f"s_mov_b32 s{sHB2}, 0xff00ff00"); A(f"s_mov_b32 s{sHB2+1}, 0xff00ff00")
        elif self.rs_var == 'A':
            A(f"s_mov_b32 s{sMMSK}, 0x000f000f"); A(f"s_mov_b32 s{sMMSK+1}, 0x000f000f")
            A(f"s_mov_b32 s{sODD}, 0"); A(f"s_mov_b32 s{sODD+1}, -1")
        else:
            A(f"s_mov_b32 s{sMMSK}, 0x33333333"); A(f"s_mov_b32 s{sMMSK+1}, 0")
            A(f"s_mov_b32 s{sODD}, 0xffff0000"); A(f"s_mov_b32 s{sODD+1}, 0xffff0000")
        A(f"s_mov_b32 s{sC}, {fbits(SC_C):#x}"); A(f"s_mov_b32 s{sC+1}, {fbits(SC_C):#x}")
        A(f"s_mov_b32 s{sTHR}, {fbits(-1.0 if self.force_slow else 40.0/SC_C):#x}")
        A(f"s_add_u32 s{sMb}, s{sWS}, {WS_MBUF}"); A(f"s_addc_u32 s{sMb+1}, s{sWS+1}, 0")
        A(f"s_add_u32 s{sHIST}, s{sWS}, {WS_MHIST}"); A(f"s_addc_u32 s{sHIST+1}, s{sWS+1}, 0")
        A(f"s_lshl_b32 s34, s{sH}, 13")
        A(f"s_add_u32 s{sKX}, s{sWS}, s34"); A(f"s_addc_u32 s{sKX+1}, s{sWS+1}, 0")
        A(f"s_add_u32 s{sVX}, s{sKX}, {WS_VX}"); A(f"s_addc_u32 s{sVX+1}, s{sKX+1}, 0")
        A(f"s_add_u32 s{sKX}, s{sKX}, {WS_KX}"); A(f"s_addc_u32 s{sKX+1}, s{sKX+1}, 0")

    def clear_slots(self):
        A = self.A
        for i in range(4): A(f"v_mov_b32 v{28+i}, -1")
        for par in range(2):
            A(f"s_lshl_b32 s34, s{sH}, 13"); A(f"s_add_u32 s34, s34, {WS_PBUF + par*0x40000}")
            A(f"s_add_u32 s36, s{sWS}, s34"); A(f"s_addc_u32 s37, s{sWS+1}, 0")
            A(f"global_store_dwordx4 {r(vAG)}, v[28:31], s[36:37] sc1"); A(f"global_store_dwordx4 {r(vAG)}, v[28:31], s[36:37] offset:1024 sc1")
        A(f"s_mov_b64 exec, {sp(sMMSK)}")
        for i in range(4):
            A(f"s_add_u32 s36, s{sMb}, {i*8192}"); A(f"s_addc_u32 s37, s{sMb+1}, 0")
            A(f"global_store_dword {r(vMst)}, v28, s[36:37] sc1")
        A("s_mov_b64 exec, -1")

    def load_weights(self):
        A = self.A; l = "v0"
        A("s_load_dwordx4 s[56:59], s[0:1], 16"); A("s_load_dwordx4 s[60:63], s[0:1], 32")
        A(f"v_lshrrev_b32 v24, 4, {l}")
        A(f"v_and_b32 v25, 15, {l}"); A("v_lshlrev_b32 v26, 1, v24"); A("v_xor_b32 v25, v25, v26"); A("v_lshlrev_b32 v25, 4, v25")
        A("v_lshlrev_b32 v24, 13, v24"); A("v_add_u32 v24, v24, v25")
        A(f"s_lshl_b32 s34, s{sW}, 17"); A(f"s_lshl_b32 s35, s{sH}, 8"); A("s_add_u32 s34, s34, s35")
        A("v_add_u32 v24, s34, v24"); A("v_xor_b32 v25, 128, v24")
        A(f"v_lshrrev_b32 v26, 4, {l}"); A(f"v_bfe_u32 v27, {l}, 2, 2"); A(f"v_and_b32 v28, 3, {l}")
        A("v_lshlrev_b32 v29, 3, v26"); A("v_add_u32 v29, v29, v27"); A("v_lshlrev_b32 v29, 8, v29")
        A("v_lshrrev_b32 v30, 1, v28")
        A("v_lshlrev_b32 v31, 1, v27"); A("v_and_b32 v32, 1, v26"); A("v_lshlrev_b32 v32, 3, v32"); A("v_add_u32 v31, v31, v32")
        A(f"s_lshl_b32 s34, s{sW}, 2"); A("v_add_u32 v30, s34, v30"); A("v_xor_b32 v30, v30, v31")
        A("v_lshlrev_b32 v30, 4, v30"); A("v_add_u32 v29, v29, v30")
        A("v_and_b32 v32, 1, v28"); A("v_lshlrev_b32 v32, 3, v32"); A("v_add_u32 v29, v29, v32")
        A(f"v_add_u32 v38, {L_WO}, v29"); A("v_xor_b32 v39, 32, v29"); A(f"v_add_u32 v39, {L_WO}, v39")
        A("v_add_u32 v36, 0x10000, v38"); A("v_add_u32 v37, 0x10000, v39")
        A("v_lshrrev_b32 v33, 1, v26"); A("v_lshlrev_b32 v33, 3, v33"); A("v_and_b32 v34, 1, v26"); A("v_lshlrev_b32 v34, 2, v34"); A("v_add_u32 v33, v33, v34")
        A("v_and_b32 v34, 1, v27"); A("v_add_u32 v33, v33, v34"); A("v_lshlrev_b32 v33, 10, v33"); A("v_add_u32 v33, v33, v32")
        A(f"s_lshl_b32 s34, s{sW}, 8"); A(f"s_add_u32 s34, s34, {L_WO}"); A("v_add_u32 v33, s34, v33")
        A("v_lshrrev_b32 v34, 1, v27"); A("v_lshlrev_b32 v34, 1, v34"); A("v_lshrrev_b32 v35, 1, v28"); A("v_add_u32 v34, v34, v35")
        A("v_and_b32 v35, 1, v27"); A("v_lshlrev_b32 v35, 1, v35"); A("v_lshrrev_b32 v40, 1, v26"); A("v_and_b32 v40, 1, v40"); A("v_lshlrev_b32 v40, 3, v40")
        A("v_add_u32 v35, v35, v40"); A("v_xor_b32 v34, v34, v35")
        A("s_waitcnt lgkmcnt(0)")
        def dma_qkv(c):
            mat, t = divmod(c, 8); slot = c % 8; base = 56 + 2*mat
            for i in range(4):
                off = (64*t + 4*i) * 8192
                A(f"s_add_u32 s36, s{base}, {off}"); A(f"s_addc_u32 s37, s{base+1}, 0")
                A(f"s_lshl_b32 s34, s{sW}, 12"); A(f"s_add_u32 m0, s34, {L_WO + slot*16384 + i*1024}")
                A(f"global_load_lds_dwordx4 v{24 + (i >> 1)}, s[36:37]")
        def dma_wo(slot):
            for i in range(4):
                A(f"s_lshr_b32 s34, s{sW}, 1"); A("s_lshl_b32 s34, s34, 3"); A(f"s_add_u32 s34, s34, {2*i}")
                A(f"v_xor_b32 v35, s34, {l}"); A("v_lshlrev_b32 v35, 4, v35")
                A(f"s_lshl_b32 s34, s{sH}, 17"); A(f"s_lshl_b32 s35, s{sW}, 12"); A("s_add_u32 s34, s34, s35")
                A(f"s_add_u32 s34, s34, {(16*slot + i)*1024}")
                A("s_add_u32 s36, s62, s34"); A("s_addc_u32 s37, s63, 0")
                A(f"s_lshl_b32 s34, s{sW}, 12"); A(f"s_add_u32 m0, s34, {L_WO + slot*16384 + i*1024}")
                A("global_load_lds_dwordx4 v35, s[36:37]")
        for c in range(8): dma_qkv(c)
        for c in range(24):
            mat, t = divmod(c, 8); slot = c % 8
            A("s_waitcnt vmcnt(28)"); A("s_barrier")
            if c == 0:
                L2 = A.newlabel("RC")
                A(f"s_cmp_lg_u32 s{sW}, 0"); A(f"s_cbranch_scc1 {L2}")
                A("v_mov_b32 v41, 0"); A("v_mov_b32 v42, s90"); A("s_mov_b64 exec, 1")
                A(f"global_atomic_add v41, v42, {sp(sDBG)} offset:{D_ROLL*4}")
                A("s_mov_b64 exec, -1")
                A.label(L2)
            for X in range(2):
                for q4 in range(4):
                    roff = [0, 4, 32, 36][q4] * 256
                    ridx = (X*8 + t)*8 + 2*q4
                    d = ar(ridx, 2) if mat == 0 else (ar(128 + ridx, 2) if mat == 1 else r(WV + ridx, 2))
                    so = slot*16384 + roff
                    if so < 65536: A(f"ds_read_b64_tr_b16 {d}, v{38+X} offset:{so}")
                    else: A(f"ds_read_b64_tr_b16 {d}, v{36+X} offset:{so-65536}")
            A("s_waitcnt lgkmcnt(0)"); A("s_barrier")
            if c + 8 < 24: dma_qkv(c + 8)
            else: dma_wo(slot)
        for hb in range(2):
            A("s_waitcnt vmcnt(16)" if hb == 0 else "s_waitcnt vmcnt(0)"); A("s_barrier")
            for dl in range(4):
                for u1 in range(2):
                    A(f"v_xor_b32 v35, {(4*dl) ^ (4*u1)}, v34"); A("v_lshlrev_b32 v35, 4, v35"); A("v_add_u32 v35, v35, v33")
                    if hb: A("v_add_u32 v35, 0x10000, v35")
                    for tl in range(2):
                        for u2 in range(2):
                            u = 2*u2 + u1
                            dst = 48 + (dl*2 + tl)*8 + 2*u
                            A(f"ds_read_b64_tr_b16 {r(dst, 2)}, v35 offset:{tl*32768 + u2*16384 + u1*2048}")
            A("s_waitcnt lgkmcnt(0)"); A("s_barrier")
            b = vWoA if hb == 0 else vWoB
            for st in range(8):
                for half in range(2):
                    A(f"ds_write_b128 {r(b)}, {r(48 + st*8 + 4*half, 4)} offset:{st*2048 + half*1024}")
            A("s_waitcnt lgkmcnt(0)")

    def dma_k(self):
        A = self.A
        A(f"s_lshl_b32 s34, s{sW}, 11"); A(f"s_add_u32 m0, s34, {L_KX}")
        A(f"global_load_lds_dwordx4 {r(vAG)}, {sp(sKX)}"); A(f"global_load_lds_dwordx4 {r(vAG)}, {sp(sKX)} offset:1024 sc1")
        A(f"s_add_u32 s{sKX}, s{sKX}, 0x40000"); A(f"s_addc_u32 s{sKX+1}, s{sKX+1}, 0")
    def dma_v(self):
        A = self.A
        A(f"s_lshl_b32 s34, s{sW}, 11"); A(f"s_add_u32 m0, s34, {L_VX}")
        A(f"global_load_lds_dwordx4 {r(vAG)}, {sp(sVX)}"); A(f"global_load_lds_dwordx4 {r(vAG)}, {sp(sVX)} offset:1024")
        A(f"s_add_u32 s{sVX}, s{sVX}, 0x40000"); A(f"s_addc_u32 s{sVX+1}, s{sVX+1}, 0")

    def preload_mem0(self):
        A = self.A
        A("s_load_dwordx2 s[36:37], s[0:1], 8"); A("s_waitcnt lgkmcnt(0)")
        A(f"s_mov_b64 exec, {sp(sMMSK)}")
        A("global_load_dword v126, v127, s[36:37]")
        A("s_mov_b64 exec, -1")
    def publish_mem0(self):
        A = self.A
        A(f"s_mov_b64 exec, {sp(sMMSK)}")
        A(f"global_store_dword {r(vMst)}, v126, {sp(sMb)}")
        if self.hist: A(f"global_store_dword {r(vMst)}, v126, {sp(sHIST)}")
        A("s_mov_b64 exec, -1")

    def salu_step(self):
        L = []; A = L.append
        A(f"s_and_b32 s34, s{sS}, 1"); A("s_lshl_b32 s34, s34, 18"); A(f"s_add_u32 s34, s34, {WS_PBUF}")
        A(f"s_add_u32 s{sPst}, s{sWS}, s34"); A(f"s_addc_u32 s{sPst+1}, s{sWS+1}, 0")
        A(f"s_add_u32 s24, s{sPst}, 32768"); A(f"s_addc_u32 s25, s{sPst+1}, 0")
        A(f"s_bfe_u32 s{sTAG}, s{sS}, 0x10001")
        A(f"s_add_u32 s34, s{sS}, 1"); A("s_and_b32 s35, s34, 3"); A("s_lshl_b32 s35, s35, 13")
        A(f"s_add_u32 s{sMn}, s{sMb}, s35"); A(f"s_addc_u32 s{sMn+1}, s{sMb+1}, 0")
        A("s_xor_b32 s35, s35, 0x4000")
        A(f"s_add_u32 s{sMz}, s{sMb}, s35"); A(f"s_addc_u32 s{sMz+1}, s{sMb+1}, 0")
        if self.hist:
            A("s_lshl_b32 s34, s34, 13"); A(f"s_add_u32 s{sHn}, s{sHIST}, s34"); A(f"s_addc_u32 s{sHn+1}, s{sHIST+1}, 0")
        A(f"s_lshl_b32 s34, s{sS}, 5"); A(f"s_add_u32 s34, s34, s{sH}")
        A("s_lshl_b32 s35, s34, 11"); A(f"s_add_u32 s35, s35, {WS_EK}"); A(f"s_add_u32 s{sEK}, s{sWS}, s35"); A(f"s_addc_u32 s{sEK+1}, s{sWS+1}, 0")
        A("s_lshl_b32 s35, s34, 13"); A(f"s_add_u32 s35, s35, {WS_EV}"); A(f"s_add_u32 s{sEV}, s{sWS}, s35"); A(f"s_addc_u32 s{sEV+1}, s{sWS+1}, 0")
        A(f"s_lshl_b32 s34, s{sS}, {CS}"); A(f"s_add_u32 s35, s34, {cnt_off(C_EXP) - 128}")
        A(f"s_cmp_eq_u32 s{sS}, 0"); A(f"s_cselect_b32 s35, {CNT_DUMMY}, s35")
        A(f"s_add_u32 s{sEXC}, s{sWS}, s35"); A(f"s_addc_u32 s{sEXC+1}, s{sWS+1}, 0")
        return L
    def shadow_prep(self):
        A = self.A
        for i in range(0, 16, 2): A(f"v_mov_b64 {r(AQ+i,2)}, 0")
        A(f"v_mov_b32 {r(SX)}, -1")

    def ag_poll_m(self, P="L"):
        A = self.A; b = Q; dep = self.ag_depth
        def issue():
            A(f"global_load_dwordx4 {r(b,4)}, {r(vAG)}, {sp(sMc)} sc1")
            A(f"global_load_dwordx4 {r(b+4,4)}, {r(vAG)}, {sp(sMc)} offset:1024 sc1")
        def check():
            A(f"v_max3_u32 {r(T0r)}, {r(b)}, {r(b+1)}, {r(b+2)}"); A(f"v_max3_u32 {r(T1r)}, {r(b+3)}, {r(b+4)}, {r(b+5)}")
            A(f"v_max3_u32 {r(T0r)}, {r(T0r)}, {r(b+6)}, {r(b+7)}"); A(f"v_max_u32 {r(T0r)}, {r(T0r)}, {r(T1r)}")
            A(f"v_cmp_eq_u32 vcc, -1, {r(T0r)}")
            A(f"s_cbranch_vccz {P}_agok")
            A("s_mov_b64 exec, vcc")
            issue()
            A(f"s_add_u32 s{sNAG}, s{sNAG}, 1")
        self.stamp(0)
        A(f"s_mov_b32 s{sCNT}, 0")
        self.shadow_prep()
        self.delay(self.ag_delay)
        for k in range(dep):
            issue()
            if k < dep-1:
                self.delay(self.ag_gap)
        A(f"global_store_dwordx4 {r(vAG)}, {r(SX,4)}, {sp(sPz)}"); A(f"global_store_dwordx4 {r(vAG)}, {r(SX,4)}, {sp(sPz)} offset:1024")
        A(f"s_mov_b64 exec, {sp(sMMSK)}"); A(f"global_store_dword {r(vMst)}, {r(SX)}, {sp(sMz)}"); A("s_mov_b64 exec, -1")
        for k in range(dep):
            A(f"s_waitcnt vmcnt({2*(dep-1) + 3})"); check()
        A.label(f"{P}_ag")
        A(f"s_waitcnt vmcnt({2*(dep-1)})"); check()
        A(f"s_add_u32 s{sCNT}, s{sCNT}, 1")
        A(f"s_cmp_lt_u32 s{sCNT}, 6000"); A(f"s_cbranch_scc1 {P}_ag")
        A(f"s_mov_b32 s{sFAIL}, 1"); A("s_waitcnt vmcnt(0)")
        A.label(f"{P}_agok")
        A("s_mov_b64 exec, -1")
        A(f"ds_write_b128 {r(vAG)}, {r(b,4)}"); A(f"ds_write_b128 {r(vAG)}, {r(b+4,4)} offset:1024")
        self.stamp(1)
        A("s_waitcnt lgkmcnt(0)")
        A("s_barrier")

    def ag_poll(self, P="L"):
        if self.nocomm or self.no_ag:
            A = self.A
            self.stamp(0)
            A(f"ds_write_b128 {r(vAG)}, {r(WV,4)}"); A(f"ds_write_b128 {r(vAG)}, {r(WV+4,4)} offset:1024")
            self.stamp(1); A("s_waitcnt lgkmcnt(0)"); A("s_barrier"); return
        if self.mpoll: return self.ag_poll_m(P)
        A = self.A
        n = self.ag_sets
        regs = [Q, Q+8, K, K+8][:n]
        def issue(b):
            A(f"global_load_dwordx4 {r(b,4)}, {r(vAG)}, {sp(sMc)} sc1")
            A(f"global_load_dwordx4 {r(b+4,4)}, {r(vAG)}, {sp(sMc)} offset:1024 sc1")
        def check(b, last=False):
            A(f"ds_write_b128 {r(vAG)}, {r(b,4)}")
            A(f"v_max3_u32 {r(T0r)}, {r(b)}, {r(b+1)}, {r(b+2)}"); A(f"v_max3_u32 {r(T1r)}, {r(b+3)}, {r(b+4)}, {r(b+5)}")
            A(f"ds_write_b128 {r(vAG)}, {r(b+4,4)} offset:1024")
            A(f"v_max3_u32 {r(T0r)}, {r(T0r)}, {r(b+6)}, {r(b+7)}"); A(f"v_max_u32 {r(T0r)}, {r(T0r)}, {r(T1r)}")
            A(f"v_cmp_eq_u32 vcc, -1, {r(T0r)}")
            if last:
                A(f"s_cbranch_vccnz {P}_agretry")
                return
            A(f"s_cbranch_vccz {P}_agok")
            issue(b)
            A(f"s_add_u32 s{sNAG}, s{sNAG}, 1")
        self.stamp(0)
        A(f"s_mov_b32 s{sCNT}, 0")
        stv = self.exports and self.stash_v
        if stv:
            A(f"ds_read_b128 {r(OX,4)}, {r(vAG)}")
            A(f"s_mov_b32 s{sEVp}, s{sEV}"); A(f"s_mov_b32 s{sEVp+1}, s{sEV+1}")
        if not self.early_shadow: self.shadow_prep()
        self.delay(self.ag_delay)
        for k, b in enumerate(regs):
            issue(b)
            if k < n-1:
                self.delay(self.ag_gap)
        nres = 0
        if self.ag_reset:
            if not self.ptag:
                A(f"global_store_dwordx4 {r(vAG)}, {r(SX,4)}, {sp(sPz)}"); A(f"global_store_dwordx4 {r(vAG)}, {r(SX,4)}, {sp(sPz)} offset:1024")
            A(f"s_mov_b64 exec, {sp(sMMSK)}"); A(f"global_store_dword {r(vMst)}, {r(SX)}, {sp(sMz)}"); A("s_mov_b64 exec, -1")
            nres = 1 if self.ptag else 3
            if stv:
                A("s_waitcnt lgkmcnt(0)"); A(f"global_store_dwordx4 {r(vAG)}, {r(OX,4)}, {sp(sEVp)} sc1"); nres = 4
            for k, b in enumerate(regs):
                A(f"s_waitcnt vmcnt({2*(n-1) + nres})"); check(b, last=(self.ft and k == n-1))
        def loop_code():
            A.label(f"{P}_ag")
            for k, b in enumerate(regs):
                A(f"s_waitcnt vmcnt({2*(n-1)})"); check(b)
            A(f"s_add_u32 s{sCNT}, s{sCNT}, 1")
            A(f"s_cmp_lt_u32 s{sCNT}, 3000"); A(f"s_cbranch_scc1 {P}_ag")
            A(f"s_mov_b32 s{sFAIL}, 1"); A("s_waitcnt vmcnt(0)")
        if self.ft:
            def ool():
                A.label(f"{P}_agretry")
                issue(regs[-1]); A(f"s_add_u32 s{sNAG}, s{sNAG}, 1")
                loop_code()
                A(f"s_branch {P}_agok")
            self.ool.append(ool)
        else:
            loop_code()
        A.label(f"{P}_agok")
        self.stamp(1)
        A("s_waitcnt lgkmcnt(0)")
        A("s_barrier")

    def rs_check(self, b, D, MF, last=False):
        A = self.A
        assert self.ptag
        A(f"v_xor_b32 {r(T0r)}, s{sTAG+1}, {r(b)}"); A(f"v_xor_b32 {r(T1r)}, s{sTAG+1}, {r(b+4)}")
        A(f"{MF} {r(D,4)}, {r(vSEL,4)}, {r(b,4)}, 0")
        A(f"v_or_b32 {r(T0r)}, {r(T0r)}, {r(T1r)}"); A(f"v_and_b32 {r(T0r)}, 1, {r(T0r)}")
        A(f"{MF} {r(D,4)}, {r(vSEL,4)}, {r(b+4,4)}, {r(D,4)}")
        A(f"v_cmp_ne_u32 vcc, 0, {r(T0r)}")
        A("s_cbranch_vccnz L_rsretry" if last else "s_cbranch_vccz L_rsok")

    def exp_flag(self):
        L = self.A.newlabel("XF")
        return [f"s_mov_b64 exec, {sp(sXM)}", f"s_cbranch_execz {L}", f"global_atomic_add {r(vL16)}, {r(vIDX)}, {sp(sEXC)}", f"{L}:", "s_mov_b64 exec, -1"]

    def kv_fast(self):
        L = self.A.newlabel("KVR")
        self.kv_ret.append(L)
        return [f"s_cmp_ge_u32 s{sS}, s{sKVOK}", f"s_cbranch_scc1 KVSLOW", f"KVRET:"]
    def sm_slow_code(self):
        A = self.A; mx, t1 = T0r, T1r
        A.label("SMSLOW")
        A(f"v_max3_f32 {r(mx)}, {r(SX)}, {r(SX+1)}, {r(SX+2)}"); A(f"v_max3_f32 {r(t1)}, {r(SX+3)}, {r(SX+4)}, {r(SX+5)}")
        A(f"v_max3_f32 {r(mx)}, {r(mx)}, {r(SX+6)}, {r(SX+7)}"); A(f"v_max3_f32 {r(t1)}, {r(t1)}, {r(SM)}, {r(SM+1)}")
        A(f"v_max3_f32 {r(mx)}, {r(mx)}, {r(SM+2)}, {r(SM+3)}"); A(f"v_max_f32 {r(mx)}, {r(mx)}, {r(t1)}")
        A(f"v_mov_b32 {r(t1)}, {r(mx)}"); A(f"v_permlane16_swap_b32 {r(mx)}, {r(t1)}"); A(f"v_max_f32 {r(mx)}, {r(mx)}, {r(t1)}")
        A(f"v_mov_b32 {r(t1)}, {r(mx)}"); A(f"v_permlane32_swap_b32 {r(mx)}, {r(t1)}"); A(f"v_max_f32 {r(mx)}, {r(mx)}, {r(t1)}")
        for b in list(range(SX, SX+8)) + list(range(SM, SM+4)): A(f"v_sub_f32 {r(b)}, {r(b)}, {r(mx)}")
        A("s_nop 1")
        A("s_branch SMRET")

    def kv_slow_code(self, lab="KVSLOW", ret="KVRET", need_off=0):
        A = self.A
        A.label(lab)
        A("s_mov_b32 s35, 0")
        A.label(lab + "_l")
        A(f"v_lshlrev_b32 {r(T1r)}, 3, {r(vL16)}")
        A(f"global_load_dword {r(T0r)}, {r(T1r)}, {sp(sKVC)} sc1"); A("s_waitcnt vmcnt(0)")
        A(f"v_cmp_gt_u32 vcc, 32, {r(T0r)}")
        A("s_nop 3"); A("s_ff1_i32_b64 s34, vcc")
        A("s_cmp_eq_u32 s34, -1"); A("s_cselect_b32 s34, 64, s34")
        if self.dma_rs: A(f"s_mov_b32 s{sKVOK}, s34")
        else: A(f"s_sub_u32 s{sKVOK}, s34, 1"); A("s_cmp_eq_u32 s34, 64"); A(f"s_cselect_b32 s{sKVOK}, 64, s{sKVOK}")
        A(f"s_cmp_lt_i32 s{sS}, s{sKVOK}"); A(f"s_cbranch_scc1 {ret}")
        A("s_sleep 4"); A("s_add_u32 s35, s35, 1"); A("s_cmp_lt_u32 s35, 60000"); A(f"s_cbranch_scc1 {lab}_l")
        A(f"s_mov_b32 s{sKVOK}, 64"); A(f"s_branch {ret}")

    def kv_check(self):
        A = self.A
        L = A.newlabel("KV"); E = A.newlabel("KVE")
        out = [f"v_readlane_b32 s34, {r(vMst)}, 2", "s_cmp_ge_u32 s34, 32", f"s_cbranch_scc1 {E}", "s_mov_b32 s35, 0", "s_mov_b64 exec, 4", f"{L}:",
               f"global_load_dword {r(vMst)}, {r(vL16)}, {sp(sKVC)} offset:-96 sc1", "s_waitcnt vmcnt(0)",
               f"v_readlane_b32 s34, {r(vMst)}, 2", "s_cmp_ge_u32 s34, 32", f"s_cbranch_scc1 {E}_x", "s_sleep 2",
               "s_add_u32 s35, s35, 1", "s_cmp_lt_u32 s35, 60000", f"s_cbranch_scc1 {L}", f"{E}_x:", "s_mov_b64 exec, -1", f"{E}:"]
        return out
    def kv_prefetch(self):
        return ["s_mov_b64 exec, 4", f"global_load_dword {r(vMst)}, {r(vL16)}, {sp(sKVC)} offset:-32 sc1", "s_mov_b64 exec, -1"]

    def weave(self, main, fill):
        A = self.A
        for x in fill.get(-1, []): A(x)
        for i, m in enumerate(main):
            A(m)
            for x in fill.get(i, []): A(x)
        for k in fill:
            assert k < len(main), (k, len(main))

    def step(self):
        A = self.A
        SMF = "v_smfmac_f32_16x16x64_bf16"; MF = "v_mfma_f32_16x16x32_bf16"; MF16 = "v_mfma_f32_16x16x16_bf16"
        st = lambda i: ([f"s_memtime s[{sST+2*i}:{sST+2*i+1}]"] if self.stamps else [])
        from collections import defaultdict
        self.stamp(2)
        kx0 = [K, K+4, K+8, K+12]; kx1 = [OX, OX+4, LX, SM]
        qs = [f"{SMF} {r(AQ+4*X,4)}, {r(M+4*t,4)}, {ar((X*8+t)*8, 8)}, {r(vIDX)}" for t in range(8) for X in range(2)]
        F = defaultdict(list)
        kxr = [f"ds_read_b128 {r(kx0[t],4)}, {r(vL16)} offset:{L_KX + t*1024}" for t in range(4)] + \
              [f"ds_read_b128 {r(kx1[t],4)}, {r(vL16)} offset:{L_KX + (4+t)*1024}" for t in range(4)]
        mr = [f"ds_read_b128 {r(M+4*t,4)}, {r(vL16)} offset:{L_STG + t*1024}" for t in range(8)]
        if not self.pipe_t0:
            for x in mr: A(x)
            F[-1].append("s_waitcnt lgkmcnt(7)")
            nk = 0
            for t in range(1, 8):
                slot = 2*t - 1
                F[slot].append(f"s_waitcnt lgkmcnt({min(15, 7 - t + nk)})")
                if t >= 4:
                    F[slot].append(kxr[nk]); nk += 1
                    F[slot+1 if slot+1 < 16 else slot].append(kxr[nk]); nk += 1
        else:
            LA = 3
            for x in mr[:LA]: A(x)
            seq = mr[LA:] + kxr
            F[-1].append(f"s_waitcnt lgkmcnt({LA-1})")
            issued = LA
            for sl in range(16):
                if sl < len(seq): F[sl].append(seq[sl]); issued += 1
                if sl % 2 == 1 and sl < 15:
                    t = (sl + 1)//2
                    F[sl].append(f"s_waitcnt lgkmcnt({min(15, issued - 1 - t)})")
            nk = 8
        if not self.ag_reset:
            F[0].append(f"global_store_dwordx4 {r(vAG)}, {r(SX,4)}, {sp(sPz)}")
            F[2].append(f"global_store_dwordx4 {r(vAG)}, {r(SX,4)}, {sp(sPz)} offset:1024")
            F[4] += [f"s_mov_b64 exec, {sp(sMMSK)}", f"global_store_dword {r(vMst)}, {r(SX)}, {sp(sMz)}", "s_mov_b64 exec, -1"]
            F[6] += ["s_waitcnt vmcnt(3)"]

        sl = self.salu_step()
        chunks = []; cur = []
        for x in sl:
            cur.append(x)
            if len(cur) >= 2 and not (x.startswith("s_add_u32") or x.startswith("s_cmp")): chunks.append(cur); cur = []
        if cur: chunks.append(cur)
        qslots = [13, 14, 15]
        for i, sl_ in enumerate(qslots): F[sl_] += chunks[i]
        self.kchunks = chunks[len(qslots):]
        self.weave(qs, F)
        assert nk == 8
        self.stamp(3)
        BAR = self.bar
        ks = [f"{SMF} {r(AK+4*X,4)}, {r(M+4*t,4)}, {ar(128+(X*8+t)*8, 8)}, {r(vIDX)}" for t in range(8) for X in range(2)]
        def post(acc, lds_off):
            return [f"v_permlane32_swap_b32 {r(acc+j)}, {r(acc+4+j)}" for j in range(4)] + \
                   [f"v_pk_add_f32 {r(acc,2)}, {r(acc,2)}, {r(acc+4,2)}", f"v_pk_add_f32 {r(acc+2,2)}, {r(acc+2,2)}, {r(acc+6,2)}",
                    f"v_cvt_pk_bf16_f32 {r(acc)}, {r(acc)}, {r(acc+1)}", f"v_cvt_pk_bf16_f32 {r(acc+1)}, {r(acc+2)}, {r(acc+3)}",
                    f"ds_write_b64 {r(vQW)}, {r(acc,2)} offset:{lds_off}"]
        F = defaultdict(list)
        F[1] += post(AQ, L_QB)
        F[8] += ["s_waitcnt vmcnt(0)"]
        if self.kbar:
            F[0] += ["s_waitcnt lgkmcnt(0)", "s_barrier"]
            if self.kvwait: F[0] += self.kv_fast()
            F[9] += [f"s_mov_b32 m0, s{sM0K}", f"global_load_lds_dwordx4 {r(vAG)}, {sp(sKX)} sc1"]
            F[13] += [f"global_load_lds_dwordx4 {r(vAG)}, {sp(sKX)} offset:1024 sc1", f"s_add_u32 s{sKX}, s{sKX}, 0x40000", f"s_addc_u32 s{sKX+1}, s{sKX+1}, 0"]
            if self.dmalat: F[13] += st(4) + ["s_waitcnt vmcnt(0)"] + st(6)
        kslots = [2, 3, 4, 5, 6, 7, 8, 10, 12, 14]
        assert len(self.kchunks) <= len(kslots), len(self.kchunks)
        for i, cch in enumerate(self.kchunks): F[kslots[i]] += cch
        for j in range(0, 8, 2): F[9 + j].append(f"v_mov_b64 {r(AQ+j,2)}, 0")
        self.weave(ks, F)
        self.stamp(5)
        vs = [f"{SMF} {r(AQ+4*X,4)}, {r(M+4*t,4)}, {r(WV+(X*8+t)*8, 8)}, {r(vIDX)}" for t in range(8) for X in range(2)]
        NV1 = self.nv1
        qtr = [f"ds_read_b64_tr_b16 {r(Q+4*t+2*hf,2)}, {r(vQR)} offset:{L_QB + t*512 + hf*256}" for t in range(4) for hf in range(2)]
        KF = M + 8
        ktr = [f"ds_read_b64_tr_b16 {r(KF+4*t+2*hf,2)}, {r(vQR)} offset:{L_KB + t*512 + hf*256}" for t in range(4) for hf in range(2)]
        F = defaultdict(list)
        kp = post(AK, L_KB)
        F[1] += kp
        if self.exports: F[2] += [f"global_store_dwordx2 {r(vQW)}, {r(AK,2)}, {sp(sEK)} sc1"]
        F[BAR] += ["s_waitcnt lgkmcnt(0)", "s_barrier"] + ([] if self.dmalat else st(6))
        if self.exports: F[BAR+1] += self.exp_flag()
        for i in range(4): F[BAR+i] += qtr[2*i:2*i+2]
        if self.kvwait and not self.kbar and not self.dma_rs: F[BAR] += self.kv_fast()
        if not self.kbar and not self.dma_rs: F[BAR+1] += [f"s_mov_b32 m0, s{sM0K}", f"global_load_lds_dwordx4 {r(vAG)}, {sp(sKX)} sc1"]
        if self.vearly:
            F[3] += [f"ds_read_b128 {r(M,4)}, {r(vAG)} offset:{L_VX}"]
            F[4] += [f"ds_read_b128 {r(M+4,4)}, {r(vAG)} offset:{L_VX + 1024}"]
            assert BAR >= 5
            F[BAR+1] += [f"s_mov_b32 m0, s{sM0V}", f"global_load_lds_dwordx4 {r(vAG)}, {sp(sVX)} sc1"]
            F[BAR+5] += [f"global_load_lds_dwordx4 {r(vAG)}, {sp(sVX)} offset:1024 sc1", f"s_add_u32 s{sVX}, s{sVX}, 0x40000", f"s_addc_u32 s{sVX+1}, s{sVX+1}, 0"]
        else:
            F[BAR+2] += [f"ds_read_b128 {r(M,4)}, {r(vAG)} offset:{L_VX}"]
            F[BAR+3] += [f"ds_read_b128 {r(M+4,4)}, {r(vAG)} offset:{L_VX + 1024}"]
        if not self.kbar and not self.dma_rs: F[BAR+5] += [f"global_load_lds_dwordx4 {r(vAG)}, {sp(sKX)} offset:1024 sc1", f"s_add_u32 s{sKX}, s{sKX}, 0x40000", f"s_addc_u32 s{sKX+1}, s{sKX+1}, 0"]
        self.weave(vs[:NV1], F)
        assert NV1 >= 12
        for x in ktr: A(x)
        sx = [f"{MF} {r(SX+4*X,4)}, {r((kx0 if X == 0 else kx1)[t],4)}, {r(Q+4*t,4)}, {'0' if t == 0 else r(SX+4*X,4)}" for t in range(4) for X in range(2)]
        A("s_waitcnt lgkmcnt(8)")
        for x in sx: A(x)
        mx, t1 = T0r, T1r
        ab = (lambda x: f"|{x}|") if self.standin else (lambda x: x)
        pre = [f"v_max3_f32 {r(mx)}, {ab(r(SX))}, {ab(r(SX+1))}, {ab(r(SX+2))}", f"v_max3_f32 {r(t1)}, {ab(r(SX+4))}, {ab(r(SX+5))}, {ab(r(SX+6))}",
               f"v_max3_f32 {r(mx)}, {r(mx)}, {ab(r(SX+3))}, {ab(r(SX+7))}", f"v_max_f32 {r(mx)}, {r(mx)}, {r(t1)}"]
        A("s_waitcnt lgkmcnt(0)")
        for t in range(4):
            A(f"{MF} {r(SM,4)}, {r(KF+4*t,4)}, {r(Q+4*t,4)}, {'0' if t == 0 else r(SM,4)}")
            if t >= 1: A(pre[t-1])
        A(pre[3])
        self.stamp(7)
        sets = [Q, Q+8, K, K+8, M+8, M+16, M+24, AQ, M]
        def ldset(idx, reg):
            dl, t = divmod(idx, 4); b = vWoA if t < 2 else vWoB; o = (dl*2 + (t & 1))*2048
            return [f"ds_read_b128 {r(reg,4)}, {r(b)} offset:{o}", f"ds_read_b128 {r(reg+4,4)}, {r(b)} offset:{o+1024}"]
        F = defaultdict(list)
        rd = ldset(0, sets[0]) + ldset(1, sets[1])
        n2 = 16 - NV1
        if self.vearly or self.dma_rs: F[0] += [rd[0]]
        else:
            F[0] += [f"s_mov_b32 m0, s{sM0V}", rd[0]]
            F[0] += [f"global_load_lds_dwordx4 {r(vAG)}, {sp(sVX)} sc1"]
        for i in range(1, 4): F[min(i, n2-1)].append(rd[i])
        self.weave(vs[NV1:], F)
        mx, t1 = T0r, T1r
        rd = ldset(2, sets[2]) + ldset(3, sets[3]) + ldset(4, sets[4]) + ldset(5, sets[5]) + ldset(6, sets[6])
        vc = [f"v_cvt_pk_bf16_f32 {r(AK+2*X+h)}, {r(AQ+4*X+2*h)}, {r(AQ+4*X+2*h+1)}" for X in range(2) for h in range(2)]
        vdma2 = [f"global_load_lds_dwordx4 {r(vAG)}, {sp(sVX)} offset:1024 sc1", f"s_add_u32 s{sVX}, s{sVX}, 0x40000", f"s_addc_u32 s{sVX+1}, s{sVX+1}, 0"]
        ri = 0
        if self.standin:
            ab = lambda x: f"|{x}|"
            A(f"v_max3_f32 {r(mx)}, {r(mx)}, {ab(r(SM))}, {ab(r(SM+1))}"); A(f"v_max3_f32 {r(mx)}, {r(mx)}, {ab(r(SM+2))}, {ab(r(SM+3))}")
            A(f"v_cmp_lt_f32 vcc, s{sTHR}, {r(mx)}")
            for b in (SX, SX+2, SX+4, SX+6, SM, SM+2): A(f"v_pk_mul_f32 {r(b,2)}, {r(b,2)}, {sp(sC)}")
            if not self.vearly and not self.dma_rs:
                for x in vdma2: A(x)
            A("s_cbranch_vccnz SMSLOW"); A.label("SMRET")
            for x in vc: A(x)
            if self.exports: A(f"global_store_dwordx4 {r(vAG)}, {r(AK,4)}, {sp(sEV)} sc1")
            if self.looptail: A(f"s_cmp_eq_u32 s{sS}, 63"); A("s_cbranch_scc1 L_fin")
        else:
            A(f"v_max3_f32 {r(mx)}, {r(mx)}, {r(SM)}, {r(SM+1)}"); A(f"v_max3_f32 {r(mx)}, {r(mx)}, {r(SM+2)}, {r(SM+3)}")
            A(f"v_mov_b32 {r(t1)}, {r(mx)}")
            if not self.vearly and not self.dma_rs:
                for x in vdma2: A(x)
            A(f"v_permlane16_swap_b32 {r(mx)}, {r(t1)}"); A(f"v_max_f32 {r(mx)}, {r(mx)}, {r(t1)}")
            A(f"v_mov_b32 {r(t1)}, {r(mx)}"); A(rd[0]); A(rd[1])
            A(f"v_permlane32_swap_b32 {r(mx)}, {r(t1)}"); A(rd[2]); A(f"v_max_f32 {r(mx)}, {r(mx)}, {r(t1)}")
            ri = 3
            for x in vc: A(x)
            if self.exports: A(f"global_store_dwordx4 {r(vAG)}, {r(AK,4)}, {sp(sEV)} sc1")
            if self.looptail: A(f"s_cmp_eq_u32 s{sS}, 63"); A("s_cbranch_scc1 L_fin")
            A(f"v_mul_f32 {r(mx)}, s{sC}, {r(mx)}")
            def pkf(b): return f"v_pk_fma_f32 {r(b,2)}, {r(b,2)}, {sp(sC)}, {r(mx,2)} op_sel_hi:[1,1,0] neg_lo:[0,0,1] neg_hi:[0,0,1]"
            for b in (SX, SX+2, SX+4, SX+6, SM, SM+2): A(pkf(b))
        for i in range(8):
            A(f"v_exp_f32 {r(SX+i)}, {r(SX+i)}")
            if ri < len(rd): A(rd[ri]); ri += 1
        if not self.pvearly:
            for i in range(4): A(f"v_exp_f32 {r(SM+i)}, {r(SM+i)}")
        for i in range(4): A(f"v_cvt_pk_bf16_f32 {r(SX+i)}, {r(SX+2*i)}, {r(SX+2*i+1)}")
        while ri < len(rd): A(rd[ri]); ri += 1
        if not self.pvearly:
            for i in range(2): A(f"v_cvt_pk_bf16_f32 {r(SM+i)}, {r(SM+2*i)}, {r(SM+2*i+1)}")
        self.stamp(8)
        A("s_waitcnt lgkmcnt(14)")
        A(f"{MF} {r(LX,4)}, {r(vONE,4)}, {r(SX,4)}, 0")
        if self.pvearly: A(f"v_exp_f32 {r(SM)}, {r(SM)}")
        A(f"{MF} {r(OX,4)}, {r(M,4)}, {r(SX,4)}, 0")
        if self.pvearly: A(f"v_exp_f32 {r(SM+1)}, {r(SM+1)}")
        A(f"{MF} {r(OX+4,4)}, {r(M+4,4)}, {r(SX,4)}, 0")
        if self.pvearly:
            A(f"v_exp_f32 {r(SM+2)}, {r(SM+2)}"); A(f"v_exp_f32 {r(SM+3)}, {r(SM+3)}")
            for i in range(2): A(f"v_cvt_pk_bf16_f32 {r(SM+i)}, {r(SM+2*i)}, {r(SM+2*i+1)}")
        A(f"{MF16} {r(LX,4)}, {r(vHALF,2)}, {r(SM,2)}, {r(LX,4)}")
        for X in range(2): A(f"{MF16} {r(OX+4*X,4)}, {r(AK+2*X,2)}, {r(SM,2)}, {r(OX+4*X,4)}")
        rd = ldset(7, sets[7]) + ldset(8, sets[8])
        for x in rd: A(x)
        A(f"v_rcp_f32 {r(mx)}, {r(LX)}")
        for X in range(2):
            o = OX + 4*X
            A(f"v_pk_mul_f32 {r(o,2)}, {r(o,2)}, {r(mx,2)} op_sel_hi:[1,0]"); A(f"v_pk_mul_f32 {r(o+2,2)}, {r(o+2,2)}, {r(mx,2)} op_sel_hi:[1,0]")
            A(f"v_cvt_pk_bf16_f32 {r(o)}, {r(o)}, {r(o+1)}"); A(f"v_cvt_pk_bf16_f32 {r(o+1)}, {r(o+2)}, {r(o+3)}")
            A(f"ds_write_b64 {r(vOW)}, {r(o,2)} offset:{X*32}")
        self.stamp(9)
        ACC = AK
        for i in range(0, 16, 2): A(f"v_mov_b64 {r(ACC+i,2)}, 0")
        A("s_waitcnt lgkmcnt(0)"); A("s_barrier")
        self.stamp(10)
        OF = SM
        for t in range(4): A(f"ds_read_b128 {r(OF+4*t,4)}, {r(vOR)} offset:{t*64}")
        reg_of = {i: sets[i] for i in range(9)}
        main = []; F = defaultdict(list)
        issued = []
        nxt = 9
        for idx in range(16):
            dl, t = divmod(idx, 4)
            main.append(None)
        lds_out = ['o0', 'o1', 'o2', 'o3']
        def wait_for(tag):
            if tag in lds_out:
                last = max(i for i, x in enumerate(lds_out) if x == tag)
                n = len(lds_out) - 1 - last
                A(f"s_waitcnt lgkmcnt({min(n,15)})")
                del lds_out[:last+1]
        pend = []
        for idx in range(16):
            dl, t = divmod(idx, 4)
            if dl == 0: wait_for(f'o{t}')
            if idx >= 9: wait_for(f's{idx}')
            A(f"{SMF} {r(ACC+4*dl,4)}, {r(OF+4*t,4)}, {r(reg_of[idx],8)}, {r(vIDX)}")
            if nxt < 16:
                reg_of[nxt] = reg_of[idx]
                for x in ldset(nxt, reg_of[nxt]): pend.append((x, f's{nxt}'))
                nxt += 1
            n = (1 if idx >= 3 else 2) if self.wo_spread else 99
            if self.wo_spread and idx >= 8: n = 2
            for _ in range(n):
                if pend:
                    x, tg = pend.pop(0); A(x); lds_out.append(tg)
            if self.rs_var == 'C':
                a = ACC
                if idx == 5: A(f"v_cvt_pk_bf16_f32 {r(a)}, {r(a)}, {r(a+1)}")
                if idx == 6: A(f"v_cvt_pk_bf16_f32 {r(a+1)}, {r(a+2)}, {r(a+3)}")
                if idx == 9: A(f"v_cvt_pk_bf16_f32 {r(a+2)}, {r(a+4)}, {r(a+5)}")
                if idx == 10:
                    A(f"v_cvt_pk_bf16_f32 {r(a+3)}, {r(a+6)}, {r(a+7)}")
                    if self.ptag: A(f"v_bfi_b32 {r(a)}, 1, s{sTAG}, {r(a)}")
                    A(f"global_store_dwordx4 {r(vPst)}, {r(a,4)}, {sp(sPst)}")
                a = ACC + 8
                if idx == 13: A(f"v_cvt_pk_bf16_f32 {r(a)}, {r(a)}, {r(a+1)}")
                if idx == 14: A(f"v_cvt_pk_bf16_f32 {r(a+1)}, {r(a+2)}, {r(a+3)}")
            elif t == 2 and dl >= 1:
                a = ACC + 4*(dl-1)
                A(f"v_cvt_pk_bf16_f32 {r(a)}, {r(a)}, {r(a+1)}"); A(f"v_cvt_pk_bf16_f32 {r(a+1)}, {r(a+2)}, {r(a+3)}")
                A(f"global_store_dwordx2 {r(vPst)}, {r(a,2)}, {sp(sPst+2*(dl-1))}")
        assert not pend
        if self.rs_var == 'C':
            a = ACC + 8
            A(f"v_cvt_pk_bf16_f32 {r(a+2)}, {r(a+4)}, {r(a+5)}"); A(f"v_cvt_pk_bf16_f32 {r(a+3)}, {r(a+6)}, {r(a+7)}")
            if self.ptag: A(f"v_bfi_b32 {r(a)}, 1, s{sTAG}, {r(a)}")
            A(f"global_store_dwordx4 {r(vPst)}, {r(a,4)}, s[24:25]")
        else:
            a = ACC + 12
            A(f"v_cvt_pk_bf16_f32 {r(a)}, {r(a)}, {r(a+1)}"); A(f"v_cvt_pk_bf16_f32 {r(a+1)}, {r(a+2)}, {r(a+3)}")
            A(f"global_store_dwordx2 {r(vPst)}, {r(a,2)}, {sp(sPst+6)}")
        self.stamp(11)
        if self.ackstamp:
            A("s_waitcnt vmcnt(0)"); self.stamp(4)
        sRD = sPst
        if self.early_shadow:
            sRD = sPrd2
            A(f"s_mov_b32 s{sPrd2}, s{sPst}"); A(f"s_mov_b32 s{sPrd2+1}, s{sPst+1}")
            A(f"s_mov_b32 s{sMc}, s{sMn}"); A(f"s_mov_b32 s{sMc+1}, s{sMn+1}")
            if self.hist: A(f"s_mov_b32 s{sHn2}, s{sHn}"); A(f"s_mov_b32 s{sHn2+1}, s{sHn+1}")
            if self.ptag: A(f"s_mov_b32 s{sTAG+1}, s{sTAG}")
            A(f"s_add_u32 s{sS}, s{sS}, 1")
            self.shadow_prep()
        def off(i): return i*1024-4096 if self.p_layout == 0 else i*256
        n = self.rs_sets
        regs = [Q, Q+8, K, K+8][:n]
        D = M
        def issue(b):
            if self.rs_var in 'AC':
                A(f"global_load_dwordx4 {r(b,4)}, {r(vRS)}, {sp(sRD)} sc1"); A(f"global_load_dwordx4 {r(b+4,4)}, {r(vRS)}, {sp(sRD)} offset:{2048 if self.cfull else 1024} sc1")
            else:
                for i in range(8): A(f"global_load_dword {r(b+i)}, {r(vRS)}, {sp(sRD)} offset:{off(i)} sc1")
        NLD = 2 if self.rs_var in 'AC' else 8
        self._rs_issue = issue
        if self.nocomm or self.no_rs:
            A(f"{MF} {r(D,4)}, {r(vSEL,4)}, {r(WV,4)}, 0"); A(f"{MF} {r(D,4)}, {r(vSEL,4)}, {r(WV+4,4)}, {r(D,4)}")
        elif self.mpoll:
            b = Q; dep = self.rs_depth
            A(f"s_mov_b32 s{sCNT}, 0")
            self.delay(self.rs_delay)
            for k in range(dep):
                issue(b)
                if k < dep-1:
                    self.delay(self.rs_gap)
            A.label("L_rs")
            A(f"s_waitcnt vmcnt({NLD*(dep-1)})")
            A(f"v_max3_u32 {r(T0r)}, {r(b)}, {r(b+1)}, {r(b+2)}"); A(f"v_max3_u32 {r(T1r)}, {r(b+3)}, {r(b+4)}, {r(b+5)}")
            A(f"v_max3_u32 {r(T0r)}, {r(T0r)}, {r(b+6)}, {r(b+7)}"); A(f"v_max_u32 {r(T0r)}, {r(T0r)}, {r(T1r)}")
            A(f"v_cmp_eq_u32 vcc, -1, {r(T0r)}")
            A("s_cbranch_vccz L_rsok0")
            A("s_mov_b64 exec, vcc")
            issue(b)
            A(f"s_add_u32 s{sNRS}, s{sNRS}, 1")
            A(f"s_add_u32 s{sCNT}, s{sCNT}, 1")
            A(f"s_cmp_lt_u32 s{sCNT}, 6000"); A("s_cbranch_scc1 L_rs")
            A(f"s_mov_b32 s{sFAIL}, 2")
            A.label("L_rsok0")
            A("s_mov_b64 exec, -1")
            A(f"{MF} {r(D,4)}, {r(vSEL,4)}, {r(b,4)}, 0"); A(f"{MF} {r(D,4)}, {r(vSEL,4)}, {r(b+4,4)}, {r(D,4)}")
        else:
            A(f"s_mov_b32 s{sCNT}, 0")
            self.delay(self.rs_delay)
            for k, b in enumerate(regs):
                issue(b)
                if k < n-1:
                    self.delay(self.rs_gap)
            if self.dma_rs:
                assert n == 1
                if self.kvwait:
                    for x in self.kv_fast(): A(x)
                if not self.nodma:
                    A(f"s_mov_b32 m0, s{sM0K}"); A(f"global_load_lds_dwordx4 {r(vAG)}, {sp(sKX)} sc1"); A(f"global_load_lds_dwordx4 {r(vAG)}, {sp(sKX)} offset:1024 sc1")
                    A(f"s_mov_b32 m0, s{sM0V}"); A(f"global_load_lds_dwordx4 {r(vAG)}, {sp(sVX)} sc1"); A(f"global_load_lds_dwordx4 {r(vAG)}, {sp(sVX)} offset:1024 sc1")
                A(f"s_add_u32 s{sKX}, s{sKX}, 0x40000"); A(f"s_addc_u32 s{sKX+1}, s{sKX+1}, 0"); A(f"s_add_u32 s{sVX}, s{sVX}, 0x40000"); A(f"s_addc_u32 s{sVX+1}, s{sVX+1}, 0")
                b = regs[0]
                A(f"s_waitcnt vmcnt({0 if self.nodma else 4})")
                self.rs_check(b, D, MF)
                issue(b)
            def rs_loop():
                A.label("L_rs")
                for k, b in enumerate(regs):
                    A(f"s_waitcnt vmcnt({NLD*(n-1)})")
                    self.rs_check(b, D, MF)
                    self._rs_issue(b)
                    A(f"s_add_u32 s{sNRS}, s{sNRS}, 1")
                A(f"s_add_u32 s{sCNT}, s{sCNT}, 1")
                A(f"s_cmp_lt_u32 s{sCNT}, 2000"); A("s_cbranch_scc1 L_rs")
                A(f"s_mov_b32 s{sFAIL}, 2")
            if self.ft and not self.dma_rs:
                for k, b in enumerate(regs):
                    A(f"s_waitcnt vmcnt({NLD*(n-1)})")
                    self.rs_check(b, D, MF, last=(k == n-1))
                    if k < n-1:
                        self._rs_issue(b); A(f"s_add_u32 s{sNRS}, s{sNRS}, 1")
                def ool():
                    A.label("L_rsretry")
                    self._rs_issue(regs[-1]); A(f"s_add_u32 s{sNRS}, s{sNRS}, 1")
                    rs_loop()
                    A("s_branch L_rsok")
                self.ool.append(ool)
            else:
                rs_loop()
        A.label("L_rsok")
        self.stamp(12)
        if not self.early_shadow:
            A(f"s_add_u32 s{sS}, s{sS}, 1")
            A(f"s_mov_b32 s{sMc}, s{sMn}"); A(f"s_mov_b32 s{sMc+1}, s{sMn+1}")
        D = M
        if self.rs_var == 'C':
            for j in range(4): A(f"v_add_f32_dpp {r(D+j)}, {r(D+j)}, {r(D+j)} row_ror:4 row_mask:0xf bank_mask:0xf")
            for j in range(4): A(f"v_add_f32_dpp {r(D+j)}, {r(D+j)}, {r(D+j)} row_ror:8 row_mask:0xf bank_mask:0xf")
            A(f"v_cndmask_b32 {r(D)}, {r(D)}, {r(D+1)}, {sp(sHB)}"); A(f"v_cndmask_b32 {r(D+2)}, {r(D+2)}, {r(D+3)}, {sp(sHB)}")
            A(f"v_cndmask_b32 {r(D)}, {r(D)}, {r(D+2)}, {sp(sHB2)}")
            A(f"v_mov_b32_dpp {r(D+1)}, {r(D)} quad_perm:[1,1,3,3] row_mask:0xf bank_mask:0xf")
            A(f"v_cvt_pk_bf16_f32 {r(D)}, {r(D)}, {r(D+1)}")
        elif self.rs_var == 'A':
            for j in range(4): A(f"v_add_f32_dpp {r(D+j)}, {r(D+j)}, {r(D+j)} row_ror:4 row_mask:0xf bank_mask:0xf")
            for j in range(4): A(f"v_add_f32_dpp {r(D+j)}, {r(D+j)}, {r(D+j)} row_ror:8 row_mask:0xf bank_mask:0xf")
            A(f"v_permlane16_swap_b32 {r(D)}, {r(D+1)}"); A(f"v_permlane16_swap_b32 {r(D+2)}, {r(D+3)}")
            A(f"v_cvt_pk_bf16_f32 {r(D)}, {r(D)}, {r(D+1)}"); A(f"v_cvt_pk_bf16_f32 {r(D+2)}, {r(D+2)}, {r(D+3)}")
            A(f"v_cndmask_b32 {r(D)}, {r(D)}, {r(D+2)}, {sp(sODD)}")
        else:
            A(f"v_mov_b32_dpp {r(D+2)}, {r(D)} quad_perm:[2,3,2,3] row_mask:0xf bank_mask:0xf")
            A(f"v_mov_b32_dpp {r(D+3)}, {r(D+1)} quad_perm:[2,3,2,3] row_mask:0xf bank_mask:0xf")
            A(f"v_cvt_pk_bf16_f32 {r(D)}, {r(D)}, {r(D+2)}"); A(f"v_cvt_pk_bf16_f32 {r(D+1)}, {r(D+1)}, {r(D+3)}")
            A(f"v_cndmask_b32 {r(D)}, {r(D)}, {r(D+1)}, {sp(sODD)}")
        A(f"s_mov_b64 exec, {sp(sMMSK)}")
        A(f"v_min_u32 {r(D)}, -2, {r(D)}")
        A(f"global_store_dword {r(vMst)}, {r(D)}, {sp(sMc)}")
        if self.hist: A(f"global_store_dword {r(vMst)}, {r(D)}, {sp(sHn2 if self.early_shadow else sHn)}")
        A("s_mov_b64 exec, -1")
        self.stamp(13)
        if self.steplog:
            A("s_memtime s[64:65]"); A("s_memrealtime s[66:67]"); A("s_waitcnt lgkmcnt(0)")
            A(f"s_lshl_b32 s34, s{sH}, 2"); A(f"s_add_u32 s34, s34, s{sW}"); A("s_lshl_b32 s34, s34, 6"); A(f"s_add_u32 s34, s34, s{sS}"); A("s_lshl_b32 s34, s34, 4")
            A(f"s_add_u32 s34, s34, {WS_STAMP + 0x10000}")
            A(f"v_mov_b32 {r(M+4)}, s34"); A(f"v_mov_b32 {r(M+8)}, s64"); A(f"v_mov_b32 {r(M+9)}, s{sNAG}"); A(f"v_mov_b32 {r(M+10)}, s{sNRS}"); A(f"v_mov_b32 {r(M+11)}, s66")
            A("s_mov_b64 exec, 1"); A(f"global_store_dwordx4 {r(M+4)}, {r(M+8,4)}, {sp(sWS)}"); A("s_mov_b64 exec, -1")


    def tail(self):
        A = self.A
        SMF = "v_smfmac_f32_16x16x64_bf16"
        self.ag_poll("T")
        for x in self.salu_step(): A(x)
        for t in range(8): A(f"ds_read_b128 {r(M+4*t,4)}, {r(vL16)} offset:{L_STG + t*1024}")
        for x in self.exp_flag(): A(x)
        A("s_waitcnt lgkmcnt(0)")
        for t in range(8):
            for X in range(2): A(f"{SMF} {r(AK+4*X,4)}, {r(M+4*t,4)}, {ar(128+(X*8+t)*8, 8)}, {r(vIDX)}")
        for t in range(8):
            for X in range(2): A(f"{SMF} {r(AQ+4*X,4)}, {r(M+4*t,4)}, {r(WV+(X*8+t)*8, 8)}, {r(vIDX)}")
        for j in range(4): A(f"v_permlane32_swap_b32 {r(AK+j)}, {r(AK+4+j)}")
        A(f"v_pk_add_f32 {r(AK,2)}, {r(AK,2)}, {r(AK+4,2)}"); A(f"v_pk_add_f32 {r(AK+2,2)}, {r(AK+2,2)}, {r(AK+6,2)}")
        A(f"v_cvt_pk_bf16_f32 {r(AK)}, {r(AK)}, {r(AK+1)}"); A(f"v_cvt_pk_bf16_f32 {r(AK+1)}, {r(AK+2)}, {r(AK+3)}")
        A(f"global_store_dwordx2 {r(vQW)}, {r(AK,2)}, {sp(sEK)} sc1")
        for X in range(2):
            A(f"v_cvt_pk_bf16_f32 {r(SX+2*X)}, {r(AQ+4*X)}, {r(AQ+4*X+1)}"); A(f"v_cvt_pk_bf16_f32 {r(SX+2*X+1)}, {r(AQ+4*X+2)}, {r(AQ+4*X+3)}")
        A(f"global_store_dwordx4 {r(vAG)}, {r(SX,4)}, {sp(sEV)} sc1")
        A("s_waitcnt vmcnt(0)"); A("s_barrier")
        A(f"s_add_u32 s{sEXC}, s{sEXC}, 128"); A(f"s_addc_u32 s{sEXC+1}, s{sEXC+1}, 0")
        for x in self.exp_flag(): A(x)
        A("s_waitcnt vmcnt(0)")

def gen_chain(A, U, o):
    kw = dict(o.get('chain_opts', {}))
    C = Chain(A, U, **kw)
    A(f"s_mov_b32 s{sH}, s{sROLE}")
    A(f"s_cmp_eq_u32 s{sXCC}, 0"); A("s_cselect_b32 s90, 0x10001, 1")
    C.setup_consts()
    C.preload_mem0()
    C.clear_slots()
    C.load_weights()
    tl_stamp(A, o.get('tl'), 0, 1, vr=(120, 121))
    U.add64(sKVC, sWS, cnt_off(C_KV, 0))
    A(f"s_cmp_eq_u32 s{sW}, 0"); A(f"s_cselect_b32 s{sXM}, 1, 0"); A(f"s_mov_b32 s{sXM+1}, 0")
    Lw = A.newlabel("SW"); Le = A.newlabel("SWE"); Ls = A.newlabel("SWS")
    A(f"s_cmp_lg_u32 s{sW}, 0"); A(f"s_cbranch_scc1 {Ls}")
    A("v_mov_b32 v24, 0"); A("s_mov_b32 s36, 0")
    A.label(Lw)
    A(f"global_load_dword v25, v24, {sp(sDBG)} offset:{D_ROLL*4} sc1"); A(f"global_load_dword v26, v24, {sp(sDBG)} offset:{D_INIT*4} sc1")
    A(f"global_load_dword v27, v24, {sp(sKVC)} sc1"); A(f"global_load_dword v28, v24, {sp(sDBG)} offset:{D_CLR*4} sc1"); A("s_waitcnt vmcnt(0)")
    A("v_readfirstlane_b32 s37, v25"); A("v_readfirstlane_b32 s38, v26"); A("v_readfirstlane_b32 s39, v27")
    A("s_lshr_b32 s35, s37, 16"); A("s_and_b32 s37, s37, 0xffff")
    A("s_cmp_ge_u32 s37, 32"); A("s_cselect_b32 s37, 1, 0"); A("s_cmp_ge_u32 s38, 1"); A("s_cselect_b32 s37, s37, 0")
    if C.kvwait: A("s_cmp_ge_u32 s39, 32"); A("s_cselect_b32 s37, s37, 0")
    if o.get('dpoll', True): A("v_readfirstlane_b32 s38, v28"); A("s_cmp_ge_u32 s38, 8"); A("s_cselect_b32 s37, s37, 0")
    A("s_cmp_lg_u32 s37, 0"); A(f"s_cbranch_scc1 {Le}")
    A("s_sleep 1"); A("s_add_u32 s36, s36, 1"); A("s_cmp_lt_u32 s36, 60000"); A(f"s_cbranch_scc1 {Lw}")
    A.label(Le)
    A(f"v_mov_b32 v24, {L_KB}"); A("v_mov_b32 v25, s35"); A("ds_write_b32 v24, v25"); A("s_waitcnt lgkmcnt(0)")
    A.label(Ls)
    A("s_barrier")
    A(f"v_mov_b32 v24, {L_KB}"); A("ds_read_b32 v25, v24"); A("s_waitcnt lgkmcnt(0)"); A("v_readfirstlane_b32 s90, v25")
    A("s_barrier")
    A(f"s_mov_b32 s{sKVOK}, 0")
    tl_stamp(A, o.get('tl'), 0, 2, vr=(120, 121))
    C.dma_k(); C.dma_v()
    A(f"s_mov_b32 s{sFAIL}, 0"); A(f"s_mov_b32 s{sS}, 0"); A(f"s_mov_b32 s{sNAG}, 0"); A(f"s_mov_b32 s{sNRS}, 0")
    A(f"s_mov_b32 s{sMc}, s{sMb}"); A(f"s_mov_b32 s{sMc+1}, s{sMb+1}")
    U.add64(sEV, sWS, 0x380000)
    A(f"s_lshl_b32 s34, s{sW}, 11"); A(f"s_add_u32 s{sM0K}, s34, {L_KX}"); A(f"s_add_u32 s{sM0V}, s34, {L_VX}")
    U.add64(sMz, sMb, 2*8192)
    C.shadow_prep()
    A("s_cmp_lg_u32 s90, 32"); A("s_cbranch_scc1 L_safe_S" if not o.get('force_safe') else "s_branch L_safe_S")
    n_main = len(A.L)
    C.publish_mem0()
    tl_stamp(A, o.get('tl'), 0, 3, vr=(120, 121))
    A.label("L_loop")
    C.ag_poll("L")
    n0 = len(A.L)
    C.step()
    if C.nodma: A.L[n0:] = [x for x in A.L[n0:] if not x.startswith("global_load_lds")]
    A.L[n0:] = [x.replace(" sc1", " " + C.dmaflag) if x.startswith("global_load_lds") else x for x in A.L[n0:]]
    if C.looptail:
        A("s_branch L_loop")
        A.label("L_fin")
        tl_stamp(A, o.get('tl'), 0, 4, vr=(120, 121))
        A("s_waitcnt vmcnt(0) lgkmcnt(0)"); A("s_barrier")
        A(f"s_add_u32 s{sEXC}, s{sEXC}, 128"); A(f"s_addc_u32 s{sEXC+1}, s{sEXC+1}, 0")
        for x in C.exp_flag(): A(x)
        A("s_waitcnt vmcnt(0)")
    else:
        A(f"s_cmp_lt_u32 s{sS}, 63"); A("s_cbranch_scc1 L_loop")
        tl_stamp(A, o.get('tl'), 0, 4, vr=(120, 121))
        C.tail()
    tl_stamp(A, o.get('tl'), 0, 5, vr=(120, 121))
    A("s_branch L_chain_done")
    if C.kvwait: C.kv_slow_code()
    if C.standin: C.sm_slow_code()
    for f in C.ool: f()
    import re
    main = A.L[n_main:]
    labels = [x[:-1] for x in main if re.fullmatch(r"\w+:", x)]
    A.label("L_safe_S")
    for x in main:
        for lb in labels: x = re.sub(r"\b" + lb + r"\b", lb + "_S", x)
        if x.startswith("global_store") and " sc1" not in x: x += " sc1"
        A(x)
    A.label("L_chain_done")
    if C.stamps:
        A(f"s_lshl_b32 s34, s{sH}, 2"); A(f"s_add_u32 s34, s34, s{sW}"); A("s_lshl_b32 s34, s34, 6"); A(f"s_add_u32 s34, s34, {WS_STAMP}")
        A(f"s_add_u32 s36, s{sWS}, s34"); A(f"s_addc_u32 s37, s{sWS+1}, 0")
        A("s_mov_b64 exec, 1"); A("v_mov_b32 v24, 0")
        for q in range(4):
            for i in range(4): A(f"v_mov_b32 v{32+4*q+i}, s{sST+2*(4*q+i)}" if 4*q+i < 14 else f"v_mov_b32 v{32+4*q+i}, s{sNAG + (4*q+i-14)}")
            A(f"global_store_dwordx4 v24, v[{32+4*q}:{35+4*q}], s[36:37] offset:{16*q}")
        A("s_waitcnt vmcnt(0)"); A("s_mov_b64 exec, -1")
```

```python
import sys, json
import kern
opts = json.loads(sys.argv[1]) if len(sys.argv) > 1 else {}
outp = sys.argv[2] if len(sys.argv) > 2 else "adaLN_cond__memory_aug_recurrent_mem_tr__dense_activation_gelu__prompt.s"
ref = open("adaLN_cond__memory_aug_recurrent_mem_tr__dense_activation_gelu__prompt.s.ref").read().split("\n")
hdr = []
for l in ref:
    if l.startswith(";") and "@launch" not in l: hdr.append(l)
    elif "@launch" in l: break
t = kern.text(opts)
doc = """; ---------------------------------------------------------------------------------------------------------
; ---------------------------------------------------------------------------------------------------------
"""
open(outp, "w").write("\n".join(hdr) + "\n" + doc + t)
print("wrote", outp, len(t))
```

```python
from common import *
import struct
L_STG = 0; L_QB = 8192; L_OB = 161280; L_KX = 10752; L_VX = 18944; L_KB = 27136; L_WO = 30208
OSTR = 288
import os
if os.environ.get('OB_ALIAS'): L_OB = 8192
L_PF = 161280

vWoB = 1
vIDX, vL16, vAG, vWoA, vQW, vQR, vOW, vPst, vRS, vMst, vOR = range(2, 13)
vSEL = 16
vONE = 20
vHALF = 14
T0r, T1r = 0, 13
M = 24; Q = 56; K = 72; AQ = 88; AK = 96; SX = 104; SM = 112; OX = 116; LX = 124
WV = 128

SC_C = 0.08838834764831845 * 1.4426950408889634

sS = 12
sC = 14
sPst = 16
sPrd = 24
sMb = 26; sMc = 28; sKX = 30; sVX = 32
sMMSK = 40
sODD = 42
sFAIL = 44; sCNT = 45; sLO = 46
sHIST = 48
sPz = 50
sMz = 52
sMn = 54
sHn = 56
sM0K = 58
sM0V = 59
sNAG = 60
sNRS = 61
sST = 64
sTHR = 8
sEXC = 62
sEK = 92
sEV = 94
sKVC = 98
sEVp = 100
sXM = 46
sKVOK = 13
sHB2 = 20
sTAG = 50
sPrd2 = 22
sHn2 = 84
sHB = 18
sPF = 24

class Chain:
    def __init__(self, A, U, stamps=False, hist=False, nsteps=63, nv1=12, rs_wait=None, ag_delay=2, p_layout=1, rs_delay=2, masked=False, wo_spread=True, nohist=False, dump=None, rs_sets=2, rs_gap=2, ag_sets=2, ag_gap=2, late_reset=True, ag_reset=True, kvwait=True, pipe_t0=True, nocomm=False, stash_v=False, l2pf=False, noexp=False, nodma=False, mpoll=False, ag_depth=2, rs_depth=2, ackstamp=False, steplog=False, rs_var='C', opt2=True, bar=5, early_shadow=True, ptag=True, cfull=False, no_rs=False, no_ag=False, dmaflag='sc1', kbar=True, vearly=False, vexp_early=True, dmalat=False, standin=True, pvearly=True, force_slow=False, looptail=True, dma_rs=False, ft=True):
        self.ft = ft; self.ool = []
        self.dma_rs = dma_rs
        if dma_rs: kbar = False; self.kbar = False
        self.looptail = looptail
        self.standin = standin; self.pvearly = pvearly; self.force_slow = force_slow
        self.dmalat = dmalat
        self.vexp_early = vexp_early
        self.vearly = vearly
        self.dmaflag = dmaflag; self.kbar = kbar and not dma_rs
        self.no_rs = no_rs; self.no_ag = no_ag
        self.cfull = cfull
        self.ptag = ptag
        self.early_shadow = early_shadow
        self.bar = bar
        self.opt2 = opt2
        self.rs_var = rs_var
        self.steplog = steplog
        self.ackstamp = ackstamp
        self.mpoll = mpoll; self.ag_depth = ag_depth; self.rs_depth = rs_depth
        self.nodma = nodma; self.noexp = noexp
        self.stash_v = stash_v; self.l2pf = l2pf
        self.pipe_t0 = pipe_t0; self.nocomm = nocomm
        self.U = U; self.kv_ret = []; self.exports = not noexp; self.ag_reset = ag_reset; self.kvwait = kvwait
        self.rs_sets = rs_sets; self.rs_gap = rs_gap; self.ag_sets = ag_sets; self.ag_gap = ag_gap; self.late_reset = late_reset
        hist = hist and not nohist
        self.p_layout = p_layout; self.rs_delay = rs_delay; self.masked = masked; self.wo_spread = wo_spread
        self.nv1 = nv1; self.rs_wait = rs_wait; self.ag_delay = ag_delay
        self.A = A; self.stamps = stamps; self.hist = hist; self.nsteps = nsteps

    def delay(self, x):
        n = int(round(x*16))
        while n > 0:
            k = min(n, 16); self.A(f"s_nop {k-1}"); n -= k

    def stamp(self, i):
        if not self.stamps: return
        A = self.A
        A(f"s_memtime s[{sST+2*i}:{sST+2*i+1}]")

    def setup_consts(self):
        A = self.A; l = "v0"
        A(f"v_lshlrev_b32 {r(vL16)}, 4, {l}")
        A(f"s_lshl_b32 s34, s{sW}, 11"); A(f"v_add_u32 {r(vAG)}, s34, {r(vL16)}")
        A(f"s_lshl_b32 s34, s{sW}, 14"); A(f"s_add_u32 s34, s34, {L_WO}"); A(f"v_add_u32 {r(vWoA)}, s34, {r(vL16)}")
        A(f"v_add_u32 {r(vWoB)}, 0x10000, {r(vWoA)}")
        A(f"v_and_b32 v24, 15, {l}")
        A(f"v_lshrrev_b32 v25, 4, {l}")
        A(f"v_mov_b32 {r(vIDX)}, 0x4444"); A("v_mov_b32 v26, 0xeeee")
        A("v_cmp_le_u32 vcc, 8, v24")
        A(f"v_cndmask_b32 {r(vIDX)}, {r(vIDX)}, v26, vcc")
        A(f"v_lshrrev_b32 v26, 1, v25"); A("v_lshlrev_b32 v26, 8, v26")
        A("v_lshlrev_b32 v27, 4, v24"); A("v_add_u32 v26, v26, v27")
        A("v_and_b32 v27, 1, v25"); A("v_lshlrev_b32 v27, 3, v27"); A("v_add_u32 v26, v26, v27")
        A(f"s_lshl_b32 s34, s{sW}, 9"); A(f"v_add_u32 {r(vQW)}, s34, v26")
        A(f"v_lshrrev_b32 v26, 2, {l}"); A("v_lshlrev_b32 v26, 4, v26")
        A(f"v_and_b32 v27, 1, {l}"); A("v_lshlrev_b32 v27, 3, v27"); A(f"v_add_u32 {r(vQR)}, v26, v27")
        A("v_and_b32 v26, 7, v24"); A(f"v_mul_u32_u24 v26, {OSTR}, v26"); A(f"v_add_u32 {r(vOR)}, {L_OB}, v26")
        A("v_lshlrev_b32 v27, 3, v25"); A(f"v_add_u32 {r(vOW)}, {r(vOR)}, v27")
        A(f"s_lshl_b32 s34, s{sW}, 6"); A(f"v_add_u32 {r(vOW)}, s34, {r(vOW)}")
        A("v_lshlrev_b32 v27, 4, v25"); A(f"v_add_u32 {r(vOR)}, {r(vOR)}, v27")
        if self.rs_var == 'C':
            pass
        elif self.p_layout == 0:
            A(f"v_lshrrev_b32 v26, 5, {l}"); A("v_lshlrev_b32 v26, 13, v26")
            A("v_and_b32 v27, 1, v25"); A("v_lshlrev_b32 v27, 7, v27"); A("v_add_u32 v26, v26, v27")
            A("v_lshlrev_b32 v27, 3, v24"); A("v_add_u32 v26, v26, v27")
            A(f"s_lshl_b32 s34, s{sW}, 16"); A(f"s_lshl_b32 s35, s{sH}, 8"); A("s_add_u32 s34, s34, s35")
            A(f"v_add_u32 {r(vPst)}, s34, v26")
            A("v_lshlrev_b32 v26, 8, v25"); A("v_lshlrev_b32 v27, 2, v24"); A("v_add_u32 v26, v26, v27")
            A(f"s_lshl_b32 s34, s{sH}, 13"); A(f"s_lshl_b32 s35, s{sW}, 6"); A("s_add_u32 s34, s34, s35"); A("s_add_u32 s34, s34, 4096")
            A(f"v_add_u32 {r(vRS)}, s34, v26")
        else:
            A(f"v_lshrrev_b32 v26, 5, {l}"); A("v_lshlrev_b32 v26, 13, v26")
            A("v_and_b32 v27, 1, v25"); A("v_lshlrev_b32 v27, 12, v27"); A("v_add_u32 v26, v26, v27")
            A("v_lshrrev_b32 v27, 3, v24"); A("v_lshlrev_b32 v27, 11, v27"); A("v_add_u32 v26, v26, v27")
            A("v_and_b32 v27, 7, v24"); A("v_lshlrev_b32 v27, 3, v27"); A("v_add_u32 v26, v26, v27")
            A(f"s_lshl_b32 s34, s{sW}, 16"); A(f"s_lshl_b32 s35, s{sH}, 6"); A("s_add_u32 s34, s34, s35")
            A(f"v_add_u32 {r(vPst)}, s34, v26")
            A("v_lshlrev_b32 v26, 6, v25"); A("v_lshlrev_b32 v27, 2, v24"); A("v_add_u32 v26, v26, v27")
            A(f"s_lshl_b32 s34, s{sH}, 13"); A(f"s_lshl_b32 s35, s{sW}, 11"); A("s_add_u32 s34, s34, s35")
            A(f"v_add_u32 {r(vRS)}, s34, v26")
        if self.rs_var == 'C':
            if not self.cfull:
                A(f"v_lshrrev_b32 v26, 5, {l}"); A("v_lshlrev_b32 v26, 3, v26")
                A("v_and_b32 v27, 1, v25"); A("v_lshlrev_b32 v27, 2, v27"); A("v_add_u32 v26, v26, v27")
                A("v_lshrrev_b32 v27, 2, v24"); A("v_add_u32 v26, v26, v27"); A("v_lshlrev_b32 v26, 11, v26")
                A("v_and_b32 v27, 3, v24"); A("v_lshlrev_b32 v27, 4, v27"); A("v_add_u32 v26, v26, v27")
                A(f"s_lshl_b32 s34, s{sW}, 16"); A(f"s_lshl_b32 s35, s{sH}, 6"); A("s_add_u32 s34, s34, s35")
                A(f"v_add_u32 {r(vPst)}, s34, v26")
                A(f"s_lshl_b32 s34, s{sH}, 13"); A(f"v_add_u32 {r(vRS)}, s34, {r(vAG)}")
            else:
                A(f"v_lshrrev_b32 v26, 5, {l}"); A("v_lshlrev_b32 v26, 2, v26")
                A("v_and_b32 v27, 1, v25"); A("v_lshlrev_b32 v27, 1, v27"); A("v_add_u32 v26, v26, v27")
                A("v_lshrrev_b32 v27, 3, v24"); A("v_add_u32 v26, v26, v27"); A("v_lshlrev_b32 v26, 12, v26")
                A("v_and_b32 v27, 7, v24"); A("v_lshlrev_b32 v27, 4, v27"); A("v_add_u32 v26, v26, v27")
                A(f"s_lshl_b32 s34, s{sW}, 16"); A(f"s_lshl_b32 s35, s{sH}, 7"); A("s_add_u32 s34, s34, s35")
                A(f"v_add_u32 {r(vPst)}, s34, v26")
                A(f"v_lshrrev_b32 v26, 2, {l}"); A("v_lshlrev_b32 v26, 7, v26"); A(f"v_and_b32 v27, 3, {l}"); A("v_lshlrev_b32 v27, 4, v27"); A("v_add_u32 v26, v26, v27")
                A(f"s_lshl_b32 s34, s{sH}, 13"); A(f"s_lshr_b32 s35, s{sW}, 1"); A("s_lshl_b32 s35, s35, 12"); A("s_add_u32 s34, s34, s35")
                A(f"s_and_b32 s35, s{sW}, 1"); A("s_lshl_b32 s35, s35, 6"); A("s_add_u32 s34, s34, s35")
                A(f"v_add_u32 {r(vRS)}, s34, v26")
            A(f"s_lshr_b32 s34, s{sH}, 3"); A("s_lshl_b32 s34, s34, 3")
            A(f"s_bfe_u32 s35, s{sH}, 0x10002"); A("s_lshl_b32 s35, s35, 2"); A("s_add_u32 s34, s34, s35")
            A(f"s_bfe_u32 s35, s{sH}, 0x10001"); A("s_add_u32 s34, s34, s35")
            A("v_and_b32 v26, 1, v25"); A("v_lshlrev_b32 v26, 1, v26"); A("v_add_u32 v26, s34, v26")
            A(f"v_bfe_u32 v27, {l}, 2, 2"); A(f"s_and_b32 s34, s{sH}, 1"); A("s_lshl_b32 s34, s34, 2"); A("v_add_u32 v27, s34, v27")
            A(f"v_bfe_u32 v28, {l}, 1, 1"); A(f"s_lshl_b32 s34, s{sW}, 1"); A("v_add_u32 v28, s34, v28")
            A("v_and_b32 v29, 1, v28"); A("v_lshlrev_b32 v29, 3, v29"); A("v_add_u32 v29, v29, v27"); A("v_lshlrev_b32 v29, 4, v29")
            A("v_lshrrev_b32 v30, 1, v28"); A("v_lshlrev_b32 v30, 2, v30"); A("v_add_u32 v29, v29, v30")
            A("v_lshlrev_b32 v30, 8, v26"); A(f"v_add_u32 {r(vMst)}, v29, v30")
            A("v_lshlrev_b32 v27, 10, v27"); A("v_lshlrev_b32 v26, 5, v26"); A("v_lshlrev_b32 v28, 2, v28"); A("v_add_u32 v27, v27, v26"); A("v_add_u32 v127, v27, v28")
            A("v_and_b32 v26, 7, v24"); A("v_lshrrev_b32 v27, 1, v26"); A("v_and_b32 v28, 1, v26")
            A("v_mov_b32 v29, 0x3f80"); A("v_mov_b32 v30, 0x3f800000")
            A("v_cmp_eq_u32 vcc, 1, v28"); A("v_cndmask_b32 v29, v29, v30, vcc")
            for rho in range(4):
                A(f"v_cmp_eq_u32 vcc, {rho}, v27"); A(f"v_cndmask_b32 {r(vSEL+rho)}, 0, v29, vcc")
        elif self.rs_var == 'A':
            A(f"v_and_b32 v26, 3, {l}"); A(f"s_and_b32 s34, s{sW}, 1"); A("s_lshl_b32 s34, s34, 2"); A("v_add_u32 v26, s34, v26")
            A(f"s_lshr_b32 s34, s{sW}, 1"); A("s_lshl_b32 s34, s34, 2"); A("v_add_u32 v27, s34, v25")
            A("v_and_b32 v28, 1, v26"); A("v_lshlrev_b32 v28, 3, v28"); A("v_add_u32 v28, v28, v27"); A("v_lshlrev_b32 v28, 4, v28")
            A("v_lshrrev_b32 v29, 1, v26"); A("v_lshlrev_b32 v29, 2, v29"); A("v_add_u32 v28, v28, v29")
            A(f"s_lshl_b32 s34, s{sH}, 8"); A(f"v_add_u32 {r(vMst)}, s34, v28")
            A("v_lshlrev_b32 v27, 10, v27"); A("v_lshlrev_b32 v26, 2, v26"); A("v_add_u32 v27, v27, v26")
            A(f"s_lshl_b32 s34, s{sH}, 5"); A("v_add_u32 v127, s34, v27")
            A("v_and_b32 v26, 7, v24"); A("v_lshrrev_b32 v27, 1, v26"); A("v_and_b32 v28, 1, v26")
            A("v_mov_b32 v29, 0x3f80"); A("v_mov_b32 v30, 0x3f800000")
            A("v_cmp_eq_u32 vcc, 1, v28"); A("v_cndmask_b32 v29, v29, v30, vcc")
            for rho in range(4):
                A(f"v_cmp_eq_u32 vcc, {rho}, v27"); A(f"v_cndmask_b32 {r(vSEL+rho)}, 0, v29, vcc")
            A(f"s_lshl_b32 s34, s{sH}, 13"); A(f"v_add_u32 {r(vRS)}, s34, {r(vAG)}")
        else:
            A("v_lshrrev_b32 v26, 2, v24"); A(f"s_and_b32 s34, s{sW}, 1"); A("s_lshl_b32 s34, s34, 2"); A("v_add_u32 v26, s34, v26")
            A("v_and_b32 v27, 1, v24"); A("v_lshlrev_b32 v27, 1, v27"); A("v_and_b32 v28, 1, v25"); A("v_add_u32 v27, v27, v28")
            A(f"s_lshr_b32 s34, s{sW}, 1"); A("s_lshl_b32 s34, s34, 2"); A("v_add_u32 v27, s34, v27")
            A("v_and_b32 v28, 1, v26"); A("v_lshlrev_b32 v28, 3, v28"); A("v_add_u32 v28, v28, v27"); A("v_lshlrev_b32 v28, 4, v28")
            A("v_lshrrev_b32 v29, 1, v26"); A("v_lshlrev_b32 v29, 2, v29"); A("v_add_u32 v28, v28, v29")
            A(f"s_lshl_b32 s34, s{sH}, 8"); A(f"v_add_u32 {r(vMst)}, s34, v28")
            A("v_lshlrev_b32 v27, 10, v27"); A("v_lshlrev_b32 v26, 2, v26"); A("v_add_u32 v27, v27, v26")
            A(f"s_lshl_b32 s34, s{sH}, 5"); A("v_add_u32 v127, s34, v27")
            A("v_and_b32 v26, 1, v24"); A("v_mov_b32 v27, 0x3f80"); A("v_mov_b32 v28, 0x3f800000")
            A("v_cmp_eq_u32 vcc, 1, v26"); A(f"v_cndmask_b32 {r(vSEL)}, v27, v28, vcc")
            for i in range(1, 4): A(f"v_mov_b32 {r(vSEL+i)}, {r(vSEL)}")
        for i in range(4): A(f"v_mov_b32 {r(vONE+i)}, 0x3f803f80")
        A("v_cmp_gt_u32 vcc, 2, v25"); A(f"v_cndmask_b32 {r(vHALF)}, 0, {r(vONE)}, vcc"); A(f"v_mov_b32 {r(vHALF+1)}, {r(vHALF)}")
        if self.rs_var == 'C':
            A(f"s_mov_b32 s{sMMSK}, 0x55555555"); A(f"s_mov_b32 s{sMMSK+1}, 0")
            A(f"s_mov_b32 s{sHB}, 0xf0f0f0f0"); A(f"s_mov_b32 s{sHB+1}, 0xf0f0f0f0")
            A(f"s_mov_b32 s{sHB2}, 0xff00ff00"); A(f"s_mov_b32 s{sHB2+1}, 0xff00ff00")
        elif self.rs_var == 'A':
            A(f"s_mov_b32 s{sMMSK}, 0x000f000f"); A(f"s_mov_b32 s{sMMSK+1}, 0x000f000f")
            A(f"s_mov_b32 s{sODD}, 0"); A(f"s_mov_b32 s{sODD+1}, -1")
        else:
            A(f"s_mov_b32 s{sMMSK}, 0x33333333"); A(f"s_mov_b32 s{sMMSK+1}, 0")
            A(f"s_mov_b32 s{sODD}, 0xffff0000"); A(f"s_mov_b32 s{sODD+1}, 0xffff0000")
        A(f"s_mov_b32 s{sC}, {fbits(SC_C):#x}"); A(f"s_mov_b32 s{sC+1}, {fbits(SC_C):#x}")
        A(f"s_mov_b32 s{sTHR}, {fbits(-1.0 if self.force_slow else 40.0/SC_C):#x}")
        A(f"s_add_u32 s{sMb}, s{sWS}, {WS_MBUF}"); A(f"s_addc_u32 s{sMb+1}, s{sWS+1}, 0")
        A(f"s_add_u32 s{sHIST}, s{sWS}, {WS_MHIST}"); A(f"s_addc_u32 s{sHIST+1}, s{sWS+1}, 0")
        A(f"s_lshl_b32 s34, s{sH}, 13")
        A(f"s_add_u32 s{sKX}, s{sWS}, s34"); A(f"s_addc_u32 s{sKX+1}, s{sWS+1}, 0")
        A(f"s_add_u32 s{sVX}, s{sKX}, {WS_VX}"); A(f"s_addc_u32 s{sVX+1}, s{sKX+1}, 0")
        A(f"s_add_u32 s{sKX}, s{sKX}, {WS_KX}"); A(f"s_addc_u32 s{sKX+1}, s{sKX+1}, 0")

    def clear_slots(self):
        A = self.A
        for i in range(4): A(f"v_mov_b32 v{28+i}, -1")
        for par in range(2):
            A(f"s_lshl_b32 s34, s{sH}, 13"); A(f"s_add_u32 s34, s34, {WS_PBUF + par*0x40000}")
            A(f"s_add_u32 s36, s{sWS}, s34"); A(f"s_addc_u32 s37, s{sWS+1}, 0")
            A(f"global_store_dwordx4 {r(vAG)}, v[28:31], s[36:37] sc1"); A(f"global_store_dwordx4 {r(vAG)}, v[28:31], s[36:37] offset:1024 sc1")
        A(f"s_mov_b64 exec, {sp(sMMSK)}")
        for i in range(4):
            A(f"s_add_u32 s36, s{sMb}, {i*8192}"); A(f"s_addc_u32 s37, s{sMb+1}, 0")
            A(f"global_store_dword {r(vMst)}, v28, s[36:37] sc1")
        A("s_mov_b64 exec, -1")

    def load_weights(self):
        A = self.A; l = "v0"
        A("s_load_dwordx4 s[56:59], s[0:1], 16"); A("s_load_dwordx4 s[60:63], s[0:1], 32")
        A(f"v_lshrrev_b32 v24, 4, {l}")
        A(f"v_and_b32 v25, 15, {l}"); A("v_lshlrev_b32 v26, 1, v24"); A("v_xor_b32 v25, v25, v26"); A("v_lshlrev_b32 v25, 4, v25")
        A("v_lshlrev_b32 v24, 13, v24"); A("v_add_u32 v24, v24, v25")
        A(f"s_lshl_b32 s34, s{sW}, 17"); A(f"s_lshl_b32 s35, s{sH}, 8"); A("s_add_u32 s34, s34, s35")
        A("v_add_u32 v24, s34, v24"); A("v_xor_b32 v25, 128, v24")
        A(f"v_lshrrev_b32 v26, 4, {l}"); A(f"v_bfe_u32 v27, {l}, 2, 2"); A(f"v_and_b32 v28, 3, {l}")
        A("v_lshlrev_b32 v29, 3, v26"); A("v_add_u32 v29, v29, v27"); A("v_lshlrev_b32 v29, 8, v29")
        A("v_lshrrev_b32 v30, 1, v28")
        A("v_lshlrev_b32 v31, 1, v27"); A("v_and_b32 v32, 1, v26"); A("v_lshlrev_b32 v32, 3, v32"); A("v_add_u32 v31, v31, v32")
        A(f"s_lshl_b32 s34, s{sW}, 2"); A("v_add_u32 v30, s34, v30"); A("v_xor_b32 v30, v30, v31")
        A("v_lshlrev_b32 v30, 4, v30"); A("v_add_u32 v29, v29, v30")
        A("v_and_b32 v32, 1, v28"); A("v_lshlrev_b32 v32, 3, v32"); A("v_add_u32 v29, v29, v32")
        A(f"v_add_u32 v38, {L_WO}, v29"); A("v_xor_b32 v39, 32, v29"); A(f"v_add_u32 v39, {L_WO}, v39")
        A("v_add_u32 v36, 0x10000, v38"); A("v_add_u32 v37, 0x10000, v39")
        A("v_lshrrev_b32 v33, 1, v26"); A("v_lshlrev_b32 v33, 3, v33"); A("v_and_b32 v34, 1, v26"); A("v_lshlrev_b32 v34, 2, v34"); A("v_add_u32 v33, v33, v34")
        A("v_and_b32 v34, 1, v27"); A("v_add_u32 v33, v33, v34"); A("v_lshlrev_b32 v33, 10, v33"); A("v_add_u32 v33, v33, v32")
        A(f"s_lshl_b32 s34, s{sW}, 8"); A(f"s_add_u32 s34, s34, {L_WO}"); A("v_add_u32 v33, s34, v33")
        A("v_lshrrev_b32 v34, 1, v27"); A("v_lshlrev_b32 v34, 1, v34"); A("v_lshrrev_b32 v35, 1, v28"); A("v_add_u32 v34, v34, v35")
        A("v_and_b32 v35, 1, v27"); A("v_lshlrev_b32 v35, 1, v35"); A("v_lshrrev_b32 v40, 1, v26"); A("v_and_b32 v40, 1, v40"); A("v_lshlrev_b32 v40, 3, v40")
        A("v_add_u32 v35, v35, v40"); A("v_xor_b32 v34, v34, v35")
        A("s_waitcnt lgkmcnt(0)")
        def dma_qkv(c):
            mat, t = divmod(c, 8); slot = c % 8; base = 56 + 2*mat
            for i in range(4):
                off = (64*t + 4*i) * 8192
                A(f"s_add_u32 s36, s{base}, {off}"); A(f"s_addc_u32 s37, s{base+1}, 0")
                A(f"s_lshl_b32 s34, s{sW}, 12"); A(f"s_add_u32 m0, s34, {L_WO + slot*16384 + i*1024}")
                A(f"global_load_lds_dwordx4 v{24 + (i >> 1)}, s[36:37]")
        def dma_wo(slot):
            for i in range(4):
                A(f"s_lshr_b32 s34, s{sW}, 1"); A("s_lshl_b32 s34, s34, 3"); A(f"s_add_u32 s34, s34, {2*i}")
                A(f"v_xor_b32 v35, s34, {l}"); A("v_lshlrev_b32 v35, 4, v35")
                A(f"s_lshl_b32 s34, s{sH}, 17"); A(f"s_lshl_b32 s35, s{sW}, 12"); A("s_add_u32 s34, s34, s35")
                A(f"s_add_u32 s34, s34, {(16*slot + i)*1024}")
                A("s_add_u32 s36, s62, s34"); A("s_addc_u32 s37, s63, 0")
                A(f"s_lshl_b32 s34, s{sW}, 12"); A(f"s_add_u32 m0, s34, {L_WO + slot*16384 + i*1024}")
                A("global_load_lds_dwordx4 v35, s[36:37]")
        for c in range(8): dma_qkv(c)
        for c in range(24):
            mat, t = divmod(c, 8); slot = c % 8
            A("s_waitcnt vmcnt(28)"); A("s_barrier")
            if c == 0:
                L2 = A.newlabel("RC")
                A(f"s_cmp_lg_u32 s{sW}, 0"); A(f"s_cbranch_scc1 {L2}")
                A("v_mov_b32 v41, 0"); A("v_mov_b32 v42, s90"); A("s_mov_b64 exec, 1")
                A(f"global_atomic_add v41, v42, {sp(sDBG)} offset:{D_ROLL*4}")
                A("s_mov_b64 exec, -1")
                A.label(L2)
            for X in range(2):
                for q4 in range(4):
                    roff = [0, 4, 32, 36][q4] * 256
                    ridx = (X*8 + t)*8 + 2*q4
                    d = ar(ridx, 2) if mat == 0 else (ar(128 + ridx, 2) if mat == 1 else r(WV + ridx, 2))
                    so = slot*16384 + roff
                    if so < 65536: A(f"ds_read_b64_tr_b16 {d}, v{38+X} offset:{so}")
                    else: A(f"ds_read_b64_tr_b16 {d}, v{36+X} offset:{so-65536}")
            A("s_waitcnt lgkmcnt(0)"); A("s_barrier")
            if c + 8 < 24: dma_qkv(c + 8)
            else: dma_wo(slot)
        for hb in range(2):
            A("s_waitcnt vmcnt(16)" if hb == 0 else "s_waitcnt vmcnt(0)"); A("s_barrier")
            for dl in range(4):
                for u1 in range(2):
                    A(f"v_xor_b32 v35, {(4*dl) ^ (4*u1)}, v34"); A("v_lshlrev_b32 v35, 4, v35"); A("v_add_u32 v35, v35, v33")
                    if hb: A("v_add_u32 v35, 0x10000, v35")
                    for tl in range(2):
                        for u2 in range(2):
                            u = 2*u2 + u1
                            dst = 48 + (dl*2 + tl)*8 + 2*u
                            A(f"ds_read_b64_tr_b16 {r(dst, 2)}, v35 offset:{tl*32768 + u2*16384 + u1*2048}")
            A("s_waitcnt lgkmcnt(0)"); A("s_barrier")
            b = vWoA if hb == 0 else vWoB
            for st in range(8):
                for half in range(2):
                    A(f"ds_write_b128 {r(b)}, {r(48 + st*8 + 4*half, 4)} offset:{st*2048 + half*1024}")
            A("s_waitcnt lgkmcnt(0)")

    def dma_k(self):
        A = self.A
        A(f"s_lshl_b32 s34, s{sW}, 11"); A(f"s_add_u32 m0, s34, {L_KX}")
        A(f"global_load_lds_dwordx4 {r(vAG)}, {sp(sKX)}"); A(f"global_load_lds_dwordx4 {r(vAG)}, {sp(sKX)} offset:1024 sc1")
        A(f"s_add_u32 s{sKX}, s{sKX}, 0x40000"); A(f"s_addc_u32 s{sKX+1}, s{sKX+1}, 0")
    def dma_v(self):
        A = self.A
        A(f"s_lshl_b32 s34, s{sW}, 11"); A(f"s_add_u32 m0, s34, {L_VX}")
        A(f"global_load_lds_dwordx4 {r(vAG)}, {sp(sVX)}"); A(f"global_load_lds_dwordx4 {r(vAG)}, {sp(sVX)} offset:1024")
        A(f"s_add_u32 s{sVX}, s{sVX}, 0x40000"); A(f"s_addc_u32 s{sVX+1}, s{sVX+1}, 0")

    def preload_mem0(self):
        A = self.A
        A("s_load_dwordx2 s[36:37], s[0:1], 8"); A("s_waitcnt lgkmcnt(0)")
        A(f"s_mov_b64 exec, {sp(sMMSK)}")
        A("global_load_dword v126, v127, s[36:37]")
        A("s_mov_b64 exec, -1")
    def publish_mem0(self):
        A = self.A
        A(f"s_mov_b64 exec, {sp(sMMSK)}")
        A(f"global_store_dword {r(vMst)}, v126, {sp(sMb)}")
        if self.hist: A(f"global_store_dword {r(vMst)}, v126, {sp(sHIST)}")
        A("s_mov_b64 exec, -1")

    def salu_step(self):
        L = []; A = L.append
        A(f"s_and_b32 s34, s{sS}, 1"); A("s_lshl_b32 s34, s34, 18"); A(f"s_add_u32 s34, s34, {WS_PBUF}")
        A(f"s_add_u32 s{sPst}, s{sWS}, s34"); A(f"s_addc_u32 s{sPst+1}, s{sWS+1}, 0")
        A(f"s_add_u32 s24, s{sPst}, 32768"); A(f"s_addc_u32 s25, s{sPst+1}, 0")
        A(f"s_bfe_u32 s{sTAG}, s{sS}, 0x10001")
        A(f"s_add_u32 s34, s{sS}, 1"); A("s_and_b32 s35, s34, 3"); A("s_lshl_b32 s35, s35, 13")
        A(f"s_add_u32 s{sMn}, s{sMb}, s35"); A(f"s_addc_u32 s{sMn+1}, s{sMb+1}, 0")
        A("s_xor_b32 s35, s35, 0x4000")
        A(f"s_add_u32 s{sMz}, s{sMb}, s35"); A(f"s_addc_u32 s{sMz+1}, s{sMb+1}, 0")
        if self.hist:
            A("s_lshl_b32 s34, s34, 13"); A(f"s_add_u32 s{sHn}, s{sHIST}, s34"); A(f"s_addc_u32 s{sHn+1}, s{sHIST+1}, 0")
        A(f"s_lshl_b32 s34, s{sS}, 5"); A(f"s_add_u32 s34, s34, s{sH}")
        A("s_lshl_b32 s35, s34, 11"); A(f"s_add_u32 s35, s35, {WS_EK}"); A(f"s_add_u32 s{sEK}, s{sWS}, s35"); A(f"s_addc_u32 s{sEK+1}, s{sWS+1}, 0")
        A("s_lshl_b32 s35, s34, 13"); A(f"s_add_u32 s35, s35, {WS_EV}"); A(f"s_add_u32 s{sEV}, s{sWS}, s35"); A(f"s_addc_u32 s{sEV+1}, s{sWS+1}, 0")
        A(f"s_lshl_b32 s34, s{sS}, {CS}"); A(f"s_add_u32 s35, s34, {cnt_off(C_EXP) - 128}")
        A(f"s_cmp_eq_u32 s{sS}, 0"); A(f"s_cselect_b32 s35, {CNT_DUMMY}, s35")
        A(f"s_add_u32 s{sEXC}, s{sWS}, s35"); A(f"s_addc_u32 s{sEXC+1}, s{sWS+1}, 0")
        return L
    def shadow_prep(self):
        A = self.A
        for i in range(0, 16, 2): A(f"v_mov_b64 {r(AQ+i,2)}, 0")
        A(f"v_mov_b32 {r(SX)}, -1")

    def ag_poll_m(self, P="L"):
        A = self.A; b = Q; dep = self.ag_depth
        def issue():
            A(f"global_load_dwordx4 {r(b,4)}, {r(vAG)}, {sp(sMc)} sc1")
            A(f"global_load_dwordx4 {r(b+4,4)}, {r(vAG)}, {sp(sMc)} offset:1024 sc1")
        def check():
            A(f"v_max3_u32 {r(T0r)}, {r(b)}, {r(b+1)}, {r(b+2)}"); A(f"v_max3_u32 {r(T1r)}, {r(b+3)}, {r(b+4)}, {r(b+5)}")
            A(f"v_max3_u32 {r(T0r)}, {r(T0r)}, {r(b+6)}, {r(b+7)}"); A(f"v_max_u32 {r(T0r)}, {r(T0r)}, {r(T1r)}")
            A(f"v_cmp_eq_u32 vcc, -1, {r(T0r)}")
            A(f"s_cbranch_vccz {P}_agok")
            A("s_mov_b64 exec, vcc")
            issue()
            A(f"s_add_u32 s{sNAG}, s{sNAG}, 1")
        self.stamp(0)
        A(f"s_mov_b32 s{sCNT}, 0")
        self.shadow_prep()
        self.delay(self.ag_delay)
        for k in range(dep):
            issue()
            if k < dep-1:
                self.delay(self.ag_gap)
        A(f"global_store_dwordx4 {r(vAG)}, {r(SX,4)}, {sp(sPz)}"); A(f"global_store_dwordx4 {r(vAG)}, {r(SX,4)}, {sp(sPz)} offset:1024")
        A(f"s_mov_b64 exec, {sp(sMMSK)}"); A(f"global_store_dword {r(vMst)}, {r(SX)}, {sp(sMz)}"); A("s_mov_b64 exec, -1")
        for k in range(dep):
            A(f"s_waitcnt vmcnt({2*(dep-1) + 3})"); check()
        A.label(f"{P}_ag")
        A(f"s_waitcnt vmcnt({2*(dep-1)})"); check()
        A(f"s_add_u32 s{sCNT}, s{sCNT}, 1")
        A(f"s_cmp_lt_u32 s{sCNT}, 6000"); A(f"s_cbranch_scc1 {P}_ag")
        A(f"s_mov_b32 s{sFAIL}, 1"); A("s_waitcnt vmcnt(0)")
        A.label(f"{P}_agok")
        A("s_mov_b64 exec, -1")
        A(f"ds_write_b128 {r(vAG)}, {r(b,4)}"); A(f"ds_write_b128 {r(vAG)}, {r(b+4,4)} offset:1024")
        self.stamp(1)
        A("s_waitcnt lgkmcnt(0)")
        A("s_barrier")

    def ag_poll(self, P="L"):
        if self.nocomm or self.no_ag:
            A = self.A
            self.stamp(0)
            A(f"ds_write_b128 {r(vAG)}, {r(WV,4)}"); A(f"ds_write_b128 {r(vAG)}, {r(WV+4,4)} offset:1024")
            self.stamp(1); A("s_waitcnt lgkmcnt(0)"); A("s_barrier"); return
        if self.mpoll: return self.ag_poll_m(P)
        A = self.A
        n = self.ag_sets
        regs = [Q, Q+8, K, K+8][:n]
        def issue(b):
            A(f"global_load_dwordx4 {r(b,4)}, {r(vAG)}, {sp(sMc)} sc1")
            A(f"global_load_dwordx4 {r(b+4,4)}, {r(vAG)}, {sp(sMc)} offset:1024 sc1")
        def check(b, last=False):
            A(f"ds_write_b128 {r(vAG)}, {r(b,4)}")
            A(f"v_max3_u32 {r(T0r)}, {r(b)}, {r(b+1)}, {r(b+2)}"); A(f"v_max3_u32 {r(T1r)}, {r(b+3)}, {r(b+4)}, {r(b+5)}")
            A(f"ds_write_b128 {r(vAG)}, {r(b+4,4)} offset:1024")
            A(f"v_max3_u32 {r(T0r)}, {r(T0r)}, {r(b+6)}, {r(b+7)}"); A(f"v_max_u32 {r(T0r)}, {r(T0r)}, {r(T1r)}")
            A(f"v_cmp_eq_u32 vcc, -1, {r(T0r)}")
            if last:
                A(f"s_cbranch_vccnz {P}_agretry")
                return
            A(f"s_cbranch_vccz {P}_agok")
            issue(b)
            A(f"s_add_u32 s{sNAG}, s{sNAG}, 1")
        self.stamp(0)
        A(f"s_mov_b32 s{sCNT}, 0")
        stv = self.exports and self.stash_v
        if stv:
            A(f"ds_read_b128 {r(OX,4)}, {r(vAG)}")
            A(f"s_mov_b32 s{sEVp}, s{sEV}"); A(f"s_mov_b32 s{sEVp+1}, s{sEV+1}")
        if not self.early_shadow: self.shadow_prep()
        self.delay(self.ag_delay)
        for k, b in enumerate(regs):
            issue(b)
            if k < n-1:
                self.delay(self.ag_gap)
        nres = 0
        if self.ag_reset:
            if not self.ptag:
                A(f"global_store_dwordx4 {r(vAG)}, {r(SX,4)}, {sp(sPz)}"); A(f"global_store_dwordx4 {r(vAG)}, {r(SX,4)}, {sp(sPz)} offset:1024")
            A(f"s_mov_b64 exec, {sp(sMMSK)}"); A(f"global_store_dword {r(vMst)}, {r(SX)}, {sp(sMz)}"); A("s_mov_b64 exec, -1")
            nres = 1 if self.ptag else 3
            if stv:
                A("s_waitcnt lgkmcnt(0)"); A(f"global_store_dwordx4 {r(vAG)}, {r(OX,4)}, {sp(sEVp)} sc1"); nres = 4
            for k, b in enumerate(regs):
                A(f"s_waitcnt vmcnt({2*(n-1) + nres})"); check(b, last=(self.ft and k == n-1))
        def loop_code():
            A.label(f"{P}_ag")
            for k, b in enumerate(regs):
                A(f"s_waitcnt vmcnt({2*(n-1)})"); check(b)
            A(f"s_add_u32 s{sCNT}, s{sCNT}, 1")
            A(f"s_cmp_lt_u32 s{sCNT}, 100000"); A(f"s_cbranch_scc1 {P}_ag")
            A(f"s_mov_b32 s{sFAIL}, 1"); A("s_waitcnt vmcnt(0)")
        if self.ft:
            def ool():
                A.label(f"{P}_agretry")
                issue(regs[-1]); A(f"s_add_u32 s{sNAG}, s{sNAG}, 1")
                loop_code()
                A(f"s_branch {P}_agok")
            self.ool.append(ool)
        else:
            loop_code()
        A.label(f"{P}_agok")
        self.stamp(1)
        A("s_waitcnt lgkmcnt(0)")
        A("s_barrier")

    def rs_check(self, b, D, MF, last=False):
        A = self.A
        assert self.ptag
        A(f"v_xor_b32 {r(T0r)}, s{sTAG+1}, {r(b)}"); A(f"v_xor_b32 {r(T1r)}, s{sTAG+1}, {r(b+4)}")
        A(f"{MF} {r(D,4)}, {r(vSEL,4)}, {r(b,4)}, 0")
        A(f"v_or_b32 {r(T0r)}, {r(T0r)}, {r(T1r)}"); A(f"v_and_b32 {r(T0r)}, 1, {r(T0r)}")
        A(f"{MF} {r(D,4)}, {r(vSEL,4)}, {r(b+4,4)}, {r(D,4)}")
        A(f"v_cmp_ne_u32 vcc, 0, {r(T0r)}")
        A("s_cbranch_vccnz L_rsretry" if last else "s_cbranch_vccz L_rsok")

    def exp_flag(self):
        L = self.A.newlabel("XF")
        return [f"s_mov_b64 exec, {sp(sXM)}", f"s_cbranch_execz {L}", f"global_atomic_add {r(vL16)}, {r(vIDX)}, {sp(sEXC)}", f"{L}:", "s_mov_b64 exec, -1"]

    def kv_fast(self):
        L = self.A.newlabel("KVR")
        self.kv_ret.append(L)
        return [f"s_cmp_ge_u32 s{sS}, s{sKVOK}", f"s_cbranch_scc1 KVSLOW", f"KVRET:"]
    def sm_slow_code(self):
        A = self.A; mx, t1 = T0r, T1r
        A.label("SMSLOW")
        A(f"v_max3_f32 {r(mx)}, {r(SX)}, {r(SX+1)}, {r(SX+2)}"); A(f"v_max3_f32 {r(t1)}, {r(SX+3)}, {r(SX+4)}, {r(SX+5)}")
        A(f"v_max3_f32 {r(mx)}, {r(mx)}, {r(SX+6)}, {r(SX+7)}"); A(f"v_max3_f32 {r(t1)}, {r(t1)}, {r(SM)}, {r(SM+1)}")
        A(f"v_max3_f32 {r(mx)}, {r(mx)}, {r(SM+2)}, {r(SM+3)}"); A(f"v_max_f32 {r(mx)}, {r(mx)}, {r(t1)}")
        A(f"v_mov_b32 {r(t1)}, {r(mx)}"); A(f"v_permlane16_swap_b32 {r(mx)}, {r(t1)}"); A(f"v_max_f32 {r(mx)}, {r(mx)}, {r(t1)}")
        A(f"v_mov_b32 {r(t1)}, {r(mx)}"); A(f"v_permlane32_swap_b32 {r(mx)}, {r(t1)}"); A(f"v_max_f32 {r(mx)}, {r(mx)}, {r(t1)}")
        for b in list(range(SX, SX+8)) + list(range(SM, SM+4)): A(f"v_sub_f32 {r(b)}, {r(b)}, {r(mx)}")
        A("s_nop 1")
        A("s_branch SMRET")

    def kv_slow_code(self, lab="KVSLOW", ret="KVRET", need_off=0):
        A = self.A
        A.label(lab)
        A("s_mov_b32 s35, 0")
        A.label(lab + "_l")
        A(f"v_lshlrev_b32 {r(T1r)}, 3, {r(vL16)}")
        A(f"global_load_dword {r(T0r)}, {r(T1r)}, {sp(sKVC)} sc1"); A("s_waitcnt vmcnt(0)")
        A(f"v_cmp_gt_u32 vcc, 32, {r(T0r)}")
        A("s_nop 3"); A("s_ff1_i32_b64 s34, vcc")
        A("s_cmp_eq_u32 s34, -1"); A("s_cselect_b32 s34, 64, s34")
        if self.dma_rs: A(f"s_mov_b32 s{sKVOK}, s34")
        else: A(f"s_sub_u32 s{sKVOK}, s34, 1"); A("s_cmp_eq_u32 s34, 64"); A(f"s_cselect_b32 s{sKVOK}, 64, s{sKVOK}")
        A(f"s_cmp_lt_i32 s{sS}, s{sKVOK}"); A(f"s_cbranch_scc1 {ret}")
        A("s_sleep 4"); A("s_add_u32 s35, s35, 1"); A("s_cmp_lt_u32 s35, 200000"); A(f"s_cbranch_scc1 {lab}_l")
        A(f"s_mov_b32 s{sKVOK}, 64"); A(f"s_branch {ret}")

    def kv_check(self):
        A = self.A
        L = A.newlabel("KV"); E = A.newlabel("KVE")
        out = [f"v_readlane_b32 s34, {r(vMst)}, 2", "s_cmp_ge_u32 s34, 32", f"s_cbranch_scc1 {E}", "s_mov_b32 s35, 0", "s_mov_b64 exec, 4", f"{L}:",
               f"global_load_dword {r(vMst)}, {r(vL16)}, {sp(sKVC)} offset:-96 sc1", "s_waitcnt vmcnt(0)",
               f"v_readlane_b32 s34, {r(vMst)}, 2", "s_cmp_ge_u32 s34, 32", f"s_cbranch_scc1 {E}_x", "s_sleep 2",
               "s_add_u32 s35, s35, 1", "s_cmp_lt_u32 s35, 200000", f"s_cbranch_scc1 {L}", f"{E}_x:", "s_mov_b64 exec, -1", f"{E}:"]
        return out
    def kv_prefetch(self):
        return ["s_mov_b64 exec, 4", f"global_load_dword {r(vMst)}, {r(vL16)}, {sp(sKVC)} offset:-32 sc1", "s_mov_b64 exec, -1"]

    def weave(self, main, fill):
        A = self.A
        for x in fill.get(-1, []): A(x)
        for i, m in enumerate(main):
            A(m)
            for x in fill.get(i, []): A(x)
        for k in fill:
            assert k < len(main), (k, len(main))

    def step(self):
        A = self.A
        SMF = "v_smfmac_f32_16x16x64_bf16"; MF = "v_mfma_f32_16x16x32_bf16"; MF16 = "v_mfma_f32_16x16x16_bf16"
        st = lambda i: ([f"s_memtime s[{sST+2*i}:{sST+2*i+1}]"] if self.stamps else [])
        from collections import defaultdict
        self.stamp(2)
        kx0 = [K, K+4, K+8, K+12]; kx1 = [OX, OX+4, LX, SM]
        qs = [f"{SMF} {r(AQ+4*X,4)}, {r(M+4*t,4)}, {ar((X*8+t)*8, 8)}, {r(vIDX)}" for t in range(8) for X in range(2)]
        F = defaultdict(list)
        kxr = [f"ds_read_b128 {r(kx0[t],4)}, {r(vL16)} offset:{L_KX + t*1024}" for t in range(4)] + \
              [f"ds_read_b128 {r(kx1[t],4)}, {r(vL16)} offset:{L_KX + (4+t)*1024}" for t in range(4)]
        mr = [f"ds_read_b128 {r(M+4*t,4)}, {r(vL16)} offset:{L_STG + t*1024}" for t in range(8)]
        if not self.pipe_t0:
            for x in mr: A(x)
            F[-1].append("s_waitcnt lgkmcnt(7)")
            nk = 0
            for t in range(1, 8):
                slot = 2*t - 1
                F[slot].append(f"s_waitcnt lgkmcnt({min(15, 7 - t + nk)})")
                if t >= 4:
                    F[slot].append(kxr[nk]); nk += 1
                    F[slot+1 if slot+1 < 16 else slot].append(kxr[nk]); nk += 1
        else:
            LA = 3
            for x in mr[:LA]: A(x)
            seq = mr[LA:] + kxr
            F[-1].append(f"s_waitcnt lgkmcnt({LA-1})")
            issued = LA
            for sl in range(16):
                if sl < len(seq): F[sl].append(seq[sl]); issued += 1
                if sl % 2 == 1 and sl < 15:
                    t = (sl + 1)//2
                    F[sl].append(f"s_waitcnt lgkmcnt({min(15, issued - 1 - t)})")
            nk = 8
        if not self.ag_reset:
            F[0].append(f"global_store_dwordx4 {r(vAG)}, {r(SX,4)}, {sp(sPz)}")
            F[2].append(f"global_store_dwordx4 {r(vAG)}, {r(SX,4)}, {sp(sPz)} offset:1024")
            F[4] += [f"s_mov_b64 exec, {sp(sMMSK)}", f"global_store_dword {r(vMst)}, {r(SX)}, {sp(sMz)}", "s_mov_b64 exec, -1"]
            F[6] += ["s_waitcnt vmcnt(3)"]

        sl = self.salu_step()
        chunks = []; cur = []
        for x in sl:
            cur.append(x)
            if len(cur) >= 2 and not (x.startswith("s_add_u32") or x.startswith("s_cmp")): chunks.append(cur); cur = []
        if cur: chunks.append(cur)
        qslots = [13, 14, 15]
        for i, sl_ in enumerate(qslots): F[sl_] += chunks[i]
        self.kchunks = chunks[len(qslots):]
        self.weave(qs, F)
        assert nk == 8
        self.stamp(3)
        BAR = self.bar
        ks = [f"{SMF} {r(AK+4*X,4)}, {r(M+4*t,4)}, {ar(128+(X*8+t)*8, 8)}, {r(vIDX)}" for t in range(8) for X in range(2)]
        def post(acc, lds_off):
            return [f"v_permlane32_swap_b32 {r(acc+j)}, {r(acc+4+j)}" for j in range(4)] + \
                   [f"v_pk_add_f32 {r(acc,2)}, {r(acc,2)}, {r(acc+4,2)}", f"v_pk_add_f32 {r(acc+2,2)}, {r(acc+2,2)}, {r(acc+6,2)}",
                    f"v_cvt_pk_bf16_f32 {r(acc)}, {r(acc)}, {r(acc+1)}", f"v_cvt_pk_bf16_f32 {r(acc+1)}, {r(acc+2)}, {r(acc+3)}",
                    f"ds_write_b64 {r(vQW)}, {r(acc,2)} offset:{lds_off}"]
        F = defaultdict(list)
        F[1] += post(AQ, L_QB)
        F[8] += ["s_waitcnt vmcnt(0)"]
        if self.kbar:
            F[0] += ["s_waitcnt lgkmcnt(0)", "s_barrier"]
            if self.kvwait: F[0] += self.kv_fast()
            F[9] += [f"s_mov_b32 m0, s{sM0K}", f"global_load_lds_dwordx4 {r(vAG)}, {sp(sKX)} sc1"]
            F[13] += [f"global_load_lds_dwordx4 {r(vAG)}, {sp(sKX)} offset:1024 sc1", f"s_add_u32 s{sKX}, s{sKX}, 0x40000", f"s_addc_u32 s{sKX+1}, s{sKX+1}, 0"]
            if self.dmalat: F[13] += st(4) + ["s_waitcnt vmcnt(0)"] + st(6)
        kslots = [2, 3, 4, 5, 6, 7, 8, 10, 12, 14]
        assert len(self.kchunks) <= len(kslots), len(self.kchunks)
        for i, cch in enumerate(self.kchunks): F[kslots[i]] += cch
        for j in range(0, 8, 2): F[9 + j].append(f"v_mov_b64 {r(AQ+j,2)}, 0")
        self.weave(ks, F)
        self.stamp(5)
        vs = [f"{SMF} {r(AQ+4*X,4)}, {r(M+4*t,4)}, {r(WV+(X*8+t)*8, 8)}, {r(vIDX)}" for t in range(8) for X in range(2)]
        NV1 = self.nv1
        qtr = [f"ds_read_b64_tr_b16 {r(Q+4*t+2*hf,2)}, {r(vQR)} offset:{L_QB + t*512 + hf*256}" for t in range(4) for hf in range(2)]
        KF = M + 8
        ktr = [f"ds_read_b64_tr_b16 {r(KF+4*t+2*hf,2)}, {r(vQR)} offset:{L_KB + t*512 + hf*256}" for t in range(4) for hf in range(2)]
        F = defaultdict(list)
        kp = post(AK, L_KB)
        F[1] += kp
        if self.exports: F[2] += [f"global_store_dwordx2 {r(vQW)}, {r(AK,2)}, {sp(sEK)} sc1"]
        F[BAR] += ["s_waitcnt lgkmcnt(0)", "s_barrier"] + ([] if self.dmalat else st(6))
        if self.exports: F[BAR+1] += self.exp_flag()
        for i in range(4): F[BAR+i] += qtr[2*i:2*i+2]
        if self.kvwait and not self.kbar and not self.dma_rs: F[BAR] += self.kv_fast()
        if not self.kbar and not self.dma_rs: F[BAR+1] += [f"s_mov_b32 m0, s{sM0K}", f"global_load_lds_dwordx4 {r(vAG)}, {sp(sKX)} sc1"]
        if self.vearly:
            F[3] += [f"ds_read_b128 {r(M,4)}, {r(vAG)} offset:{L_VX}"]
            F[4] += [f"ds_read_b128 {r(M+4,4)}, {r(vAG)} offset:{L_VX + 1024}"]
            assert BAR >= 5
            F[BAR+1] += [f"s_mov_b32 m0, s{sM0V}", f"global_load_lds_dwordx4 {r(vAG)}, {sp(sVX)} sc1"]
            F[BAR+5] += [f"global_load_lds_dwordx4 {r(vAG)}, {sp(sVX)} offset:1024 sc1", f"s_add_u32 s{sVX}, s{sVX}, 0x40000", f"s_addc_u32 s{sVX+1}, s{sVX+1}, 0"]
        else:
            F[BAR+2] += [f"ds_read_b128 {r(M,4)}, {r(vAG)} offset:{L_VX}"]
            F[BAR+3] += [f"ds_read_b128 {r(M+4,4)}, {r(vAG)} offset:{L_VX + 1024}"]
        if not self.kbar and not self.dma_rs: F[BAR+5] += [f"global_load_lds_dwordx4 {r(vAG)}, {sp(sKX)} offset:1024 sc1", f"s_add_u32 s{sKX}, s{sKX}, 0x40000", f"s_addc_u32 s{sKX+1}, s{sKX+1}, 0"]
        self.weave(vs[:NV1], F)
        assert NV1 >= 12
        for x in ktr: A(x)
        sx = [f"{MF} {r(SX+4*X,4)}, {r((kx0 if X == 0 else kx1)[t],4)}, {r(Q+4*t,4)}, {'0' if t == 0 else r(SX+4*X,4)}" for t in range(4) for X in range(2)]
        A("s_waitcnt lgkmcnt(8)")
        for x in sx: A(x)
        mx, t1 = T0r, T1r
        ab = (lambda x: f"|{x}|") if self.standin else (lambda x: x)
        pre = [f"v_max3_f32 {r(mx)}, {ab(r(SX))}, {ab(r(SX+1))}, {ab(r(SX+2))}", f"v_max3_f32 {r(t1)}, {ab(r(SX+4))}, {ab(r(SX+5))}, {ab(r(SX+6))}",
               f"v_max3_f32 {r(mx)}, {r(mx)}, {ab(r(SX+3))}, {ab(r(SX+7))}", f"v_max_f32 {r(mx)}, {r(mx)}, {r(t1)}"]
        A("s_waitcnt lgkmcnt(0)")
        for t in range(4):
            A(f"{MF} {r(SM,4)}, {r(KF+4*t,4)}, {r(Q+4*t,4)}, {'0' if t == 0 else r(SM,4)}")
            if t >= 1: A(pre[t-1])
        A(pre[3])
        self.stamp(7)
        sets = [Q, Q+8, K, K+8, M+8, M+16, M+24, AQ, M]
        def ldset(idx, reg):
            dl, t = divmod(idx, 4); b = vWoA if t < 2 else vWoB; o = (dl*2 + (t & 1))*2048
            return [f"ds_read_b128 {r(reg,4)}, {r(b)} offset:{o}", f"ds_read_b128 {r(reg+4,4)}, {r(b)} offset:{o+1024}"]
        F = defaultdict(list)
        rd = ldset(0, sets[0]) + ldset(1, sets[1])
        n2 = 16 - NV1
        if self.vearly or self.dma_rs: F[0] += [rd[0]]
        else:
            F[0] += [f"s_mov_b32 m0, s{sM0V}", rd[0]]
            F[0] += [f"global_load_lds_dwordx4 {r(vAG)}, {sp(sVX)} sc1"]
        for i in range(1, 4): F[min(i, n2-1)].append(rd[i])
        self.weave(vs[NV1:], F)
        mx, t1 = T0r, T1r
        rd = ldset(2, sets[2]) + ldset(3, sets[3]) + ldset(4, sets[4]) + ldset(5, sets[5]) + ldset(6, sets[6])
        vc = [f"v_cvt_pk_bf16_f32 {r(AK+2*X+h)}, {r(AQ+4*X+2*h)}, {r(AQ+4*X+2*h+1)}" for X in range(2) for h in range(2)]
        vdma2 = [f"global_load_lds_dwordx4 {r(vAG)}, {sp(sVX)} offset:1024 sc1", f"s_add_u32 s{sVX}, s{sVX}, 0x40000", f"s_addc_u32 s{sVX+1}, s{sVX+1}, 0"]
        ri = 0
        if self.standin:
            ab = lambda x: f"|{x}|"
            A(f"v_max3_f32 {r(mx)}, {r(mx)}, {ab(r(SM))}, {ab(r(SM+1))}"); A(f"v_max3_f32 {r(mx)}, {r(mx)}, {ab(r(SM+2))}, {ab(r(SM+3))}")
            A(f"v_cmp_lt_f32 vcc, s{sTHR}, {r(mx)}")
            for b in (SX, SX+2, SX+4, SX+6, SM, SM+2): A(f"v_pk_mul_f32 {r(b,2)}, {r(b,2)}, {sp(sC)}")
            if not self.vearly and not self.dma_rs:
                for x in vdma2: A(x)
            A("s_cbranch_vccnz SMSLOW"); A.label("SMRET")
            for x in vc: A(x)
            if self.exports: A(f"global_store_dwordx4 {r(vAG)}, {r(AK,4)}, {sp(sEV)} sc1")
            if self.looptail: A(f"s_cmp_eq_u32 s{sS}, 63"); A("s_cbranch_scc1 L_fin")
        else:
            A(f"v_max3_f32 {r(mx)}, {r(mx)}, {r(SM)}, {r(SM+1)}"); A(f"v_max3_f32 {r(mx)}, {r(mx)}, {r(SM+2)}, {r(SM+3)}")
            A(f"v_mov_b32 {r(t1)}, {r(mx)}")
            if not self.vearly and not self.dma_rs:
                for x in vdma2: A(x)
            A(f"v_permlane16_swap_b32 {r(mx)}, {r(t1)}"); A(f"v_max_f32 {r(mx)}, {r(mx)}, {r(t1)}")
            A(f"v_mov_b32 {r(t1)}, {r(mx)}"); A(rd[0]); A(rd[1])
            A(f"v_permlane32_swap_b32 {r(mx)}, {r(t1)}"); A(rd[2]); A(f"v_max_f32 {r(mx)}, {r(mx)}, {r(t1)}")
            ri = 3
            for x in vc: A(x)
            if self.exports: A(f"global_store_dwordx4 {r(vAG)}, {r(AK,4)}, {sp(sEV)} sc1")
            if self.looptail: A(f"s_cmp_eq_u32 s{sS}, 63"); A("s_cbranch_scc1 L_fin")
            A(f"v_mul_f32 {r(mx)}, s{sC}, {r(mx)}")
            def pkf(b): return f"v_pk_fma_f32 {r(b,2)}, {r(b,2)}, {sp(sC)}, {r(mx,2)} op_sel_hi:[1,1,0] neg_lo:[0,0,1] neg_hi:[0,0,1]"
            for b in (SX, SX+2, SX+4, SX+6, SM, SM+2): A(pkf(b))
        for i in range(8):
            A(f"v_exp_f32 {r(SX+i)}, {r(SX+i)}")
            if ri < len(rd): A(rd[ri]); ri += 1
        if not self.pvearly:
            for i in range(4): A(f"v_exp_f32 {r(SM+i)}, {r(SM+i)}")
        for i in range(4): A(f"v_cvt_pk_bf16_f32 {r(SX+i)}, {r(SX+2*i)}, {r(SX+2*i+1)}")
        while ri < len(rd): A(rd[ri]); ri += 1
        if not self.pvearly:
            for i in range(2): A(f"v_cvt_pk_bf16_f32 {r(SM+i)}, {r(SM+2*i)}, {r(SM+2*i+1)}")
        self.stamp(8)
        A("s_waitcnt lgkmcnt(14)")
        A(f"{MF} {r(LX,4)}, {r(vONE,4)}, {r(SX,4)}, 0")
        if self.pvearly: A(f"v_exp_f32 {r(SM)}, {r(SM)}")
        A(f"{MF} {r(OX,4)}, {r(M,4)}, {r(SX,4)}, 0")
        if self.pvearly: A(f"v_exp_f32 {r(SM+1)}, {r(SM+1)}")
        A(f"{MF} {r(OX+4,4)}, {r(M+4,4)}, {r(SX,4)}, 0")
        if self.pvearly:
            A(f"v_exp_f32 {r(SM+2)}, {r(SM+2)}"); A(f"v_exp_f32 {r(SM+3)}, {r(SM+3)}")
            for i in range(2): A(f"v_cvt_pk_bf16_f32 {r(SM+i)}, {r(SM+2*i)}, {r(SM+2*i+1)}")
        A(f"{MF16} {r(LX,4)}, {r(vHALF,2)}, {r(SM,2)}, {r(LX,4)}")
        for X in range(2): A(f"{MF16} {r(OX+4*X,4)}, {r(AK+2*X,2)}, {r(SM,2)}, {r(OX+4*X,4)}")
        rd = ldset(7, sets[7]) + ldset(8, sets[8])
        for x in rd: A(x)
        A(f"v_rcp_f32 {r(mx)}, {r(LX)}")
        for X in range(2):
            o = OX + 4*X
            A(f"v_pk_mul_f32 {r(o,2)}, {r(o,2)}, {r(mx,2)} op_sel_hi:[1,0]"); A(f"v_pk_mul_f32 {r(o+2,2)}, {r(o+2,2)}, {r(mx,2)} op_sel_hi:[1,0]")
            A(f"v_cvt_pk_bf16_f32 {r(o)}, {r(o)}, {r(o+1)}"); A(f"v_cvt_pk_bf16_f32 {r(o+1)}, {r(o+2)}, {r(o+3)}")
            A(f"ds_write_b64 {r(vOW)}, {r(o,2)} offset:{X*32}")
        self.stamp(9)
        ACC = AK
        for i in range(0, 16, 2): A(f"v_mov_b64 {r(ACC+i,2)}, 0")
        A("s_waitcnt lgkmcnt(0)"); A("s_barrier")
        self.stamp(10)
        OF = SM
        for t in range(4): A(f"ds_read_b128 {r(OF+4*t,4)}, {r(vOR)} offset:{t*64}")
        reg_of = {i: sets[i] for i in range(9)}
        main = []; F = defaultdict(list)
        issued = []
        nxt = 9
        for idx in range(16):
            dl, t = divmod(idx, 4)
            main.append(None)
        lds_out = ['o0', 'o1', 'o2', 'o3']
        def wait_for(tag):
            if tag in lds_out:
                last = max(i for i, x in enumerate(lds_out) if x == tag)
                n = len(lds_out) - 1 - last
                A(f"s_waitcnt lgkmcnt({min(n,15)})")
                del lds_out[:last+1]
        pend = []
        for idx in range(16):
            dl, t = divmod(idx, 4)
            if dl == 0: wait_for(f'o{t}')
            if idx >= 9: wait_for(f's{idx}')
            A(f"{SMF} {r(ACC+4*dl,4)}, {r(OF+4*t,4)}, {r(reg_of[idx],8)}, {r(vIDX)}")
            if nxt < 16:
                reg_of[nxt] = reg_of[idx]
                for x in ldset(nxt, reg_of[nxt]): pend.append((x, f's{nxt}'))
                nxt += 1
            n = (1 if idx >= 3 else 2) if self.wo_spread else 99
            if self.wo_spread and idx >= 8: n = 2
            for _ in range(n):
                if pend:
                    x, tg = pend.pop(0); A(x); lds_out.append(tg)
            if self.rs_var == 'C':
                a = ACC
                if idx == 5: A(f"v_cvt_pk_bf16_f32 {r(a)}, {r(a)}, {r(a+1)}")
                if idx == 6: A(f"v_cvt_pk_bf16_f32 {r(a+1)}, {r(a+2)}, {r(a+3)}")
                if idx == 9: A(f"v_cvt_pk_bf16_f32 {r(a+2)}, {r(a+4)}, {r(a+5)}")
                if idx == 10:
                    A(f"v_cvt_pk_bf16_f32 {r(a+3)}, {r(a+6)}, {r(a+7)}")
                    if self.ptag: A(f"v_bfi_b32 {r(a)}, 1, s{sTAG}, {r(a)}")
                    A(f"global_store_dwordx4 {r(vPst)}, {r(a,4)}, {sp(sPst)}")
                a = ACC + 8
                if idx == 13: A(f"v_cvt_pk_bf16_f32 {r(a)}, {r(a)}, {r(a+1)}")
                if idx == 14: A(f"v_cvt_pk_bf16_f32 {r(a+1)}, {r(a+2)}, {r(a+3)}")
            elif t == 2 and dl >= 1:
                a = ACC + 4*(dl-1)
                A(f"v_cvt_pk_bf16_f32 {r(a)}, {r(a)}, {r(a+1)}"); A(f"v_cvt_pk_bf16_f32 {r(a+1)}, {r(a+2)}, {r(a+3)}")
                A(f"global_store_dwordx2 {r(vPst)}, {r(a,2)}, {sp(sPst+2*(dl-1))}")
        assert not pend
        if self.rs_var == 'C':
            a = ACC + 8
            A(f"v_cvt_pk_bf16_f32 {r(a+2)}, {r(a+4)}, {r(a+5)}"); A(f"v_cvt_pk_bf16_f32 {r(a+3)}, {r(a+6)}, {r(a+7)}")
            if self.ptag: A(f"v_bfi_b32 {r(a)}, 1, s{sTAG}, {r(a)}")
            A(f"global_store_dwordx4 {r(vPst)}, {r(a,4)}, s[24:25]")
        else:
            a = ACC + 12
            A(f"v_cvt_pk_bf16_f32 {r(a)}, {r(a)}, {r(a+1)}"); A(f"v_cvt_pk_bf16_f32 {r(a+1)}, {r(a+2)}, {r(a+3)}")
            A(f"global_store_dwordx2 {r(vPst)}, {r(a,2)}, {sp(sPst+6)}")
        self.stamp(11)
        if self.ackstamp:
            A("s_waitcnt vmcnt(0)"); self.stamp(4)
        sRD = sPst
        if self.early_shadow:
            sRD = sPrd2
            A(f"s_mov_b32 s{sPrd2}, s{sPst}"); A(f"s_mov_b32 s{sPrd2+1}, s{sPst+1}")
            A(f"s_mov_b32 s{sMc}, s{sMn}"); A(f"s_mov_b32 s{sMc+1}, s{sMn+1}")
            if self.hist: A(f"s_mov_b32 s{sHn2}, s{sHn}"); A(f"s_mov_b32 s{sHn2+1}, s{sHn+1}")
            if self.ptag: A(f"s_mov_b32 s{sTAG+1}, s{sTAG}")
            A(f"s_add_u32 s{sS}, s{sS}, 1")
            self.shadow_prep()
        def off(i): return i*1024-4096 if self.p_layout == 0 else i*256
        n = self.rs_sets
        regs = [Q, Q+8, K, K+8][:n]
        D = M
        def issue(b):
            if self.rs_var in 'AC':
                A(f"global_load_dwordx4 {r(b,4)}, {r(vRS)}, {sp(sRD)} sc1"); A(f"global_load_dwordx4 {r(b+4,4)}, {r(vRS)}, {sp(sRD)} offset:{2048 if self.cfull else 1024} sc1")
            else:
                for i in range(8): A(f"global_load_dword {r(b+i)}, {r(vRS)}, {sp(sRD)} offset:{off(i)} sc1")
        NLD = 2 if self.rs_var in 'AC' else 8
        self._rs_issue = issue
        if self.nocomm or self.no_rs:
            A(f"{MF} {r(D,4)}, {r(vSEL,4)}, {r(WV,4)}, 0"); A(f"{MF} {r(D,4)}, {r(vSEL,4)}, {r(WV+4,4)}, {r(D,4)}")
        elif self.mpoll:
            b = Q; dep = self.rs_depth
            A(f"s_mov_b32 s{sCNT}, 0")
            self.delay(self.rs_delay)
            for k in range(dep):
                issue(b)
                if k < dep-1:
                    self.delay(self.rs_gap)
            A.label("L_rs")
            A(f"s_waitcnt vmcnt({NLD*(dep-1)})")
            A(f"v_max3_u32 {r(T0r)}, {r(b)}, {r(b+1)}, {r(b+2)}"); A(f"v_max3_u32 {r(T1r)}, {r(b+3)}, {r(b+4)}, {r(b+5)}")
            A(f"v_max3_u32 {r(T0r)}, {r(T0r)}, {r(b+6)}, {r(b+7)}"); A(f"v_max_u32 {r(T0r)}, {r(T0r)}, {r(T1r)}")
            A(f"v_cmp_eq_u32 vcc, -1, {r(T0r)}")
            A("s_cbranch_vccz L_rsok0")
            A("s_mov_b64 exec, vcc")
            issue(b)
            A(f"s_add_u32 s{sNRS}, s{sNRS}, 1")
            A(f"s_add_u32 s{sCNT}, s{sCNT}, 1")
            A(f"s_cmp_lt_u32 s{sCNT}, 6000"); A("s_cbranch_scc1 L_rs")
            A(f"s_mov_b32 s{sFAIL}, 2")
            A.label("L_rsok0")
            A("s_mov_b64 exec, -1")
            A(f"{MF} {r(D,4)}, {r(vSEL,4)}, {r(b,4)}, 0"); A(f"{MF} {r(D,4)}, {r(vSEL,4)}, {r(b+4,4)}, {r(D,4)}")
        else:
            A(f"s_mov_b32 s{sCNT}, 0")
            self.delay(self.rs_delay)
            for k, b in enumerate(regs):
                issue(b)
                if k < n-1:
                    self.delay(self.rs_gap)
            if self.dma_rs:
                assert n == 1
                if self.kvwait:
                    for x in self.kv_fast(): A(x)
                if not self.nodma:
                    A(f"s_mov_b32 m0, s{sM0K}"); A(f"global_load_lds_dwordx4 {r(vAG)}, {sp(sKX)} sc1"); A(f"global_load_lds_dwordx4 {r(vAG)}, {sp(sKX)} offset:1024 sc1")
                    A(f"s_mov_b32 m0, s{sM0V}"); A(f"global_load_lds_dwordx4 {r(vAG)}, {sp(sVX)} sc1"); A(f"global_load_lds_dwordx4 {r(vAG)}, {sp(sVX)} offset:1024 sc1")
                A(f"s_add_u32 s{sKX}, s{sKX}, 0x40000"); A(f"s_addc_u32 s{sKX+1}, s{sKX+1}, 0"); A(f"s_add_u32 s{sVX}, s{sVX}, 0x40000"); A(f"s_addc_u32 s{sVX+1}, s{sVX+1}, 0")
                b = regs[0]
                A(f"s_waitcnt vmcnt({0 if self.nodma else 4})")
                self.rs_check(b, D, MF)
                issue(b)
            def rs_loop():
                A.label("L_rs")
                for k, b in enumerate(regs):
                    A(f"s_waitcnt vmcnt({NLD*(n-1)})")
                    self.rs_check(b, D, MF)
                    self._rs_issue(b)
                    A(f"s_add_u32 s{sNRS}, s{sNRS}, 1")
                A(f"s_add_u32 s{sCNT}, s{sCNT}, 1")
                A(f"s_cmp_lt_u32 s{sCNT}, 100000"); A("s_cbranch_scc1 L_rs")
                A(f"s_mov_b32 s{sFAIL}, 2")
            if self.ft and not self.dma_rs:
                for k, b in enumerate(regs):
                    A(f"s_waitcnt vmcnt({NLD*(n-1)})")
                    self.rs_check(b, D, MF, last=(k == n-1))
                    if k < n-1:
                        self._rs_issue(b); A(f"s_add_u32 s{sNRS}, s{sNRS}, 1")
                def ool():
                    A.label("L_rsretry")
                    self._rs_issue(regs[-1]); A(f"s_add_u32 s{sNRS}, s{sNRS}, 1")
                    rs_loop()
                    A("s_branch L_rsok")
                self.ool.append(ool)
            else:
                rs_loop()
        A.label("L_rsok")
        self.stamp(12)
        if not self.early_shadow:
            A(f"s_add_u32 s{sS}, s{sS}, 1")
            A(f"s_mov_b32 s{sMc}, s{sMn}"); A(f"s_mov_b32 s{sMc+1}, s{sMn+1}")
        D = M
        if self.rs_var == 'C':
            for j in range(4): A(f"v_add_f32_dpp {r(D+j)}, {r(D+j)}, {r(D+j)} row_ror:4 row_mask:0xf bank_mask:0xf")
            for j in range(4): A(f"v_add_f32_dpp {r(D+j)}, {r(D+j)}, {r(D+j)} row_ror:8 row_mask:0xf bank_mask:0xf")
            A(f"v_cndmask_b32 {r(D)}, {r(D)}, {r(D+1)}, {sp(sHB)}"); A(f"v_cndmask_b32 {r(D+2)}, {r(D+2)}, {r(D+3)}, {sp(sHB)}")
            A(f"v_cndmask_b32 {r(D)}, {r(D)}, {r(D+2)}, {sp(sHB2)}")
            A(f"v_mov_b32_dpp {r(D+1)}, {r(D)} quad_perm:[1,1,3,3] row_mask:0xf bank_mask:0xf")
            A(f"v_cvt_pk_bf16_f32 {r(D)}, {r(D)}, {r(D+1)}")
        elif self.rs_var == 'A':
            for j in range(4): A(f"v_add_f32_dpp {r(D+j)}, {r(D+j)}, {r(D+j)} row_ror:4 row_mask:0xf bank_mask:0xf")
            for j in range(4): A(f"v_add_f32_dpp {r(D+j)}, {r(D+j)}, {r(D+j)} row_ror:8 row_mask:0xf bank_mask:0xf")
            A(f"v_permlane16_swap_b32 {r(D)}, {r(D+1)}"); A(f"v_permlane16_swap_b32 {r(D+2)}, {r(D+3)}")
            A(f"v_cvt_pk_bf16_f32 {r(D)}, {r(D)}, {r(D+1)}"); A(f"v_cvt_pk_bf16_f32 {r(D+2)}, {r(D+2)}, {r(D+3)}")
            A(f"v_cndmask_b32 {r(D)}, {r(D)}, {r(D+2)}, {sp(sODD)}")
        else:
            A(f"v_mov_b32_dpp {r(D+2)}, {r(D)} quad_perm:[2,3,2,3] row_mask:0xf bank_mask:0xf")
            A(f"v_mov_b32_dpp {r(D+3)}, {r(D+1)} quad_perm:[2,3,2,3] row_mask:0xf bank_mask:0xf")
            A(f"v_cvt_pk_bf16_f32 {r(D)}, {r(D)}, {r(D+2)}"); A(f"v_cvt_pk_bf16_f32 {r(D+1)}, {r(D+1)}, {r(D+3)}")
            A(f"v_cndmask_b32 {r(D)}, {r(D)}, {r(D+1)}, {sp(sODD)}")
        A(f"s_mov_b64 exec, {sp(sMMSK)}")
        A(f"v_min_u32 {r(D)}, -2, {r(D)}")
        A(f"global_store_dword {r(vMst)}, {r(D)}, {sp(sMc)}")
        if self.hist: A(f"global_store_dword {r(vMst)}, {r(D)}, {sp(sHn2 if self.early_shadow else sHn)}")
        A("s_mov_b64 exec, -1")
        self.stamp(13)
        if self.steplog:
            A("s_memtime s[64:65]"); A("s_memrealtime s[66:67]"); A("s_waitcnt lgkmcnt(0)")
            A(f"s_lshl_b32 s34, s{sH}, 2"); A(f"s_add_u32 s34, s34, s{sW}"); A("s_lshl_b32 s34, s34, 6"); A(f"s_add_u32 s34, s34, s{sS}"); A("s_lshl_b32 s34, s34, 4")
            A(f"s_add_u32 s34, s34, {WS_STAMP + 0x10000}")
            A(f"v_mov_b32 {r(M+4)}, s34"); A(f"v_mov_b32 {r(M+8)}, s64"); A(f"v_mov_b32 {r(M+9)}, s{sNAG}"); A(f"v_mov_b32 {r(M+10)}, s{sNRS}"); A(f"v_mov_b32 {r(M+11)}, s66")
            A("s_mov_b64 exec, 1"); A(f"global_store_dwordx4 {r(M+4)}, {r(M+8,4)}, {sp(sWS)}"); A("s_mov_b64 exec, -1")


    def tail(self):
        A = self.A
        SMF = "v_smfmac_f32_16x16x64_bf16"
        self.ag_poll("T")
        for x in self.salu_step(): A(x)
        for t in range(8): A(f"ds_read_b128 {r(M+4*t,4)}, {r(vL16)} offset:{L_STG + t*1024}")
        for x in self.exp_flag(): A(x)
        A("s_waitcnt lgkmcnt(0)")
        for t in range(8):
            for X in range(2): A(f"{SMF} {r(AK+4*X,4)}, {r(M+4*t,4)}, {ar(128+(X*8+t)*8, 8)}, {r(vIDX)}")
        for t in range(8):
            for X in range(2): A(f"{SMF} {r(AQ+4*X,4)}, {r(M+4*t,4)}, {r(WV+(X*8+t)*8, 8)}, {r(vIDX)}")
        for j in range(4): A(f"v_permlane32_swap_b32 {r(AK+j)}, {r(AK+4+j)}")
        A(f"v_pk_add_f32 {r(AK,2)}, {r(AK,2)}, {r(AK+4,2)}"); A(f"v_pk_add_f32 {r(AK+2,2)}, {r(AK+2,2)}, {r(AK+6,2)}")
        A(f"v_cvt_pk_bf16_f32 {r(AK)}, {r(AK)}, {r(AK+1)}"); A(f"v_cvt_pk_bf16_f32 {r(AK+1)}, {r(AK+2)}, {r(AK+3)}")
        A(f"global_store_dwordx2 {r(vQW)}, {r(AK,2)}, {sp(sEK)} sc1")
        for X in range(2):
            A(f"v_cvt_pk_bf16_f32 {r(SX+2*X)}, {r(AQ+4*X)}, {r(AQ+4*X+1)}"); A(f"v_cvt_pk_bf16_f32 {r(SX+2*X+1)}, {r(AQ+4*X+2)}, {r(AQ+4*X+3)}")
        A(f"global_store_dwordx4 {r(vAG)}, {r(SX,4)}, {sp(sEV)} sc1")
        A("s_waitcnt vmcnt(0)"); A("s_barrier")
        A(f"s_add_u32 s{sEXC}, s{sEXC}, 128"); A(f"s_addc_u32 s{sEXC+1}, s{sEXC+1}, 0")
        for x in self.exp_flag(): A(x)
        A("s_waitcnt vmcnt(0)")

def gen_chain(A, U, o):
    kw = dict(o.get('chain_opts', {}))
    C = Chain(A, U, **kw)
    A(f"s_mov_b32 s{sH}, s{sROLE}")
    A(f"s_cmp_eq_u32 s{sXCC}, 0"); A("s_cselect_b32 s90, 0x10001, 1")
    C.setup_consts()
    C.preload_mem0()
    C.clear_slots()
    C.load_weights()
    tl_stamp(A, o.get('tl'), 0, 1, vr=(120, 121))
    U.add64(sKVC, sWS, cnt_off(C_KV, 0))
    A(f"s_cmp_eq_u32 s{sW}, 0"); A(f"s_cselect_b32 s{sXM}, 1, 0"); A(f"s_mov_b32 s{sXM+1}, 0")
    Lw = A.newlabel("SW"); Le = A.newlabel("SWE"); Ls = A.newlabel("SWS")
    A(f"s_cmp_lg_u32 s{sW}, 0"); A(f"s_cbranch_scc1 {Ls}")
    A("v_mov_b32 v24, 0"); A("s_mov_b32 s36, 0")
    A.label(Lw)
    A(f"global_load_dword v25, v24, {sp(sDBG)} offset:{D_ROLL*4} sc1"); A(f"global_load_dword v26, v24, {sp(sDBG)} offset:{D_INIT*4} sc1")
    A(f"global_load_dword v27, v24, {sp(sKVC)} sc1"); A(f"global_load_dword v28, v24, {sp(sDBG)} offset:{D_CLR*4} sc1"); A("s_waitcnt vmcnt(0)")
    A("v_readfirstlane_b32 s37, v25"); A("v_readfirstlane_b32 s38, v26"); A("v_readfirstlane_b32 s39, v27")
    A("s_lshr_b32 s35, s37, 16"); A("s_and_b32 s37, s37, 0xffff")
    A("s_cmp_ge_u32 s37, 32"); A("s_cselect_b32 s37, 1, 0"); A("s_cmp_ge_u32 s38, 1"); A("s_cselect_b32 s37, s37, 0")
    if C.kvwait: A("s_cmp_ge_u32 s39, 32"); A("s_cselect_b32 s37, s37, 0")
    if o.get('dpoll', True): A("v_readfirstlane_b32 s38, v28"); A("s_cmp_ge_u32 s38, 8"); A("s_cselect_b32 s37, s37, 0")
    A("s_cmp_lg_u32 s37, 0"); A(f"s_cbranch_scc1 {Le}")
    A("s_sleep 1"); A("s_add_u32 s36, s36, 1"); A("s_cmp_lt_u32 s36, 200000"); A(f"s_cbranch_scc1 {Lw}")
    A.label(Le)
    A(f"v_mov_b32 v24, {L_KB}"); A("v_mov_b32 v25, s35"); A("ds_write_b32 v24, v25"); A("s_waitcnt lgkmcnt(0)")
    A.label(Ls)
    A("s_barrier")
    A(f"v_mov_b32 v24, {L_KB}"); A("ds_read_b32 v25, v24"); A("s_waitcnt lgkmcnt(0)"); A("v_readfirstlane_b32 s90, v25")
    A("s_barrier")
    A(f"s_mov_b32 s{sKVOK}, 0")
    tl_stamp(A, o.get('tl'), 0, 2, vr=(120, 121))
    C.dma_k(); C.dma_v()
    A(f"s_mov_b32 s{sFAIL}, 0"); A(f"s_mov_b32 s{sS}, 0"); A(f"s_mov_b32 s{sNAG}, 0"); A(f"s_mov_b32 s{sNRS}, 0")
    A(f"s_mov_b32 s{sMc}, s{sMb}"); A(f"s_mov_b32 s{sMc+1}, s{sMb+1}")
    U.add64(sEV, sWS, 0x380000)
    A(f"s_lshl_b32 s34, s{sW}, 11"); A(f"s_add_u32 s{sM0K}, s34, {L_KX}"); A(f"s_add_u32 s{sM0V}, s34, {L_VX}")
    U.add64(sMz, sMb, 2*8192)
    C.shadow_prep()
    A("s_cmp_lg_u32 s90, 32"); A("s_cbranch_scc1 L_safe_S" if not o.get('force_safe') else "s_branch L_safe_S")
    n_main = len(A.L)
    C.publish_mem0()
    tl_stamp(A, o.get('tl'), 0, 3, vr=(120, 121))
    A.label("L_loop")
    C.ag_poll("L")
    n0 = len(A.L)
    C.step()
    if C.nodma: A.L[n0:] = [x for x in A.L[n0:] if not x.startswith("global_load_lds")]
    A.L[n0:] = [x.replace(" sc1", " " + C.dmaflag) if x.startswith("global_load_lds") else x for x in A.L[n0:]]
    if C.looptail:
        A("s_branch L_loop")
        A.label("L_fin")
        tl_stamp(A, o.get('tl'), 0, 4, vr=(120, 121))
        A("s_waitcnt vmcnt(0) lgkmcnt(0)"); A("s_barrier")
        A(f"s_add_u32 s{sEXC}, s{sEXC}, 128"); A(f"s_addc_u32 s{sEXC+1}, s{sEXC+1}, 0")
        for x in C.exp_flag(): A(x)
        A("s_waitcnt vmcnt(0)")
    else:
        A(f"s_cmp_lt_u32 s{sS}, 63"); A("s_cbranch_scc1 L_loop")
        tl_stamp(A, o.get('tl'), 0, 4, vr=(120, 121))
        C.tail()
    tl_stamp(A, o.get('tl'), 0, 5, vr=(120, 121))
    A("s_branch L_chain_done")
    if C.kvwait: C.kv_slow_code()
    if C.standin: C.sm_slow_code()
    for f in C.ool: f()
    import re
    main = A.L[n_main:]
    labels = [x[:-1] for x in main if re.fullmatch(r"\w+:", x)]
    A.label("L_safe_S")
    for x in main:
        for lb in labels: x = re.sub(r"\b" + lb + r"\b", lb + "_S", x)
        if x.startswith("global_store") and " sc1" not in x: x += " sc1"
        A(x)
    A.label("L_chain_done")
    if C.stamps:
        A(f"s_lshl_b32 s34, s{sH}, 2"); A(f"s_add_u32 s34, s34, s{sW}"); A("s_lshl_b32 s34, s34, 6"); A(f"s_add_u32 s34, s34, {WS_STAMP}")
        A(f"s_add_u32 s36, s{sWS}, s34"); A(f"s_addc_u32 s37, s{sWS+1}, 0")
        A("s_mov_b64 exec, 1"); A("v_mov_b32 v24, 0")
        for q in range(4):
            for i in range(4): A(f"v_mov_b32 v{32+4*q+i}, s{sST+2*(4*q+i)}" if 4*q+i < 14 else f"v_mov_b32 v{32+4*q+i}, s{sNAG + (4*q+i-14)}")
            A(f"global_store_dwordx4 v24, v[{32+4*q}:{35+4*q}], s[36:37] offset:{16*q}")
        A("s_waitcnt vmcnt(0)"); A("s_mov_b64 exec, -1")
```

```python
from common import *
import struct
L_STG = 0; L_QB = 8192; L_OB = 161280; L_KX = 10752; L_VX = 18944; L_KB = 27136; L_WO = 30208
OSTR = 288
import os
if os.environ.get('OB_ALIAS'): L_OB = 8192
L_PF = 161280

vWoB = 1
vIDX, vL16, vAG, vWoA, vQW, vQR, vOW, vPst, vRS, vMst, vOR = range(2, 13)
vSEL = 16
vONE = 20
vHALF = 14
T0r, T1r = 0, 13
M = 24; Q = 56; K = 72; AQ = 88; AK = 96; SX = 104; SM = 112; OX = 116; LX = 124
WV = 128

SC_C = 0.08838834764831845 * 1.4426950408889634

sS = 12
sC = 14
sPst = 16
sPrd = 24
sMb = 26; sMc = 28; sKX = 30; sVX = 32
sMMSK = 40
sODD = 42
sFAIL = 44; sCNT = 45; sLO = 46
sHIST = 48
sPz = 50
sMz = 52
sMn = 54
sHn = 56
sM0K = 58
sM0V = 59
sNAG = 60
sNRS = 61
sST = 64
sTHR = 8
sEXC = 62
sEK = 92
sEV = 94
sKVC = 98
sEVp = 100
sXM = 46
sKVOK = 13
sHB2 = 20
sTAG = 50
sPrd2 = 22
sHn2 = 84
sHB = 18
sPF = 24

class Chain:
    def __init__(self, A, U, stamps=False, hist=False, nsteps=63, nv1=12, rs_wait=None, ag_delay=2, p_layout=1, rs_delay=2, masked=False, wo_spread=True, nohist=False, dump=None, rs_sets=2, rs_gap=2, ag_sets=2, ag_gap=2, late_reset=True, ag_reset=True, kvwait=True, pipe_t0=True, nocomm=False, stash_v=False, l2pf=False, noexp=False, nodma=False, mpoll=False, ag_depth=2, rs_depth=2, ackstamp=False, steplog=False, rs_var='C', opt2=True, bar=5, early_shadow=True, ptag=True, cfull=False, no_rs=False, no_ag=False, dmaflag='sc1', kbar=True, vearly=False, vexp_early=True, dmalat=False, standin=True, pvearly=True, force_slow=False, looptail=True, dma_rs=False, ft=True):
        self.ft = ft; self.ool = []
        self.dma_rs = dma_rs
        if dma_rs: kbar = False; self.kbar = False
        self.looptail = looptail
        self.standin = standin; self.pvearly = pvearly; self.force_slow = force_slow
        self.dmalat = dmalat
        self.vexp_early = vexp_early
        self.vearly = vearly
        self.dmaflag = dmaflag; self.kbar = kbar and not dma_rs
        self.no_rs = no_rs; self.no_ag = no_ag
        self.cfull = cfull
        self.ptag = ptag
        self.early_shadow = early_shadow
        self.bar = bar
        self.opt2 = opt2
        self.rs_var = rs_var
        self.steplog = steplog
        self.ackstamp = ackstamp
        self.mpoll = mpoll; self.ag_depth = ag_depth; self.rs_depth = rs_depth
        self.nodma = nodma; self.noexp = noexp
        self.stash_v = stash_v; self.l2pf = l2pf
        self.pipe_t0 = pipe_t0; self.nocomm = nocomm
        self.U = U; self.kv_ret = []; self.exports = not noexp; self.ag_reset = ag_reset; self.kvwait = kvwait
        self.rs_sets = rs_sets; self.rs_gap = rs_gap; self.ag_sets = ag_sets; self.ag_gap = ag_gap; self.late_reset = late_reset
        hist = hist and not nohist
        self.p_layout = p_layout; self.rs_delay = rs_delay; self.masked = masked; self.wo_spread = wo_spread
        self.nv1 = nv1; self.rs_wait = rs_wait; self.ag_delay = ag_delay
        self.A = A; self.stamps = stamps; self.hist = hist; self.nsteps = nsteps

    def delay(self, x):
        n = int(round(x*16))
        while n > 0:
            k = min(n, 16); self.A(f"s_nop {k-1}"); n -= k

    def stamp(self, i):
        if not self.stamps: return
        A = self.A
        A(f"s_memtime s[{sST+2*i}:{sST+2*i+1}]")

    def setup_consts(self):
        A = self.A; l = "v0"
        A(f"v_lshlrev_b32 {r(vL16)}, 4, {l}")
        A(f"s_lshl_b32 s34, s{sW}, 11"); A(f"v_add_u32 {r(vAG)}, s34, {r(vL16)}")
        A(f"s_lshl_b32 s34, s{sW}, 14"); A(f"s_add_u32 s34, s34, {L_WO}"); A(f"v_add_u32 {r(vWoA)}, s34, {r(vL16)}")
        A(f"v_add_u32 {r(vWoB)}, 0x10000, {r(vWoA)}")
        A(f"v_and_b32 v24, 15, {l}")
        A(f"v_lshrrev_b32 v25, 4, {l}")
        A(f"v_mov_b32 {r(vIDX)}, 0x4444"); A("v_mov_b32 v26, 0xeeee")
        A("v_cmp_le_u32 vcc, 8, v24")
        A(f"v_cndmask_b32 {r(vIDX)}, {r(vIDX)}, v26, vcc")
        A(f"v_lshrrev_b32 v26, 1, v25"); A("v_lshlrev_b32 v26, 8, v26")
        A("v_lshlrev_b32 v27, 4, v24"); A("v_add_u32 v26, v26, v27")
        A("v_and_b32 v27, 1, v25"); A("v_lshlrev_b32 v27, 3, v27"); A("v_add_u32 v26, v26, v27")
        A(f"s_lshl_b32 s34, s{sW}, 9"); A(f"v_add_u32 {r(vQW)}, s34, v26")
        A(f"v_lshrrev_b32 v26, 2, {l}"); A("v_lshlrev_b32 v26, 4, v26")
        A(f"v_and_b32 v27, 1, {l}"); A("v_lshlrev_b32 v27, 3, v27"); A(f"v_add_u32 {r(vQR)}, v26, v27")
        A("v_and_b32 v26, 7, v24"); A(f"v_mul_u32_u24 v26, {OSTR}, v26"); A(f"v_add_u32 {r(vOR)}, {L_OB}, v26")
        A("v_lshlrev_b32 v27, 3, v25"); A(f"v_add_u32 {r(vOW)}, {r(vOR)}, v27")
        A(f"s_lshl_b32 s34, s{sW}, 6"); A(f"v_add_u32 {r(vOW)}, s34, {r(vOW)}")
        A("v_lshlrev_b32 v27, 4, v25"); A(f"v_add_u32 {r(vOR)}, {r(vOR)}, v27")
        if self.rs_var == 'C':
            pass
        elif self.p_layout == 0:
            A(f"v_lshrrev_b32 v26, 5, {l}"); A("v_lshlrev_b32 v26, 13, v26")
            A("v_and_b32 v27, 1, v25"); A("v_lshlrev_b32 v27, 7, v27"); A("v_add_u32 v26, v26, v27")
            A("v_lshlrev_b32 v27, 3, v24"); A("v_add_u32 v26, v26, v27")
            A(f"s_lshl_b32 s34, s{sW}, 16"); A(f"s_lshl_b32 s35, s{sH}, 8"); A("s_add_u32 s34, s34, s35")
            A(f"v_add_u32 {r(vPst)}, s34, v26")
            A("v_lshlrev_b32 v26, 8, v25"); A("v_lshlrev_b32 v27, 2, v24"); A("v_add_u32 v26, v26, v27")
            A(f"s_lshl_b32 s34, s{sH}, 13"); A(f"s_lshl_b32 s35, s{sW}, 6"); A("s_add_u32 s34, s34, s35"); A("s_add_u32 s34, s34, 4096")
            A(f"v_add_u32 {r(vRS)}, s34, v26")
        else:
            A(f"v_lshrrev_b32 v26, 5, {l}"); A("v_lshlrev_b32 v26, 13, v26")
            A("v_and_b32 v27, 1, v25"); A("v_lshlrev_b32 v27, 12, v27"); A("v_add_u32 v26, v26, v27")
            A("v_lshrrev_b32 v27, 3, v24"); A("v_lshlrev_b32 v27, 11, v27"); A("v_add_u32 v26, v26, v27")
            A("v_and_b32 v27, 7, v24"); A("v_lshlrev_b32 v27, 3, v27"); A("v_add_u32 v26, v26, v27")
            A(f"s_lshl_b32 s34, s{sW}, 16"); A(f"s_lshl_b32 s35, s{sH}, 6"); A("s_add_u32 s34, s34, s35")
            A(f"v_add_u32 {r(vPst)}, s34, v26")
            A("v_lshlrev_b32 v26, 6, v25"); A("v_lshlrev_b32 v27, 2, v24"); A("v_add_u32 v26, v26, v27")
            A(f"s_lshl_b32 s34, s{sH}, 13"); A(f"s_lshl_b32 s35, s{sW}, 11"); A("s_add_u32 s34, s34, s35")
            A(f"v_add_u32 {r(vRS)}, s34, v26")
        if self.rs_var == 'C':
            if not self.cfull:
                A(f"v_lshrrev_b32 v26, 5, {l}"); A("v_lshlrev_b32 v26, 3, v26")
                A("v_and_b32 v27, 1, v25"); A("v_lshlrev_b32 v27, 2, v27"); A("v_add_u32 v26, v26, v27")
                A("v_lshrrev_b32 v27, 2, v24"); A("v_add_u32 v26, v26, v27"); A("v_lshlrev_b32 v26, 11, v26")
                A("v_and_b32 v27, 3, v24"); A("v_lshlrev_b32 v27, 4, v27"); A("v_add_u32 v26, v26, v27")
                A(f"s_lshl_b32 s34, s{sW}, 16"); A(f"s_lshl_b32 s35, s{sH}, 6"); A("s_add_u32 s34, s34, s35")
                A(f"v_add_u32 {r(vPst)}, s34, v26")
                A(f"s_lshl_b32 s34, s{sH}, 13"); A(f"v_add_u32 {r(vRS)}, s34, {r(vAG)}")
            else:
                A(f"v_lshrrev_b32 v26, 5, {l}"); A("v_lshlrev_b32 v26, 2, v26")
                A("v_and_b32 v27, 1, v25"); A("v_lshlrev_b32 v27, 1, v27"); A("v_add_u32 v26, v26, v27")
                A("v_lshrrev_b32 v27, 3, v24"); A("v_add_u32 v26, v26, v27"); A("v_lshlrev_b32 v26, 12, v26")
                A("v_and_b32 v27, 7, v24"); A("v_lshlrev_b32 v27, 4, v27"); A("v_add_u32 v26, v26, v27")
                A(f"s_lshl_b32 s34, s{sW}, 16"); A(f"s_lshl_b32 s35, s{sH}, 7"); A("s_add_u32 s34, s34, s35")
                A(f"v_add_u32 {r(vPst)}, s34, v26")
                A(f"v_lshrrev_b32 v26, 2, {l}"); A("v_lshlrev_b32 v26, 7, v26"); A(f"v_and_b32 v27, 3, {l}"); A("v_lshlrev_b32 v27, 4, v27"); A("v_add_u32 v26, v26, v27")
                A(f"s_lshl_b32 s34, s{sH}, 13"); A(f"s_lshr_b32 s35, s{sW}, 1"); A("s_lshl_b32 s35, s35, 12"); A("s_add_u32 s34, s34, s35")
                A(f"s_and_b32 s35, s{sW}, 1"); A("s_lshl_b32 s35, s35, 6"); A("s_add_u32 s34, s34, s35")
                A(f"v_add_u32 {r(vRS)}, s34, v26")
            A(f"s_lshr_b32 s34, s{sH}, 3"); A("s_lshl_b32 s34, s34, 3")
            A(f"s_bfe_u32 s35, s{sH}, 0x10002"); A("s_lshl_b32 s35, s35, 2"); A("s_add_u32 s34, s34, s35")
            A(f"s_bfe_u32 s35, s{sH}, 0x10001"); A("s_add_u32 s34, s34, s35")
            A("v_and_b32 v26, 1, v25"); A("v_lshlrev_b32 v26, 1, v26"); A("v_add_u32 v26, s34, v26")
            A(f"v_bfe_u32 v27, {l}, 2, 2"); A(f"s_and_b32 s34, s{sH}, 1"); A("s_lshl_b32 s34, s34, 2"); A("v_add_u32 v27, s34, v27")
            A(f"v_bfe_u32 v28, {l}, 1, 1"); A(f"s_lshl_b32 s34, s{sW}, 1"); A("v_add_u32 v28, s34, v28")
            A("v_and_b32 v29, 1, v28"); A("v_lshlrev_b32 v29, 3, v29"); A("v_add_u32 v29, v29, v27"); A("v_lshlrev_b32 v29, 4, v29")
            A("v_lshrrev_b32 v30, 1, v28"); A("v_lshlrev_b32 v30, 2, v30"); A("v_add_u32 v29, v29, v30")
            A("v_lshlrev_b32 v30, 8, v26"); A(f"v_add_u32 {r(vMst)}, v29, v30")
            A("v_lshlrev_b32 v27, 10, v27"); A("v_lshlrev_b32 v26, 5, v26"); A("v_lshlrev_b32 v28, 2, v28"); A("v_add_u32 v27, v27, v26"); A("v_add_u32 v127, v27, v28")
            A("v_and_b32 v26, 7, v24"); A("v_lshrrev_b32 v27, 1, v26"); A("v_and_b32 v28, 1, v26")
            A("v_mov_b32 v29, 0x3f80"); A("v_mov_b32 v30, 0x3f800000")
            A("v_cmp_eq_u32 vcc, 1, v28"); A("v_cndmask_b32 v29, v29, v30, vcc")
            for rho in range(4):
                A(f"v_cmp_eq_u32 vcc, {rho}, v27"); A(f"v_cndmask_b32 {r(vSEL+rho)}, 0, v29, vcc")
        elif self.rs_var == 'A':
            A(f"v_and_b32 v26, 3, {l}"); A(f"s_and_b32 s34, s{sW}, 1"); A("s_lshl_b32 s34, s34, 2"); A("v_add_u32 v26, s34, v26")
            A(f"s_lshr_b32 s34, s{sW}, 1"); A("s_lshl_b32 s34, s34, 2"); A("v_add_u32 v27, s34, v25")
            A("v_and_b32 v28, 1, v26"); A("v_lshlrev_b32 v28, 3, v28"); A("v_add_u32 v28, v28, v27"); A("v_lshlrev_b32 v28, 4, v28")
            A("v_lshrrev_b32 v29, 1, v26"); A("v_lshlrev_b32 v29, 2, v29"); A("v_add_u32 v28, v28, v29")
            A(f"s_lshl_b32 s34, s{sH}, 8"); A(f"v_add_u32 {r(vMst)}, s34, v28")
            A("v_lshlrev_b32 v27, 10, v27"); A("v_lshlrev_b32 v26, 2, v26"); A("v_add_u32 v27, v27, v26")
            A(f"s_lshl_b32 s34, s{sH}, 5"); A("v_add_u32 v127, s34, v27")
            A("v_and_b32 v26, 7, v24"); A("v_lshrrev_b32 v27, 1, v26"); A("v_and_b32 v28, 1, v26")
            A("v_mov_b32 v29, 0x3f80"); A("v_mov_b32 v30, 0x3f800000")
            A("v_cmp_eq_u32 vcc, 1, v28"); A("v_cndmask_b32 v29, v29, v30, vcc")
            for rho in range(4):
                A(f"v_cmp_eq_u32 vcc, {rho}, v27"); A(f"v_cndmask_b32 {r(vSEL+rho)}, 0, v29, vcc")
            A(f"s_lshl_b32 s34, s{sH}, 13"); A(f"v_add_u32 {r(vRS)}, s34, {r(vAG)}")
        else:
            A("v_lshrrev_b32 v26, 2, v24"); A(f"s_and_b32 s34, s{sW}, 1"); A("s_lshl_b32 s34, s34, 2"); A("v_add_u32 v26, s34, v26")
            A("v_and_b32 v27, 1, v24"); A("v_lshlrev_b32 v27, 1, v27"); A("v_and_b32 v28, 1, v25"); A("v_add_u32 v27, v27, v28")
            A(f"s_lshr_b32 s34, s{sW}, 1"); A("s_lshl_b32 s34, s34, 2"); A("v_add_u32 v27, s34, v27")
            A("v_and_b32 v28, 1, v26"); A("v_lshlrev_b32 v28, 3, v28"); A("v_add_u32 v28, v28, v27"); A("v_lshlrev_b32 v28, 4, v28")
            A("v_lshrrev_b32 v29, 1, v26"); A("v_lshlrev_b32 v29, 2, v29"); A("v_add_u32 v28, v28, v29")
            A(f"s_lshl_b32 s34, s{sH}, 8"); A(f"v_add_u32 {r(vMst)}, s34, v28")
            A("v_lshlrev_b32 v27, 10, v27"); A("v_lshlrev_b32 v26, 2, v26"); A("v_add_u32 v27, v27, v26")
            A(f"s_lshl_b32 s34, s{sH}, 5"); A("v_add_u32 v127, s34, v27")
            A("v_and_b32 v26, 1, v24"); A("v_mov_b32 v27, 0x3f80"); A("v_mov_b32 v28, 0x3f800000")
            A("v_cmp_eq_u32 vcc, 1, v26"); A(f"v_cndmask_b32 {r(vSEL)}, v27, v28, vcc")
            for i in range(1, 4): A(f"v_mov_b32 {r(vSEL+i)}, {r(vSEL)}")
        for i in range(4): A(f"v_mov_b32 {r(vONE+i)}, 0x3f803f80")
        A("v_cmp_gt_u32 vcc, 2, v25"); A(f"v_cndmask_b32 {r(vHALF)}, 0, {r(vONE)}, vcc"); A(f"v_mov_b32 {r(vHALF+1)}, {r(vHALF)}")
        if self.rs_var == 'C':
            A(f"s_mov_b32 s{sMMSK}, 0x55555555"); A(f"s_mov_b32 s{sMMSK+1}, 0")
            A(f"s_mov_b32 s{sHB}, 0xf0f0f0f0"); A(f"s_mov_b32 s{sHB+1}, 0xf0f0f0f0")
            A(f"s_mov_b32 s{sHB2}, 0xff00ff00"); A(f"s_mov_b32 s{sHB2+1}, 0xff00ff00")
        elif self.rs_var == 'A':
            A(f"s_mov_b32 s{sMMSK}, 0x000f000f"); A(f"s_mov_b32 s{sMMSK+1}, 0x000f000f")
            A(f"s_mov_b32 s{sODD}, 0"); A(f"s_mov_b32 s{sODD+1}, -1")
        else:
            A(f"s_mov_b32 s{sMMSK}, 0x33333333"); A(f"s_mov_b32 s{sMMSK+1}, 0")
            A(f"s_mov_b32 s{sODD}, 0xffff0000"); A(f"s_mov_b32 s{sODD+1}, 0xffff0000")
        A(f"s_mov_b32 s{sC}, {fbits(SC_C):#x}"); A(f"s_mov_b32 s{sC+1}, {fbits(SC_C):#x}")
        A(f"s_mov_b32 s{sTHR}, {fbits(-1.0 if self.force_slow else 40.0/SC_C):#x}")
        A(f"s_add_u32 s{sMb}, s{sWS}, {WS_MBUF}"); A(f"s_addc_u32 s{sMb+1}, s{sWS+1}, 0")
        A(f"s_add_u32 s{sHIST}, s{sWS}, {WS_MHIST}"); A(f"s_addc_u32 s{sHIST+1}, s{sWS+1}, 0")
        A(f"s_lshl_b32 s34, s{sH}, 13")
        A(f"s_add_u32 s{sKX}, s{sWS}, s34"); A(f"s_addc_u32 s{sKX+1}, s{sWS+1}, 0")
        A(f"s_add_u32 s{sVX}, s{sKX}, {WS_VX}"); A(f"s_addc_u32 s{sVX+1}, s{sKX+1}, 0")
        A(f"s_add_u32 s{sKX}, s{sKX}, {WS_KX}"); A(f"s_addc_u32 s{sKX+1}, s{sKX+1}, 0")

    def clear_slots(self):
        A = self.A
        for i in range(4): A(f"v_mov_b32 v{28+i}, -1")
        for par in range(2):
            A(f"s_lshl_b32 s34, s{sH}, 13"); A(f"s_add_u32 s34, s34, {WS_PBUF + par*0x40000}")
            A(f"s_add_u32 s36, s{sWS}, s34"); A(f"s_addc_u32 s37, s{sWS+1}, 0")
            A(f"global_store_dwordx4 {r(vAG)}, v[28:31], s[36:37] sc1"); A(f"global_store_dwordx4 {r(vAG)}, v[28:31], s[36:37] offset:1024 sc1")
        A(f"s_mov_b64 exec, {sp(sMMSK)}")
        for i in range(4):
            A(f"s_add_u32 s36, s{sMb}, {i*8192}"); A(f"s_addc_u32 s37, s{sMb+1}, 0")
            A(f"global_store_dword {r(vMst)}, v28, s[36:37] sc1")
        A("s_mov_b64 exec, -1")

    def load_weights(self):
        A = self.A; l = "v0"
        A("s_load_dwordx4 s[56:59], s[0:1], 16"); A("s_load_dwordx4 s[60:63], s[0:1], 32")
        A(f"v_lshrrev_b32 v24, 4, {l}")
        A(f"v_and_b32 v25, 15, {l}"); A("v_lshlrev_b32 v26, 1, v24"); A("v_xor_b32 v25, v25, v26"); A("v_lshlrev_b32 v25, 4, v25")
        A("v_lshlrev_b32 v24, 13, v24"); A("v_add_u32 v24, v24, v25")
        A(f"s_lshl_b32 s34, s{sW}, 17"); A(f"s_lshl_b32 s35, s{sH}, 8"); A("s_add_u32 s34, s34, s35")
        A("v_add_u32 v24, s34, v24"); A("v_xor_b32 v25, 128, v24")
        A(f"v_lshrrev_b32 v26, 4, {l}"); A(f"v_bfe_u32 v27, {l}, 2, 2"); A(f"v_and_b32 v28, 3, {l}")
        A("v_lshlrev_b32 v29, 3, v26"); A("v_add_u32 v29, v29, v27"); A("v_lshlrev_b32 v29, 8, v29")
        A("v_lshrrev_b32 v30, 1, v28")
        A("v_lshlrev_b32 v31, 1, v27"); A("v_and_b32 v32, 1, v26"); A("v_lshlrev_b32 v32, 3, v32"); A("v_add_u32 v31, v31, v32")
        A(f"s_lshl_b32 s34, s{sW}, 2"); A("v_add_u32 v30, s34, v30"); A("v_xor_b32 v30, v30, v31")
        A("v_lshlrev_b32 v30, 4, v30"); A("v_add_u32 v29, v29, v30")
        A("v_and_b32 v32, 1, v28"); A("v_lshlrev_b32 v32, 3, v32"); A("v_add_u32 v29, v29, v32")
        A(f"v_add_u32 v38, {L_WO}, v29"); A("v_xor_b32 v39, 32, v29"); A(f"v_add_u32 v39, {L_WO}, v39")
        A("v_add_u32 v36, 0x10000, v38"); A("v_add_u32 v37, 0x10000, v39")
        A("v_lshrrev_b32 v33, 1, v26"); A("v_lshlrev_b32 v33, 3, v33"); A("v_and_b32 v34, 1, v26"); A("v_lshlrev_b32 v34, 2, v34"); A("v_add_u32 v33, v33, v34")
        A("v_and_b32 v34, 1, v27"); A("v_add_u32 v33, v33, v34"); A("v_lshlrev_b32 v33, 10, v33"); A("v_add_u32 v33, v33, v32")
        A(f"s_lshl_b32 s34, s{sW}, 8"); A(f"s_add_u32 s34, s34, {L_WO}"); A("v_add_u32 v33, s34, v33")
        A("v_lshrrev_b32 v34, 1, v27"); A("v_lshlrev_b32 v34, 1, v34"); A("v_lshrrev_b32 v35, 1, v28"); A("v_add_u32 v34, v34, v35")
        A("v_and_b32 v35, 1, v27"); A("v_lshlrev_b32 v35, 1, v35"); A("v_lshrrev_b32 v40, 1, v26"); A("v_and_b32 v40, 1, v40"); A("v_lshlrev_b32 v40, 3, v40")
        A("v_add_u32 v35, v35, v40"); A("v_xor_b32 v34, v34, v35")
        A("s_waitcnt lgkmcnt(0)")
        def dma_qkv(c):
            mat, t = divmod(c, 8); slot = c % 8; base = 56 + 2*mat
            for i in range(4):
                off = (64*t + 4*i) * 8192
                A(f"s_add_u32 s36, s{base}, {off}"); A(f"s_addc_u32 s37, s{base+1}, 0")
                A(f"s_lshl_b32 s34, s{sW}, 12"); A(f"s_add_u32 m0, s34, {L_WO + slot*16384 + i*1024}")
                A(f"global_load_lds_dwordx4 v{24 + (i >> 1)}, s[36:37]")
        def dma_wo(slot):
            for i in range(4):
                A(f"s_lshr_b32 s34, s{sW}, 1"); A("s_lshl_b32 s34, s34, 3"); A(f"s_add_u32 s34, s34, {2*i}")
                A(f"v_xor_b32 v35, s34, {l}"); A("v_lshlrev_b32 v35, 4, v35")
                A(f"s_lshl_b32 s34, s{sH}, 17"); A(f"s_lshl_b32 s35, s{sW}, 12"); A("s_add_u32 s34, s34, s35")
                A(f"s_add_u32 s34, s34, {(16*slot + i)*1024}")
                A("s_add_u32 s36, s62, s34"); A("s_addc_u32 s37, s63, 0")
                A(f"s_lshl_b32 s34, s{sW}, 12"); A(f"s_add_u32 m0, s34, {L_WO + slot*16384 + i*1024}")
                A("global_load_lds_dwordx4 v35, s[36:37]")
        for c in range(8): dma_qkv(c)
        for c in range(24):
            mat, t = divmod(c, 8); slot = c % 8
            A("s_waitcnt vmcnt(28)"); A("s_barrier")
            if c == 0:
                L2 = A.newlabel("RC")
                A(f"s_cmp_lg_u32 s{sW}, 0"); A(f"s_cbranch_scc1 {L2}")
                A("v_mov_b32 v41, 0"); A("v_mov_b32 v42, s90"); A("s_mov_b64 exec, 1")
                A(f"global_atomic_add v41, v42, {sp(sDBG)} offset:{D_ROLL*4}")
                A("s_mov_b64 exec, -1")
                A.label(L2)
            for X in range(2):
                for q4 in range(4):
                    roff = [0, 4, 32, 36][q4] * 256
                    ridx = (X*8 + t)*8 + 2*q4
                    d = ar(ridx, 2) if mat == 0 else (ar(128 + ridx, 2) if mat == 1 else r(WV + ridx, 2))
                    so = slot*16384 + roff
                    if so < 65536: A(f"ds_read_b64_tr_b16 {d}, v{38+X} offset:{so}")
                    else: A(f"ds_read_b64_tr_b16 {d}, v{36+X} offset:{so-65536}")
            A("s_waitcnt lgkmcnt(0)"); A("s_barrier")
            if c + 8 < 24: dma_qkv(c + 8)
            else: dma_wo(slot)
        for hb in range(2):
            A("s_waitcnt vmcnt(16)" if hb == 0 else "s_waitcnt vmcnt(0)"); A("s_barrier")
            for dl in range(4):
                for u1 in range(2):
                    A(f"v_xor_b32 v35, {(4*dl) ^ (4*u1)}, v34"); A("v_lshlrev_b32 v35, 4, v35"); A("v_add_u32 v35, v35, v33")
                    if hb: A("v_add_u32 v35, 0x10000, v35")
                    for tl in range(2):
                        for u2 in range(2):
                            u = 2*u2 + u1
                            dst = 48 + (dl*2 + tl)*8 + 2*u
                            A(f"ds_read_b64_tr_b16 {r(dst, 2)}, v35 offset:{tl*32768 + u2*16384 + u1*2048}")
            A("s_waitcnt lgkmcnt(0)"); A("s_barrier")
            b = vWoA if hb == 0 else vWoB
            for st in range(8):
                for half in range(2):
                    A(f"ds_write_b128 {r(b)}, {r(48 + st*8 + 4*half, 4)} offset:{st*2048 + half*1024}")
            A("s_waitcnt lgkmcnt(0)")

    def dma_k(self):
        A = self.A
        A(f"s_lshl_b32 s34, s{sW}, 11"); A(f"s_add_u32 m0, s34, {L_KX}")
        A(f"global_load_lds_dwordx4 {r(vAG)}, {sp(sKX)}"); A(f"global_load_lds_dwordx4 {r(vAG)}, {sp(sKX)} offset:1024 sc1")
        A(f"s_add_u32 s{sKX}, s{sKX}, 0x40000"); A(f"s_addc_u32 s{sKX+1}, s{sKX+1}, 0")
    def dma_v(self):
        A = self.A
        A(f"s_lshl_b32 s34, s{sW}, 11"); A(f"s_add_u32 m0, s34, {L_VX}")
        A(f"global_load_lds_dwordx4 {r(vAG)}, {sp(sVX)}"); A(f"global_load_lds_dwordx4 {r(vAG)}, {sp(sVX)} offset:1024")
        A(f"s_add_u32 s{sVX}, s{sVX}, 0x40000"); A(f"s_addc_u32 s{sVX+1}, s{sVX+1}, 0")

    def preload_mem0(self):
        A = self.A
        A("s_load_dwordx2 s[36:37], s[0:1], 8"); A("s_waitcnt lgkmcnt(0)")
        A(f"s_mov_b64 exec, {sp(sMMSK)}")
        A("global_load_dword v126, v127, s[36:37]")
        A("s_mov_b64 exec, -1")
    def publish_mem0(self):
        A = self.A
        A(f"s_mov_b64 exec, {sp(sMMSK)}")
        A(f"global_store_dword {r(vMst)}, v126, {sp(sMb)}")
        if self.hist: A(f"global_store_dword {r(vMst)}, v126, {sp(sHIST)}")
        A("s_mov_b64 exec, -1")

    def salu_step(self):
        L = []; A = L.append
        A(f"s_and_b32 s34, s{sS}, 1"); A("s_lshl_b32 s34, s34, 18"); A(f"s_add_u32 s34, s34, {WS_PBUF}")
        A(f"s_add_u32 s{sPst}, s{sWS}, s34"); A(f"s_addc_u32 s{sPst+1}, s{sWS+1}, 0")
        A(f"s_add_u32 s24, s{sPst}, 32768"); A(f"s_addc_u32 s25, s{sPst+1}, 0")
        A(f"s_bfe_u32 s{sTAG}, s{sS}, 0x10001")
        A(f"s_add_u32 s34, s{sS}, 1"); A("s_and_b32 s35, s34, 3"); A("s_lshl_b32 s35, s35, 13")
        A(f"s_add_u32 s{sMn}, s{sMb}, s35"); A(f"s_addc_u32 s{sMn+1}, s{sMb+1}, 0")
        A("s_xor_b32 s35, s35, 0x4000")
        A(f"s_add_u32 s{sMz}, s{sMb}, s35"); A(f"s_addc_u32 s{sMz+1}, s{sMb+1}, 0")
        if self.hist:
            A("s_lshl_b32 s34, s34, 13"); A(f"s_add_u32 s{sHn}, s{sHIST}, s34"); A(f"s_addc_u32 s{sHn+1}, s{sHIST+1}, 0")
        A(f"s_lshl_b32 s34, s{sS}, 5"); A(f"s_add_u32 s34, s34, s{sH}")
        A("s_lshl_b32 s35, s34, 11"); A(f"s_add_u32 s35, s35, {WS_EK}"); A(f"s_add_u32 s{sEK}, s{sWS}, s35"); A(f"s_addc_u32 s{sEK+1}, s{sWS+1}, 0")
        A("s_lshl_b32 s35, s34, 13"); A(f"s_add_u32 s35, s35, {WS_EV}"); A(f"s_add_u32 s{sEV}, s{sWS}, s35"); A(f"s_addc_u32 s{sEV+1}, s{sWS+1}, 0")
        A(f"s_lshl_b32 s34, s{sS}, {CS}"); A(f"s_add_u32 s35, s34, {cnt_off(C_EXP) - 128}")
        A(f"s_cmp_eq_u32 s{sS}, 0"); A(f"s_cselect_b32 s35, {CNT_DUMMY}, s35")
        A(f"s_add_u32 s{sEXC}, s{sWS}, s35"); A(f"s_addc_u32 s{sEXC+1}, s{sWS+1}, 0")
        return L
    def shadow_prep(self):
        A = self.A
        for i in range(0, 16, 2): A(f"v_mov_b64 {r(AQ+i,2)}, 0")
        A(f"v_mov_b32 {r(SX)}, -1")

    def ag_poll_m(self, P="L"):
        A = self.A; b = Q; dep = self.ag_depth
        def issue():
            A(f"global_load_dwordx4 {r(b,4)}, {r(vAG)}, {sp(sMc)} sc1")
            A(f"global_load_dwordx4 {r(b+4,4)}, {r(vAG)}, {sp(sMc)} offset:1024 sc1")
        def check():
            A(f"v_max3_u32 {r(T0r)}, {r(b)}, {r(b+1)}, {r(b+2)}"); A(f"v_max3_u32 {r(T1r)}, {r(b+3)}, {r(b+4)}, {r(b+5)}")
            A(f"v_max3_u32 {r(T0r)}, {r(T0r)}, {r(b+6)}, {r(b+7)}"); A(f"v_max_u32 {r(T0r)}, {r(T0r)}, {r(T1r)}")
            A(f"v_cmp_eq_u32 vcc, -1, {r(T0r)}")
            A(f"s_cbranch_vccz {P}_agok")
            A("s_mov_b64 exec, vcc")
            issue()
            A(f"s_add_u32 s{sNAG}, s{sNAG}, 1")
        self.stamp(0)
        A(f"s_mov_b32 s{sCNT}, 0")
        self.shadow_prep()
        self.delay(self.ag_delay)
        for k in range(dep):
            issue()
            if k < dep-1:
                self.delay(self.ag_gap)
        A(f"global_store_dwordx4 {r(vAG)}, {r(SX,4)}, {sp(sPz)}"); A(f"global_store_dwordx4 {r(vAG)}, {r(SX,4)}, {sp(sPz)} offset:1024")
        A(f"s_mov_b64 exec, {sp(sMMSK)}"); A(f"global_store_dword {r(vMst)}, {r(SX)}, {sp(sMz)}"); A("s_mov_b64 exec, -1")
        for k in range(dep):
            A(f"s_waitcnt vmcnt({2*(dep-1) + 3})"); check()
        A.label(f"{P}_ag")
        A(f"s_waitcnt vmcnt({2*(dep-1)})"); check()
        A(f"s_add_u32 s{sCNT}, s{sCNT}, 1")
        A(f"s_cmp_lt_u32 s{sCNT}, 6000"); A(f"s_cbranch_scc1 {P}_ag")
        A(f"s_mov_b32 s{sFAIL}, 1"); A("s_waitcnt vmcnt(0)")
        A.label(f"{P}_agok")
        A("s_mov_b64 exec, -1")
        A(f"ds_write_b128 {r(vAG)}, {r(b,4)}"); A(f"ds_write_b128 {r(vAG)}, {r(b+4,4)} offset:1024")
        self.stamp(1)
        A("s_waitcnt lgkmcnt(0)")
        A("s_barrier")

    def ag_poll(self, P="L"):
        if self.nocomm or self.no_ag:
            A = self.A
            self.stamp(0)
            A(f"ds_write_b128 {r(vAG)}, {r(WV,4)}"); A(f"ds_write_b128 {r(vAG)}, {r(WV+4,4)} offset:1024")
            self.stamp(1); A("s_waitcnt lgkmcnt(0)"); A("s_barrier"); return
        if self.mpoll: return self.ag_poll_m(P)
        A = self.A
        n = self.ag_sets
        regs = [Q, Q+8, K, K+8][:n]
        def issue(b):
            A(f"global_load_dwordx4 {r(b,4)}, {r(vAG)}, {sp(sMc)} sc1")
            A(f"global_load_dwordx4 {r(b+4,4)}, {r(vAG)}, {sp(sMc)} offset:1024 sc1")
        def check(b, last=False):
            A(f"ds_write_b128 {r(vAG)}, {r(b,4)}")
            A(f"v_max3_u32 {r(T0r)}, {r(b)}, {r(b+1)}, {r(b+2)}"); A(f"v_max3_u32 {r(T1r)}, {r(b+3)}, {r(b+4)}, {r(b+5)}")
            A(f"ds_write_b128 {r(vAG)}, {r(b+4,4)} offset:1024")
            A(f"v_max3_u32 {r(T0r)}, {r(T0r)}, {r(b+6)}, {r(b+7)}"); A(f"v_max_u32 {r(T0r)}, {r(T0r)}, {r(T1r)}")
            A(f"v_cmp_eq_u32 vcc, -1, {r(T0r)}")
            if last:
                A(f"s_cbranch_vccnz {P}_agretry")
                return
            A(f"s_cbranch_vccz {P}_agok")
            issue(b)
            A(f"s_add_u32 s{sNAG}, s{sNAG}, 1")
        self.stamp(0)
        A(f"s_mov_b32 s{sCNT}, 0")
        stv = self.exports and self.stash_v
        if stv:
            A(f"ds_read_b128 {r(OX,4)}, {r(vAG)}")
            A(f"s_mov_b32 s{sEVp}, s{sEV}"); A(f"s_mov_b32 s{sEVp+1}, s{sEV+1}")
        if not self.early_shadow: self.shadow_prep()
        self.delay(self.ag_delay)
        for k, b in enumerate(regs):
            issue(b)
            if k < n-1:
                self.delay(self.ag_gap)
        nres = 0
        if self.ag_reset:
            if not self.ptag:
                A(f"global_store_dwordx4 {r(vAG)}, {r(SX,4)}, {sp(sPz)}"); A(f"global_store_dwordx4 {r(vAG)}, {r(SX,4)}, {sp(sPz)} offset:1024")
            A(f"s_mov_b64 exec, {sp(sMMSK)}"); A(f"global_store_dword {r(vMst)}, {r(SX)}, {sp(sMz)}"); A("s_mov_b64 exec, -1")
            nres = 1 if self.ptag else 3
            if stv:
                A("s_waitcnt lgkmcnt(0)"); A(f"global_store_dwordx4 {r(vAG)}, {r(OX,4)}, {sp(sEVp)} sc1"); nres = 4
            for k, b in enumerate(regs):
                A(f"s_waitcnt vmcnt({2*(n-1) + nres})"); check(b, last=(self.ft and k == n-1))
        def loop_code():
            A.label(f"{P}_ag")
            for k, b in enumerate(regs):
                A(f"s_waitcnt vmcnt({2*(n-1)})"); check(b)
            A(f"s_add_u32 s{sCNT}, s{sCNT}, 1")
            A(f"s_cmp_lt_u32 s{sCNT}, 100000"); A(f"s_cbranch_scc1 {P}_ag")
            A(f"s_mov_b32 s{sFAIL}, 1"); A("s_waitcnt vmcnt(0)")
        if self.ft:
            def ool():
                A.label(f"{P}_agretry")
                issue(regs[-1]); A(f"s_add_u32 s{sNAG}, s{sNAG}, 1")
                loop_code()
                A(f"s_branch {P}_agok")
            self.ool.append(ool)
        else:
            loop_code()
        A.label(f"{P}_agok")
        self.stamp(1)
        A("s_waitcnt lgkmcnt(0)")
        A("s_barrier")

    def rs_check(self, b, D, MF, last=False):
        A = self.A
        assert self.ptag
        A(f"v_xor_b32 {r(T0r)}, s{sTAG+1}, {r(b)}"); A(f"v_xor_b32 {r(T1r)}, s{sTAG+1}, {r(b+4)}")
        A(f"{MF} {r(D,4)}, {r(vSEL,4)}, {r(b,4)}, 0")
        A(f"v_or_b32 {r(T0r)}, {r(T0r)}, {r(T1r)}"); A(f"v_and_b32 {r(T0r)}, 1, {r(T0r)}")
        A(f"{MF} {r(D,4)}, {r(vSEL,4)}, {r(b+4,4)}, {r(D,4)}")
        A(f"v_cmp_ne_u32 vcc, 0, {r(T0r)}")
        A("s_cbranch_vccnz L_rsretry" if last else "s_cbranch_vccz L_rsok")

    def exp_flag(self):
        L = self.A.newlabel("XF")
        return [f"s_mov_b64 exec, {sp(sXM)}", f"s_cbranch_execz {L}", f"global_atomic_add {r(vL16)}, {r(vIDX)}, {sp(sEXC)}", f"{L}:", "s_mov_b64 exec, -1"]

    def kv_fast(self):
        L = self.A.newlabel("KVR")
        self.kv_ret.append(L)
        return [f"s_cmp_ge_u32 s{sS}, s{sKVOK}", f"s_cbranch_scc1 KVSLOW", f"KVRET:"]
    def sm_slow_code(self):
        A = self.A; mx, t1 = T0r, T1r
        A.label("SMSLOW")
        A(f"v_max3_f32 {r(mx)}, {r(SX)}, {r(SX+1)}, {r(SX+2)}"); A(f"v_max3_f32 {r(t1)}, {r(SX+3)}, {r(SX+4)}, {r(SX+5)}")
        A(f"v_max3_f32 {r(mx)}, {r(mx)}, {r(SX+6)}, {r(SX+7)}"); A(f"v_max3_f32 {r(t1)}, {r(t1)}, {r(SM)}, {r(SM+1)}")
        A(f"v_max3_f32 {r(mx)}, {r(mx)}, {r(SM+2)}, {r(SM+3)}"); A(f"v_max_f32 {r(mx)}, {r(mx)}, {r(t1)}")
        A(f"v_mov_b32 {r(t1)}, {r(mx)}"); A(f"v_permlane16_swap_b32 {r(mx)}, {r(t1)}"); A(f"v_max_f32 {r(mx)}, {r(mx)}, {r(t1)}")
        A(f"v_mov_b32 {r(t1)}, {r(mx)}"); A(f"v_permlane32_swap_b32 {r(mx)}, {r(t1)}"); A(f"v_max_f32 {r(mx)}, {r(mx)}, {r(t1)}")
        for b in list(range(SX, SX+8)) + list(range(SM, SM+4)): A(f"v_sub_f32 {r(b)}, {r(b)}, {r(mx)}")
        A("s_nop 1")
        A("s_branch SMRET")

    def kv_slow_code(self, lab="KVSLOW", ret="KVRET", need_off=0):
        A = self.A
        A.label(lab)
        A("s_mov_b32 s35, 0")
        A.label(lab + "_l")
        A(f"v_lshlrev_b32 {r(T1r)}, 3, {r(vL16)}")
        A(f"global_load_dword {r(T0r)}, {r(T1r)}, {sp(sKVC)} sc1"); A("s_waitcnt vmcnt(0)")
        A(f"v_cmp_gt_u32 vcc, 32, {r(T0r)}")
        A("s_nop 3"); A("s_ff1_i32_b64 s34, vcc")
        A("s_cmp_eq_u32 s34, -1"); A("s_cselect_b32 s34, 64, s34")
        if self.dma_rs: A(f"s_mov_b32 s{sKVOK}, s34")
        else: A(f"s_sub_u32 s{sKVOK}, s34, 1"); A("s_cmp_eq_u32 s34, 64"); A(f"s_cselect_b32 s{sKVOK}, 64, s{sKVOK}")
        A(f"s_cmp_lt_i32 s{sS}, s{sKVOK}"); A(f"s_cbranch_scc1 {ret}")
        A("s_sleep 4"); A("s_add_u32 s35, s35, 1"); A("s_cmp_lt_u32 s35, 200000"); A(f"s_cbranch_scc1 {lab}_l")
        A(f"s_mov_b32 s{sKVOK}, 64"); A(f"s_branch {ret}")

    def kv_check(self):
        A = self.A
        L = A.newlabel("KV"); E = A.newlabel("KVE")
        out = [f"v_readlane_b32 s34, {r(vMst)}, 2", "s_cmp_ge_u32 s34, 32", f"s_cbranch_scc1 {E}", "s_mov_b32 s35, 0", "s_mov_b64 exec, 4", f"{L}:",
               f"global_load_dword {r(vMst)}, {r(vL16)}, {sp(sKVC)} offset:-96 sc1", "s_waitcnt vmcnt(0)",
               f"v_readlane_b32 s34, {r(vMst)}, 2", "s_cmp_ge_u32 s34, 32", f"s_cbranch_scc1 {E}_x", "s_sleep 2",
               "s_add_u32 s35, s35, 1", "s_cmp_lt_u32 s35, 200000", f"s_cbranch_scc1 {L}", f"{E}_x:", "s_mov_b64 exec, -1", f"{E}:"]
        return out
    def kv_prefetch(self):
        return ["s_mov_b64 exec, 4", f"global_load_dword {r(vMst)}, {r(vL16)}, {sp(sKVC)} offset:-32 sc1", "s_mov_b64 exec, -1"]

    def weave(self, main, fill):
        A = self.A
        for x in fill.get(-1, []): A(x)
        for i, m in enumerate(main):
            A(m)
            for x in fill.get(i, []): A(x)
        for k in fill:
            assert k < len(main), (k, len(main))

    def step(self):
        A = self.A
        SMF = "v_smfmac_f32_16x16x64_bf16"; MF = "v_mfma_f32_16x16x32_bf16"; MF16 = "v_mfma_f32_16x16x16_bf16"
        st = lambda i: ([f"s_memtime s[{sST+2*i}:{sST+2*i+1}]"] if self.stamps else [])
        from collections import defaultdict
        self.stamp(2)
        kx0 = [K, K+4, K+8, K+12]; kx1 = [OX, OX+4, LX, SM]
        qs = [f"{SMF} {r(AQ+4*X,4)}, {r(M+4*t,4)}, {ar((X*8+t)*8, 8)}, {r(vIDX)}" for t in range(8) for X in range(2)]
        F = defaultdict(list)
        kxr = [f"ds_read_b128 {r(kx0[t],4)}, {r(vL16)} offset:{L_KX + t*1024}" for t in range(4)] + \
              [f"ds_read_b128 {r(kx1[t],4)}, {r(vL16)} offset:{L_KX + (4+t)*1024}" for t in range(4)]
        mr = [f"ds_read_b128 {r(M+4*t,4)}, {r(vL16)} offset:{L_STG + t*1024}" for t in range(8)]
        if not self.pipe_t0:
            for x in mr: A(x)
            F[-1].append("s_waitcnt lgkmcnt(7)")
            nk = 0
            for t in range(1, 8):
                slot = 2*t - 1
                F[slot].append(f"s_waitcnt lgkmcnt({min(15, 7 - t + nk)})")
                if t >= 4:
                    F[slot].append(kxr[nk]); nk += 1
                    F[slot+1 if slot+1 < 16 else slot].append(kxr[nk]); nk += 1
        else:
            LA = 3
            for x in mr[:LA]: A(x)
            seq = mr[LA:] + kxr
            F[-1].append(f"s_waitcnt lgkmcnt({LA-1})")
            issued = LA
            for sl in range(16):
                if sl < len(seq): F[sl].append(seq[sl]); issued += 1
                if sl % 2 == 1 and sl < 15:
                    t = (sl + 1)//2
                    F[sl].append(f"s_waitcnt lgkmcnt({min(15, issued - 1 - t)})")
            nk = 8
        if not self.ag_reset:
            F[0].append(f"global_store_dwordx4 {r(vAG)}, {r(SX,4)}, {sp(sPz)}")
            F[2].append(f"global_store_dwordx4 {r(vAG)}, {r(SX,4)}, {sp(sPz)} offset:1024")
            F[4] += [f"s_mov_b64 exec, {sp(sMMSK)}", f"global_store_dword {r(vMst)}, {r(SX)}, {sp(sMz)}", "s_mov_b64 exec, -1"]
            F[6] += ["s_waitcnt vmcnt(3)"]

        sl = self.salu_step()
        chunks = []; cur = []
        for x in sl:
            cur.append(x)
            if len(cur) >= 2 and not (x.startswith("s_add_u32") or x.startswith("s_cmp")): chunks.append(cur); cur = []
        if cur: chunks.append(cur)
        qslots = [13, 14, 15]
        for i, sl_ in enumerate(qslots): F[sl_] += chunks[i]
        self.kchunks = chunks[len(qslots):]
        self.weave(qs, F)
        assert nk == 8
        self.stamp(3)
        BAR = self.bar
        ks = [f"{SMF} {r(AK+4*X,4)}, {r(M+4*t,4)}, {ar(128+(X*8+t)*8, 8)}, {r(vIDX)}" for t in range(8) for X in range(2)]
        def post(acc, lds_off):
            return [f"v_permlane32_swap_b32 {r(acc+j)}, {r(acc+4+j)}" for j in range(4)] + \
                   [f"v_pk_add_f32 {r(acc,2)}, {r(acc,2)}, {r(acc+4,2)}", f"v_pk_add_f32 {r(acc+2,2)}, {r(acc+2,2)}, {r(acc+6,2)}",
                    f"v_cvt_pk_bf16_f32 {r(acc)}, {r(acc)}, {r(acc+1)}", f"v_cvt_pk_bf16_f32 {r(acc+1)}, {r(acc+2)}, {r(acc+3)}",
                    f"ds_write_b64 {r(vQW)}, {r(acc,2)} offset:{lds_off}"]
        F = defaultdict(list)
        F[1] += post(AQ, L_QB)
        F[8] += ["s_waitcnt vmcnt(0)"]
        if self.kbar:
            F[0] += ["s_waitcnt lgkmcnt(0)", "s_barrier"]
            if self.kvwait: F[0] += self.kv_fast()
            F[9] += [f"s_mov_b32 m0, s{sM0K}", f"global_load_lds_dwordx4 {r(vAG)}, {sp(sKX)} sc1"]
            F[13] += [f"global_load_lds_dwordx4 {r(vAG)}, {sp(sKX)} offset:1024 sc1", f"s_add_u32 s{sKX}, s{sKX}, 0x40000", f"s_addc_u32 s{sKX+1}, s{sKX+1}, 0"]
            if self.dmalat: F[13] += st(4) + ["s_waitcnt vmcnt(0)"] + st(6)
        kslots = [2, 3, 4, 5, 6, 7, 8, 10, 12, 14]
        assert len(self.kchunks) <= len(kslots), len(self.kchunks)
        for i, cch in enumerate(self.kchunks): F[kslots[i]] += cch
        for j in range(0, 8, 2): F[9 + j].append(f"v_mov_b64 {r(AQ+j,2)}, 0")
        self.weave(ks, F)
        self.stamp(5)
        vs = [f"{SMF} {r(AQ+4*X,4)}, {r(M+4*t,4)}, {r(WV+(X*8+t)*8, 8)}, {r(vIDX)}" for t in range(8) for X in range(2)]
        NV1 = self.nv1
        qtr = [f"ds_read_b64_tr_b16 {r(Q+4*t+2*hf,2)}, {r(vQR)} offset:{L_QB + t*512 + hf*256}" for t in range(4) for hf in range(2)]
        KF = M + 8
        ktr = [f"ds_read_b64_tr_b16 {r(KF+4*t+2*hf,2)}, {r(vQR)} offset:{L_KB + t*512 + hf*256}" for t in range(4) for hf in range(2)]
        F = defaultdict(list)
        kp = post(AK, L_KB)
        F[1] += kp
        if self.exports: F[2] += [f"global_store_dwordx2 {r(vQW)}, {r(AK,2)}, {sp(sEK)} sc1"]
        F[BAR] += ["s_waitcnt lgkmcnt(0)", "s_barrier"] + ([] if self.dmalat else st(6))
        if self.exports: F[BAR+1] += self.exp_flag()
        for i in range(4): F[BAR+i] += qtr[2*i:2*i+2]
        if self.kvwait and not self.kbar and not self.dma_rs: F[BAR] += self.kv_fast()
        if not self.kbar and not self.dma_rs: F[BAR+1] += [f"s_mov_b32 m0, s{sM0K}", f"global_load_lds_dwordx4 {r(vAG)}, {sp(sKX)} sc1"]
        if self.vearly:
            F[3] += [f"ds_read_b128 {r(M,4)}, {r(vAG)} offset:{L_VX}"]
            F[4] += [f"ds_read_b128 {r(M+4,4)}, {r(vAG)} offset:{L_VX + 1024}"]
            assert BAR >= 5
            F[BAR+1] += [f"s_mov_b32 m0, s{sM0V}", f"global_load_lds_dwordx4 {r(vAG)}, {sp(sVX)} sc1"]
            F[BAR+5] += [f"global_load_lds_dwordx4 {r(vAG)}, {sp(sVX)} offset:1024 sc1", f"s_add_u32 s{sVX}, s{sVX}, 0x40000", f"s_addc_u32 s{sVX+1}, s{sVX+1}, 0"]
        else:
            F[BAR+2] += [f"ds_read_b128 {r(M,4)}, {r(vAG)} offset:{L_VX}"]
            F[BAR+3] += [f"ds_read_b128 {r(M+4,4)}, {r(vAG)} offset:{L_VX + 1024}"]
        if not self.kbar and not self.dma_rs: F[BAR+5] += [f"global_load_lds_dwordx4 {r(vAG)}, {sp(sKX)} offset:1024 sc1", f"s_add_u32 s{sKX}, s{sKX}, 0x40000", f"s_addc_u32 s{sKX+1}, s{sKX+1}, 0"]
        self.weave(vs[:NV1], F)
        assert NV1 >= 12
        for x in ktr: A(x)
        sx = [f"{MF} {r(SX+4*X,4)}, {r((kx0 if X == 0 else kx1)[t],4)}, {r(Q+4*t,4)}, {'0' if t == 0 else r(SX+4*X,4)}" for t in range(4) for X in range(2)]
        A("s_waitcnt lgkmcnt(8)")
        for x in sx: A(x)
        mx, t1 = T0r, T1r
        ab = (lambda x: f"|{x}|") if self.standin else (lambda x: x)
        pre = [f"v_max3_f32 {r(mx)}, {ab(r(SX))}, {ab(r(SX+1))}, {ab(r(SX+2))}", f"v_max3_f32 {r(t1)}, {ab(r(SX+4))}, {ab(r(SX+5))}, {ab(r(SX+6))}",
               f"v_max3_f32 {r(mx)}, {r(mx)}, {ab(r(SX+3))}, {ab(r(SX+7))}", f"v_max_f32 {r(mx)}, {r(mx)}, {r(t1)}"]
        A("s_waitcnt lgkmcnt(0)")
        for t in range(4):
            A(f"{MF} {r(SM,4)}, {r(KF+4*t,4)}, {r(Q+4*t,4)}, {'0' if t == 0 else r(SM,4)}")
            if t >= 1: A(pre[t-1])
        A(pre[3])
        self.stamp(7)
        sets = [Q, Q+8, K, K+8, M+8, M+16, M+24, AQ, M]
        def ldset(idx, reg):
            dl, t = divmod(idx, 4); b = vWoA if t < 2 else vWoB; o = (dl*2 + (t & 1))*2048
            return [f"ds_read_b128 {r(reg,4)}, {r(b)} offset:{o}", f"ds_read_b128 {r(reg+4,4)}, {r(b)} offset:{o+1024}"]
        F = defaultdict(list)
        rd = ldset(0, sets[0]) + ldset(1, sets[1])
        n2 = 16 - NV1
        if self.vearly or self.dma_rs: F[0] += [rd[0]]
        else:
            F[0] += [f"s_mov_b32 m0, s{sM0V}", rd[0]]
            F[0] += [f"global_load_lds_dwordx4 {r(vAG)}, {sp(sVX)} sc1"]
        for i in range(1, 4): F[min(i, n2-1)].append(rd[i])
        self.weave(vs[NV1:], F)
        mx, t1 = T0r, T1r
        rd = ldset(2, sets[2]) + ldset(3, sets[3]) + ldset(4, sets[4]) + ldset(5, sets[5]) + ldset(6, sets[6])
        vc = [f"v_cvt_pk_bf16_f32 {r(AK+2*X+h)}, {r(AQ+4*X+2*h)}, {r(AQ+4*X+2*h+1)}" for X in range(2) for h in range(2)]
        vdma2 = [f"global_load_lds_dwordx4 {r(vAG)}, {sp(sVX)} offset:1024 sc1", f"s_add_u32 s{sVX}, s{sVX}, 0x40000", f"s_addc_u32 s{sVX+1}, s{sVX+1}, 0"]
        ri = 0
        if self.standin:
            ab = lambda x: f"|{x}|"
            A(f"v_max3_f32 {r(mx)}, {r(mx)}, {ab(r(SM))}, {ab(r(SM+1))}"); A(f"v_max3_f32 {r(mx)}, {r(mx)}, {ab(r(SM+2))}, {ab(r(SM+3))}")
            A(f"v_cmp_lt_f32 vcc, s{sTHR}, {r(mx)}")
            for b in (SX, SX+2, SX+4, SX+6, SM, SM+2): A(f"v_pk_mul_f32 {r(b,2)}, {r(b,2)}, {sp(sC)}")
            if not self.vearly and not self.dma_rs:
                for x in vdma2: A(x)
            A("s_cbranch_vccnz SMSLOW"); A.label("SMRET")
            for x in vc: A(x)
            if self.exports: A(f"global_store_dwordx4 {r(vAG)}, {r(AK,4)}, {sp(sEV)} sc1")
            if self.looptail: A(f"s_cmp_eq_u32 s{sS}, 63"); A("s_cbranch_scc1 L_fin")
        else:
            A(f"v_max3_f32 {r(mx)}, {r(mx)}, {r(SM)}, {r(SM+1)}"); A(f"v_max3_f32 {r(mx)}, {r(mx)}, {r(SM+2)}, {r(SM+3)}")
            A(f"v_mov_b32 {r(t1)}, {r(mx)}")
            if not self.vearly and not self.dma_rs:
                for x in vdma2: A(x)
            A(f"v_permlane16_swap_b32 {r(mx)}, {r(t1)}"); A(f"v_max_f32 {r(mx)}, {r(mx)}, {r(t1)}")
            A(f"v_mov_b32 {r(t1)}, {r(mx)}"); A(rd[0]); A(rd[1])
            A(f"v_permlane32_swap_b32 {r(mx)}, {r(t1)}"); A(rd[2]); A(f"v_max_f32 {r(mx)}, {r(mx)}, {r(t1)}")
            ri = 3
            for x in vc: A(x)
            if self.exports: A(f"global_store_dwordx4 {r(vAG)}, {r(AK,4)}, {sp(sEV)} sc1")
            if self.looptail: A(f"s_cmp_eq_u32 s{sS}, 63"); A("s_cbranch_scc1 L_fin")
            A(f"v_mul_f32 {r(mx)}, s{sC}, {r(mx)}")
            def pkf(b): return f"v_pk_fma_f32 {r(b,2)}, {r(b,2)}, {sp(sC)}, {r(mx,2)} op_sel_hi:[1,1,0] neg_lo:[0,0,1] neg_hi:[0,0,1]"
            for b in (SX, SX+2, SX+4, SX+6, SM, SM+2): A(pkf(b))
        for i in range(8):
            A(f"v_exp_f32 {r(SX+i)}, {r(SX+i)}")
            if ri < len(rd): A(rd[ri]); ri += 1
        if not self.pvearly:
            for i in range(4): A(f"v_exp_f32 {r(SM+i)}, {r(SM+i)}")
        for i in range(4): A(f"v_cvt_pk_bf16_f32 {r(SX+i)}, {r(SX+2*i)}, {r(SX+2*i+1)}")
        while ri < len(rd): A(rd[ri]); ri += 1
        if not self.pvearly:
            for i in range(2): A(f"v_cvt_pk_bf16_f32 {r(SM+i)}, {r(SM+2*i)}, {r(SM+2*i+1)}")
        self.stamp(8)
        A("s_waitcnt lgkmcnt(14)")
        A(f"{MF} {r(LX,4)}, {r(vONE,4)}, {r(SX,4)}, 0")
        if self.pvearly: A(f"v_exp_f32 {r(SM)}, {r(SM)}")
        A(f"{MF} {r(OX,4)}, {r(M,4)}, {r(SX,4)}, 0")
        if self.pvearly: A(f"v_exp_f32 {r(SM+1)}, {r(SM+1)}")
        A(f"{MF} {r(OX+4,4)}, {r(M+4,4)}, {r(SX,4)}, 0")
        if self.pvearly:
            A(f"v_exp_f32 {r(SM+2)}, {r(SM+2)}"); A(f"v_exp_f32 {r(SM+3)}, {r(SM+3)}")
            for i in range(2): A(f"v_cvt_pk_bf16_f32 {r(SM+i)}, {r(SM+2*i)}, {r(SM+2*i+1)}")
        A(f"{MF16} {r(LX,4)}, {r(vHALF,2)}, {r(SM,2)}, {r(LX,4)}")
        for X in range(2): A(f"{MF16} {r(OX+4*X,4)}, {r(AK+2*X,2)}, {r(SM,2)}, {r(OX+4*X,4)}")
        rd = ldset(7, sets[7]) + ldset(8, sets[8])
        for x in rd: A(x)
        A(f"v_rcp_f32 {r(mx)}, {r(LX)}")
        for X in range(2):
            o = OX + 4*X
            A(f"v_pk_mul_f32 {r(o,2)}, {r(o,2)}, {r(mx,2)} op_sel_hi:[1,0]"); A(f"v_pk_mul_f32 {r(o+2,2)}, {r(o+2,2)}, {r(mx,2)} op_sel_hi:[1,0]")
            A(f"v_cvt_pk_bf16_f32 {r(o)}, {r(o)}, {r(o+1)}"); A(f"v_cvt_pk_bf16_f32 {r(o+1)}, {r(o+2)}, {r(o+3)}")
            A(f"ds_write_b64 {r(vOW)}, {r(o,2)} offset:{X*32}")
        self.stamp(9)
        ACC = AK
        for i in range(0, 16, 2): A(f"v_mov_b64 {r(ACC+i,2)}, 0")
        A("s_waitcnt lgkmcnt(0)"); A("s_barrier")
        self.stamp(10)
        OF = SM
        for t in range(4): A(f"ds_read_b128 {r(OF+4*t,4)}, {r(vOR)} offset:{t*64}")
        reg_of = {i: sets[i] for i in range(9)}
        main = []; F = defaultdict(list)
        issued = []
        nxt = 9
        for idx in range(16):
            dl, t = divmod(idx, 4)
            main.append(None)
        lds_out = ['o0', 'o1', 'o2', 'o3']
        def wait_for(tag):
            if tag in lds_out:
                last = max(i for i, x in enumerate(lds_out) if x == tag)
                n = len(lds_out) - 1 - last
                A(f"s_waitcnt lgkmcnt({min(n,15)})")
                del lds_out[:last+1]
        pend = []
        for idx in range(16):
            dl, t = divmod(idx, 4)
            if dl == 0: wait_for(f'o{t}')
            if idx >= 9: wait_for(f's{idx}')
            A(f"{SMF} {r(ACC+4*dl,4)}, {r(OF+4*t,4)}, {r(reg_of[idx],8)}, {r(vIDX)}")
            if nxt < 16:
                reg_of[nxt] = reg_of[idx]
                for x in ldset(nxt, reg_of[nxt]): pend.append((x, f's{nxt}'))
                nxt += 1
            n = (1 if idx >= 3 else 2) if self.wo_spread else 99
            if self.wo_spread and idx >= 8: n = 2
            for _ in range(n):
                if pend:
                    x, tg = pend.pop(0); A(x); lds_out.append(tg)
            if self.rs_var == 'C':
                a = ACC
                if idx == 5: A(f"v_cvt_pk_bf16_f32 {r(a)}, {r(a)}, {r(a+1)}")
                if idx == 6: A(f"v_cvt_pk_bf16_f32 {r(a+1)}, {r(a+2)}, {r(a+3)}")
                if idx == 9: A(f"v_cvt_pk_bf16_f32 {r(a+2)}, {r(a+4)}, {r(a+5)}")
                if idx == 10:
                    A(f"v_cvt_pk_bf16_f32 {r(a+3)}, {r(a+6)}, {r(a+7)}")
                    if self.ptag: A(f"v_bfi_b32 {r(a)}, 1, s{sTAG}, {r(a)}")
                    A(f"global_store_dwordx4 {r(vPst)}, {r(a,4)}, {sp(sPst)}")
                a = ACC + 8
                if idx == 13: A(f"v_cvt_pk_bf16_f32 {r(a)}, {r(a)}, {r(a+1)}")
                if idx == 14: A(f"v_cvt_pk_bf16_f32 {r(a+1)}, {r(a+2)}, {r(a+3)}")
            elif t == 2 and dl >= 1:
                a = ACC + 4*(dl-1)
                A(f"v_cvt_pk_bf16_f32 {r(a)}, {r(a)}, {r(a+1)}"); A(f"v_cvt_pk_bf16_f32 {r(a+1)}, {r(a+2)}, {r(a+3)}")
                A(f"global_store_dwordx2 {r(vPst)}, {r(a,2)}, {sp(sPst+2*(dl-1))}")
        assert not pend
        if self.rs_var == 'C':
            a = ACC + 8
            A(f"v_cvt_pk_bf16_f32 {r(a+2)}, {r(a+4)}, {r(a+5)}"); A(f"v_cvt_pk_bf16_f32 {r(a+3)}, {r(a+6)}, {r(a+7)}")
            if self.ptag: A(f"v_bfi_b32 {r(a)}, 1, s{sTAG}, {r(a)}")
            A(f"global_store_dwordx4 {r(vPst)}, {r(a,4)}, s[24:25]")
        else:
            a = ACC + 12
            A(f"v_cvt_pk_bf16_f32 {r(a)}, {r(a)}, {r(a+1)}"); A(f"v_cvt_pk_bf16_f32 {r(a+1)}, {r(a+2)}, {r(a+3)}")
            A(f"global_store_dwordx2 {r(vPst)}, {r(a,2)}, {sp(sPst+6)}")
        self.stamp(11)
        if self.ackstamp:
            A("s_waitcnt vmcnt(0)"); self.stamp(4)
        sRD = sPst
        if self.early_shadow:
            sRD = sPrd2
            A(f"s_mov_b32 s{sPrd2}, s{sPst}"); A(f"s_mov_b32 s{sPrd2+1}, s{sPst+1}")
            A(f"s_mov_b32 s{sMc}, s{sMn}"); A(f"s_mov_b32 s{sMc+1}, s{sMn+1}")
            if self.hist: A(f"s_mov_b32 s{sHn2}, s{sHn}"); A(f"s_mov_b32 s{sHn2+1}, s{sHn+1}")
            if self.ptag: A(f"s_mov_b32 s{sTAG+1}, s{sTAG}")
            A(f"s_add_u32 s{sS}, s{sS}, 1")
            self.shadow_prep()
        def off(i): return i*1024-4096 if self.p_layout == 0 else i*256
        n = self.rs_sets
        regs = [Q, Q+8, K, K+8][:n]
        D = M
        def issue(b):
            if self.rs_var in 'AC':
                A(f"global_load_dwordx4 {r(b,4)}, {r(vRS)}, {sp(sRD)} sc1"); A(f"global_load_dwordx4 {r(b+4,4)}, {r(vRS)}, {sp(sRD)} offset:{2048 if self.cfull else 1024} sc1")
            else:
                for i in range(8): A(f"global_load_dword {r(b+i)}, {r(vRS)}, {sp(sRD)} offset:{off(i)} sc1")
        NLD = 2 if self.rs_var in 'AC' else 8
        self._rs_issue = issue
        if self.nocomm or self.no_rs:
            A(f"{MF} {r(D,4)}, {r(vSEL,4)}, {r(WV,4)}, 0"); A(f"{MF} {r(D,4)}, {r(vSEL,4)}, {r(WV+4,4)}, {r(D,4)}")
        elif self.mpoll:
            b = Q; dep = self.rs_depth
            A(f"s_mov_b32 s{sCNT}, 0")
            self.delay(self.rs_delay)
            for k in range(dep):
                issue(b)
                if k < dep-1:
                    self.delay(self.rs_gap)
            A.label("L_rs")
            A(f"s_waitcnt vmcnt({NLD*(dep-1)})")
            A(f"v_max3_u32 {r(T0r)}, {r(b)}, {r(b+1)}, {r(b+2)}"); A(f"v_max3_u32 {r(T1r)}, {r(b+3)}, {r(b+4)}, {r(b+5)}")
            A(f"v_max3_u32 {r(T0r)}, {r(T0r)}, {r(b+6)}, {r(b+7)}"); A(f"v_max_u32 {r(T0r)}, {r(T0r)}, {r(T1r)}")
            A(f"v_cmp_eq_u32 vcc, -1, {r(T0r)}")
            A("s_cbranch_vccz L_rsok0")
            A("s_mov_b64 exec, vcc")
            issue(b)
            A(f"s_add_u32 s{sNRS}, s{sNRS}, 1")
            A(f"s_add_u32 s{sCNT}, s{sCNT}, 1")
            A(f"s_cmp_lt_u32 s{sCNT}, 6000"); A("s_cbranch_scc1 L_rs")
            A(f"s_mov_b32 s{sFAIL}, 2")
            A.label("L_rsok0")
            A("s_mov_b64 exec, -1")
            A(f"{MF} {r(D,4)}, {r(vSEL,4)}, {r(b,4)}, 0"); A(f"{MF} {r(D,4)}, {r(vSEL,4)}, {r(b+4,4)}, {r(D,4)}")
        else:
            A(f"s_mov_b32 s{sCNT}, 0")
            self.delay(self.rs_delay)
            for k, b in enumerate(regs):
                issue(b)
                if k < n-1:
                    self.delay(self.rs_gap)
            if self.dma_rs:
                assert n == 1
                if self.kvwait:
                    for x in self.kv_fast(): A(x)
                if not self.nodma:
                    A(f"s_mov_b32 m0, s{sM0K}"); A(f"global_load_lds_dwordx4 {r(vAG)}, {sp(sKX)} sc1"); A(f"global_load_lds_dwordx4 {r(vAG)}, {sp(sKX)} offset:1024 sc1")
                    A(f"s_mov_b32 m0, s{sM0V}"); A(f"global_load_lds_dwordx4 {r(vAG)}, {sp(sVX)} sc1"); A(f"global_load_lds_dwordx4 {r(vAG)}, {sp(sVX)} offset:1024 sc1")
                A(f"s_add_u32 s{sKX}, s{sKX}, 0x40000"); A(f"s_addc_u32 s{sKX+1}, s{sKX+1}, 0"); A(f"s_add_u32 s{sVX}, s{sVX}, 0x40000"); A(f"s_addc_u32 s{sVX+1}, s{sVX+1}, 0")
                b = regs[0]
                A(f"s_waitcnt vmcnt({0 if self.nodma else 4})")
                self.rs_check(b, D, MF)
                issue(b)
            def rs_loop():
                A.label("L_rs")
                for k, b in enumerate(regs):
                    A(f"s_waitcnt vmcnt({NLD*(n-1)})")
                    self.rs_check(b, D, MF)
                    self._rs_issue(b)
                    A(f"s_add_u32 s{sNRS}, s{sNRS}, 1")
                A(f"s_add_u32 s{sCNT}, s{sCNT}, 1")
                A(f"s_cmp_lt_u32 s{sCNT}, 100000"); A("s_cbranch_scc1 L_rs")
                A(f"s_mov_b32 s{sFAIL}, 2")
            if self.ft and not self.dma_rs:
                for k, b in enumerate(regs):
                    A(f"s_waitcnt vmcnt({NLD*(n-1)})")
                    self.rs_check(b, D, MF, last=(k == n-1))
                    if k < n-1:
                        self._rs_issue(b); A(f"s_add_u32 s{sNRS}, s{sNRS}, 1")
                def ool():
                    A.label("L_rsretry")
                    self._rs_issue(regs[-1]); A(f"s_add_u32 s{sNRS}, s{sNRS}, 1")
                    rs_loop()
                    A("s_branch L_rsok")
                self.ool.append(ool)
            else:
                rs_loop()
        A.label("L_rsok")
        self.stamp(12)
        if not self.early_shadow:
            A(f"s_add_u32 s{sS}, s{sS}, 1")
            A(f"s_mov_b32 s{sMc}, s{sMn}"); A(f"s_mov_b32 s{sMc+1}, s{sMn+1}")
        D = M
        if self.rs_var == 'C':
            for j in range(4): A(f"v_add_f32_dpp {r(D+j)}, {r(D+j)}, {r(D+j)} row_ror:4 row_mask:0xf bank_mask:0xf")
            for j in range(4): A(f"v_add_f32_dpp {r(D+j)}, {r(D+j)}, {r(D+j)} row_ror:8 row_mask:0xf bank_mask:0xf")
            A(f"v_cndmask_b32 {r(D)}, {r(D)}, {r(D+1)}, {sp(sHB)}"); A(f"v_cndmask_b32 {r(D+2)}, {r(D+2)}, {r(D+3)}, {sp(sHB)}")
            A(f"v_cndmask_b32 {r(D)}, {r(D)}, {r(D+2)}, {sp(sHB2)}")
            A(f"v_mov_b32_dpp {r(D+1)}, {r(D)} quad_perm:[1,1,3,3] row_mask:0xf bank_mask:0xf")
            A(f"v_cvt_pk_bf16_f32 {r(D)}, {r(D)}, {r(D+1)}")
        elif self.rs_var == 'A':
            for j in range(4): A(f"v_add_f32_dpp {r(D+j)}, {r(D+j)}, {r(D+j)} row_ror:4 row_mask:0xf bank_mask:0xf")
            for j in range(4): A(f"v_add_f32_dpp {r(D+j)}, {r(D+j)}, {r(D+j)} row_ror:8 row_mask:0xf bank_mask:0xf")
            A(f"v_permlane16_swap_b32 {r(D)}, {r(D+1)}"); A(f"v_permlane16_swap_b32 {r(D+2)}, {r(D+3)}")
            A(f"v_cvt_pk_bf16_f32 {r(D)}, {r(D)}, {r(D+1)}"); A(f"v_cvt_pk_bf16_f32 {r(D+2)}, {r(D+2)}, {r(D+3)}")
            A(f"v_cndmask_b32 {r(D)}, {r(D)}, {r(D+2)}, {sp(sODD)}")
        else:
            A(f"v_mov_b32_dpp {r(D+2)}, {r(D)} quad_perm:[2,3,2,3] row_mask:0xf bank_mask:0xf")
            A(f"v_mov_b32_dpp {r(D+3)}, {r(D+1)} quad_perm:[2,3,2,3] row_mask:0xf bank_mask:0xf")
            A(f"v_cvt_pk_bf16_f32 {r(D)}, {r(D)}, {r(D+2)}"); A(f"v_cvt_pk_bf16_f32 {r(D+1)}, {r(D+1)}, {r(D+3)}")
            A(f"v_cndmask_b32 {r(D)}, {r(D)}, {r(D+1)}, {sp(sODD)}")
        A(f"s_mov_b64 exec, {sp(sMMSK)}")
        A(f"v_min_u32 {r(D)}, -2, {r(D)}")
        A(f"global_store_dword {r(vMst)}, {r(D)}, {sp(sMc)}")
        if self.hist: A(f"global_store_dword {r(vMst)}, {r(D)}, {sp(sHn2 if self.early_shadow else sHn)}")
        A("s_mov_b64 exec, -1")
        self.stamp(13)
        if self.steplog:
            A("s_memtime s[64:65]"); A("s_memrealtime s[66:67]"); A("s_waitcnt lgkmcnt(0)")
            A(f"s_lshl_b32 s34, s{sH}, 2"); A(f"s_add_u32 s34, s34, s{sW}"); A("s_lshl_b32 s34, s34, 6"); A(f"s_add_u32 s34, s34, s{sS}"); A("s_lshl_b32 s34, s34, 4")
            A(f"s_add_u32 s34, s34, {WS_STAMP + 0x10000}")
            A(f"v_mov_b32 {r(M+4)}, s34"); A(f"v_mov_b32 {r(M+8)}, s64"); A(f"v_mov_b32 {r(M+9)}, s{sNAG}"); A(f"v_mov_b32 {r(M+10)}, s{sNRS}"); A(f"v_mov_b32 {r(M+11)}, s66")
            A("s_mov_b64 exec, 1"); A(f"global_store_dwordx4 {r(M+4)}, {r(M+8,4)}, {sp(sWS)}"); A("s_mov_b64 exec, -1")


    def tail(self):
        A = self.A
        SMF = "v_smfmac_f32_16x16x64_bf16"
        self.ag_poll("T")
        for x in self.salu_step(): A(x)
        for t in range(8): A(f"ds_read_b128 {r(M+4*t,4)}, {r(vL16)} offset:{L_STG + t*1024}")
        for x in self.exp_flag(): A(x)
        A("s_waitcnt lgkmcnt(0)")
        for t in range(8):
            for X in range(2): A(f"{SMF} {r(AK+4*X,4)}, {r(M+4*t,4)}, {ar(128+(X*8+t)*8, 8)}, {r(vIDX)}")
        for t in range(8):
            for X in range(2): A(f"{SMF} {r(AQ+4*X,4)}, {r(M+4*t,4)}, {r(WV+(X*8+t)*8, 8)}, {r(vIDX)}")
        for j in range(4): A(f"v_permlane32_swap_b32 {r(AK+j)}, {r(AK+4+j)}")
        A(f"v_pk_add_f32 {r(AK,2)}, {r(AK,2)}, {r(AK+4,2)}"); A(f"v_pk_add_f32 {r(AK+2,2)}, {r(AK+2,2)}, {r(AK+6,2)}")
        A(f"v_cvt_pk_bf16_f32 {r(AK)}, {r(AK)}, {r(AK+1)}"); A(f"v_cvt_pk_bf16_f32 {r(AK+1)}, {r(AK+2)}, {r(AK+3)}")
        A(f"global_store_dwordx2 {r(vQW)}, {r(AK,2)}, {sp(sEK)} sc1")
        for X in range(2):
            A(f"v_cvt_pk_bf16_f32 {r(SX+2*X)}, {r(AQ+4*X)}, {r(AQ+4*X+1)}"); A(f"v_cvt_pk_bf16_f32 {r(SX+2*X+1)}, {r(AQ+4*X+2)}, {r(AQ+4*X+3)}")
        A(f"global_store_dwordx4 {r(vAG)}, {r(SX,4)}, {sp(sEV)} sc1")
        A("s_waitcnt vmcnt(0)"); A("s_barrier")
        A(f"s_add_u32 s{sEXC}, s{sEXC}, 128"); A(f"s_addc_u32 s{sEXC+1}, s{sEXC+1}, 0")
        for x in self.exp_flag(): A(x)
        A("s_waitcnt vmcnt(0)")

def gen_chain(A, U, o):
    kw = dict(o.get('chain_opts', {}))
    C = Chain(A, U, **kw)
    A(f"s_mov_b32 s{sH}, s{sROLE}")
    A(f"s_cmp_eq_u32 s{sXCC}, 0"); A("s_cselect_b32 s90, 0x10001, 1")
    C.setup_consts()
    C.preload_mem0()
    C.clear_slots()
    C.load_weights()
    tl_stamp(A, o.get('tl'), 0, 1, vr=(120, 121))
    U.add64(sKVC, sWS, cnt_off(C_KV, 0))
    A(f"s_cmp_eq_u32 s{sW}, 0"); A(f"s_cselect_b32 s{sXM}, 1, 0"); A(f"s_mov_b32 s{sXM+1}, 0")
    Lw = A.newlabel("SW"); Le = A.newlabel("SWE"); Ls = A.newlabel("SWS")
    A(f"s_cmp_lg_u32 s{sW}, 0"); A(f"s_cbranch_scc1 {Ls}")
    A("v_mov_b32 v24, 0"); A("s_mov_b32 s36, 0")
    A.label(Lw)
    A(f"global_load_dword v25, v24, {sp(sDBG)} offset:{D_ROLL*4} sc1"); A(f"global_load_dword v26, v24, {sp(sDBG)} offset:{D_INIT*4} sc1")
    A(f"global_load_dword v27, v24, {sp(sKVC)} sc1"); A(f"global_load_dword v28, v24, {sp(sDBG)} offset:{D_CLR*4} sc1"); A("s_waitcnt vmcnt(0)")
    A("v_readfirstlane_b32 s37, v25"); A("v_readfirstlane_b32 s38, v26"); A("v_readfirstlane_b32 s39, v27")
    A("s_lshr_b32 s35, s37, 16"); A("s_and_b32 s37, s37, 0xffff")
    A("s_cmp_ge_u32 s37, 32"); A("s_cselect_b32 s37, 1, 0"); A("s_cmp_ge_u32 s38, 1"); A("s_cselect_b32 s37, s37, 0")
    if C.kvwait: A("s_cmp_ge_u32 s39, 32"); A("s_cselect_b32 s37, s37, 0")
    if o.get('dpoll', True): A("v_readfirstlane_b32 s38, v28"); A("s_cmp_ge_u32 s38, 8"); A("s_cselect_b32 s37, s37, 0")
    A("s_cmp_lg_u32 s37, 0"); A(f"s_cbranch_scc1 {Le}")
    A("s_sleep 1"); A("s_add_u32 s36, s36, 1"); A("s_cmp_lt_u32 s36, 200000"); A(f"s_cbranch_scc1 {Lw}")
    A.label(Le)
    A(f"v_mov_b32 v24, {L_KB}"); A("v_mov_b32 v25, s35"); A("ds_write_b32 v24, v25"); A("s_waitcnt lgkmcnt(0)")
    A.label(Ls)
    A("s_barrier")
    A(f"v_mov_b32 v24, {L_KB}"); A("ds_read_b32 v25, v24"); A("s_waitcnt lgkmcnt(0)"); A("v_readfirstlane_b32 s90, v25")
    A("s_barrier")
    A(f"s_mov_b32 s{sKVOK}, 0")
    tl_stamp(A, o.get('tl'), 0, 2, vr=(120, 121))
    C.dma_k(); C.dma_v()
    A(f"s_mov_b32 s{sFAIL}, 0"); A(f"s_mov_b32 s{sS}, 0"); A(f"s_mov_b32 s{sNAG}, 0"); A(f"s_mov_b32 s{sNRS}, 0")
    A(f"s_mov_b32 s{sMc}, s{sMb}"); A(f"s_mov_b32 s{sMc+1}, s{sMb+1}")
    U.add64(sEV, sWS, 0x380000)
    A(f"s_lshl_b32 s34, s{sW}, 11"); A(f"s_add_u32 s{sM0K}, s34, {L_KX}"); A(f"s_add_u32 s{sM0V}, s34, {L_VX}")
    U.add64(sMz, sMb, 2*8192)
    C.shadow_prep()
    A("s_cmp_lg_u32 s90, 32"); A("s_cbranch_scc1 L_safe_S" if not o.get('force_safe') else "s_branch L_safe_S")
    n_main = len(A.L)
    C.publish_mem0()
    tl_stamp(A, o.get('tl'), 0, 3, vr=(120, 121))
    A.label("L_loop")
    C.ag_poll("L")
    n0 = len(A.L)
    C.step()
    if C.nodma: A.L[n0:] = [x for x in A.L[n0:] if not x.startswith("global_load_lds")]
    A.L[n0:] = [x.replace(" sc1", " " + C.dmaflag) if x.startswith("global_load_lds") else x for x in A.L[n0:]]
    if C.looptail:
        A("s_branch L_loop")
        A.label("L_fin")
        tl_stamp(A, o.get('tl'), 0, 4, vr=(120, 121))
        A("s_waitcnt vmcnt(0) lgkmcnt(0)"); A("s_barrier")
        A(f"s_add_u32 s{sEXC}, s{sEXC}, 128"); A(f"s_addc_u32 s{sEXC+1}, s{sEXC+1}, 0")
        for x in C.exp_flag(): A(x)
        A("s_waitcnt vmcnt(0)")
        if o.get('endwb', True):
            Lw = A.newlabel("WB")
            A(f"s_cmp_lg_u32 s{sW}, 0"); A(f"s_cbranch_scc1 {Lw}")
            A("buffer_wbl2 sc1"); A("s_waitcnt vmcnt(0)")
            A.label(Lw)
    else:
        A(f"s_cmp_lt_u32 s{sS}, 63"); A("s_cbranch_scc1 L_loop")
        tl_stamp(A, o.get('tl'), 0, 4, vr=(120, 121))
        C.tail()
    tl_stamp(A, o.get('tl'), 0, 5, vr=(120, 121))
    A("s_branch L_chain_done")
    if C.kvwait: C.kv_slow_code()
    if C.standin: C.sm_slow_code()
    for f in C.ool: f()
    import re
    main = A.L[n_main:]
    labels = [x[:-1] for x in main if re.fullmatch(r"\w+:", x)]
    A.label("L_safe_S")
    for x in main:
        for lb in labels: x = re.sub(r"\b" + lb + r"\b", lb + "_S", x)
        if x.startswith("global_store") and " sc1" not in x: x += " sc1"
        A(x)
    A.label("L_chain_done")
    if C.stamps:
        A(f"s_lshl_b32 s34, s{sH}, 2"); A(f"s_add_u32 s34, s34, s{sW}"); A("s_lshl_b32 s34, s34, 6"); A(f"s_add_u32 s34, s34, {WS_STAMP}")
        A(f"s_add_u32 s36, s{sWS}, s34"); A(f"s_addc_u32 s37, s{sWS+1}, 0")
        A("s_mov_b64 exec, 1"); A("v_mov_b32 v24, 0")
        for q in range(4):
            for i in range(4): A(f"v_mov_b32 v{32+4*q+i}, s{sST+2*(4*q+i)}" if 4*q+i < 14 else f"v_mov_b32 v{32+4*q+i}, s{sNAG + (4*q+i-14)}")
            A(f"global_store_dwordx4 v24, v[{32+4*q}:{35+4*q}], s[36:37] offset:{16*q}")
        A("s_waitcnt vmcnt(0)"); A("s_mov_b64 exec, -1")
```

```python
from common import *
import roles1

def gen(opts=None):
    o = dict(chain=True, mh=True, g=True, q=True, arc=True)
    o.update(opts or {})
    A = Prog(); U = Util(A)
    A(f"s_load_dwordx2 {sp(sWS)}, s[0:1], 128"); A(f"s_load_dwordx2 {sp(sDBG)}, s[0:1], 120")
    A(f"s_getreg_b32 s{sXCC}, hwreg(HW_REG_XCC_ID, 0, 4)")
    A("v_lshrrev_b32 v1, 6, v0"); A("v_and_b32 v0, 63, v0")
    A(f"v_readfirstlane_b32 s{sW}, v1")
    A("s_waitcnt lgkmcnt(0)")
    A(f"s_cmp_lg_u32 s{sW}, 0"); A("s_cbranch_scc1 L_wt")
    A("s_mov_b64 exec, 1")
    A("v_mov_b32 v3, 0"); A("v_mov_b32 v4, 1")
    if o.get('fake_xcc'):
        A(f"s_and_b32 s12, s2, {o['fake_xcc']}"); A("s_cmp_lg_u32 s12, 0"); A("s_cbranch_scc1 L_wk")
    A(f"s_cmp_lg_u32 s{sXCC}, 0"); A("s_cbranch_scc1 L_wk")
    A(f"global_atomic_add v5, v3, v4, {sp(sDBG)} offset:{D_XT*4} sc0"); A("s_waitcnt vmcnt(0)")
    A("v_readfirstlane_b32 s12, v5"); A("s_cmp_lt_u32 s12, 32"); A("s_cbranch_scc1 L_got")
    A.label("L_wk")
    A(f"global_atomic_add v5, v3, v4, {sp(sDBG)} offset:{D_WT*4} sc0"); A("s_waitcnt vmcnt(0)")
    A("v_readfirstlane_b32 s12, v5"); A("v_add_u32 v5, 32, v5")
    A("s_cmp_lt_u32 s12, 224"); A("s_cbranch_scc1 L_got")
    A(f"global_atomic_add v6, v3, v4, {sp(sDBG)} offset:{D_XT*4} sc0"); A("s_waitcnt vmcnt(0)")
    A("v_readfirstlane_b32 s12, v6"); A("s_cmp_ge_u32 s12, 32"); A("s_cbranch_scc1 L_got")
    A("v_mov_b32 v5, v6")
    A.label("L_got")
    A(f"v_mov_b32 v3, {L_MISC}"); A("ds_write_b32 v3, v5"); A("s_waitcnt lgkmcnt(0)")
    A("s_mov_b64 exec, -1")
    A.label("L_wt")
    A("s_barrier")
    A(f"v_mov_b32 v3, {L_MISC}"); A("ds_read_b32 v5, v3"); A("s_waitcnt lgkmcnt(0)")
    A(f"v_readfirstlane_b32 s{sROLE}, v5")
    A("s_barrier")
    TL = o.get('tl', False)
    tl_stamp(A, TL, 0, 0)
    A(f"s_cmp_lt_u32 s{sROLE}, 32"); A("s_cbranch_scc1 L_chain")
    A(f"s_sub_u32 s12, s{sROLE}, 32")
    A("s_cmp_ge_u32 s12, 224"); A("s_cbranch_scc1 L_end")
    A("s_cmp_lg_u32 s12, 0"); A("s_cbranch_scc1 L_noinit")
    A(f"s_lshl_b32 s34, s{sW}, 10"); A("v_lshlrev_b32 v2, 4, v0"); A("v_add_u32 v2, s34, v2")
    for i in range(4): A(f"v_mov_b32 v{8+i}, 0")
    for i in range(2*NCNT):
        A(f"global_store_dwordx4 v2, v[8:11], {sp(sWS)} sc1"); A("v_add_u32 v2, 4096, v2")
    A("s_waitcnt vmcnt(0)"); A("s_barrier")
    U.add64(44, sDBG, D_INIT*4); U.signal(44)
    A.label("L_noinit")
    if o.get('dpoll', True):
        A("s_cmp_lt_u32 s12, 216"); A("s_cbranch_scc1 L_noclr")
        A("s_sub_u32 s13, s12, 216")
        A(f"s_lshl_b32 s34, s{sW}, 10"); A("v_lshlrev_b32 v2, 4, v0"); A("v_add_u32 v2, s34, v2")
        for i in range(4): A(f"v_mov_b32 v{8+i}, -1")
        nl = 64 - LASTSEG
        for base, per_seg in ((WS_EK, 65536), (WS_EV, 262144), (WS_YP, 262144), (WS_H2F, 32768), (WS_FP, 11*32768)):
            tot = nl*per_seg; part = tot // 8
            assert part % 4096 == 0
            A(f"s_mul_i32 s34, s13, {part}"); A(f"s_add_u32 s34, s34, {base + LASTSEG*per_seg}"); U.add64(44, sWS, "s34")
            for i in range(part // 4096):
                A("global_store_dwordx4 v2, v[8:11], s[44:45] sc1"); A("s_add_u32 s44, s44, 4096"); A("s_addc_u32 s45, s45, 0")
        U.add64(44, sDBG, D_CLR*4); U.signal(44)
        A.label("L_noclr")
    if o['mh']:
        MH0 = o.get('mh0', 64)
        A(f"s_sub_u32 s13, s12, {MH0}"); A("s_cmp_ge_u32 s13, 64"); A("s_cbranch_scc1 L_nomh")
        A("s_cmp_lt_u32 s13, 16"); A("s_cbranch_scc1 L_nom")
        A("s_sub_u32 s19, s13, 16")
        roles1.role_M(A, U, 19, TL)
        tl_stamp(A, TL, 0, 13)
        A("s_barrier")
        A.label("L_nom")
        U.wait_cnt1(sDBG, 1, off=D_INIT*4, sleep=4)
        roles1.role_H(A, U, 13, TL)
        A("s_barrier")
        A.label("L_nomh")
    tl_stamp(A, TL, 0, 1)
    U.wait_cnt1(sDBG, 1, off=D_INIT*4, sleep=4)
    if o['g']:
        A("s_and_b32 s14, s12, 31"); A("s_lshr_b32 s15, s12, 5")
        if o.get('remap', True):
            A("s_lshl_b32 s34, s15, 2"); A("s_lshr_b32 s15, 0x4326510, s34"); A("s_and_b32 s15, s15, 15")
        if o.get('pfw', False):
            A("s_cmp_lt_u32 s12, 128"); A("s_cbranch_scc1 L_nopf")
            A("s_load_dwordx4 s[40:43], s[0:1], 16"); A("s_load_dwordx4 s[44:47], s[0:1], 32")
            A(f"s_sub_u32 s34, s12, 128"); A("s_lshl_b32 s34, s34, 2"); A(f"s_add_u32 s34, s34, s{sW}")
            A("v_lshlrev_b32 v2, 4, v0")
            A("s_waitcnt lgkmcnt(0)")
            for mi, b in enumerate(o.get('pforder', (40, 46, 42, 44))):
                for kk in range(11):
                    A(f"s_add_u32 s35, s34, {384*kk}"); A("s_min_u32 s35, s35, 4095"); A("s_lshl_b32 s35, s35, 10")
                    A(f"s_add_u32 s36, s{b}, s35"); A(f"s_addc_u32 s37, s{b+1}, 0")
                    A(f"global_load_dwordx4 v[{16+4*(kk % 11)}:{19+4*(kk % 11)}], v2, s[36:37]")
                A("s_waitcnt vmcnt(0)")
            A.label("L_nopf")
        if o.get('gdelay', True):
            A(f"s_cmp_lt_u32 s15, {o.get('gfirst', 3)}"); A("s_cbranch_scc1 L_gnd")
            U.add64(44, sWS, cnt_off(C_HRDY, 0)); U.wait_cnt1(44, 1, sleep=16)
            if o.get('gsecond', 8) < 7:
                A(f"s_cmp_lt_u32 s15, {o.get('gsecond')}"); A("s_cbranch_scc1 L_gnd")
                U.add64(44, sWS, cnt_off(C_KV, 0)); U.wait_cnt1(44, 32, sleep=16)
            A.label("L_gnd")
        roles1.role_G(A, U, 14, 15, do_q=o['q'], TL=TL)
        tl_stamp(A, TL, 0, 4)
    if o['arc']:
        import roles2
        roles2.DBGX1 = o.get('dbgx1', False); roles2.FAST = o.get('fastpoll', True); roles2.DPOLL = o.get('dpoll', True); roles2.PRE = dict(a=34, r1=66, c=34, r2=70); roles2.PRE.update(o.get('pre', {})); roles2.LVS = o.get('lvs', 4); roles2.OUTFLAG = o.get('outflag', 'sc1')
        roles2.roles_ARC(A, U, 12, TL, o.get('slp'), o.get('w1', True))
    A("s_branch L_end")
    A.label("L_chain")
    if o['chain']:
        import chainf
        chainf.gen_chain(A, U, o)
    A.label("L_end")
    return A

NAME = "adaLN_cond__memory_aug_recurrent_mem_tr__dense_activation_gelu__prompt_kernel"
def text(opts=None, name=NAME):
    from asmlib import kernel_text
    A = gen(opts)
    body = A.finalize(verbose=True)
    return kernel_text([(name, body, 512, 102, 256)], [f"; @launch grid=(256,1,1) block=(256,1,1) lds={LDS_TOTAL}"])

if __name__ == "__main__":
    t = text(dict(chain=False, arc=False))
    open("k_test.s", "w").write(t)
    print(len(t.split("\n")), "lines")
```
